```python
import torch

def _softmax(x, axis=-1):
    return torch.softmax(x, dim=axis)
def _gelu(x):
    return torch.nn.functional.gelu(x, approximate="tanh")
def _silu(x):
    return torch.nn.functional.silu(x)
def _sigmoid(x):
    return torch.sigmoid(x)
def _layernorm(x, axis=-1, eps=1e-5):
    m = x.mean(dim=axis, keepdim=True)
    v = x.var(dim=axis, keepdim=True, unbiased=False)
    return (x - m) / torch.sqrt(v + eps)
def _scatter_add(tgt, idx, src, axis=0):
    return tgt.clone().index_add_(axis, idx, src)
def _segment_sum(src, seg, n):
    out = torch.zeros((n,) + src.shape[1:], dtype=src.dtype)
    return out.index_add_(0, seg, src)
def _pad(x, pw):
    flat = tuple(v for pair in reversed(pw) for v in pair)
    return torch.nn.functional.pad(x, flat)

kernel_name = 'parallel_sum__linear_kernel_hedgehog__dense_activation_squared_relu__prompt'

def setup_inputs():

    _w = (lambda a: (lambda t: t.to(torch.bfloat16) if t.is_floating_point() else t)(torch.as_tensor(a)))
    def _A_setup():
        B, S, D, H = 1, 2048, 512, 32
        Dh = D // H
        return {
            "x": _w((lambda *s: torch.randn(*s, dtype=torch.bfloat16) * 0.05)(B, S, D)),
            "wqkv": _w((lambda *s: torch.randn(*s, dtype=torch.bfloat16) * 0.8)(D, 3 * D)),
            "w_phi": _w((lambda *s: torch.randn(*s, dtype=torch.bfloat16) * 0.8)(H, Dh, Dh) * (Dh ** -0.5)),
            "wo": _w((lambda *s: torch.randn(*s, dtype=torch.bfloat16) * 0.2)(D, D)),
        }
    _A_in = _A_setup()

    def _B_setup():
        B, S, D, F = 1, 2048, 512, 1792
        return {
            "x": _w((lambda *s: torch.randn(*s, dtype=torch.bfloat16) * 0.05)(B, S, D)),
            "w1": _w((lambda *s: torch.randn(*s, dtype=torch.bfloat16) * 0.05)(D, F)),
            "b1": _w((lambda *s: torch.randn(*s, dtype=torch.bfloat16) * 0.4)(F)),
            "w2": _w((lambda *s: torch.randn(*s, dtype=torch.bfloat16) * 0.05)(F, D)),
            "b2": _w((lambda *s: torch.randn(*s, dtype=torch.bfloat16) * 3.2)(D)),
        }
    _B_in = _B_setup()

    return {
        "A_x": _A_in["x"],
        "A_wqkv": _A_in["wqkv"],
        "A_w_phi": _A_in["w_phi"],
        "A_wo": _A_in["wo"],
        "B_x": _B_in["x"],
        "B_w1": _B_in["w1"],
        "B_b1": _B_in["b1"],
        "B_w2": _B_in["w2"],
        "B_b2": _B_in["b2"],
    }

def reference(A_x, A_wqkv, A_w_phi, A_wo, B_x, B_w1, B_b1, B_w2, B_b2):
    def _A_ref(x, wqkv, w_phi, wo):
        B, S, D = x.shape
        H = 32; Dh = D // H
        qkv = (lambda x, *d: x.permute(*d))((x @ wqkv).reshape(B, S, 3, H, Dh), 2, 0, 3, 1, 4)
        q, k, v = qkv[0], qkv[1], qkv[2]
        pq = torch.einsum("bhsd,hdf->bhsf", q, w_phi)
        pk = torch.einsum("bhsd,hdf->bhsf", k, w_phi)
        phi_q = torch.concatenate([_softmax(pq, axis=-1), _softmax(-pq, axis=-1)], axis=-1)
        phi_k = torch.concatenate([_softmax(pk, axis=-1), _softmax(-pk, axis=-1)], axis=-1)
        kv = torch.einsum("bhsf,bhsd->bhfd", phi_k, v)
        z  = torch.einsum("bhsf->bhf", phi_k)
        num = torch.einsum("bhqf,bhfd->bhqd", phi_q, kv)
        den = torch.einsum("bhqf,bhf->bhq", phi_q, z)[..., None] + 1e-6
        o = num / den
        return (lambda x, *d: x.permute(*d))(o, 0, 2, 1, 3).reshape(B, S, D) @ wo

    def _B_ref(x, w1, b1, w2, b2):
        h = torch.einsum("bsd,df->bsf", x, w1) + b1
        zero = torch.zeros_like(h)
        r = torch.where(h > zero, h, zero)
        h = r * r
        out = torch.einsum("bsf,fd->bsd", h, w2) + b2
        return out

    x = A_x
    xn = _layernorm(x, axis=-1)
    return x + _A_ref(xn, A_wqkv, A_w_phi, A_wo) + _B_ref(xn, B_w1, B_b1, B_w2, B_b2)
```

```python
import sys
opts = dict(ln=0, r_pq=1, r_num=1, r_den=1, r_outA=1, r_h1=1, r_hb=1, r_outB=1)
for a in sys.argv[2:]:
    k, v = a.split("="); opts[k] = int(v)
L = []
A = L.append
XN = 0; QKV = XN + 2048*512*4; H = QKV + 2048*1536*4; PHI = H + 2048*1792*4
KV = PHI + 2*2048*1024*4; O = KV + 32*32*32*4; END = O + 2048*512*4
kernels = [("ln_kernel", 8, 256), ("g1_kernel", 2048*3328//256, 256), ("phi_kernel", 2*2048*32//256, 256),
           ("kv_kernel", 32*32*32//256, 256), ("o_kernel", 2048*32//256, 256), ("out_kernel", 2048*512//256, 256)]
for n, g, b in kernels:
    A(f"; @launch kernel={n} grid=({g},1,1) block=({b},1,1) lds=0")
A('.amdgcn_target "amdgcn-amd-amdhsa--gfx950"\n.text')
sizes = [2048*512*2, 512*1536*2, 32*16*16*2, 512*512*2, 2048*512*2, 512*1792*2, 1792*2, 1792*512*2, 512*2, 2048*512*2, 256, END]
def srd(slot, s):
    A(f"s_load_dwordx2 s[{s}:{s+1}], s[0:1], {slot*8}")
    A("s_waitcnt lgkmcnt(0)")
    A(f"s_mov_b32 s{s+2}, {sizes[slot]}")
    A(f"s_mov_b32 s{s+3}, 0x20000")
def begin(name, grid):
    A(f".globl {name}\n.p2align 8\n.type {name},@function\n{name}:")
    A(f"s_cmp_ge_u32 s2, {grid}\ns_cbranch_scc1 {name}_end")
    A("s_lshl_b32 s3, s2, 8\nv_add_u32 v0, s3, v0")
def end(name):
    A(f"s_waitcnt vmcnt(0)\n{name}_end:\ns_endpgm")
def rnd(v, on=1):
    if on:
        A(f"v_cvt_pk_bf16_f32 {v}, {v}, {v}\nv_lshlrev_b32 {v}, 16, {v}")
def ldbf(dst, off, s, extra=""):
    A(f"buffer_load_ushort {dst}, {off}, s[{s}:{s+3}], 0 offen {extra}")

begin("ln_kernel", 8); srd(0, 8); srd(11, 12)
A("v_lshlrev_b32 v1, 10, v0")
A("v_mov_b32 v2, 0\nv_mov_b32 v6, v1\ns_mov_b32 s4, 0")
A("ln_l1:"); ldbf("v3", "v6", 8); A("s_waitcnt vmcnt(0)\nv_lshlrev_b32 v3, 16, v3\nv_add_f32 v2, v2, v3\nv_add_u32 v6, 2, v6")
A("s_add_u32 s4, s4, 1\ns_cmp_lt_u32 s4, 512\ns_cbranch_scc1 ln_l1")
A("v_mul_f32 v2, 0x3b000000, v2")
A("v_mov_b32 v4, 0\nv_mov_b32 v6, v1\ns_mov_b32 s4, 0")
A("ln_l2:"); ldbf("v3", "v6", 8); A("s_waitcnt vmcnt(0)\nv_lshlrev_b32 v3, 16, v3\nv_sub_f32 v3, v3, v2\nv_fmac_f32 v4, v3, v3\nv_add_u32 v6, 2, v6")
A("s_add_u32 s4, s4, 1\ns_cmp_lt_u32 s4, 512\ns_cbranch_scc1 ln_l2")
A("v_mul_f32 v4, 0x3b000000, v4")
bfstats = opts["ln"] in (0, 1, 2, 4)
rnd("v2", bfstats); rnd("v4", bfstats)
A("v_add_f32 v4, 0x3727c5ac, v4"); rnd("v4", bfstats)
A("v_sqrt_f32 v4, v4\ns_nop 1"); rnd("v4", bfstats)
A("v_rcp_f32 v4, v4\ns_nop 1")
A("v_mov_b32 v6, v1\nv_lshlrev_b32 v7, 11, v0\ns_mov_b32 s4, 0")
A("ln_l3:"); ldbf("v3", "v6", 8); A("s_waitcnt vmcnt(0)\nv_lshlrev_b32 v3, 16, v3\nv_sub_f32 v3, v3, v2")
rnd("v3", opts["ln"] in (0, 4))
A("v_mul_f32 v3, v3, v4")
rnd("v3", opts["ln"] in (0, 1))
A("buffer_store_dword v3, v7, s[12:15], 0 offen\nv_add_u32 v6, 2, v6\nv_add_u32 v7, 4, v7")
A("s_add_u32 s4, s4, 1\ns_cmp_lt_u32 s4, 512\ns_cbranch_scc1 ln_l3")
end("ln_kernel")

begin("g1_kernel", 2048*13); srd(1, 8); srd(5, 12); srd(6, 16); srd(11, 20)
A("s_mul_hi_u32 s4, s2, 0x13b13b14")
A("s_mul_i32 s5, s4, 13\ns_sub_u32 s5, s2, s5")
A("v_and_b32 v1, 255, v0\ns_lshl_b32 s6, s5, 8\nv_add_u32 v1, s6, v1")
A("s_lshl_b32 s7, s4, 11")
A("v_mov_b32 v2, 0\nv_mov_b32 v6, s7\ns_mov_b32 s24, 0")
A("s_cmp_ge_u32 s5, 6\ns_cbranch_scc1 g1_ffn")
A("v_lshlrev_b32 v7, 1, v1")
A("g1_l1:\nbuffer_load_dword v3, v6, s[20:23], 0 offen"); ldbf("v4", "v7", 8)
A("s_waitcnt vmcnt(0)\nv_lshlrev_b32 v4, 16, v4\nv_fmac_f32 v2, v3, v4\nv_add_u32 v6, 4, v6\nv_add_u32 v7, 3072, v7")
A("s_add_u32 s24, s24, 1\ns_cmp_lt_u32 s24, 512\ns_cbranch_scc1 g1_l1")
rnd("v2")
A(f"s_mul_i32 s6, s4, {1536*4}\ns_add_u32 s6, s6, {QKV}\nv_lshlrev_b32 v7, 2, v1\nv_add_u32 v7, s6, v7")
A("buffer_store_dword v2, v7, s[20:23], 0 offen\ns_branch g1_done")
A("g1_ffn:\nv_subrev_u32 v1, 1536, v1\nv_lshlrev_b32 v7, 1, v1\nv_mov_b32 v8, v7")
A("g1_l2:\nbuffer_load_dword v3, v6, s[20:23], 0 offen"); ldbf("v4", "v7", 12)
A("s_waitcnt vmcnt(0)\nv_lshlrev_b32 v4, 16, v4\nv_fmac_f32 v2, v3, v4\nv_add_u32 v6, 4, v6\nv_add_u32 v7, 3584, v7")
A("s_add_u32 s24, s24, 1\ns_cmp_lt_u32 s24, 512\ns_cbranch_scc1 g1_l2")
rnd("v2", opts["r_h1"])
ldbf("v4", "v8", 16); A("s_waitcnt vmcnt(0)\nv_lshlrev_b32 v4, 16, v4\nv_add_f32 v2, v2, v4")
rnd("v2", opts["r_hb"])
A("v_max_f32 v2, 0, v2\nv_mul_f32 v2, v2, v2"); rnd("v2")
A(f"s_mul_i32 s6, s4, {1792*4}\ns_add_u32 s6, s6, {H}\nv_lshlrev_b32 v7, 2, v1\nv_add_u32 v7, s6, v7")
A("buffer_store_dword v2, v7, s[20:23], 0 offen")
A("g1_done:")
end("g1_kernel")

begin("phi_kernel", 512); srd(2, 8); srd(11, 12)
A("v_and_b32 v1, 31, v0\nv_bfe_u32 v2, v0, 5, 11\nv_lshrrev_b32 v3, 16, v0")
A(f"s_mov_b32 s4, {1536*4}\nv_mul_lo_u32 v4, v2, s4\nv_lshl_add_u32 v4, v3, 11, v4\nv_lshl_add_u32 v4, v1, 6, v4\nv_add_u32 v4, {QKV}, v4")
for d in range(16): A(f"buffer_load_dword v{16+d}, v4, s[12:15], 0 offen offset:{4*d}")
A("v_lshlrev_b32 v5, 9, v1")
for f in range(16): A(f"v_mov_b32 v{32+f}, 0")
for d in range(16):
    for f in range(16): ldbf(f"v{48+f}", "v5", 8, f"offset:{d*32+f*2}")
    A("s_waitcnt vmcnt(0)")
    for f in range(16): A(f"v_lshlrev_b32 v{48+f}, 16, v{48+f}\nv_fmac_f32 v{32+f}, v{16+d}, v{48+f}")
for f in range(16): rnd(f"v{32+f}", opts["r_pq"])
A(f"v_lshlrev_b32 v6, 7, v0\nv_add_u32 v6, {PHI}, v6")
for sg in range(2):
    n = "-" if sg else ""
    A(f"v_max_f32_e64 v7, {n}v32, {n}v33")
    for f in range(2, 16): A(f"v_max_f32_e64 v7, v7, {n}v{32+f}")
    A("v_mov_b32 v8, 0")
    for f in range(16):
        A(f"v_sub_f32_e64 v{48+f}, {n}v{32+f}, v7\nv_mul_f32 v{48+f}, 0x3fb8aa3b, v{48+f}\nv_exp_f32 v{48+f}, v{48+f}\ns_nop 1\nv_add_f32 v8, v8, v{48+f}")
    A("v_rcp_f32 v8, v8\ns_nop 1")
    for f in range(16):
        A(f"v_mul_f32 v{48+f}, v{48+f}, v8"); rnd(f"v{48+f}")
        A(f"buffer_store_dword v{48+f}, v6, s[12:15], 0 offen offset:{sg*64+f*4}")
    A("s_waitcnt vmcnt(0)")
end("phi_kernel")

begin("kv_kernel", 128); srd(11, 12)
A("v_and_b32 v1, 31, v0\nv_bfe_u32 v2, v0, 5, 5\nv_lshrrev_b32 v3, 10, v0")
A(f"v_lshlrev_b32 v4, 7, v3\nv_lshl_add_u32 v4, v2, 2, v4\nv_add_u32 v4, {PHI + 2048*1024*4}, v4")
A(f"v_and_b32 v9, 15, v1\nv_lshlrev_b32 v5, 6, v3\nv_lshl_add_u32 v5, v9, 2, v5\nv_add_u32 v5, {QKV + 1024*4}, v5")
A("v_cmp_gt_u32 vcc, 16, v1\nv_mov_b32 v6, 0\ns_mov_b32 s4, 0")
A("kv_l:\nbuffer_load_dword v7, v4, s[12:15], 0 offen\nbuffer_load_dword v8, v5, s[12:15], 0 offen\ns_waitcnt vmcnt(0)")
A("v_cndmask_b32 v8, 1.0, v8, vcc\nv_fmac_f32 v6, v7, v8\nv_add_u32 v4, 4096, v4\nv_add_u32 v5, 6144, v5")
A("s_add_u32 s4, s4, 1\ns_cmp_lt_u32 s4, 2048\ns_cbranch_scc1 kv_l")
rnd("v6")
A(f"v_lshlrev_b32 v7, 2, v0\nv_add_u32 v7, {KV}, v7\nbuffer_store_dword v6, v7, s[12:15], 0 offen")
end("kv_kernel")

begin("o_kernel", 256); srd(11, 12)
A(f"v_and_b32 v1, 31, v0\nv_lshlrev_b32 v4, 7, v0\nv_add_u32 v4, {PHI}, v4")
A(f"v_lshlrev_b32 v5, 12, v1\nv_add_u32 v5, {KV}, v5")
for d in range(17): A(f"v_mov_b32 v{16+d}, 0")
for f in range(32):
    A(f"buffer_load_dword v8, v4, s[12:15], 0 offen offset:{4*f}")
    for d in range(17): A(f"buffer_load_dword v{40+d}, v5, s[12:15], 0 offen offset:{f*128+d*4}")
    A("s_waitcnt vmcnt(0)")
    for d in range(17): A(f"v_fmac_f32 v{16+d}, v8, v{40+d}")
rnd("v32", opts["r_den"]); A("v_add_f32 v32, 0x358637bd, v32"); rnd("v32", opts["r_den"])
A("v_rcp_f32 v32, v32\ns_nop 1")
A(f"v_lshlrev_b32 v6, 6, v0\nv_add_u32 v6, {O}, v6")
for d in range(16):
    rnd(f"v{16+d}", opts["r_num"]); A(f"v_mul_f32 v{16+d}, v{16+d}, v32"); rnd(f"v{16+d}")
    A(f"buffer_store_dword v{16+d}, v6, s[12:15], 0 offen offset:{4*d}")
end("o_kernel")

begin("out_kernel", 4096); srd(0, 8); srd(3, 12); srd(7, 16); srd(8, 20); srd(9, 24); srd(11, 28)
A("v_and_b32 v1, 511, v0\ns_lshr_b32 s4, s2, 1")
A(f"s_lshl_b32 s5, s4, 11\ns_add_u32 s5, s5, {O}\nv_mov_b32 v6, s5\nv_lshlrev_b32 v7, 1, v1\nv_mov_b32 v2, 0\ns_mov_b32 s6, 0")
A("out_l1:\nbuffer_load_dword v3, v6, s[28:31], 0 offen"); ldbf("v4", "v7", 12)
A("s_waitcnt vmcnt(0)\nv_lshlrev_b32 v4, 16, v4\nv_fmac_f32 v2, v3, v4\nv_add_u32 v6, 4, v6\nv_add_u32 v7, 1024, v7")
A("s_add_u32 s6, s6, 1\ns_cmp_lt_u32 s6, 512\ns_cbranch_scc1 out_l1")
rnd("v2", opts["r_outA"])
A(f"s_mul_i32 s5, s4, {1792*4}\ns_add_u32 s5, s5, {H}\nv_mov_b32 v6, s5\nv_lshlrev_b32 v7, 1, v1\nv_mov_b32 v5, 0\ns_mov_b32 s6, 0")
A("out_l2:\nbuffer_load_dword v3, v6, s[28:31], 0 offen"); ldbf("v4", "v7", 16)
A("s_waitcnt vmcnt(0)\nv_lshlrev_b32 v4, 16, v4\nv_fmac_f32 v5, v3, v4\nv_add_u32 v6, 4, v6\nv_add_u32 v7, 1024, v7")
A("s_add_u32 s6, s6, 1\ns_cmp_lt_u32 s6, 1792\ns_cbranch_scc1 out_l2")
rnd("v5", opts["r_outB"])
A("v_lshlrev_b32 v7, 1, v1\nv_lshlrev_b32 v8, 1, v0"); ldbf("v4", "v7", 20); ldbf("v3", "v8", 8)
A("s_waitcnt vmcnt(0)\nv_lshlrev_b32 v4, 16, v4\nv_lshlrev_b32 v3, 16, v3\nv_add_f32 v5, v5, v4")
rnd("v5", opts["r_outB"])
A("v_add_f32 v2, v3, v2"); rnd("v2", opts["r_outA"])
A("v_add_f32 v2, v2, v5\nv_cvt_pk_bf16_f32 v2, v2, v2\nbuffer_store_short v2, v8, s[24:27], 0 offen")
end("out_kernel")

A('.section .rodata,"a"')
for n, g, b in kernels:
    A(f".p2align 6\n.amdhsa_kernel {n}\n  .amdhsa_next_free_vgpr 64\n  .amdhsa_next_free_sgpr 40\n  .amdhsa_accum_offset 64\n  .amdhsa_group_segment_fixed_size 0\n  .amdhsa_kernarg_size 96\n  .amdhsa_user_sgpr_count 2\n  .amdhsa_user_sgpr_kernarg_segment_ptr 1\n  .amdhsa_system_sgpr_workgroup_id_x 1\n  .amdhsa_float_denorm_mode_32 3\n.end_amdhsa_kernel")
open(sys.argv[1], "w").write("\n".join(L) + "\n")
```

```python
import re
class Ins:
    __slots__ = ("text","cls","vw","vr","sw","sr","a","b","c","skip","nops","passes")
def _regs(tok):
    tok = tok.strip()
    tok = tok.lstrip("-")
    m = re.match(r"^(?:abs\()?\|?([vsa])(\d+)\|?\)?$", tok)
    if m: return m.group(1), {int(m.group(2))}
    m = re.match(r"^(?:abs\()?\|?([vsa])\[(\d+):(\d+)\]\|?\)?$", tok)
    if m: return m.group(1), set(range(int(m.group(2)), int(m.group(3))+1))
    if tok == "vcc": return "s", {106,107}
    if tok == "exec": return "s", {126,127}
    if tok == "m0": return "s", {124}
    return None, set()
TRANS = ("v_exp_f32","v_log_f32","v_rcp_f32","v_rsq_f32","v_sqrt_f32","v_sin_f32","v_cos_f32")
class Asm:
    def __init__(self):
        self.items = []
        self.skipdepth = 0
        self.skipid = 0
    def raw(self, s): self.items.append(s)
    def label(self, name): self.items.append(name + ":")
    def __call__(self, text):
        for line in text.strip().split("\n"):
            line = line.split(";")[0].strip()
            if not line: continue
            if line.endswith(":") or line.startswith("."):
                self.items.append(line); continue
            self.items.append(self._parse(line))
    def _parse(self, line):
        I = Ins(); I.text = line; I.vw=set(); I.vr=set(); I.sw=set(); I.sr=set(); I.a=I.b=I.c=set(); I.skip = self.skipid if self.skipdepth>0 else 0; I.nops=1; I.passes=0
        parts = line.split(None, 1); op = parts[0]
        ops = []
        if len(parts) > 1:
            ops = [o.strip() for o in re.split(r",(?![^\[]*\])", parts[1])]
            if ops:
                last = ops[-1].split()
                ops[-1] = last[0] if last else ""
                mods = last[1:]
            else: mods = []
        else: mods = []
        def add(tok, w):
            k, r = _regs(tok)
            if k == "v": (I.vw if w else I.vr).update(r)
            elif k == "a": (I.vw if w else I.vr).update({x+1000 for x in r})
            elif k == "s": (I.sw if w else I.sr).update(r)
        def vset(tok):
            k, r = _regs(tok)
            return r if k == "v" else ({x+1000 for x in r} if k=="a" else set())
        base = op.replace("_e32","").replace("_e64","").replace("_dpp","").replace("_sdwa","")
        if op == "s_nop":
            I.cls = "nop"; I.nops = int(ops[0],0)+1
        elif op.startswith("v_mfma"):
            I.cls = "mfma"; I.passes = 8 if "32x32" in op else 4
            add(ops[0], True); I.a = vset(ops[1]); I.b = vset(ops[2]); I.c = vset(ops[3])
            I.vr = I.a | I.b | I.c
        elif op.startswith("v_permlane") and "swap" in op:
            I.cls = "perm"
            for o in ops[:2]: add(o, True); add(o, False)
        elif op.startswith("v_cmp"):
            I.cls = "valu"; add(ops[0], True)
            for o in ops[1:]: add(o, False)
        elif op.startswith("v_readfirstlane") or op.startswith("v_readlane"):
            I.cls = "rdlane"; add(ops[0], True)
            for o in ops[1:]: add(o, False)
        elif op.startswith("v_"):
            I.cls = "trans" if base in TRANS else ("dot" if op.startswith("v_dot") else ("dpp" if "_dpp" in op else "valu"))
            add(ops[0], True)
            for o in ops[1:]: add(o, False)
            if base.startswith("v_fmac") or base.startswith("v_dot2c"): add(ops[0], False)
        elif op.startswith("ds_read") or op.startswith("ds_bpermute") or op.endswith("_rtn_u32"):
            I.cls = "ds"; add(ops[0], True)
            for o in ops[1:]: add(o, False)
        elif op.startswith("ds_"):
            I.cls = "ds"
            for o in ops: add(o, False)
        elif op.startswith("buffer_load") or op.startswith("global_load"):
            if "lds" in mods or "_lds_" in op:
                I.cls = "dma"
                for o in ops: add(o, False)
                I.sr.add(124)
            else:
                I.cls = "vmem"; add(ops[0], True)
                for o in ops[1:]: add(o, False)
                if "d16" in op: add(ops[0], False)
        elif op.startswith("buffer_store") or op.startswith("global_store") or "atomic" in op:
            I.cls = "vmemst"
            for o in ops: add(o, False)
            if "x4" in op or "x3" in op:
                I.a = vset(ops[0]) if op.startswith("buffer") else vset(ops[1])
        elif op.startswith("s_"):
            I.cls = "salu"
            if not (op.startswith("s_cmp") or op.startswith("s_cbranch") or op.startswith("s_branch") or op in ("s_waitcnt","s_barrier","s_endpgm","s_sleep","s_setprio")):
                add(ops[0], True)
                for o in ops[1:]: add(o, False)
                if "saveexec" in op: I.sw.update({126,127})
            else:
                for o in ops: add(o, False)
        else:
            raise ValueError("unknown op " + line)
        return I
    def skippable(self):
        a = self
        class C:
            def __enter__(s):
                if a.skipdepth == 0: a.skipid += 1
                a.skipdepth += 1
            def __exit__(s, *x): a.skipdepth -= 1
        return C()
    @staticmethod
    def _need(p, c):
        n = 0
        VAL = ("valu","trans","dot","dpp","perm","rdlane")
        pv = p.cls in VAL; cv = c.cls in VAL
        if p.cls == "mfma":
            d = p.vw
            big = {8:12, 4:8}[p.passes]
            if c.cls == "mfma":
                if d & (c.a | c.b): n = max(n, big)
                if d & c.c:
                    if not (c.c == d and c.passes == p.passes): n = max(n, big-2)
                elif d & c.vw: n = max(n, big)
            else:
                if d & (c.vr | c.vw): n = max(n, big)
            if cv and (p.c & c.vw): n = max(n, {8:7,4:3}[p.passes])
        if pv:
            if c.cls == "mfma" and (p.vw & c.vr): n = max(n, 3 if p.cls=="dot" else 2)
            if c.cls == "perm" and (p.vw & c.vr): n = max(n, 2)
            if c.cls == "dpp" and (p.vw & c.vr): n = max(n, 2)
            if c.cls == "rdlane" and (p.vw & c.vr): n = max(n, 1)
            if p.cls == "trans" and cv and c.cls != "trans" and (p.vw & c.vr): n = max(n, 1)
            if p.cls == "trans" and c.cls in ("vmemst","ds","vmem","dma") and (p.vw & c.vr): n = max(n, 1)
            if p.cls == "dot" and (p.vw & (c.vr | c.vw)):
                same = c.cls == "dot" and c.text.split()[0] == p.text.split()[0]
                if same:
                    ops = [o.strip() for o in c.text.split(None,1)[1].split(",")]
                    ab = set()
                    for o in ops[1:3]:
                        k, r = _regs(o)
                        if k == "v": ab |= r
                    if p.vw & ab: n = max(n, 3)
                else: n = max(n, 3)
            if p.sw:
                if c.cls in ("vmem","vmemst","dma") and (p.sw & c.sr): n = max(n, 5)
                if cv and (p.sw & c.sr): n = max(n, 4 if c.cls=="rdlane" else 2)
                if cv and c.text.startswith("v_cndmask") and ({106,107} & p.sw): n = max(n, 2)
                if (p.sw & {126,127}) and c.cls == "mfma": n = max(n, 4)
        if p.cls == "salu" and 124 in p.sw and c.cls == "dma": n = max(n, 1)
        if p.cls == "vmemst" and p.a and (p.a & c.vw): n = max(n, 2 if cv else 1)
        return n
    def finish(self):
        out = []
        hist = []
        for it in self.items:
            if isinstance(it, str):
                out.append(it); continue
            need = 0; dist = 0
            for p in reversed(hist[-40:]):
                r = self._need(p, it)
                if r > dist: need = max(need, r - dist)
                if not p.skip or p.skip == it.skip: dist += p.nops
                if dist >= 24: break
            while need > 0:
                k = min(need, 16)
                N = self._parse(f"s_nop {k-1}"); N.skip = it.skip
                out.append("    " + N.text); hist.append(N); need -= k
            out.append("    " + it.text); hist.append(it)
        return "\n".join(out) + "\n"
```

```python
import gen as G
from gen import VM, srd, srd_fin, kernel_head, kernel_tail, Stamps, AF_TG, KVACC, KV_J, FLAGS, STAMPS

LOG2E = "0x3fb8aa3b"
SLOT = 32768
SPIN = 200000
def gen_k1(a, name="p1_kernel"):
    kernel_head(a, name, 256)
    st = Stamps(a, STAMPS); st()
    X, WQ, W1, WS, DBG, WPHI, B1, I1 = 12, 16, 20, 24, 28, 32, 36, 40
    names = (("x",X),("wqkv",WQ),("w1",W1),("ws",WS),("dbg",DBG),("wphi",WPHI),("b1",B1))
    for n, s in names: srd(a, n, s)
    a("""
    v_and_b32 v1, 63, v0
    v_lshrrev_b32 v2, 6, v0
    v_readfirstlane_b32 s3, v2
    s_and_b32 s9, s2, 7                 ; xcd
    s_lshr_b32 s10, s2, 3               ; idx 0..31
    s_lshr_b32 s4, s9, 2                ; mh
    s_lshl_b32 s4, s4, 3
    s_and_b32 s11, s10, 7
    s_add_u32 s4, s4, s11               ; m
    s_lshr_b32 s5, s10, 4               ; type
    s_and_b32 s6, s9, 3
    s_lshl_b32 s6, s6, 1
    s_bfe_u32 s11, s10, 0x10003
    s_add_u32 s6, s6, s11
    s_and_b32 s7, s3, 3                 ; tg
    s_lshr_b32 s8, s3, 2                ; n
    """)
    a("""
    v_lshrrev_b32 v9, 3, v1             ; row8
    v_and_b32 v10, 7, v1                ; p
    v_lshrrev_b32 v11, 4, v1            ; l>>4
    v_xor_b32 v12, v10, v11
    v_lshlrev_b32 v13, 10, v9
    v_lshl_add_u32 v3, v12, 4, v13
    v_xor_b32 v4, 64, v3
    v_and_b32 v11, 1, v11
    v_lshlrev_b32 v11, 2, v11
    v_xor_b32 v12, v10, v11             ; W chunk
    v_lshlrev_b32 v12, 4, v12
    v_mul_u32_u24 v13, 3072, v9
    v_add_u32 v5, v13, v12
    v_mul_u32_u24 v13, 3584, v9
    v_add_u32 v7, v13, v12
    v_xor_b32 v14, 32, v5
    s_cmp_eq_u32 s5, 0
    s_cselect_b64 vcc, -1, 0
    v_cndmask_b32 v6, v7, v14, vcc
    v_lshrrev_b32 v9, 2, v1
    v_and_b32 v10, 3, v1
    v_mul_u32_u24 v13, 3584, v9
    v_lshl_add_u32 v8, v10, 4, v13
    """)
    a("s_waitcnt lgkmcnt(0)")
    for n, s in names: srd_fin(a, n, s)
    a(f"""
    s_cmp_eq_u32 s5, 0
    s_cselect_b32 s{I1}, s{WQ}, s{W1}
    s_cselect_b32 s{I1+1}, s{WQ+1}, s{W1+1}
    s_cselect_b32 s{I1+2}, s{WQ+2}, s{W1+2}
    s_mov_b32 s{I1+3}, 0x20000
    """)
    a(f"""
    s_lshl_b32 s44, s4, 17
    s_lshl_b32 s11, s3, 14
    s_add_u32 s44, s44, s11
    s_lshl_b32 s45, s6, 7               ; j*128 bytes
    s_mul_i32 s11, s3, {8*3072}
    s_add_u32 s46, s45, s11             ; j*128 + 8w*3072
    s_add_u32 s53, s46, 1024
    s_cmp_eq_u32 s5, 0
    s_cselect_b32 s45, s53, s46         ; I0 base
    s_add_u32 s46, s46, 2048
    s_lshr_b32 s9, s6, 1
    s_mul_i32 s9, s9, 5
    s_add_u32 s9, s9, 8
    s_and_b32 s10, s6, 1
    s_mul_i32 s11, s10, 3
    s_add_u32 s50, s9, s11
    s_add_u32 s51, s50, 1
    s_cmp_eq_u32 s5, 0
    s_cselect_b32 s51, s6, s51          ; I2 block
    s_add_u32 s52, s9, 2
    s_lshl_b32 s52, s52, 1
    s_add_u32 s52, s52, s10
    s_lshl_b32 s53, s50, 7
    s_mul_i32 s11, s3, {8*3584}
    s_add_u32 s53, s53, s11
    s_cmp_eq_u32 s5, 0
    s_cselect_b32 s46, s46, s53         ; I1 base
    s_mov_b32 s47, {64*3584}
    s_cselect_b32 s47, {64*3072}, s47
    s_lshl_b32 s48, s51, 7
    s_mul_i32 s11, s3, {16*3584}
    s_add_u32 s48, s48, s11
    s_lshl_b32 s49, s52, 6
    s_add_u32 s49, s49, s11
    s_lshl_b32 s50, s50, 1
    s_lshl_b32 s51, s51, 1
    s_lshl_b32 s54, s3, 11
    s_lshl_b32 s55, s3, 10              ; w*1024
    """)
    vm = VM(a)
    def dmaA(c):
        sl = (c % 5)*SLOT
        a(f"s_add_u32 m0, s54, {sl}\ns_add_u32 s56, s44, {c*128}")
        vm.issue(f"buffer_load_dwordx4 v3, s[{X}:{X+3}], s56 offen lds", f"C{c}")
        a(f"s_add_u32 m0, s54, {sl+1024}\ns_add_u32 s56, s44, {c*128+8192}")
        vm.issue(f"buffer_load_dwordx4 v4, s[{X}:{X+3}], s56 offen lds", f"C{c}")
        a(f"s_add_u32 m0, s55, {sl+16384}\ns_add_u32 s56, s45, {c*64*3072}")
        vm.issue(f"buffer_load_dwordx4 v5, s[{WQ}:{WQ+3}], s56 offen lds", f"C{c}")
        a(f"s_add_u32 m0, s55, {sl+24576}")
        vm.issue(f"buffer_load_dwordx4 v6, s[{I1}:{I1+3}], s46 offen lds", f"C{c}")
        a("s_add_u32 s46, s46, s47")
    def dmaB(c):
        sl = (c % 5)*SLOT; kb = (c-8)*128*3584
        a(f"s_add_u32 m0, s54, {sl}\ns_add_u32 s56, s48, {kb}")
        vm.issue(f"buffer_load_dwordx4 v7, s[{W1}:{W1+3}], s56 offen lds", f"C{c}")
        a(f"s_add_u32 m0, s54, {sl+1024}\ns_add_u32 s56, s48, {kb+8*3584}")
        vm.issue(f"buffer_load_dwordx4 v7, s[{W1}:{W1+3}], s56 offen lds", f"C{c}")
        a(f"s_cmp_eq_u32 s5, 0\ns_cbranch_scc1 {name}_sk3_{c}")
        with a.skippable():
            a(f"s_add_u32 m0, s55, {sl+16384}\ns_add_u32 s56, s49, {kb}")
            a(f"buffer_load_dwordx4 v8, s[{W1}:{W1+3}], s56 offen lds")
        a.label(f"{name}_sk3_{c}")
    a(f"""
    v_lshlrev_b32 v9, 4, v0             ; tid*16
    v_mov_b32 v10, 0
    v_mov_b32 v11, 0
    v_mov_b32 v12, 0
    v_mov_b32 v13, 0
    s_mul_i32 s57, s6, {KV_J}
    s_add_u32 s57, s57, {KVACC}
    s_cmp_eq_u32 s5, 1
    s_cselect_b32 s63, s4, 1
    s_cmp_eq_u32 s63, 0
    s_cbranch_scc0 {name}_nz1
    """)
    with a.skippable():
        a(f"""
        buffer_store_dwordx4 v[10:13], v9, s[{WS}:{WS+3}], s57 offen sc0 sc1
        s_add_u32 s9, s57, 8192
        s_cmp_eq_u32 s3, 0
        s_cbranch_scc0 {name}_nz1
        buffer_store_dwordx4 v[10:13], v9, s[{WS}:{WS+3}], s9 offen sc0 sc1
        """)
    a.label(f"{name}_nz1")
    for c in range(5): dmaA(c)
    st()
    a(f"s_cmp_eq_u32 s63, 0\ns_cbranch_scc0 {name}_nozero")
    with a.skippable():
        a(f"""
        s_waitcnt vmcnt(20)
        s_barrier
        s_cmp_eq_u32 s3, 0
        s_cbranch_scc0 {name}_nozero
        s_lshl_b32 s9, s6, 2
        v_mov_b32 v10, 1
        s_mov_b64 exec, 1
        buffer_store_dword v10, v11, s[{DBG}:{DBG+3}], s9 offen offset:4 sc0 sc1
        s_mov_b64 exec, -1
        """)
    a.label(f"{name}_nozero")
    a(f"s_or_b32 s9, s2, s3\ns_cmp_eq_u32 s9, 0\ns_cbranch_scc0 {name}_nononce")
    with a.skippable():
        a(f"""
        s_memrealtime s[58:59]
        s_waitcnt lgkmcnt(0)
        s_or_b32 s58, s58, 1
        v_mov_b32 v10, s58
        s_mov_b64 exec, 1
        buffer_store_dword v10, v11, s[{DBG}:{DBG+3}], 0 offen sc0 sc1
        s_mov_b64 exec, -1
        """)
    a.label(f"{name}_nononce")
    a(f"""
    v_and_b32 v9, 15, v1
    v_lshrrev_b32 v10, 5, v1
    v_lshlrev_b32 v9, 1, v9
    v_lshl_add_u32 v9, v10, 7, v9
    s_lshl_b32 s9, s6, 2
    s_lshl_b32 s10, s8, 1
    s_add_u32 s60, s9, s10
    s_lshl_b32 s9, s60, 9
    """)
    for h in range(2):
        for j in range(8):
            d = (j&3) + 8*(j>>2)
            vm.issue(f"buffer_load_ushort v{45+8*h+j}, v9, s[{WPHI}:{WPHI+3}], s9 offen offset:{h*512+d*32}", "S")
    a(f"""
    v_and_b32 v9, 31, v1
    v_lshlrev_b32 v9, 1, v9
    s_add_u32 s50, s50, s8
    s_add_u32 s51, s51, s8
    s_lshl_b32 s9, s50, 6
    s_lshl_b32 s10, s51, 6
    s_lshl_b32 s11, s52, 6
    """)
    vm.issue(f"buffer_load_ushort v24, v9, s[{B1}:{B1+3}], s9 offen", "S")
    vm.issue(f"buffer_load_ushort v25, v9, s[{B1}:{B1+3}], s10 offen", "S")
    vm.issue(f"buffer_load_ushort v26, v9, s[{B1}:{B1+3}], s11 offen", "S")
    a(f"""
    v_and_b32 v9, 31, v1                ; t
    v_lshrrev_b32 v10, 5, v1            ; half
    v_bfe_u32 v11, v1, 1, 3
    v_xor_b32 v11, v11, v10
    v_lshlrev_b32 v9, 7, v9
    v_lshl_add_u32 v32, v11, 4, v9
    s_lshl_b32 s9, s7, 12
    v_add_u32 v32, s9, v32
    v_xor_b32 v33, 32, v32
    v_xor_b32 v34, 64, v32
    v_xor_b32 v35, 96, v32
    v_bfe_u32 v11, v1, 2, 2             ; r
    v_lshl_add_u32 v12, v10, 3, v11     ; k = 8*(g>>1)+r
    v_lshlrev_b32 v12, 7, v12
    v_and_b32 v13, 3, v1
    v_lshl_add_u32 v12, v13, 3, v12     ; k*128 + cq*8
    v_bfe_u32 v13, v1, 4, 1             ; g&1
    v_and_b32 v11, 2, v11               ; swz
    v_xor_b32 v11, v11, v13             ; (g&1) ^ swz
    s_lshl_b32 s9, s8, 1
    v_xor_b32 v11, s9, v11
    v_lshl_add_u32 v38, v11, 5, v12
    v_lshlrev_b32 v13, 13, v13          ; (g&1)*8192
    v_add_u32 v14, v38, v13
    v_xor_b32 v15, 32, v14
    v_add_u32 v9, 8192, v38
    s_cmp_eq_u32 s5, 0
    s_cselect_b64 vcc, -1, 0
    v_cndmask_b32 v36, v38, v14, vcc
    v_cndmask_b32 v37, v9, v15, vcc
    v_add_u32 v36, 16384, v36
    v_add_u32 v37, 16384, v37
    """)
    a("""
    v_bfe_u32 v11, v1, 2, 2
    v_lshl_add_u32 v12, v10, 3, v11
    v_lshlrev_b32 v12, 6, v12
    v_and_b32 v13, 3, v1
    v_lshl_add_u32 v12, v13, 3, v12
    v_bfe_u32 v13, v1, 4, 1
    v_lshl_add_u32 v39, v13, 5, v12
    v_mov_b32 v40, 0x3f803f80
    """)
    ACC0, ACC1, WB, XF = 64, 80, 96, 128
    for i in range(32): a(f"v_mov_b32 v{ACC0+i}, 0")
    a("v_mov_b32 v41, 0\nv_mov_b32 v42, 0\nv_mov_b32 v43, 0\nv_mov_b32 v44, 0")
    a("s_cmp_eq_u32 s8, 0\ns_cselect_b64 vcc, -1, 0")
    for c in range(8):
        vm.wait(f"C{c}")
        a("s_barrier")
        if c >= 1:
            if c+4 <= 7: dmaA(c+4)
            else: dmaB(c+4)
        for i in range(4):
            k = 4*c+i
            a(f"ds_read_b128 v[{XF+4*k}:{XF+4*k+3}], v{32+i}")
            for t in range(2):
                for e in range(2):
                    r = WB + 8*i + 4*t + 2*e
                    a(f"ds_read_b64_tr_b16 v[{r}:{r+1}], v{36+t} offset:{i*2048+e*512}")
        d = SLOT if (c % 5) != 4 else -4*SLOT
        for i in range(4):
            k = 4*c+i
            a(f"s_waitcnt lgkmcnt({min(15, 5*(3-i))})")
            for t in range(2):
                acc = (ACC0, ACC1)[t]; r = WB + 8*i + 4*t
                a(f"v_mfma_f32_32x32x16_bf16 v[{acc}:{acc+15}], v[{r}:{r+3}], v[{XF+4*k}:{XF+4*k+3}], v[{acc}:{acc+15}]")
            a(f"s_cbranch_vccz {name}_sq{k}")
            with a.skippable():
                for q in range(4): a(f"v_dot2_f32_bf16 v{41+(q&1)}, v{XF+4*k+q}, v40, v{41+(q&1)}")
                a(f"s_branch {name}_sd{k}")
            a.label(f"{name}_sq{k}")
            with a.skippable():
                for q in range(4): a(f"v_dot2_f32_bf16 v{41+(q&1)}, v{XF+4*k+q}, v{XF+4*k+q}, v{41+(q&1)}")
            a.label(f"{name}_sd{k}")
            a(f"s_cmp_eq_u32 s7, {i}\ns_cbranch_scc0 {name}_nc{k}")
            with a.skippable():
                for q in range(4):
                    for t in range(2): a(f"v_dot2_f32_bf16 v{43+t}, v{WB+8*i+4*t+q}, v40, v{43+t}")
            a.label(f"{name}_nc{k}")
        if c < 7:
            for r in (32,33,34,35,36,37): a(f"v_add_u32 v{r}, {d & 0xffffffff}, v{r}")
    st()
    EX = 3*SLOT + 24576
    a(f"""
    v_add_f32 v41, v41, v42
    v_lshlrev_b32 v9, 2, v1             ; lane*4
    s_mul_i32 s9, s3, 768
    v_add_u32 v10, s9, v9
    v_add_u32 v10, {EX}, v10
    ds_write_b32 v10, v41
    ds_write_b32 v10, v43 offset:256
    ds_write_b32 v10, v44 offset:512
    """)
    a("s_waitcnt vmcnt(0) lgkmcnt(0)\ns_barrier"); vm.q = []
    for q in range(8): a(f"v_lshl_or_b32 v{16+q}, v{46+2*q}, 16, v{45+2*q}")
    vm.issue(f"buffer_load_dword v63, v9, s[{DBG}:{DBG+3}], 0 offen sc0 sc1", "DBG")
    a(f"""
    v_and_b32 v11, 31, v1
    v_lshlrev_b32 v11, 2, v11
    s_mul_i32 s9, s7, 768
    v_add_u32 v11, s9, v11
    v_add_u32 v11, {EX}, v11
    ds_read_b32 v45, v11
    ds_read_b32 v46, v11 offset:128
    ds_read_b32 v47, v11 offset:{4*768}
    ds_read_b32 v48, v11 offset:{4*768+128}
    s_mul_i32 s9, s8, {4*768}
    v_add_u32 v12, s9, v9
    v_add_u32 v12, {EX}, v12
    """)
    for t in range(2):
        for g in range(4): a(f"ds_read_b32 v{49+4*t+g}, v12 offset:{g*768+256+256*t}")
    a("""
    v_and_b32 v13, 31, v1
    v_lshrrev_b32 v14, 5, v1
    v_lshlrev_b32 v14, 2, v14
    v_sub_u32 v13, v13, v14             ; n - 4*half
    v_mov_b32 v14, 0x3f80
    v_mov_b32 v15, 0x3f800000
    """)
    for sg in range(2):
        for q in range(4):
            f0 = (2*q & 3) + 8*((2*q) >> 2) + 16*sg
            dst = (28, 112)[sg] + q
            a(f"v_cmp_eq_u32 vcc, {f0}, v13\nv_cndmask_b32 v{dst}, 0, v14, vcc\nv_cmp_eq_u32 vcc, {f0+1}, v13\nv_cndmask_b32 v{dst}, v{dst}, v15, vcc")
    a("s_waitcnt lgkmcnt(8)")
    a(f"""
    v_add_f32 v45, v45, v46
    v_add_f32 v47, v47, v48
    v_mul_f32 v45, 0x3b000000, v45      ; mu
    v_mul_f32 v47, 0x3b000000, v47
    v_fma_f32 v47, -v45, v45, v47       ; var
    v_max_f32 v47, 0, v47
    v_add_f32 v47, 0x3727c5ac, v47
    v_rsq_f32 v46, v47                  ; r
    v_mul_f32 v48, v47, v46             ; sigma
    v_sub_f32 v45, 0, v45               ; -mu
    v_cvt_pk_bf16_f32 v116, v45, v45
    v_and_b32 v9, 0xffff0000, v116
    v_sub_f32 v45, v45, v9
    v_cvt_pk_bf16_f32 v117, v45, v45
    v_cvt_pk_bf16_f32 v9, v48, v48
    v_and_b32 v9, 0xffff0000, v9
    v_sub_f32 v10, v48, v9
    v_cvt_pk_bf16_f32 v118, v9, v10
    v_mov_b32 v119, 0
    v_mul_f32 v47, {LOG2E}, v46         ; c = r*log2e
    v_mul_f32 v48, 0.5, v46             ; r/2
    """)
    vm.wait("S")
    a("v_cmp_gt_u32 vcc, 32, v1")
    for i in range(3):
        a(f"v_lshl_or_b32 v{24+i}, v{24+i}, 16, v{24+i}\nv_cndmask_b32 v{24+i}, 0, v{24+i}, vcc")
    def corr(acc, cs4, b1reg):
        a(f"""
        v_add_f32 v{cs4}, v{cs4}, v{cs4+1}
        v_add_f32 v{cs4+2}, v{cs4+2}, v{cs4+3}
        v_add_f32 v{cs4}, v{cs4}, v{cs4+2}
        v_cvt_pk_bf16_f32 v9, v{cs4}, v{cs4}
        v_and_b32 v9, 0xffff0000, v9
        v_sub_f32 v10, v{cs4}, v9
        v_cvt_pk_bf16_f32 v120, v9, v10
        v_mov_b32 v121, v120
        v_mov_b32 v122, {b1reg}
        v_mov_b32 v123, 0
        v_mfma_f32_32x32x16_bf16 v[{acc}:{acc+15}], v[120:123], v[116:119], v[{acc}:{acc+15}]
        """)
    def softmax(P, Pp, Pm):
        E = 49
        a(f"""
        v_max3_f32 v9, v{P}, v{P+1}, v{P+2}
        v_max3_f32 v10, -v{P}, -v{P+1}, -v{P+2}
        v_max3_f32 v9, v9, v{P+3}, v{P+4}
        v_max3_f32 v10, v10, -v{P+3}, -v{P+4}
        v_max3_f32 v9, v9, v{P+5}, v{P+6}
        v_max3_f32 v10, v10, -v{P+5}, -v{P+6}
        v_max_f32 v9, v9, v{P+7}
        v_max_f32_e64 v10, v10, -v{P+7}
        v_permlane32_swap_b32 v9, v10
        v_max_f32 v9, v9, v10
        v_mul_f32_e64 v9, -v9, v47
        v_mov_b32 v10, v9
        v_permlane32_swap_b32 v9, v10
        """)
        for r in range(8):
            a(f"v_fma_f32 v{E+r}, -v{P+r}, v47, v10\nv_fma_f32 v{P+r}, v{P+r}, v47, v9")
        for r in range(8):
            a(f"v_exp_f32 v{E+r}, v{E+r}\nv_exp_f32 v{P+r}, v{P+r}")
        a(f"v_add_f32 v9, v{P}, v{P+1}\nv_add_f32 v10, v{E}, v{E+1}")
        for r in range(2, 8): a(f"v_add_f32 v9, v9, v{P+r}\nv_add_f32 v10, v10, v{E+r}")
        a("""
        v_permlane32_swap_b32 v9, v10
        v_add_f32 v9, v9, v10
        v_rcp_f32 v9, v9
        s_nop 0
        v_mov_b32 v10, v9
        v_permlane32_swap_b32 v9, v10
        """)
        for r in range(8): a(f"v_mul_f32 v{P+r}, v{P+r}, v9\nv_mul_f32 v{E+r}, v{E+r}, v10")
        for q in range(4): a(f"v_cvt_pk_bf16_f32 v{Pp+q}, v{P+2*q}, v{P+2*q+1}\nv_cvt_pk_bf16_f32 v{Pm+q}, v{E+2*q}, v{E+2*q+1}")
    def ffn_epi(acc, s_tile):
        for r in range(16): a(f"v_add_f32_e64 v{acc+r}, v{acc+r}, |v{acc+r}|")
        for r in range(16): a(f"v_mul_f32 v{acc+r}, v{acc+r}, v48")
        for r in range(16): a(f"v_mul_f32 v{acc+r}, v{acc+r}, v{acc+r}")
        for q in range(8): a(f"v_cvt_pk_bf16_f32 v{acc+q}, v{acc+2*q}, v{acc+2*q+1}")
        a(f"s_lshl_b32 s9, s{s_tile}, 11\ns_add_u32 s9, s9, s61")
        vm.issue(f"buffer_store_dwordx4 v[{acc}:{acc+3}], v27, s[{WS}:{WS+3}], s9 offen {G.HST}", "H")
        vm.issue(f"buffer_store_dwordx4 v[{acc+4}:{acc+7}], v27, s[{WS}:{WS+3}], s9 offen offset:1024 {G.HST}", "H")
    a(f"""
    s_lshl_b32 s61, s4, 2
    s_add_u32 s61, s61, s7
    s_mul_i32 s61, s61, {AF_TG}
    v_lshlrev_b32 v27, 4, v1
    s_waitcnt lgkmcnt(0)
    s_cmp_eq_u32 s5, 0
    s_cbranch_scc0 {name}_typeB
    """)
    vmA = vm; vmq_save = list(vm.q)
    corr(ACC0, 49, "0"); corr(ACC1, 53, "0")
    KVP = 1*SLOT + 24576
    a(f"""
    v_and_b32 v11, 31, v1
    v_lshrrev_b32 v12, 5, v1
    v_mul_u32_u24 v12, 17, v12
    v_add_u32 v12, v12, v11
    v_lshlrev_b32 v12, 6, v12
    s_mul_i32 s9, s7, 8704
    s_mul_i32 s10, s8, 4352
    s_add_u32 s9, s9, s10
    s_add_u32 s9, s9, {KVP}
    v_add_u32 v62, s9, v12
    v_cmp_eq_u32 vcc, 16, v11
    v_cndmask_b32 v61, 0, v40, vcc
    v_cmp_gt_u32 s[58:59], 17, v11
    """)
    for h in range(2):
        acc = (ACC0, ACC1)[h]
        T = WB
        for q in range(4): a(f"v_cvt_pk_bf16_f32 v{124+q}, v{acc+2*q}, v{acc+2*q+1}")
        a(f"v_mfma_f32_32x32x16_bf16 v[{T}:{T+15}], v[{16+4*h}:{19+4*h}], v[124:127], 0")
        for r in range(8, 16): a(f"v_mul_f32 v{acc+r}, v{acc+r}, v46")
        for q in range(4): a(f"v_cvt_pk_bf16_f32 v{124+q}, v{acc+8+2*q}, v{acc+9+2*q}")
        a(f"v_mfma_f32_32x32x16_bf16 v[{acc}:{acc+15}], v[124:127], v[28:31], 0")
        softmax(T, 120, 124)
        a(f"v_mfma_f32_32x32x16_bf16 v[{T}:{T+15}], v[120:123], v[28:31], 0")
        a(f"v_mfma_f32_32x32x16_bf16 v[{T}:{T+15}], v[124:127], v[112:115], v[{T}:{T+15}]")
        for q in range(8): a(f"v_cvt_pk_bf16_f32 v{acc+q}, v{acc+2*q}, v{acc+2*q+1}\nv_or_b32 v{acc+q}, v{acc+q}, v61")
        for q in range(8): a(f"v_cvt_pk_bf16_f32 v{acc+8+q}, v{T+2*q}, v{T+2*q+1}")
        a(f"v_mfma_f32_32x32x16_bf16 v[{T}:{T+15}], v[{acc+8}:{acc+11}], v[{acc}:{acc+3}], 0")
        a(f"v_mfma_f32_32x32x16_bf16 v[{T}:{T+15}], v[{acc+12}:{acc+15}], v[{acc+4}:{acc+7}], v[{T}:{T+15}]")
        a("s_mov_b64 exec, s[58:59]")
        for q in range(4): a(f"ds_write_b128 v62, v[{T+4*q}:{T+4*q+3}] offset:{h*2176+16*q}")
        a("s_mov_b64 exec, -1")
    a("s_waitcnt lgkmcnt(0)\ns_barrier")
    a(f"v_lshlrev_b32 v9, 2, v0\nv_add_u32 v10, {KVP}, v9")
    for rho in range(5):
        for g in range(4): a(f"ds_read_b32 v{96+4*rho+g}, v10 offset:{g*8704+rho*2048}")
    a(f"s_add_u32 s9, s6, 1\ns_mov_b32 s63, 0")
    a.label(f"{name}_zspin")
    a(f"""
    s_waitcnt vmcnt(0)
    v_readlane_b32 s10, v63, s9
    v_readlane_b32 s62, v63, 0
    s_cmp_eq_u32 s10, 0
    s_cselect_b32 s10, 0, s62
    s_cmp_lg_u32 s10, 0
    s_cbranch_scc1 {name}_zok
    s_add_u32 s63, s63, 1
    s_cmp_gt_u32 s63, {SPIN}
    s_cbranch_scc1 {name}_zok
    s_sleep 1
    v_lshlrev_b32 v11, 2, v1
    buffer_load_dword v63, v11, s[{DBG}:{DBG+3}], 0 offen sc0 sc1
    s_branch {name}_zspin
    """)
    a.label(f"{name}_zok"); vm.q = []
    a("s_waitcnt lgkmcnt(0)")
    for rho in range(5):
        b = 96+4*rho
        a(f"v_add_f32 v{b}, v{b}, v{b+1}\nv_add_f32 v{b+2}, v{b+2}, v{b+3}\nv_add_f32 v{b}, v{b}, v{b+2}")
        if rho < 2: vm.issue(f"buffer_atomic_add_f32 v{b}, v9, s[{WS}:{WS+3}], s57 offen offset:{rho*2048}", "AT")
        elif rho < 4:
            if rho == 2: a("s_add_u32 s9, s57, 4096")
            vm.issue(f"buffer_atomic_add_f32 v{b}, v9, s[{WS}:{WS+3}], s9 offen offset:{(rho-2)*2048}", "AT")
        else:
            a(f"s_cmp_lt_u32 s3, 2\ns_cbranch_scc0 {name}_noat")
            with a.skippable():
                a(f"s_add_u32 s9, s57, 8192\nbuffer_atomic_add_f32 v{b}, v9, s[{WS}:{WS+3}], s9 offen")
            a.label(f"{name}_noat")
    st()
    def passB(two, tagname):
        for i in range(32 if two else 16): a(f"v_mov_b32 v{ACC0+i}, 0")
        a("v_mov_b32 v43, 0\nv_mov_b32 v44, 0")
        nt = 2 if two else 1
        def rd(k):
            c = 8 + k//8; sl = (c % 5)*SLOT; kk = k % 8
            b = (96, 104, 120)[k % 3]
            if kk == 0:
                a(f"v_add_u32 v{9+2*(c&1)}, {sl}, v38")
                if two: a(f"v_add_u32 v{10+2*(c&1)}, {sl+16384}, v39")
            for e in range(2): a(f"ds_read_b64_tr_b16 v[{b+2*e}:{b+2*e+1}], v{9+2*(c&1)} offset:{kk*2048+e*512}")
            if two:
                for e in range(2): a(f"ds_read_b64_tr_b16 v[{b+4+2*e}:{b+4+2*e+1}], v{10+2*(c&1)} offset:{kk*1024+e*256}")
        rd(0); rd(1)
        for k in range(32):
            if k+2 < 32: rd(k+2)
            left = min(2, 31-k)*2*nt
            a(f"s_waitcnt lgkmcnt({left})")
            b = (96, 104, 120)[k % 3]
            a(f"v_mfma_f32_32x32x16_bf16 v[{ACC0}:{ACC0+15}], v[{b}:{b+3}], v[{XF+4*k}:{XF+4*k+3}], v[{ACC0}:{ACC0+15}]")
            if two: a(f"v_mfma_f32_32x32x16_bf16 v[{ACC1}:{ACC1+15}], v[{b+4}:{b+7}], v[{XF+4*k}:{XF+4*k+3}], v[{ACC1}:{ACC1+15}]")
            a(f"s_cmp_eq_u32 s7, {k&3}\ns_cbranch_scc0 {name}_{tagname}_nc{k}")
            with a.skippable():
                for q in range(4):
                    for t in range(nt): a(f"v_dot2_f32_bf16 v{43+t}, v{b+4*t+q}, v40, v{43+t}")
            a.label(f"{name}_{tagname}_nc{k}")
    EX2 = 2*SLOT
    EX2 = 4*SLOT + 24576
    def cs_exchange(two):
        a(f"""
        v_lshlrev_b32 v9, 2, v1
        s_lshl_b32 s9, s3, 9
        v_add_u32 v10, s9, v9
        v_add_u32 v10, {EX2}, v10
        ds_write_b32 v10, v43
        ds_write_b32 v10, v44 offset:256
        s_lshl_b32 s9, s8, 11
        v_add_u32 v12, s9, v9
        v_add_u32 v12, {EX2}, v12
        """)
    def cs_read(two):
        for t in range(2 if two else 1):
            for g in range(4): a(f"ds_read_b32 v{49+4*t+g}, v12 offset:{g*512+256*t}")
        a("s_waitcnt lgkmcnt(0)")
    passB(False, "pa")
    cs_exchange(False)
    a("s_waitcnt vmcnt(0) lgkmcnt(0)\ns_barrier"); vm.q = []
    a(f"s_cmp_eq_u32 s3, 0\ns_cbranch_scc0 {name}_nokvf")
    with a.skippable():
        a(f"""
        s_lshl_b32 s9, s6, 7
        s_lshl_b32 s10, s4, 2
        s_add_u32 s9, s9, s10
        s_add_u32 s9, s9, {FLAGS}
        v_mov_b32 v10, s62
        v_mov_b32 v11, 0
        s_mov_b64 exec, 1
        buffer_store_dword v10, v11, s[{WS}:{WS+3}], s9 offen sc0 sc1
        s_mov_b64 exec, -1
        """)
    a.label(f"{name}_nokvf")
    st()
    cs_read(False)
    corr(ACC0, 49, "v25")
    ffn_epi(ACC0, 51)
    a(f"s_branch {name}_done")
    a.label(f"{name}_typeB")
    vm.q = list(vmq_save)
    a("s_nop 7")
    corr(ACC0, 49, "0"); corr(ACC1, 53, "v24")
    PQ = 28
    stor = ((28, 112), (4, 60))
    a(f"v_readlane_b32 s62, v63, 0") if False else None
    for h in range(2):
        T = WB
        for q in range(4): a(f"v_cvt_pk_bf16_f32 v{124+q}, v{ACC0+8*h+2*q}, v{ACC0+8*h+2*q+1}")
        a(f"v_mfma_f32_32x32x16_bf16 v[{T}:{T+15}], v[{16+4*h}:{19+4*h}], v[124:127], 0")
        if h == 0: ffn_epi(ACC1, 50)
        if h == 1: a("s_waitcnt vmcnt(2)")
        softmax(T, stor[h][0], stor[h][1])
    st()
    a(f"s_cmp_eq_u32 s8, 0\ns_cbranch_scc1 {name}_B2")
    passB(False, "pb1")
    cs_exchange(False)
    a("s_waitcnt lgkmcnt(0)\ns_barrier")
    cs_read(False)
    corr(ACC0, 49, "v25")
    ffn_epi(ACC0, 51)
    a(f"s_branch {name}_Bj")
    a.label(f"{name}_B2")
    passB(True, "pb2")
    cs_exchange(True)
    a("s_waitcnt lgkmcnt(0)\ns_barrier")
    cs_read(True)
    corr(ACC0, 49, "v25"); corr(ACC1, 53, "v26")
    ffn_epi(ACC0, 51); ffn_epi(ACC1, 52)
    a.label(f"{name}_Bj")
    st()
    a(f"""
    v_lshlrev_b32 v9, 2, v1
    s_lshl_b32 s9, s6, 7
    s_add_u32 s9, s9, {FLAGS}
    s_mov_b32 s63, 0
    """)
    a.label(f"{name}_kspin")
    a(f"""
    buffer_load_dword v10, v9, s[{DBG}:{DBG+3}], 0 offen sc0 sc1
    buffer_load_dword v11, v9, s[{WS}:{WS+3}], s9 offen sc0 sc1
    s_waitcnt vmcnt(0)
    v_readlane_b32 s62, v10, 0
    s_nop 3
    v_cmp_ne_u32 vcc, s62, v11
    s_and_b32 s10, vcc_lo, 0xffff
    s_cmp_eq_u32 s62, 0
    s_cselect_b32 s10, 1, s10
    s_cmp_eq_u32 s10, 0
    s_cbranch_scc1 {name}_kok
    s_add_u32 s63, s63, 1
    s_cmp_gt_u32 s63, {SPIN}
    s_cbranch_scc1 {name}_kok
    s_sleep 1
    s_branch {name}_kspin
    """)
    a.label(f"{name}_kok"); vm.q = []
    st()
    KVL = 2*SLOT
    a(f"s_add_u32 m0, s55, {KVL}\ns_add_u32 s9, s57, s55")
    a(f"buffer_load_dwordx4 v27, s[{WS}:{WS+3}], s9 offen sc0 sc1 lds")
    a(f"s_cmp_eq_u32 s3, 0\ns_cbranch_scc0 {name}_k9")
    with a.skippable():
        a(f"s_mov_b32 m0, {KVL+8192}\ns_add_u32 s9, s57, 8192\nbuffer_load_dwordx4 v27, s[{WS}:{WS+3}], s9 offen sc0 sc1 lds")
    a.label(f"{name}_k9")
    a(f"""
    v_and_b32 v11, 31, v1
    v_min_u32 v11, 16, v11
    v_lshrrev_b32 v12, 5, v1
    v_mul_u32_u24 v12, 17, v12
    v_add_u32 v12, v12, v11
    v_lshlrev_b32 v12, 6, v12
    s_mul_i32 s10, s8, 4352
    s_add_u32 s10, s10, {KVL}
    v_add_u32 v12, s10, v12
    s_waitcnt vmcnt(0)
    s_barrier
    """)
    for h in range(2):
        for q in range(4): a(f"ds_read_b128 v[{ACC0+16*h+4*q}:{ACC0+16*h+4*q+3}], v12 offset:{h*2176+16*q}")
    a(f"s_add_u32 s9, s60, 112\ns_lshl_b32 s9, s9, 10\ns_add_u32 s9, s9, s61")
    for h in range(2):
        acc = ACC0+16*h; T = WB
        a(f"s_waitcnt lgkmcnt({4*(1-h)})")
        for q in range(8): a(f"v_cvt_pk_bf16_f32 v{acc+q}, v{acc+2*q}, v{acc+2*q+1}")
        a(f"v_mfma_f32_32x32x16_bf16 v[{T}:{T+15}], v[{acc}:{acc+3}], v[{stor[h][0]}:{stor[h][0]+3}], 0")
        a(f"v_mfma_f32_32x32x16_bf16 v[{T}:{T+15}], v[{acc+4}:{acc+7}], v[{stor[h][1]}:{stor[h][1]+3}], v[{T}:{T+15}]")
        a(f"v_add_f32 v9, 0x358637bd, v{T+8}\nv_rcp_f32 v9, v9")
        for r in range(8): a(f"v_mul_f32 v{T+r}, v{T+r}, v9")
        for q in range(4): a(f"v_cvt_pk_bf16_f32 v{acc+8+q}, v{T+2*q}, v{T+2*q+1}")
        a(f"buffer_store_dwordx4 v[{acc+8}:{acc+11}], v27, s[{WS}:{WS+3}], s9 offen offset:{h*1024} {G.HST}")
    a.label(f"{name}_done")
    if G.INSTR:
        a("s_waitcnt vmcnt(0)")
    st.flush(WS, 3)
    kernel_tail(a, name)
```

```python
import sys
sys.path.insert(0, "work")
from asmlib import Asm

SZ = dict(x=2048*512*2, wqkv=512*1536*2, wphi=32*16*16*2, wo=512*512*2, w1=512*1792*2, b1=1792*2, w2=1792*512*2, b2=512*2, out=2048*512*2, dbg=256)
SLOT = dict(x=0, wqkv=1, wphi=2, wo=3, w1=5, b1=6, w2=7, b2=8, out=9, dbg=10, ws=11)
AFRAG = 0
AF_TG = 144*1024
KVACC = 64*AF_TG
KV_J = 9216
FLAGS = KVACC + 8*KV_J
STAMPS = FLAGS + 8192
WS_END = STAMPS + 256*8*64*2
INSTR = False
class Stamps:
    def __init__(self, a, base): self.a = a; self.n = 0; self.base = base
    def __call__(self):
        if not INSTR: return
        self.a(f"s_memrealtime s[{64+2*self.n}:{65+2*self.n}]"); self.n += 1
    def flush(self, WS, wave_s):
        if not INSTR: return
        a = self.a
        self()
        a(f"s_waitcnt lgkmcnt(0) vmcnt(0)\ns_lshl_b32 s62, s2, 3\ns_add_u32 s62, s62, s{wave_s}\ns_lshl_b32 s62, s62, 6\ns_add_u32 s62, s62, {self.base}")
        a("v_mov_b32 v0, 0\ns_mov_b64 exec, 1")
        for i in range(self.n):
            a(f"v_mov_b32 v1, s{64+2*i}\nbuffer_store_dword v1, v0, s[{WS}:{WS+3}], s62 offen offset:{4*i}\ns_nop 1")
SZ["ws"] = WS_END

class VM:
    def __init__(self, a): self.a = a; self.q = []
    def issue(self, text, tag): self.a(text); self.q.append(tag)
    def wait(self, tag):
        idx = [i for i, t in enumerate(self.q) if t == tag]
        if not idx: return
        n = len(self.q) - 1 - idx[-1]
        assert n <= 63
        self.a(f"s_waitcnt vmcnt({n})")
        self.q = self.q[idx[-1]+1:]
    def waitall(self):
        self.a("s_waitcnt vmcnt(0)"); self.q = []

def srd(a, name, s):
    a(f"s_load_dwordx2 s[{s}:{s+1}], s[0:1], {SLOT[name]*8}")
def srd_fin(a, name, s):
    a(f"s_mov_b32 s{s+2}, {SZ[name]}\ns_mov_b32 s{s+3}, 0x20000")

def kernel_head(a, name, grid):
    a.raw(f".globl {name}\n.p2align 8\n.type {name},@function\n{name}:")
    a(f"s_cmp_ge_u32 s2, {grid}\ns_cbranch_scc1 {name}_end")
def kernel_tail(a, name):
    a.raw(f"{name}_end:"); a("s_endpgm")
def descriptor(name, vgpr=256, sgpr=96):
    return f""".p2align 6
.amdhsa_kernel {name}
  .amdhsa_next_free_vgpr {vgpr}
  .amdhsa_next_free_sgpr {sgpr}
  .amdhsa_accum_offset {vgpr}
  .amdhsa_group_segment_fixed_size 0
  .amdhsa_kernarg_size 96
  .amdhsa_user_sgpr_count 2
  .amdhsa_user_sgpr_kernarg_segment_ptr 1
  .amdhsa_system_sgpr_workgroup_id_x 1
  .amdhsa_float_denorm_mode_32 3
.end_amdhsa_kernel
"""

def gen_k2(a, name="p2_kernel"):
    kernel_head(a, name, 256)
    W2, WO, WS, X, B2, OUT = 8, 12, 16, 20, 24, 28
    st = Stamps(a, STAMPS + 256*8*64); st()
    for n, s in (("w2",W2),("wo",WO),("ws",WS),("x",X),("b2",B2),("out",OUT)): srd(a, n, s)
    a("""
    v_and_b32 v1, 63, v0
    v_lshrrev_b32 v2, 6, v0
    v_readfirstlane_b32 s3, v2          ; wave
    s_and_b32 s4, s2, 7
    s_lshr_b32 s5, s2, 3
    s_and_b32 s6, s5, 3
    s_lshl_b32 s4, s4, 2
    s_add_u32 s4, s4, s6                ; mt
    s_lshr_b32 s5, s5, 2                ; nt
    """)
    a("""
    v_lshrrev_b32 v3, 3, v1
    v_and_b32 v4, 7, v1
    v_lshrrev_b32 v5, 2, v1
    v_and_b32 v5, 4, v5
    v_xor_b32 v4, v4, v5
    v_lshlrev_b32 v3, 10, v3
    v_lshl_add_u32 v3, v4, 4, v3
    v_lshlrev_b32 v4, 4, v1
    """)
    a("""
    v_lshrrev_b32 v5, 5, v1             ; g>>1
    v_bfe_u32 v6, v1, 2, 2              ; r
    v_lshl_add_u32 v5, v5, 2, v6        ; k
    v_lshlrev_b32 v5, 7, v5             ; k*128
    v_and_b32 v7, 3, v1
    v_lshl_add_u32 v5, v7, 3, v5        ; + cq*8
    v_bfe_u32 v7, v1, 4, 1              ; g&1
    v_and_b32 v6, 2, v6                 ; ((r>>1)&1)<<1
    v_or_b32 v7, v7, v6
    v_xor_b32 v8, 2, v7
    v_lshl_add_u32 v6, v8, 5, v5
    v_lshl_add_u32 v5, v7, 5, v5
    s_mul_i32 s7, s3, 18432
    v_add_u32 v5, s7, v5
    v_add_u32 v6, s7, v6
    """)
    a("s_waitcnt lgkmcnt(0)")
    for n, s in (("w2",W2),("wo",WO),("ws",WS),("x",X),("b2",B2),("out",OUT)): srd_fin(a, n, s)
    vm = VM(a)
    a(f"""
    s_mul_i32 s32, s3, {14*16*1024}
    s_lshl_b32 s33, s5, 7
    s_add_u32 s32, s32, s33
    s_lshl_b32 s34, s3, 16
    s_add_u32 s34, s34, s33
    s_mul_i32 s35, s4, {2*AF_TG}
    s_mul_i32 s36, s3, {14*1024}
    s_add_u32 s36, s36, s35
    s_lshl_b32 s37, s3, 12
    s_add_u32 s37, s37, s35
    s_add_u32 s37, s37, {112*1024}
    s_add_u32 s38, s36, {AF_TG}
    s_add_u32 s39, s37, {AF_TG}
    """)
    def dma(u, half, slot, tag):
        a(f"s_add_u32 s40, s7, {slot*2048 + half*1024}\ns_mov_b32 m0, s40")
        if u < 14:
            a(f"s_add_u32 s41, s32, {(u*16+half*8)*1024}")
            vm.issue(f"buffer_load_dwordx4 v3, s[{W2}:{W2+3}], s41 offen lds", tag)
        else:
            a(f"s_add_u32 s41, s34, {((u-14)*16+half*8)*1024}")
            vm.issue(f"buffer_load_dwordx4 v3, s[{WO}:{WO+3}], s41 offen lds", tag)
    ACC = 16; WREG = 80; WTMP = 152; ABUF = 168; NA = 11
    def aload(u):
        r = ABUF + (u % NA)*8
        for tb in range(2):
            if u < 14: sb, off = (36, 38)[tb], u*1024
            else: sb, off = (37, 39)[tb], (u-14)*1024
            if off < 4096:
                vm.issue(f"buffer_load_dwordx4 v[{r+4*tb}:{r+4*tb+3}], v4, s[{WS}:{WS+3}], s{sb} offen offset:{off}", f"A{u}")
            else:
                a(f"s_add_u32 s41, s{sb}, {off}")
                vm.issue(f"buffer_load_dwordx4 v[{r+4*tb}:{r+4*tb+3}], v4, s[{WS}:{WS+3}], s41 offen", f"A{u}")
    for u in range(9):
        for h in range(2): dma(u, h, u, "D1")
    for u in range(NA): aload(u)
    for i in range(64): a(f"v_mov_b32 v{ACC+i}, 0")
    st()
    vm.wait("D1")
    st()
    def trread(dst, slot):
        for b in range(2):
            for e in range(2):
                a(f"ds_read_b64_tr_b16 v[{dst+4*b+2*e}:{dst+4*b+2*e+1}], v{5+b} offset:{slot*2048+e*1024}")
    for u in range(9): trread(WREG+8*u, u)
    a("s_waitcnt lgkmcnt(0)")
    for u in range(9, 18):
        for h in range(2): dma(u, h, u-9, "D2")
    a(f"""
    v_lshrrev_b32 v7, 3, v1
    v_lshlrev_b32 v7, 10, v7
    v_and_b32 v8, 7, v1
    v_lshlrev_b32 v8, 4, v8             ; c*16
    v_add_u32 v7, v7, v8                ; row*1024 + c*16
    s_lshl_b32 s42, s4, 16
    s_lshl_b32 s43, s3, 13
    s_add_u32 s42, s42, s43
    s_add_u32 s42, s42, s33             ; + nt*128
    """)
    def mfmas(u, w):
        r = ABUF + (u % NA)*8
        for tb in range(2):
            for nb in range(2):
                d = ACC + 16*(2*tb+nb)
                a(f"v_mfma_f32_32x32x16_bf16 v[{d}:{d+15}], v[{w+4*nb}:{w+4*nb+3}], v[{r+4*tb}:{r+4*tb+3}], v[{d}:{d+15}]")
    for u in range(18):
        if u == 8:
            vm.wait("D2"); trread(WTMP, 0)
        if u >= 9:
            if u < 17: trread(WTMP + 8*((u-8)&1), u-8)
            a(f"s_waitcnt lgkmcnt({4 if u<17 else 0})")
        vm.wait(f"A{u}")
        mfmas(u, WREG+8*u if u < 9 else WTMP+8*((u-9)&1))
        if u + NA < 18: aload(u+NA)
        if u == 10:
            vm.issue(f"buffer_load_dwordx4 v[80:83], v7, s[{X}:{X+3}], s42 offen", "X")
            vm.issue(f"buffer_load_dwordx4 v[84:87], v8, s[{B2}:{B2+3}], s33 offen", "X")
    a("""
    v_and_b32 v9, 31, v1
    v_lshrrev_b32 v10, 5, v1
    v_and_b32 v11, 7, v1
    v_xor_b32 v10, v10, v11             ; half ^ (t&7)
    v_lshlrev_b32 v9, 8, v9
    v_lshl_add_u32 v9, v10, 4, v9
    s_lshl_b32 s40, s3, 14
    v_add_u32 v9, s40, v9
    v_xor_b32 v10, 32, v9
    v_xor_b32 v11, 64, v9
    v_xor_b32 v12, 96, v9
    """)
    st()
    a("s_barrier")
    st()
    for tb in range(2):
        for nb in range(2):
            for qq in range(4):
                d = ACC + 16*(2*tb+nb) + 4*qq
                a(f"ds_write_b128 v{9+qq}, v[{d}:{d+3}] offset:{tb*8192+nb*128}")
    a("""
    v_lshrrev_b32 v13, 3, v1
    v_and_b32 v14, 7, v1
    v_lshlrev_b32 v14, 1, v14
    v_xor_b32 v14, v14, v13
    v_lshlrev_b32 v13, 8, v13
    v_lshl_add_u32 v13, v14, 4, v13
    s_lshl_b32 s40, s3, 11
    v_add_u32 v13, s40, v13             ; e=0
    v_xor_b32 v14, 16, v13              ; e=1
    v_add_u32 v15, 0x10000, v13
    v_add_u32 v2, 0x10000, v14
    s_waitcnt lgkmcnt(0)
    s_barrier
    """)
    R = 96
    for w in range(8):
        for e in range(2):
            ad = (13, 14)[e] if w < 4 else (15, 2)[e]
            a(f"ds_read_b128 v[{R+8*w+4*e}:{R+8*w+4*e+3}], v{ad} offset:{(w&3)*16384}")
    vm.wait("X")
    for i in range(4):
        a(f"v_lshlrev_b32 v{16+2*i}, 16, v{80+i}\nv_and_b32 v{17+2*i}, 0xffff0000, v{80+i}")
        a(f"v_lshlrev_b32 v{24+2*i}, 16, v{84+i}\nv_and_b32 v{25+2*i}, 0xffff0000, v{84+i}")
    for i in range(8): a(f"v_add_f32 v{16+i}, v{16+i}, v{24+i}")
    for w in range(8):
        a(f"s_waitcnt lgkmcnt({14-2*w})")
        for i in range(8): a(f"v_add_f32 v{16+i}, v{16+i}, v{R+8*w+i}")
    for i in range(4): a(f"v_cvt_pk_bf16_f32 v{24+i}, v{16+2*i}, v{17+2*i}")
    a(f"buffer_store_dwordx4 v[24:27], v7, s[{OUT}:{OUT+3}], s42 offen")
    st(); a("s_waitcnt vmcnt(0)") if INSTR else None
    st.flush(WS, 3)
    kernel_tail(a, name)

HST = ""
def main():
    import gen as G, gen_k1
    which = sys.argv[2] if len(sys.argv) > 2 else "k2"
    G.INSTR = "instr" in sys.argv
    a = Asm()
    hdr = []; desc = ""
    a.raw('.amdgcn_target "amdgcn-amd-amdhsa--gfx950"\n.text')
    if which in ("k1", "both"):
        hdr.append("; @launch kernel=p1_kernel grid=(256,1,1) block=(512,1,1) lds=163840")
        gen_k1.gen_k1(a); desc += descriptor("p1_kernel")
    if which in ("k2", "both"):
        hdr.append("; @launch kernel=p2_kernel grid=(256,1,1) block=(512,1,1) lds=147456")
        G.gen_k2(a); desc += descriptor("p2_kernel")
    txt = "\n".join(hdr) + "\n" + a.finish() + '.section .rodata,"a"\n' + desc
    open(sys.argv[1], "w").write(txt)
if __name__ == "__main__":
    import gen
    gen.main()
```

```python
import re
class Ins:
    __slots__ = ("text","cls","vw","vr","sw","sr","a","b","c","skip","nops","passes","tag")
def _regs(tok):
    tok = tok.strip()
    tok = tok.lstrip("-")
    m = re.match(r"^(?:abs\()?\|?([vsa])(\d+)\|?\)?$", tok)
    if m: return m.group(1), {int(m.group(2))}
    m = re.match(r"^(?:abs\()?\|?([vsa])\[(\d+):(\d+)\]\|?\)?$", tok)
    if m: return m.group(1), set(range(int(m.group(2)), int(m.group(3))+1))
    if tok == "vcc": return "s", {106,107}
    if tok == "exec": return "s", {126,127}
    if tok == "m0": return "s", {124}
    return None, set()
TRANS = ("v_exp_f32","v_log_f32","v_rcp_f32","v_rsq_f32","v_sqrt_f32","v_sin_f32","v_cos_f32")
class Asm:
    def __init__(self):
        self.items = []
        self.skipdepth = 0
        self.skipid = 0
    def raw(self, s): self.items.append(s)
    def label(self, name): self.items.append(name + ":")
    def __call__(self, text, tag=None):
        for line in text.strip().split("\n"):
            line = line.split(";")[0].strip()
            if not line: continue
            if line.endswith(":") or line.startswith("."):
                self.items.append(line); continue
            I = self._parse(line); I.tag = tag
            self.items.append(I)
    def wv(self, tag): self.items.append(("wv", tag))
    def wl(self, tag): self.items.append(("wl", tag))
    def qsave(self, key): self.items.append(("qsave", key))
    def qload(self, key): self.items.append(("qload", key))
    def sub(self):
        b = Asm(); b.parent = self; return b
    def merge(self, *streams):
        idx = [0]*len(streams); n = [len(s.items) for s in streams]
        tot = sum(n)
        for _ in range(tot):
            best = min((i for i in range(len(streams)) if idx[i] < n[i]), key=lambda i: (idx[i]+0.5)/n[i])
            self.items.append(streams[best].items[idx[best]]); idx[best] += 1
    def extend(self, s): self.items.extend(s.items)
    def _parse(self, line):
        I = Ins(); I.tag = None; I.text = line; I.vw=set(); I.vr=set(); I.sw=set(); I.sr=set(); I.a=I.b=I.c=set(); I.skip = self.skipid if self.skipdepth>0 else 0; I.nops=1; I.passes=0
        parts = line.split(None, 1); op = parts[0]
        ops = []
        if len(parts) > 1:
            ops = [o.strip() for o in re.split(r",(?![^\[]*\])", parts[1])]
            if ops:
                last = ops[-1].split()
                ops[-1] = last[0] if last else ""
                mods = last[1:]
            else: mods = []
        else: mods = []
        def add(tok, w):
            k, r = _regs(tok)
            if k == "v": (I.vw if w else I.vr).update(r)
            elif k == "a": (I.vw if w else I.vr).update({x+1000 for x in r})
            elif k == "s": (I.sw if w else I.sr).update(r)
        def vset(tok):
            k, r = _regs(tok)
            return r if k == "v" else ({x+1000 for x in r} if k=="a" else set())
        base = op.replace("_e32","").replace("_e64","").replace("_dpp","").replace("_sdwa","")
        if op == "s_nop":
            I.cls = "nop"; I.nops = int(ops[0],0)+1
        elif op.startswith("v_mfma"):
            I.cls = "mfma"; I.passes = 8 if "32x32" in op else 4
            add(ops[0], True); I.a = vset(ops[1]); I.b = vset(ops[2]); I.c = vset(ops[3])
            I.vr = I.a | I.b | I.c
        elif op.startswith("v_permlane") and "swap" in op:
            I.cls = "perm"
            for o in ops[:2]: add(o, True); add(o, False)
        elif op.startswith("v_cmp"):
            I.cls = "valu"; add(ops[0], True)
            for o in ops[1:]: add(o, False)
        elif op.startswith("v_readfirstlane") or op.startswith("v_readlane"):
            I.cls = "rdlane"; add(ops[0], True)
            for o in ops[1:]: add(o, False)
        elif op.startswith("v_"):
            I.cls = "trans" if base in TRANS else ("dot" if op.startswith("v_dot") else ("dpp" if "_dpp" in op else "valu"))
            add(ops[0], True)
            for o in ops[1:]: add(o, False)
            if base.startswith("v_fmac") or base.startswith("v_dot2c"): add(ops[0], False)
        elif op.startswith("ds_read") or op.startswith("ds_bpermute") or op.endswith("_rtn_u32"):
            I.cls = "ds"; add(ops[0], True)
            for o in ops[1:]: add(o, False)
        elif op.startswith("ds_"):
            I.cls = "ds"
            for o in ops: add(o, False)
        elif op.startswith("buffer_load") or op.startswith("global_load"):
            if "lds" in mods or "_lds_" in op:
                I.cls = "dma"
                for o in ops: add(o, False)
                I.sr.add(124)
            else:
                I.cls = "vmem"; add(ops[0], True)
                for o in ops[1:]: add(o, False)
                if "d16" in op: add(ops[0], False)
        elif op.startswith("buffer_store") or op.startswith("global_store") or "atomic" in op:
            I.cls = "vmemst"
            for o in ops: add(o, False)
            if "x4" in op or "x3" in op:
                I.a = vset(ops[0]) if op.startswith("buffer") else vset(ops[1])
        elif op.startswith("s_"):
            I.cls = "salu"
            if not (op.startswith("s_cmp") or op.startswith("s_cbranch") or op.startswith("s_branch") or op in ("s_waitcnt","s_barrier","s_endpgm","s_sleep","s_setprio")):
                add(ops[0], True)
                for o in ops[1:]: add(o, False)
                if "saveexec" in op: I.sw.update({126,127})
            else:
                for o in ops: add(o, False)
        else:
            raise ValueError("unknown op " + line)
        return I
    def skippable(self):
        a = self
        class C:
            def __enter__(s):
                if a.skipdepth == 0: a.skipid += 1
                a.skipdepth += 1
            def __exit__(s, *x): a.skipdepth -= 1
        return C()
    @staticmethod
    def _need(p, c):
        n = 0
        VAL = ("valu","trans","dot","dpp","perm","rdlane")
        pv = p.cls in VAL; cv = c.cls in VAL
        if p.cls == "mfma":
            d = p.vw
            big = {8:12, 4:8}[p.passes]
            if c.cls == "mfma":
                if d & (c.a | c.b): n = max(n, big)
                if d & c.c:
                    if not (c.c == d and c.passes == p.passes): n = max(n, big-2)
                elif d & c.vw: n = max(n, big)
            else:
                if d & (c.vr | c.vw): n = max(n, big)
            if cv and (p.c & c.vw): n = max(n, {8:7,4:3}[p.passes])
        if pv:
            if c.cls == "mfma" and (p.vw & c.vr): n = max(n, 3 if p.cls=="dot" else 2)
            if c.cls == "perm" and (p.vw & c.vr): n = max(n, 2)
            if c.cls == "dpp" and (p.vw & c.vr): n = max(n, 2)
            if c.cls == "rdlane" and (p.vw & c.vr): n = max(n, 1)
            if p.cls == "trans" and cv and c.cls != "trans" and (p.vw & c.vr): n = max(n, 1)
            if p.cls == "trans" and c.cls in ("vmemst","ds","vmem","dma") and (p.vw & c.vr): n = max(n, 1)
            if p.cls == "dot" and (p.vw & (c.vr | c.vw)):
                same = c.cls == "dot" and c.text.split()[0] == p.text.split()[0]
                if same:
                    ops = [o.strip() for o in c.text.split(None,1)[1].split(",")]
                    ab = set()
                    for o in ops[1:3]:
                        k, r = _regs(o)
                        if k == "v": ab |= r
                    if p.vw & ab: n = max(n, 3)
                else: n = max(n, 3)
            if p.sw:
                if c.cls in ("vmem","vmemst","dma") and (p.sw & c.sr): n = max(n, 5)
                if cv and (p.sw & c.sr): n = max(n, 4 if c.cls=="rdlane" else 2)
                if cv and c.text.startswith("v_cndmask") and ({106,107} & p.sw): n = max(n, 2)
                if (p.sw & {126,127}) and c.cls == "mfma": n = max(n, 4)
        if p.cls == "salu" and 124 in p.sw and c.cls == "dma": n = max(n, 1)
        if p.cls == "vmemst" and p.a and (p.a & c.vw): n = max(n, 2 if cv else 1)
        return n
    def finish(self):
        out = []
        hist = []
        qv = []; ql = []; saved = {}
        for it in self.items:
            if isinstance(it, str):
                out.append(it); continue
            if isinstance(it, tuple):
                kind, tag = it
                if kind == "retag":
                    qv = [tag[1] if t == tag[0] else t for t in qv]; continue
                if kind == "qsave": saved[tag] = (list(qv), list(ql)); continue
                if kind == "qload": qv, ql = list(saved[tag][0]), list(saved[tag][1]); continue
                q = qv if kind == "wv" else ql
                ix = [i for i, t in enumerate(q) if t == tag]
                if not ix: continue
                nleft = len(q) - 1 - ix[-1]
                lim = 63 if kind == "wv" else 15
                nleft = min(nleft, lim)
                del q[:len(q)-nleft]
                it = self._parse(f"s_waitcnt {'vmcnt' if kind=='wv' else 'lgkmcnt'}({nleft})")
            else:
                if it.text.startswith("s_waitcnt"):
                    m = re.search(r"vmcnt\((\d+)\)", it.text)
                    if m and not it.skip:
                        k = int(m.group(1)); del qv[:max(0, len(qv)-k)]
                    m = re.search(r"lgkmcnt\((\d+)\)", it.text)
                    if m and not it.skip:
                        k = int(m.group(1)); del ql[:max(0, len(ql)-k)]
                elif not it.skip:
                    if it.cls in ("vmem", "vmemst", "dma"): qv.append(it.tag)
                    elif it.cls == "ds": ql.append(it.tag)
            need = 0; dist = 0
            for p in reversed(hist[-40:]):
                r = self._need(p, it)
                if r > dist: need = max(need, r - dist)
                if not p.skip or p.skip == it.skip: dist += p.nops
                if dist >= 24: break
            while need > 0:
                k = min(need, 16)
                N = self._parse(f"s_nop {k-1}"); N.skip = it.skip
                out.append("    " + N.text); hist.append(N); need -= k
            out.append("    " + it.text); hist.append(it)
        return "\n".join(out) + "\n"
```

```python
import sys, os
sys.path.insert(0, "work")
from asmlib import Asm
EXP = os.environ.get("EXP", "").split(",")
INSTR = "instr" in sys.argv
STG = os.environ.get("STG", "main")
NAME = "parallel_sum__linear_kernel_hedgehog__dense_activation_squared_relu__prompt_kernel"
SZ = dict(x=2048*512*2, wqkv=512*1536*2, wphi=32*16*16*2, wo=512*512*2, w1=512*1792*2, b1=1792*2, w2=1792*512*2, b2=512*2, out=2048*512*2, dbg=256)
KSLOT = dict(x=0, wqkv=1, wphi=2, wo=3, w1=5, b1=6, w2=7, b2=8, out=9, dbg=10, ws=11)
AF_TG = 144*1024
KVACC = 64*AF_TG; KV_J = 9216
KVF = KVACC + 8*KV_J
HF = KVF + 8*512
OF = HF + 32*256
EFS = OF + 32*256
EFC = EFS + 16*128
CSP = EFC + 16*128
STAT = CSP + 16*16*1024
STAMPS = STAT + 2048*16
WS_END = STAMPS + 256*8*64
SZ["ws"] = WS_END
LOG2E = "0x3fb8aa3b"
SLOT = 32768; PG = 16384
SPIN = 400000
SLEEP = int(os.environ.get('SLEEP', '4'))
SC = "sc0 sc1"
X, WQ, W1, WS, DBG, WPHI, B1, I1, W2, WO, B2, OUT = 12, 16, 20, 24, 28, 32, 36, 40, 44, 48, 52, 56
def R(s): return f"s[{s}:{s+3}]"
def V(b, n=4): return f"v[{b}:{b+n-1}]"
MF = "v_mfma_f32_32x32x16_bf16"
a = Asm()
nst = [0]
def st(i=None, grp="main"):
    if not INSTR or grp != STG: return
    if i is not None: nst[0] = i
    a(f"s_memrealtime s[{84+2*nst[0]}:{85+2*nst[0]}]"); nst[0] += 1
def L(n): return f"L_{n}"
def fin(x, n, s): x(f"s_mov_b32 s{s+2}, {SZ[n]}\ns_mov_b32 s{s+3}, 0x20000")

a.raw('.amdgcn_target "amdgcn-amd-amdhsa--gfx950"\n.text')
a.raw(f".globl {NAME}\n.p2align 8\n.type {NAME},@function\n{NAME}:")
a(f"s_cmp_ge_u32 s2, 256\ns_cbranch_scc1 {L('end')}")
st(grp=STG)
names = (("x",X),("wqkv",WQ),("w1",W1),("ws",WS),("dbg",DBG),("wphi",WPHI),("b1",B1),("w2",W2),("wo",WO),("b2",B2),("out",OUT))
for n, s in names: a(f"s_load_dwordx2 s[{s}:{s+1}], s[0:1], {KSLOT[n]*8}")
a(f"""
v_and_b32 v1, 63, v0
v_lshrrev_b32 v2, 6, v0
v_readfirstlane_b32 s3, v2
s_bfe_u32 s4, s2, 0x30003
s_bfe_u32 s9, s2, 0x10002
s_lshl_b32 s9, s9, 3
s_add_u32 s4, s4, s9                ; m
s_lshr_b32 s5, s2, 7                ; type
s_and_b32 s6, s2, 3
s_lshl_b32 s6, s6, 1
s_bfe_u32 s10, s2, 0x10006
s_add_u32 s6, s6, s10               ; j   (s10 = j&1)
v_lshrrev_b32 v9, 3, v1
v_and_b32 v10, 7, v1
v_lshrrev_b32 v11, 4, v1
v_xor_b32 v12, v10, v11
v_lshlrev_b32 v13, 10, v9
v_lshl_add_u32 v2, v12, 4, v13
v_xor_b32 v3, 64, v2
v_and_b32 v11, 1, v11
v_lshlrev_b32 v11, 6, v11
v_lshlrev_b32 v12, 4, v10
v_xor_b32 v12, v12, v11
v_mul_u32_u24 v13, 3072, v9
v_add_u32 v4, v13, v12
v_mul_u32_u24 v13, 3584, v9
v_add_u32 v6, v13, v12
v_xor_b32 v14, 32, v4
s_and_b32 s7, s3, 3
s_lshr_b32 s8, s3, 2
s_and_b32 s9, s2, 3
s_mul_i32 s9, s9, 5
s_add_u32 s9, s9, 8
s_mul_i32 s11, s10, 3
s_add_u32 s66, s9, s11              ; I1 block (B)
s_lshl_b32 s61, s6, 7
s_add_u32 s62, s61, 2048
s_lshl_b32 s77, s66, 7
s_add_u32 s78, s61, 1024
s_movk_i32 s63, 3584
s_cmp_eq_u32 s5, 0
s_cselect_b64 vcc, -1, 0
s_cselect_b32 s61, s78, s61         ; I0 col
s_cselect_b32 s62, s62, s77         ; I1 col
s_cselect_b32 s63, 3072, s63
v_cndmask_b32 v5, v6, v14, vcc
s_lshl_b32 s60, s4, 17
s_lshl_b32 s69, s3, 11
s_lshl_b32 s70, s3, 10
s_lshl_b32 s11, s3, 14
s_add_u32 s76, s60, s11
s_mul_i32 s11, s3, {8*3072}
s_add_u32 s82, s61, s11
s_lshl_b32 s11, s3, 3
s_mul_i32 s11, s11, s63
s_add_u32 s83, s62, s11
s_lshl_b32 s75, s63, 6
s_waitcnt lgkmcnt(0)
""")
fin(a, "x", X); fin(a, "wqkv", WQ); fin(a, "w1", W1)
a(f"""
s_cselect_b32 s{I1}, s{WQ}, s{W1}
s_cselect_b32 s{I1+1}, s{WQ+1}, s{W1+1}
s_cselect_b32 s{I1+2}, s{WQ+2}, s{W1+2}
s_mov_b32 s{I1+3}, 0x20000
""") if False else a(f"""
s_cmp_eq_u32 s5, 0
s_cselect_b32 s{I1}, s{WQ}, s{W1}
s_cselect_b32 s{I1+1}, s{WQ+1}, s{W1+1}
s_cselect_b32 s{I1+2}, s{WQ+2}, s{W1+2}
s_mov_b32 s{I1+3}, 0x20000
""")
I2PG = {8: 6, 9: 8, 10: 0, 11: 2}
I3AD = {8: 7*PG, 9: 7*PG+8192, 10: 1*PG, 11: 1*PG+8192}
def dma(c, piece, x=None):
    x = x or a
    t = f"C{c}"
    if c < 8:
        sl = (c % 5)*SLOT
        if piece < 2:
            x(f"s_add_u32 s71, s76, {c*128 + 8192*piece}\ns_add_u32 m0, s69, {sl+1024*piece}")
            x(f"buffer_load_dwordx4 v{2+piece}, {R(X)}, s71 offen lds", t)
        elif piece == 2:
            x(f"s_add_u32 s71, s82, {c*64*3072}\ns_add_u32 m0, s70, {sl+16384}")
            x(f"buffer_load_dwordx4 v4, {R(WQ)}, s71 offen lds", t)
        else:
            x(f"s_add_u32 m0, s70, {sl+24576}\ns_nop 0")
            x(f"buffer_load_dwordx4 v5, {R(I1)}, s83 offen lds", t)
            x("s_add_u32 s83, s83, s75")
    else:
        kb = (c-8)*128*3584
        if piece == 0:
            x(f"s_cmp_eq_u32 s5, 0\ns_cbranch_scc1 {L(f'sk3_{c}')}")
            with x.skippable():
                x(f"s_add_u32 m0, s70, {I3AD[c]}\ns_add_u32 s71, s65, {kb}")
                x(f"buffer_load_dwordx4 v7, {R(W1)}, s71 offen lds")
            x.label(L(f"sk3_{c}"))
        elif piece < 3:
            e = piece-1
            x(f"s_add_u32 m0, s69, {I2PG[c]*PG+1024*e}\ns_add_u32 s71, s64, {kb + e*8*3584}")
            x(f"buffer_load_dwordx4 v6, {R(W1)}, s71 offen lds", t)
def dmac(c):
    for p in range(4): dma(c, p)
dmac(0)
fin(a, "ws", WS); fin(a, "dbg", DBG); fin(a, "wphi", WPHI)
a(f"""
s_add_u32 s67, s66, 1
s_cmp_eq_u32 s5, 0
s_cselect_b32 s67, s6, s67          ; I2 block
s_add_u32 s68, s9, 2
s_lshl_b32 s68, s68, 1
s_add_u32 s68, s68, s10
s_lshl_b32 s64, s67, 7
s_lshl_b32 s65, s68, 6
s_lshl_b32 s79, s5, 3
s_add_u32 s79, s79, s6              ; slot
v_lshrrev_b32 v9, 2, v1
v_and_b32 v10, 3, v1
v_mul_u32_u24 v13, 3584, v9
v_lshl_add_u32 v7, v10, 4, v13
v_lshlrev_b32 v26, 4, v1
v_mov_b32 v19, 0
s_lshl_b32 s9, s79, 13
s_add_u32 s9, s9, s70
s_add_u32 s9, s9, s60
s_lshl_b32 s10, s4, 5
s_lshl_b32 s11, s7, 3
s_add_u32 s10, s10, s11
""")
EARLY = 4*SLOT
a(f"buffer_load_dwordx4 v[120:123], v26, {R(X)}, s9 offen", "E")
a(f"s_or_b32 s9, s2, s3\ns_cmp_eq_u32 s9, 0\ns_cbranch_scc0 {L('nononce')}")
with a.skippable():
    a(f"""
    s_memrealtime s[80:81]
    s_waitcnt lgkmcnt(0)
    s_or_b32 s80, s80, 1
    v_mov_b32 v10, s80
    s_mov_b64 exec, 1
    buffer_store_dword v10, v19, {R(DBG)}, 0 offen {SC}
    s_mov_b64 exec, -1
    """)
a.label(L('nononce'))
a(f"s_lshl_b32 s11, s7, 10\ns_cmp_eq_u32 s8, 0\ns_cbranch_scc0 {L('e1')}")
with a.skippable():
    a(f"""
    s_add_u32 m0, s11, {EARLY}
    s_mul_i32 s71, s10, 3072
    s_add_u32 s71, s71, s61
    buffer_load_dwordx4 v4, {R(WQ)}, s71 offen lds
    s_add_u32 m0, s11, {EARLY+8192}
    s_mul_i32 s71, s10, 3584
    s_add_u32 s71, s71, s64
    buffer_load_dwordx4 v6, {R(W1)}, s71 offen lds
    s_branch {L('e2')}
    """)
a.label(L('e1'))
with a.skippable():
    a(f"""
    s_add_u32 m0, s11, {EARLY+4096}
    s_mul_i32 s71, s10, s63
    s_add_u32 s71, s71, s62
    buffer_load_dwordx4 v5, {R(I1)}, s71 offen lds
    s_add_u32 m0, s11, {EARLY+12288}
    s_cmp_lt_u32 s7, 2
    s_cbranch_scc1 {L('e1b')}
    s_lshl_b32 s9, s6, 11
    s_add_u32 s9, s9, s11
    s_sub_u32 s9, s9, 2048
    buffer_load_dwordx4 v26, {R(WPHI)}, s9 offen lds
    s_branch {L('e2')}
    """)
    a.label(L('e1b'))
    a(f"""
    s_cmp_eq_u32 s5, 0
    s_cbranch_scc1 {L('e2')}
    s_lshl_b32 s9, s7, 3
    s_add_u32 s9, s9, s10
    s_mul_i32 s71, s9, 3584
    s_add_u32 s71, s71, s65
    buffer_load_dwordx4 v7, {R(W1)}, s71 offen lds
    """)
a.label(L('e2'))
dma(1, 0)
a(f"""
s_mul_i32 s11, s3, {16*3584}
s_add_u32 s64, s64, s11
s_add_u32 s65, s65, s11
s_mul_i32 s72, s6, {KV_J}
s_add_u32 s72, s72, {KVACC}
s_cmp_eq_u32 s5, 1
s_cselect_b32 s9, s4, 1
s_cmp_eq_u32 s9, 0
s_cbranch_scc0 {L('nozero')}
""")
with a.skippable():
    a(f"""
    v_lshlrev_b32 v9, 4, v0
    v_mov_b32 v10, 0
    v_mov_b32 v11, 0
    v_mov_b32 v12, 0
    v_mov_b32 v13, 0
    buffer_store_dwordx4 v[10:13], v9, {R(WS)}, s72 offen {SC}
    s_add_u32 s9, s72, 8192
    s_cmp_eq_u32 s3, 0
    s_cbranch_scc0 {L('nozero')}
    buffer_store_dwordx4 v[10:13], v9, {R(WS)}, s9 offen {SC}
    """)
a.label(L('nozero'))
a.items.append(("retag", ("C1", "C1a")))
dma(1, 1); dma(1, 2); dma(1, 3)
a(f"""
v_and_b32 v29, 31, v1
v_lshrrev_b32 v30, 5, v1
v_bfe_u32 v31, v1, 1, 3
v_xor_b32 v31, v31, v30
v_lshlrev_b32 v32, 7, v29
v_lshl_add_u32 v8, v31, 4, v32
s_lshl_b32 s9, s7, 12
v_add_u32 v8, s9, v8
v_xor_b32 v9, 32, v8
v_xor_b32 v10, 64, v8
v_xor_b32 v11, 96, v8
v_bfe_u32 v31, v1, 2, 2
v_lshl_add_u32 v32, v30, 3, v31
v_and_b32 v33, 3, v1
v_lshlrev_b32 v33, 3, v33
v_lshl_add_u32 v34, v32, 7, v33
v_lshl_add_u32 v21, v32, 6, v33
v_lshl_add_u32 v38, v30, 2, v31
v_lshl_add_u32 v38, v38, 5, v33
v_bfe_u32 v33, v1, 4, 1
v_lshl_add_u32 v21, v33, 5, v21
v_and_b32 v31, 2, v31
v_xor_b32 v31, v31, v33
v_lshl_add_u32 v35, v31, 5, v34
s_lshl_b32 s9, s8, 6
v_xor_b32 v20, s9, v35
v_lshlrev_b32 v33, 13, v33
v_add_u32 v34, v20, v33
v_xor_b32 v36, 32, v34
v_add_u32 v37, 8192, v20
v_cndmask_b32 v12, v20, v34, vcc
v_cndmask_b32 v13, v37, v36, vcc
v_add_u32 v12, 16384, v12
v_add_u32 v13, 16384, v13
v_mov_b32 v22, 0x3f803f80
s_lshl_b32 s9, s8, 10
s_add_u32 s9, s9, {EARLY+14336}
v_add_u32 v18, s9, v38
s_and_b32 s9, s3, 1
s_lshl_b32 s9, s9, 6
s_lshr_b32 s10, s3, 1
s_cmp_eq_u32 s10, 1
s_cselect_b32 s11, 32, 0
s_cmp_eq_u32 s5, 0
s_cselect_b32 s11, s11, 0
s_or_b32 s9, s9, s11
v_xor_b32 v14, s9, v35
s_lshl_b32 s10, s10, 12
s_add_u32 s10, s10, {EARLY}
v_add_u32 v14, s10, v14
v_add_u32 v15, 512, v14
v_add_u32 v16, 2048, v14
v_add_u32 v17, 2560, v14
s_cmp_ge_u32 s3, 6
s_cbranch_scc0 {L('e3')}
""")
with a.skippable():
    a(f"v_add_u32 v14, {EARLY+12288}, v21\nv_add_u32 v15, 256, v14\nv_add_u32 v16, 1024, v14\nv_add_u32 v17, 1280, v14")
a.label(L('e3'))
a(f"buffer_load_dword v127, v19, {R(DBG)}, 0 offen {SC}", "N0")
st()
ACC0, ACC1, ACC2, XF = 64, 80, 112, 128
a.wv("C1a"); a("s_barrier")
st(grp="A")
CSL = 9*PG
def rdA(p):
    i = p & 3; b = 96 + 8*(p % 3); c = p >> 2
    a(f"ds_read_b128 {V(XF+4*p)}, v{8+i}", f"P{p}")
    for t in range(2):
        for e in range(2):
            a(f"ds_read_b64_tr_b16 {V(b+4*t+2*e,2)}, v{12+t} offset:{i*2048+e*512}", f"P{p}")
    if c < 7:
        d = (SLOT if (c % 5) != 4 else -4*SLOT) & 0xffffffff
        a(f"v_add_u32 v{8+i}, {d}, v{8+i}")
        if i == 3: a(f"v_add_u32 v12, {d}, v12\nv_add_u32 v13, {d}, v13")
for k, ad in enumerate((14, 15, 16, 17)): a(f"ds_read_b64_tr_b16 {V(48+2*k,2)}, v{ad}", "EW")
for h in range(2):
    for e in range(2): a(f"ds_read_b64_tr_b16 {V(32+4*h+2*e,2)}, v18 offset:{h*512+e*256}", "EW2")
rdA(0); rdA(1)
a("v_mov_b32 v124, 0\nv_mov_b32 v125, 0\nv_mov_b32 v126, 0")
for q in range(4):
    a(f"v_dot2_f32_bf16 v124, v{120+q}, v22, v124\nv_dot2_f32_bf16 v125, v{120+q}, v{120+q}, v125")
a.wl("EW")
for q in range(8): a(f"v_dot2_f32_bf16 v126, v{48+q}, v22, v126")
for dpp in ("quad_perm:[1,0,3,2]", "quad_perm:[2,3,0,1]", "row_half_mirror", "row_mirror"):
    a(f"v_add_f32_dpp v124, v124, v124 {dpp} row_mask:0xf bank_mask:0xf\nv_add_f32_dpp v125, v125, v125 {dpp} row_mask:0xf bank_mask:0xf")
a(f"""
v_permlane16_swap_b32 v124, v125
v_add_f32 v124, v124, v125
v_mov_b32 v56, v126
v_mov_b32 v125, v124
v_permlane32_swap_b32 v126, v56
v_permlane32_swap_b32 v124, v125
v_add_f32 v126, v126, v56
v_add_f32 v124, v124, v125
v_mov_b32 v125, v124
v_permlane16_swap_b32 v124, v125
v_mul_f32 v124, 0x3b000000, v124
v_mul_f32 v125, 0x3b000000, v125
v_fma_f32 v125, -v124, v124, v125
v_max_f32 v125, 0, v125
v_add_f32 v125, 0x3727c5ac, v125
v_rsq_f32 v122, v125
v_sub_f32 v124, 0, v124
v_mul_f32 v125, v125, v122
v_cvt_pk_bf16_f32 v56, v124, v125
v_and_b32 v57, 0xffff0000, v56
v_lshlrev_b32 v58, 16, v56
v_sub_f32 v59, v124, v58
v_sub_f32 v60, v125, v57
v_cvt_pk_bf16_f32 v120, v58, v59
v_cvt_pk_bf16_f32 v121, v57, v60
s_lshl_b32 s10, s4, 7
s_lshl_b32 s11, s79, 3
s_add_u32 s10, s10, s11
s_add_u32 s10, s10, s3
s_lshl_b32 s10, s10, 4
s_add_u32 s10, s10, {STAT}
s_lshl_b32 s11, s79, 14
s_lshl_b32 s71, s4, 10
s_add_u32 s11, s11, s71
s_lshl_b32 s71, s3, 7
s_add_u32 s11, s11, s71
s_add_u32 s11, s11, {CSP}
v_lshlrev_b32 v56, 2, v1
s_mov_b64 exec, 1
buffer_store_dwordx4 v[120:123], v19, {R(WS)}, s10 offen {SC}
s_mov_b32 exec_lo, -1
buffer_store_dword v126, v56, {R(WS)}, s11 offen {SC}
s_mov_b64 exec, -1
""")
dmac(2)
for p in range(32):
    c = p >> 2; i = p & 3
    if i == 2 and c < 7:
        a.wv(f"C{c+1}"); a("s_barrier")
        st(grp="A")
        if c == 1:
            a(f"s_cmp_eq_u32 s3, 0\ns_cbranch_scc0 {L('nofl')}")
            with a.skippable():
                a("s_mov_b32 s71, 0")
                a.label(L('nspin'))
                a(f"""
                v_readfirstlane_b32 s9, v127
                s_add_u32 s71, s71, 1
                s_cmp_gt_u32 s71, {SPIN}
                s_cbranch_scc1 {L('nok')}
                s_cmp_lg_u32 s9, 0
                s_cbranch_scc1 {L('nok')}
                buffer_load_dword v127, v19, {R(DBG)}, 0 offen {SC}
                s_waitcnt vmcnt(0)
                s_branch {L('nspin')}
                """)
                a.label(L('nok'))
                a(f"""
                s_lshl_b32 s10, s4, 7
                s_lshl_b32 s11, s79, 2
                s_add_u32 s10, s10, s11
                s_lshl_b32 s11, s79, 7
                s_lshl_b32 s71, s4, 2
                s_add_u32 s11, s11, s71
                s_add_u32 s11, s11, {EFC-EFS}
                v_mov_b32 v14, s10
                v_writelane_b32 v14, s11, 1
                s_mov_b32 s10, {EFS}
                s_mov_b64 exec, 3
                buffer_store_dword v127, v14, {R(WS)}, s10 offen {SC}
                s_mov_b64 exec, -1
                """)
            a.label(L('nofl'))
        if c == 5:
            a(f"buffer_load_dword v127, v19, {R(DBG)}, 0 offen {SC}", "FL")
            a(f"buffer_load_dword v15, v18, {R(WS)}, 0 offen {SC}", "FL")
        if c == 6:
            a.wv("FL")
            a("s_mov_b32 s71, 0")
            a.label(L('fspin'))
            a(f"""
            v_readfirstlane_b32 s75, v127
            v_cmp_ne_u32 vcc, v15, v127
            s_cmp_eq_u32 s75, 0
            s_cselect_b64 vcc, -1, vcc
            s_cmp_eq_u64 vcc, 0
            s_cbranch_scc1 {L('fok')}
            s_add_u32 s71, s71, 1
            s_cmp_gt_u32 s71, {SPIN}
            s_cbranch_scc1 {L('fok')}
            """)
            with a.skippable():
                a(f"buffer_load_dword v127, v19, {R(DBG)}, 0 offen {SC}\nbuffer_load_dword v15, v18, {R(WS)}, 0 offen {SC}\ns_waitcnt vmcnt(0)\ns_branch {L('fspin')}")
            a.label(L('fok'))
            a(f"""
            v_and_b32 v14, 31, v1
            v_lshlrev_b32 v14, 4, v14
            s_lshl_b32 s9, s4, 11
            s_lshl_b32 s10, s7, 9
            s_add_u32 s9, s9, s10
            s_add_u32 s9, s9, {STAT}
            """)
            a(f"buffer_load_dwordx4 v[120:123], v14, {R(WS)}, s9 offen {SC}", "ST")
            a(f"s_lshl_b32 s9, s79, 14\ns_add_u32 s9, s9, s69\ns_add_u32 s9, s9, {CSP}\ns_add_u32 m0, s69, {CSL}")
            a(f"buffer_load_dwordx4 v26, {R(WS)}, s9 offen {SC} lds", "ST")
            a(f"buffer_load_dwordx4 v26, {R(WS)}, s9 offen offset:1024 {SC} lds", "ST")
    if p < 2: dma(3, 2*p); dma(3, 2*p+1)
    else:
        cc = ((p-2) >> 2) + 4
        if cc <= 10: dma(cc, (p-2) & 3)
        if p == 29: dma(11, 0)
    if p+2 < 32: rdA(p+2)
    a.wl(f"P{p}")
    b = 96 + 8*(p % 3)
    for t in range(2):
        acc = (ACC0, ACC1)[t]
        a(f"{MF} {V(acc,16)}, {V(b+4*t)}, {V(XF+4*p)}, {V(acc,16) if p else 0}")
    if p == 3:
        fin(a, "b1", B1)
        a(f"""
        s_lshl_b32 s66, s66, 1
        s_lshl_b32 s67, s67, 1
        s_add_u32 s66, s66, s8
        s_add_u32 s67, s67, s8
        v_lshlrev_b32 v40, 1, v29
        s_lshl_b32 s9, s66, 6
        s_lshl_b32 s10, s67, 6
        s_lshl_b32 s11, s68, 6
        """)
        a(f"buffer_load_ushort v29, v40, {R(B1)}, s9 offen", "S")
        a(f"buffer_load_ushort v30, v40, {R(B1)}, s10 offen", "S")
        a(f"buffer_load_ushort v31, v40, {R(B1)}, s11 offen", "S")
    if p == 4:
        fin(a, "w2", W2); fin(a, "wo", WO); fin(a, "b2", B2); fin(a, "out", OUT)
    if p == 5:
        a(f"""
        s_lshl_b32 s9, s6, 2
        s_lshl_b32 s10, s8, 1
        s_add_u32 s73, s9, s10
        s_lshl_b32 s74, s4, 2
        s_add_u32 s74, s74, s7
        s_mul_i32 s74, s74, {AF_TG}
        """)
    if p == 8:
        a(f"""
        v_and_b32 v40, 15, v1
        v_lshlrev_b32 v40, 2, v40
        s_lshl_b32 s9, s4, 7
        s_add_u32 s9, s9, {EFS}
        s_lshl_b32 s10, s79, 7
        s_add_u32 s10, s10, {EFC}
        v_add_u32 v18, s9, v40
        v_add_u32 v41, s10, v40
        v_lshrrev_b32 v42, 4, v1
        v_cmp_eq_u32 vcc, 1, v42
        v_cndmask_b32 v18, v18, v41, vcc
        s_lshl_b32 s9, s6, 2
        s_add_u32 s9, s9, {EFS+32}
        v_writelane_b32 v18, s9, 32
        """)
    if p == 4 and "nopf" not in EXP:
        a(f"""
        s_lshr_b32 s9, s2, 3
        s_lshl_b32 s9, s9, 3
        s_add_u32 s9, s9, s3               ; unit 0..255
        s_mul_i32 s10, s9, {56*128}
        s_lshl_b32 s11, s9, 11
        v_lshlrev_b32 v40, 7, v1
        v_min_u32 v41, {55*128}, v40
        v_and_b32 v40, {15*128}, v40
        """)
        a(f"buffer_load_dword v124, v41, {R(W2)}, s10 offen", "PF")
        a(f"buffer_load_dword v125, v40, {R(WO)}, s11 offen", "PF")
    if p == 14:
        a.wv("S")
        a("v_cmp_gt_u32 vcc, 32, v1")
        for q in range(3): a(f"v_lshl_or_b32 v{29+q}, v{29+q}, 16, v{29+q}\nv_cndmask_b32 v{29+q}, 0, v{29+q}, vcc")
        a("v_and_b32 v40, 31, v1\nv_lshrrev_b32 v41, 5, v1\nv_lshlrev_b32 v42, 2, v41\nv_sub_u32 v42, v40, v42\nv_mov_b32 v43, 0x3f80\nv_mov_b32 v44, 0x3f800000")
    if 15 <= p < 23:
        k = p-15; sg = k >> 2; q = k & 3
        f0 = (2*q & 3) + 8*((2*q) >> 2) + 16*sg; dst = 48 + k
        a(f"v_cmp_eq_u32 vcc, {f0}, v42\nv_cndmask_b32 v{dst}, 0, v43, vcc\nv_cmp_eq_u32 vcc, {f0+1}, v42\nv_cndmask_b32 v{dst}, v{dst}, v44, vcc")
    if p == 24:
        a(f"""
        v_lshlrev_b32 v45, 13, v41
        v_lshl_add_u32 v27, v40, 2, v45
        v_add_u32 v27, {CSL}, v27
        v_bfe_u32 v42, v1, 4, 1
        v_mul_u32_u24 v42, 192, v42
        v_add_u32 v28, v27, v42
        s_lshl_b32 s9, s8, 7
        v_add_u32 v28, s9, v28
        v_add_u32 v27, s9, v27
        """)
    if p == 25:
        a(f"""
        v_lshl_add_u32 v42, v41, 4, v40
        v_lshlrev_b32 v42, 6, v42           ; (half*16+col)*64
        s_lshl_b32 s9, s7, 12
        s_mul_i32 s10, s8, {6*PG}
        s_add_u32 s9, s9, s10
        s_add_u32 s9, s9, {PG}
        v_add_u32 v42, s9, v42
        v_lshlrev_b32 v43, 6, v41
        s_lshl_b32 s9, s7, 12
        s_lshl_b32 s10, s8, 7
        s_add_u32 s9, s9, s10
        v_add_u32 v43, s9, v43
        v_cmp_eq_u32 vcc, 16, v40
        v_cndmask_b32 v0, v42, v43, vcc
        v_cndmask_b32 v17, 0, v22, vcc
        v_cmp_gt_u32 s[80:81], 17, v40
        """)
    if p == 26 or p == 27:
        pass
st(); st(grp="B")
a.wv("ST"); a("s_barrier")
st(grp="B")
dma(11, 1); dma(11, 2)
a(f"""
v_and_b32 v44, 0xffff, v120
v_lshl_or_b32 v40, v44, 16, v44
v_lshrrev_b32 v44, 16, v120
v_lshl_or_b32 v41, v44, 16, v44
v_mov_b32 v42, v121
v_mov_b32 v43, 0
v_mov_b32 v23, v122
v_mul_f32 v24, {LOG2E}, v122
v_mul_f32 v25, 0.5, v122
v_mov_b32 v47, 0
""")
a(f"""
v_lshrrev_b32 v14, 3, v1
v_and_b32 v15, 7, v1
v_lshrrev_b32 v16, 2, v1
v_and_b32 v16, 4, v16
v_xor_b32 v15, v15, v16
v_lshlrev_b32 v14, 10, v14
v_lshl_add_u32 v18, v15, 4, v14
s_and_b32 s82, s2, 7
s_lshl_b32 s82, s82, 2
s_bfe_u32 s9, s2, 0x20003
s_add_u32 s82, s82, s9
s_lshr_b32 s62, s2, 5
s_lshl_b32 s62, s62, 7
s_mul_i32 s60, s3, {14*16*1024}
s_add_u32 s60, s60, s62
s_add_u32 s83, s60, {14*16384}
s_lshl_b32 s63, s3, 16
s_add_u32 s63, s63, s62
s_lshr_b32 s76, s2, 5
s_mul_i32 s76, s76, 7
s_lshr_b32 s76, s76, 2
s_mul_i32 s9, s9, 3
s_add_u32 s76, s76, s9
s_cmp_ge_u32 s76, 14
s_cselect_b32 s9, 14, 0
s_sub_u32 s76, s76, s9
{"s_mov_b32 s76, 0" if "norot" in EXP else ""}
s_lshl_b32 s61, s76, 14
s_add_u32 s61, s61, s60
""")
W2PG = [3, 4, 5, 6, 8, 9, 0, 2, 1]
def p2_dma(x, u, tag):
    pg = W2PG[u % 9]
    for half in range(2):
        x(f"s_add_u32 m0, s69, {pg*PG + half*1024}")
        if u < 14:
            if half == 0:
                x(f"s_add_u32 s71, s61, 8192\nbuffer_load_dwordx4 v18, {R(W2)}, s61 offen lds", tag)
            else:
                x(f"s_add_u32 s61, s61, 16384\nbuffer_load_dwordx4 v18, {R(W2)}, s71 offen lds", tag)
                x("s_cmp_eq_u32 s61, s83\ns_cselect_b32 s61, s60, s61")
        else:
            x(f"s_add_u32 s71, s63, {((u-14)*16+half*8)*1024}")
            x(f"buffer_load_dwordx4 v18, {R(WO)}, s71 offen lds", tag)
def cs_rd(x, dst, addr, off, tag):
    for g in range(8): x(f"ds_read_b32 v{dst+g}, v{addr} offset:{g*1024+off}", tag)
def corr(x, acc, src, b1reg, first):
    x(f"""
    v_add_f32 v{src}, v{src}, v{src+1}
    v_add_f32 v{src+2}, v{src+2}, v{src+3}
    v_add_f32 v{src+4}, v{src+4}, v{src+5}
    v_add_f32 v{src+6}, v{src+6}, v{src+7}
    v_add_f32 v{src}, v{src}, v{src+2}
    v_add_f32 v{src+4}, v{src+4}, v{src+6}
    v_add_f32 v{src}, v{src}, v{src+4}
    v_cvt_pk_bf16_f32 v{src+1}, v{src}, v{src}
    v_and_b32 v{src+1}, 0xffff0000, v{src+1}
    v_sub_f32 v{src+2}, v{src}, v{src+1}
    v_cvt_pk_bf16_f32 v44, v{src+1}, v{src+2}
    v_cvt_pk_bf16_f32 v45, v{src+1}, v{src+2}
    v_mov_b32 v46, {b1reg}
    {MF} {V(acc,16)}, v[44:47], v[40:43], {0 if first else V(acc,16)}
    """)
def softmax(x, P, Pp, Pm):
    E = 56
    x(f"""
    v_max3_f32 v6, v{P}, v{P+1}, v{P+2}
    v_max3_f32 v7, -v{P}, -v{P+1}, -v{P+2}
    v_max3_f32 v6, v6, v{P+3}, v{P+4}
    v_max3_f32 v7, v7, -v{P+3}, -v{P+4}
    v_max3_f32 v6, v6, v{P+5}, v{P+6}
    v_max3_f32 v7, v7, -v{P+5}, -v{P+6}
    v_max_f32 v6, v6, v{P+7}
    v_max_f32_e64 v7, v7, -v{P+7}
    v_permlane32_swap_b32 v6, v7
    v_max_f32 v6, v6, v7
    v_mul_f32_e64 v6, -v6, v24
    v_mov_b32 v7, v6
    v_permlane32_swap_b32 v6, v7
    """)
    for r in range(8): x(f"v_fma_f32 v{E+r}, -v{P+r}, v24, v7\nv_fma_f32 v{P+r}, v{P+r}, v24, v6")
    for r in range(8): x(f"v_exp_f32 v{E+r}, v{E+r}\nv_exp_f32 v{P+r}, v{P+r}")
    x(f"v_add_f32 v6, v{P}, v{P+1}\nv_add_f32 v7, v{E}, v{E+1}")
    for r in range(2, 8): x(f"v_add_f32 v6, v6, v{P+r}\nv_add_f32 v7, v7, v{E+r}")
    x("v_permlane32_swap_b32 v6, v7\nv_add_f32 v6, v6, v7\nv_rcp_f32 v6, v6\nv_mov_b32 v7, v6\nv_permlane32_swap_b32 v6, v7")
    for r in range(8): x(f"v_mul_f32 v{P+r}, v{P+r}, v6\nv_mul_f32 v{E+r}, v{E+r}, v7")
    for q in range(4): x(f"v_cvt_pk_bf16_f32 v{Pp+q}, v{P+2*q}, v{P+2*q+1}\nv_cvt_pk_bf16_f32 v{Pm+q}, v{E+2*q}, v{E+2*q+1}")
def ffn_epi(x, acc, s_tile):
    for r in range(16): x(f"v_add_f32_e64 v{acc+r}, v{acc+r}, |v{acc+r}|")
    for r in range(16): x(f"v_mul_f32 v{acc+r}, v{acc+r}, v25")
    for r in range(16): x(f"v_mul_f32 v{acc+r}, v{acc+r}, v{acc+r}")
    for q in range(8): x(f"v_cvt_pk_bf16_f32 v{acc+q}, v{acc+2*q}, v{acc+2*q+1}")
    x(f"s_lshl_b32 s9, s{s_tile}, 11\ns_add_u32 s9, s9, s74")
    x(f"buffer_store_dwordx4 {V(acc)}, v26, {R(WS)}, s9 offen {SC}", "H")
    x(f"buffer_store_dwordx4 {V(acc+4)}, v26, {R(WS)}, s9 offen offset:1024 {SC}", "H")
def passB(x, two, bufs):
    def rd(k):
        c = 8 + k//8; kk = k % 8
        if kk == 0:
            x(f"v_add_u32 v{12+(c&1)}, {I2PG[c]*PG}, v20")
            if two: x(f"v_add_u32 v{14+(c&1)}, {I3AD[c]}, v21")
        lo, hi = bufs[k % 3]
        for e in range(2): x(f"ds_read_b64_tr_b16 {V(lo+2*e,2)}, v{12+(c&1)} offset:{kk*2048+e*512}", f"B{k}")
        if two:
            for e in range(2): x(f"ds_read_b64_tr_b16 {V(hi+2*e,2)}, v{14+(c&1)} offset:{kk*1024+e*256}", f"B{k}")
    rd(0); rd(1)
    for k in range(32):
        if k == 22: x.wv("C11"); x("s_barrier")
        if "latedma" in EXP:
            if k == 31:
                for u in range(6): p2_dma(x, u, "D1")
        else:
            if k in (2, 8, 14): p2_dma(x, (k-2)//6, "D1")
            if k in (23, 26, 29): p2_dma(x, 3 + (k-23)//3, "D1")
        if k+2 < 32: rd(k+2)
        x.wl(f"B{k}")
        lo, hi = bufs[k % 3]
        x(f"{MF} {V(ACC2,16)}, {V(lo)}, {V(XF+4*k)}, {V(ACC2,16)}")
        if two: x(f"{MF} {V(ACC1,16)}, {V(hi)}, {V(XF+4*k)}, {V(ACC1,16)}")
def domerge(E, Bs):
    if "noE" in EXP: a.extend(Bs)
    elif "noB" in EXP:
        a.extend(E); a.wv("C11"); a("s_barrier")
        for u in range(6): p2_dma(a, u, "D1")
    elif "seq" in EXP: a.extend(E); a.extend(Bs)
    else: a.merge(E, Bs)
def flag_store(soff):
    a(f"""
    v_mov_b32 v8, s75
    s_mov_b64 exec, 1
    buffer_store_dword v8, v19, {R(WS)}, {soff} offen {SC}
    s_mov_b64 exec, -1
    """)
def poll(tagl, soff, nlanes_mask, wide=False, drain=True):
    a(f"s_cmp_eq_u32 s3, 0\ns_cbranch_scc0 {L(tagl+'ok')}")
    with a.skippable():
        a(f"s_mov_b32 s79, 0\nv_lshlrev_b32 v8, {3 if wide else 2}, v1")
        a.label(L(tagl))
        if wide: a(f"buffer_load_dwordx2 v[10:11], v8, {R(WS)}, {soff} offen {SC}")
        else: a(f"buffer_load_dword v10, v8, {R(WS)}, {soff} offen {SC}")
        a("s_waitcnt vmcnt(0)\nv_cmp_ne_u32 vcc, s75, v10")
        if wide: a("v_cmp_ne_u32 s[80:81], s75, v11\ns_or_b64 vcc, vcc, s[80:81]")
        if nlanes_mask == 32: a("s_mov_b32 vcc_hi, 0")
        a(f"""
        s_cmp_eq_u64 vcc, 0
        s_cbranch_scc1 {L(tagl+'ok')}
        s_add_u32 s79, s79, 1
        s_cmp_gt_u32 s79, {SPIN}
        s_cbranch_scc1 {L(tagl+'ok')}
        s_sleep {SLEEP}
        s_branch {L(tagl)}
        """)
    a.label(L(tagl+'ok'))
    if drain: a("s_waitcnt vmcnt(0)")
    a("s_barrier")
WREG = 128; P2ACC = 64; WTMP = 48
def p2_traddr():
    a(f"""
    v_lshrrev_b32 v8, 5, v1
    v_bfe_u32 v9, v1, 2, 2
    v_lshl_add_u32 v8, v8, 2, v9
    v_lshlrev_b32 v8, 7, v8
    v_and_b32 v10, 3, v1
    v_lshl_add_u32 v8, v10, 3, v8
    v_bfe_u32 v10, v1, 4, 1
    v_and_b32 v9, 2, v9
    v_or_b32 v10, v10, v9
    v_lshl_add_u32 v2, v10, 5, v8
    v_add_u32 v2, s69, v2
    v_xor_b32 v3, 64, v2
    v_add_u32 v4, 0x10000, v2
    v_add_u32 v5, 0x10000, v3
    v_add_u32 v6, 0x20000, v2
    v_add_u32 v7, 0x20000, v3
    """)
def p2_tr(dst, u, tag):
    pg = W2PG[u % 9]
    for b in range(2):
        for e in range(2):
            a(f"ds_read_b64_tr_b16 {V(dst+4*b+2*e,2)}, v{2+2*(pg>>2)+b} offset:{(pg&3)*PG+e*1024}", tag)
def hflag():
    a(f"""
    s_lshl_b32 s9, s4, 1
    s_lshr_b32 s10, s7, 1
    s_add_u32 s9, s9, s10
    s_lshl_b32 s9, s9, 8
    s_lshl_b32 s10, s79, 2
    s_lshl_b32 s11, s8, 1
    s_add_u32 s10, s10, s11
    s_and_b32 s11, s7, 1
    s_add_u32 s10, s10, s11
    s_lshl_b32 s10, s10, 2
    s_add_u32 s77, s9, s10
    s_add_u32 s9, s77, {HF}
    """)
    flag_store("s9")

a(f"s_cmp_eq_u32 s5, 0\ns_cbranch_scc0 {L('typeB')}")
a.qsave("br")
cs_rd(a, 96, 28, 0, "Q0"); cs_rd(a, 104, 28, 64, "Q1"); cs_rd(a, 56, 27, 512, "Q2")
a("v_mov_b32 v21, v17")
a.wl("Q0"); corr(a, ACC0, 96, "0", False)
a.wl("Q1"); corr(a, ACC1, 104, "0", False)
a.wl("Q2"); corr(a, ACC2, 56, "v30", True)
st(grp="B")
E = a.sub(); Bs = a.sub()
T = 96
for h in range(2):
    acc = (ACC0, ACC1)[h]
    for q in range(4): E(f"v_cvt_pk_bf16_f32 v{44+q}, v{acc+2*q}, v{acc+2*q+1}")
    E(f"{MF} {V(T,16)}, {V(32+4*h)}, v[44:47], 0")
    for r in range(8, 16): E(f"v_mul_f32 v{acc+r}, v{acc+r}, v23")
    for q in range(4): E(f"v_cvt_pk_bf16_f32 v{44+q}, v{acc+8+2*q}, v{acc+9+2*q}")
    E(f"{MF} {V(acc,16)}, v[44:47], v[48:51], 0")
    softmax(E, T, 44, 56)
    E(f"{MF} {V(T,16)}, v[44:47], v[48:51], 0")
    E(f"{MF} {V(T,16)}, v[56:59], v[52:55], {V(T,16)}")
    for q in range(8): E(f"v_cvt_pk_bf16_f32 v{56+q}, v{acc+2*q}, v{acc+2*q+1}\nv_or_b32 v{56+q}, v{56+q}, v21")
    for q in range(8): E(f"v_cvt_pk_bf16_f32 v{T+q}, v{T+2*q}, v{T+2*q+1}")
    E(f"{MF} {V(acc,16)}, {V(T)}, v[56:59], 0")
    E(f"{MF} {V(acc,16)}, {V(T+4)}, v[60:63], {V(acc,16)}")
passB(Bs, False, ((2,0),(8,0),(14,0)))
domerge(E, Bs)
st(grp="B")
a("s_mov_b64 exec, s[80:81]")
for h in range(2):
    for q in range(4): a(f"ds_write_b128 v0, {V((ACC0,ACC1)[h]+4*q)} offset:{h*2048+16*q}")
a("s_mov_b64 exec, -1")
a(f"""
v_lshlrev_b32 v8, 2, v1
s_lshl_b32 s9, s3, 8
v_add_u32 v11, s9, v8
v_add_u32 v12, {7*PG}, v11
v_and_b32 v13, 0x7c, v8
v_lshrrev_b32 v14, 5, v1
v_lshl_add_u32 v13, v14, 11, v13
s_lshl_b32 s9, s3, 7
v_add_u32 v13, s9, v13
""")
a("s_waitcnt lgkmcnt(0)\ns_barrier")
st(); st(grp="B")
for rho in range(4):
    for g in range(4):
        if rho < 2: a(f"ds_read_b32 v{64+4*rho+g}, v11 offset:{PG+g*4096+rho*2048}", f"KV{rho}")
        else: a(f"ds_read_b32 v{64+4*rho+g}, v12 offset:{g*4096+(rho-2)*2048}", f"KV{rho}")
for g in range(4): a(f"ds_read_b32 v{80+g}, v13 offset:{g*4096}", "KV4")
for rho in range(5):
    b = 64+4*rho
    a.wl(f"KV{rho}")
    a(f"v_add_f32 v{b}, v{b}, v{b+1}\nv_add_f32 v{b+2}, v{b+2}, v{b+3}\nv_add_f32 v{b}, v{b}, v{b+2}")
    if rho == 4:
        pass
a(f"s_cmp_lt_u32 s3, 2\ns_cbranch_scc0 {L('noat')}")
with a.skippable():
    a(f"s_add_u32 s9, s72, 8192\nbuffer_atomic_add_f32 v80, v11, {R(WS)}, s9 offen")
a.label(L('noat'))
a("s_add_u32 s9, s72, 4096")
for rho in range(4):
    a(f"buffer_atomic_add_f32 v{64+4*rho}, v11, {R(WS)}, {'s72' if rho < 2 else 's9'} offen offset:{(rho&1)*2048}", "AT")
ffn_epi(a, ACC2, 67)
p2_traddr()
a("s_barrier")
st(grp="B")
a.wv("D1")
for u in range(6): p2_tr(WREG+8*u, u, "W1")
for u in range(6, 8): p2_dma(a, u, "D1b")
a.wv("H")
st(grp="B")
a(f"""
s_lshl_b32 s9, s6, 9
s_lshl_b32 s10, s4, 5
s_add_u32 s9, s9, s10
s_lshl_b32 s10, s3, 2
s_add_u32 s9, s9, s10
s_add_u32 s9, s9, {KVF}
""")
flag_store("s9")
hflag()
st()
a("s_barrier")
p2_dma(a, 8, "D1b")
a.wl("W1")
for u in range(9, 15): p2_dma(a, u, "D2")
a.wv("D1b")
for u in range(6, 9): p2_tr(WREG+8*u, u, "W1")
a.wl("W1")
for u in range(15, 18): p2_dma(a, u, "D2")
a(f"s_branch {L('phase2')}")
a.label(L('typeB'))
a.qload("br")
a("s_nop 7")
cs_rd(a, 96, 27, 256, "Q1"); cs_rd(a, 104, 27, 0, "Q0"); cs_rd(a, 56, 27, 512, "Q2")
a.wl("Q1"); corr(a, ACC1, 96, "v29", False)
a.wl("Q0"); corr(a, ACC0, 104, "0", False)
a.wl("Q2"); corr(a, ACC2, 56, "v30", True)
cs_rd(a, 96, 27, 768, "Q3")
ffn_epi(a, ACC1, 66)
for q in range(8): a(f"v_cvt_pk_bf16_f32 v{48+q}, v{ACC0+2*q}, v{ACC0+2*q+1}")
a.wl("Q3")
def epiB(x):
    for h in range(2):
        x(f"{MF} {V(ACC0,16)}, {V(32+4*h)}, {V(48+4*h)}, 0")
        softmax(x, ACC0, 32+4*h, 48+4*h)
st(3, grp="B")
a(f"s_cmp_eq_u32 s8, 0\ns_cbranch_scc1 {L('B2')}")
a.qsave("b2")
E = a.sub(); Bs = a.sub(); epiB(E); passB(Bs, False, ((96,0),(104,0),(2,0))); domerge(E, Bs)
ffn_epi(a, ACC2, 67)
a(f"s_branch {L('Bj')}")
a.label(L('B2'))
a.qload("b2")
corr(a, ACC1, 96, "v31", True)
E = a.sub(); Bs = a.sub(); epiB(E); passB(Bs, True, ((96,100),(104,108),(2,8))); domerge(E, Bs)
ffn_epi(a, ACC2, 67); ffn_epi(a, ACC1, 68)
a.label(L('Bj'))
st(3); st(4, grp="B"); st(grp="B")
p2_traddr()
a("s_barrier")
st(grp="B")
for u in range(6, 8): p2_dma(a, u, "D1b")
a.wv("H")
st(grp="B")
hflag()
for u in range(6): p2_tr(WREG+8*u, u, "W1")
a("s_barrier")
p2_dma(a, 8, "D1b")
a.wl("W1")
for u in range(9, 15): p2_dma(a, u, "D2")
a.wv("D1b")
for u in range(6, 9): p2_tr(WREG+8*u, u, "W1")
a.wl("W1")
for u in range(15, 18): p2_dma(a, u, "D2")
a(f"s_lshl_b32 s9, s6, 9\ns_add_u32 s64, s9, {KVF}")
poll("pk", "s64", 64, wide=True)
st()
KVL = 7*PG
a(f"s_add_u32 m0, s70, {KVL}\ns_add_u32 s9, s72, s70")
a(f"buffer_load_dwordx4 v26, {R(WS)}, s9 offen {SC} lds")
a(f"s_cmp_eq_u32 s3, 0\ns_cbranch_scc0 {L('k9')}")
with a.skippable():
    a(f"s_mov_b32 m0, {KVL+8192}\ns_add_u32 s9, s72, 8192\nbuffer_load_dwordx4 v26, {R(WS)}, s9 offen {SC} lds")
a.label(L('k9'))
a(f"""
v_and_b32 v11, 31, v1
v_lshrrev_b32 v12, 5, v1
v_lshl_add_u32 v13, v12, 4, v11
v_lshlrev_b32 v13, 6, v13
s_lshl_b32 s10, s8, 12
s_add_u32 s10, s10, {KVL}
v_add_u32 v13, s10, v13
v_add_u32 v14, 2048, v13
v_lshlrev_b32 v12, 6, v12
s_lshl_b32 s10, s8, 8
s_add_u32 s10, s10, {KVL+8192}
v_add_u32 v12, s10, v12
v_add_u32 v15, 128, v12
v_cmp_gt_u32 vcc, 16, v11
v_cndmask_b32 v12, v12, v13, vcc
v_cndmask_b32 v13, v15, v14, vcc
s_waitcnt vmcnt(0)
s_barrier
""")
for h in range(2):
    for q in range(4): a(f"ds_read_b128 {V(64+16*h+4*q)}, v{12+h} offset:{16*q}", f"K{h}")
a(f"s_add_u32 s9, s73, 112\ns_lshl_b32 s9, s9, 10\ns_add_u32 s9, s9, s74")
for h in range(2):
    acc = 64+16*h; T = 96+16*h
    a.wl(f"K{h}")
    for q in range(8): a(f"v_cvt_pk_bf16_f32 v{acc+q}, v{acc+2*q}, v{acc+2*q+1}")
    a(f"{MF} {V(T,16)}, {V(acc)}, {V(32+4*h)}, 0")
    a(f"{MF} {V(T,16)}, {V(acc+4)}, {V(48+4*h)}, {V(T,16)}")
for h in range(2):
    acc = 64+16*h; T = 96+16*h
    a(f"v_add_f32 v9, 0x358637bd, v{T+8}\nv_rcp_f32 v9, v9")
    for r in range(8): a(f"v_mul_f32 v{T+r}, v{T+r}, v9")
    for q in range(4): a(f"v_cvt_pk_bf16_f32 v{acc+8+q}, v{T+2*q}, v{T+2*q+1}")
    a(f"buffer_store_dwordx4 {V(acc+8)}, v26, {R(WS)}, s9 offen offset:{h*1024} {SC}", "O")
a.wv("O")
a(f"s_add_u32 s9, s77, {OF - 128}")
flag_store("s9")
a.label(L('phase2'))
st()
a(f"""
s_mul_i32 s64, s82, {2*AF_TG}
s_mul_i32 s65, s3, {14*1024}
s_add_u32 s65, s65, s64
s_lshl_b32 s66, s3, 12
s_add_u32 s66, s66, s64
s_add_u32 s66, s66, {112*1024}
s_add_u32 s67, s65, {AF_TG}
s_add_u32 s68, s66, {AF_TG}
s_lshl_b32 s9, s82, 8
s_add_u32 s72, s9, {HF}
s_add_u32 s73, s9, {OF}
v_lshlrev_b32 v0, 4, v1
s_waitcnt lgkmcnt(0)
""")
poll("ph", "s72", 64)
st()
abuf = [200+8*i for i in range(7)] + [16+8*i for i in range(4)]
NA = 11
a(f"""
s_mov_b32 s60, s65
s_add_u32 s83, s65, {14*1024}
s_lshl_b32 s9, s76, 10
s_add_u32 s65, s65, s9
""")
def aload(u):
    r = abuf[u % NA]
    if u < 14:
        a(f"s_add_u32 s71, s65, {AF_TG}")
        a(f"buffer_load_dwordx4 {V(r)}, v0, {R(WS)}, s65 offen {SC}", f"A{u}")
        a(f"buffer_load_dwordx4 {V(r+4)}, v0, {R(WS)}, s71 offen {SC}", f"A{u}")
        a("s_add_u32 s65, s65, 1024\ns_cmp_eq_u32 s65, s83\ns_cselect_b32 s65, s60, s65")
    else:
        for tb in range(2):
            a(f"buffer_load_dwordx4 {V(r+4*tb)}, v0, {R(WS)}, s{(66,68)[tb]} offen offset:{(u-14)*1024} {SC}", f"A{u}")
for u in range(NA):
    aload(u)
    if u == 6:
        a(f"v_lshlrev_b32 v8, 2, v1\nbuffer_load_dword v10, v8, {R(WS)}, s73 offen {SC}", "A6")
def mfmas(u, w):
    r = abuf[u % NA]
    for tb in range(2):
        for nb in range(2):
            d = P2ACC + 16*(2*tb+nb)
            a(f"{MF} {V(d,16)}, {V(w+4*nb)}, {V(r+4*tb)}, {V(d,16) if u else 0}")
a(f"""
v_lshrrev_b32 v12, 3, v1
v_lshlrev_b32 v12, 10, v12
v_and_b32 v13, 7, v1
v_lshlrev_b32 v13, 4, v13
v_add_u32 v12, v12, v13
s_lshl_b32 s74, s82, 16
s_lshl_b32 s9, s3, 13
s_add_u32 s74, s74, s9
s_add_u32 s74, s74, s62
""")
for u in range(18):
    if u == 8: p2_tr(WTMP, 9, "T9")
    if 9 <= u < 17: p2_tr(WTMP + 8*((u-8)&1), u+1, f"T{u+1}")
    if u >= 9: a.wl(f"T{u}")
    a.wv(f"A{u}")
    mfmas(u, WREG+8*u if u < 9 else WTMP+8*((u-9)&1))
    if u < 3: aload(u+NA)
    if u == 3:
        a(f"buffer_load_dwordx4 v[128:131], v12, {R(X)}, s74 offen", "X")
        a(f"buffer_load_dwordx4 v[132:135], v13, {R(B2)}, s62 offen", "X")
    if u == 6:
        a("s_mov_b32 s79, 0")
        a.label(L('po'))
        a(f"""
        v_cmp_ne_u32 vcc, s75, v10
        s_cmp_eq_u32 vcc_lo, 0
        s_cbranch_scc1 {L('pook')}
        s_add_u32 s79, s79, 1
        s_cmp_gt_u32 s79, {SPIN}
        s_cbranch_scc1 {L('pook')}
        """)
        with a.skippable():
            a(f"s_sleep 8\nbuffer_load_dword v10, v8, {R(WS)}, s73 offen {SC}\ns_waitcnt vmcnt(0)\ns_branch {L('po')}")
        a.label(L('pook'))
        for uu in range(14, 18): aload(uu)
st()
RPG = [0, 1, 2, 3, 4, 5, 6, 8]
a(f"""
v_bfe_u32 v8, v1, 3, 2
v_lshlrev_b32 v8, 14, v8
v_and_b32 v9, 7, v1
v_lshl_add_u32 v8, v9, 8, v8
v_lshrrev_b32 v10, 5, v1
v_xor_b32 v10, v10, v9
v_lshl_add_u32 v8, v10, 4, v8
v_add_u32 v8, s69, v8
v_xor_b32 v9, 32, v8
v_xor_b32 v10, 64, v8
v_xor_b32 v11, 96, v8
v_bfe_u32 v14, v1, 3, 2
v_cmp_eq_u32 vcc, 3, v14
v_mov_b32 v14, 0x10000
v_mov_b32 v15, 0x14000
v_cndmask_b32 v14, v14, v15, vcc
v_add_u32 v2, v14, v8
v_add_u32 v3, v14, v9
v_add_u32 v4, v14, v10
v_add_u32 v5, v14, v11
""")
for tb in range(2):
    for nb in range(2):
        for qq in range(4):
            d = P2ACC + 16*(2*tb+nb) + 4*qq
            a(f"ds_write_b128 v{(8,2)[tb]+qq}, {V(d)} offset:{nb*128}")
a("""
v_lshrrev_b32 v6, 3, v1
v_and_b32 v7, 7, v1
v_lshlrev_b32 v7, 1, v7
v_xor_b32 v7, v7, v6
v_lshlrev_b32 v6, 8, v6
v_lshl_add_u32 v6, v7, 4, v6
s_cmp_eq_u32 s3, 7
s_cselect_b32 s9, 8, s3
s_lshl_b32 s9, s9, 14
v_add_u32 v6, s9, v6
v_xor_b32 v7, 16, v6
s_waitcnt lgkmcnt(0)
s_barrier
""")
RR = 160
for w in range(8):
    for e in range(2):
        a(f"ds_read_b128 {V(RR+8*w+4*e)}, v{6+e} offset:{w*2048}", f"R{w}")
a.wv("X")
for i in range(4):
    a(f"v_lshlrev_b32 v{24+2*i}, 16, v{128+i}\nv_and_b32 v{25+2*i}, 0xffff0000, v{128+i}")
    a(f"v_lshlrev_b32 v{32+2*i}, 16, v{132+i}\nv_and_b32 v{33+2*i}, 0xffff0000, v{132+i}")
for i in range(8): a(f"v_add_f32 v{24+i}, v{24+i}, v{32+i}")
for w in range(8):
    a.wl(f"R{w}")
    for i in range(8): a(f"v_add_f32 v{24+i}, v{24+i}, v{RR+8*w+i}")
for i in range(4): a(f"v_cvt_pk_bf16_f32 v{32+i}, v{24+2*i}, v{25+2*i}")
a(f"buffer_store_dwordx4 v[32:35], v12, {R(OUT)}, s74 offen")
if INSTR:
    a("s_waitcnt vmcnt(0)"); st()
    nst[0] = 9
    a(f"s_waitcnt lgkmcnt(0)\ns_lshl_b32 s9, s2, 3\ns_add_u32 s9, s9, s3\ns_lshl_b32 s9, s9, 6\ns_add_u32 s9, s9, {STAMPS}")
    a("v_mov_b32 v0, 0\ns_mov_b64 exec, 1")
    for i in range(nst[0]):
        a(f"v_mov_b32 v1, s{84+2*i}\nbuffer_store_dword v1, v0, {R(WS)}, s9 offen offset:{4*i}\ns_nop 1")
a.label(L('end')); a("s_endpgm")
desc = f""".section .rodata,"a"
.p2align 6
.amdhsa_kernel {NAME}
  .amdhsa_next_free_vgpr 256
  .amdhsa_next_free_sgpr 102
  .amdhsa_accum_offset 256
  .amdhsa_group_segment_fixed_size 0
  .amdhsa_kernarg_size 96
  .amdhsa_user_sgpr_count 2
  .amdhsa_user_sgpr_kernarg_segment_ptr 1
  .amdhsa_system_sgpr_workgroup_id_x 1
  .amdhsa_float_denorm_mode_32 3
.end_amdhsa_kernel
"""
if __name__ == "__main__":
    open(sys.argv[1], "w").write("; @launch grid=(256,1,1) block=(512,1,1) lds=163840\n" + a.finish() + desc)
    print("stamps:", nst[0], "STAMPS", STAMPS)
```

```python
import sys, os
sys.path.insert(0, "work")
from asmlib import Asm
EXP = os.environ.get("EXP", "").split(",")
INSTR = "instr" in sys.argv
STG = os.environ.get("STG", "main")
NAME = "parallel_sum__linear_kernel_hedgehog__dense_activation_squared_relu__prompt_kernel"
SZ = dict(x=2048*512*2, wqkv=512*1536*2, wphi=32*16*16*2, wo=512*512*2, w1=512*1792*2, b1=1792*2, w2=1792*512*2, b2=512*2, out=2048*512*2, dbg=256)
KSLOT = dict(x=0, wqkv=1, wphi=2, wo=3, w1=5, b1=6, w2=7, b2=8, out=9, dbg=10, ws=11)
AF_TG = 144*1024
KVACC = 64*AF_TG; KV_J = 9216
KVF = KVACC + 8*KV_J
HF = KVF + 8*512
OF = HF + 32*256
EFS = OF + 32*256
EFC = EFS + 16*128
CSP = EFC + 16*128
STAT = CSP + 16*16*1024
STAMPS = STAT + 2048*16
WS_END = STAMPS + 256*8*64
SZ["ws"] = WS_END
LOG2E = "0x3fb8aa3b"
SLOT = 32768; PG = 16384
SPIN = 400000
SLEEP = int(os.environ.get('SLEEP', '4'))
SC = "sc0 sc1"
X, WQ, W1, WS, DBG, WPHI, B1, I1, W2, WO, B2, OUT = 12, 16, 20, 24, 28, 32, 36, 40, 44, 48, 52, 56
def R(s): return f"s[{s}:{s+3}]"
def V(b, n=4): return f"v[{b}:{b+n-1}]"
MF = "v_mfma_f32_32x32x16_bf16"
a = Asm()
nst = [0]
def st(i=None, grp="main"):
    if not INSTR or grp != STG: return
    if i is not None: nst[0] = i
    a(f"s_memrealtime s[{84+2*nst[0]}:{85+2*nst[0]}]"); nst[0] += 1
def L(n): return f"L_{n}"
def fin(x, n, s): x(f"s_mov_b32 s{s+2}, {SZ[n]}\ns_mov_b32 s{s+3}, 0x20000")

a.raw('.amdgcn_target "amdgcn-amd-amdhsa--gfx950"\n.text')
a.raw(f".globl {NAME}\n.p2align 8\n.type {NAME},@function\n{NAME}:")
a(f"s_cmp_ge_u32 s2, 256\ns_cbranch_scc1 {L('end')}")
st(grp=STG)
names = (("x",X),("wqkv",WQ),("w1",W1),("ws",WS),("dbg",DBG),("wphi",WPHI),("b1",B1),("w2",W2),("wo",WO),("b2",B2),("out",OUT))
for n, s in names: a(f"s_load_dwordx2 s[{s}:{s+1}], s[0:1], {KSLOT[n]*8}")
a(f"""
v_and_b32 v1, 63, v0
v_lshrrev_b32 v2, 6, v0
v_readfirstlane_b32 s3, v2
s_bfe_u32 s4, s2, 0x30003
s_bfe_u32 s9, s2, 0x10002
s_lshl_b32 s9, s9, 3
s_add_u32 s4, s4, s9                ; m
s_lshr_b32 s5, s2, 7                ; type
s_and_b32 s6, s2, 3
s_lshl_b32 s6, s6, 1
s_bfe_u32 s10, s2, 0x10006
s_add_u32 s6, s6, s10               ; j   (s10 = j&1)
v_lshrrev_b32 v9, 3, v1
v_and_b32 v10, 7, v1
v_lshrrev_b32 v11, 4, v1
v_xor_b32 v12, v10, v11
v_lshlrev_b32 v13, 10, v9
v_lshl_add_u32 v2, v12, 4, v13
v_xor_b32 v3, 64, v2
v_and_b32 v11, 1, v11
v_lshlrev_b32 v11, 6, v11
v_lshlrev_b32 v12, 4, v10
v_xor_b32 v12, v12, v11
v_mul_u32_u24 v13, 3072, v9
v_add_u32 v4, v13, v12
v_mul_u32_u24 v13, 3584, v9
v_add_u32 v6, v13, v12
v_xor_b32 v14, 32, v4
s_and_b32 s7, s3, 3
s_lshr_b32 s8, s3, 2
s_and_b32 s9, s2, 3
s_mul_i32 s9, s9, 5
s_add_u32 s9, s9, 8
s_mul_i32 s11, s10, 3
s_add_u32 s66, s9, s11              ; I1 block (B)
s_lshl_b32 s61, s6, 7
s_add_u32 s62, s61, 2048
s_lshl_b32 s77, s66, 7
s_add_u32 s78, s61, 1024
s_movk_i32 s63, 3584
s_cmp_eq_u32 s5, 0
s_cselect_b64 vcc, -1, 0
s_cselect_b32 s61, s78, s61         ; I0 col
s_cselect_b32 s62, s62, s77         ; I1 col
s_cselect_b32 s63, 3072, s63
v_cndmask_b32 v5, v6, v14, vcc
s_lshl_b32 s60, s4, 17
s_lshl_b32 s69, s3, 11
s_lshl_b32 s70, s3, 10
s_lshl_b32 s11, s3, 14
s_add_u32 s76, s60, s11
s_mul_i32 s11, s3, {8*3072}
s_add_u32 s82, s61, s11
s_lshl_b32 s11, s3, 3
s_mul_i32 s11, s11, s63
s_add_u32 s83, s62, s11
s_lshl_b32 s75, s63, 6
s_waitcnt lgkmcnt(0)
""")
fin(a, "x", X); fin(a, "wqkv", WQ); fin(a, "w1", W1)
a(f"""
s_cselect_b32 s{I1}, s{WQ}, s{W1}
s_cselect_b32 s{I1+1}, s{WQ+1}, s{W1+1}
s_cselect_b32 s{I1+2}, s{WQ+2}, s{W1+2}
s_mov_b32 s{I1+3}, 0x20000
""") if False else a(f"""
s_cmp_eq_u32 s5, 0
s_cselect_b32 s{I1}, s{WQ}, s{W1}
s_cselect_b32 s{I1+1}, s{WQ+1}, s{W1+1}
s_cselect_b32 s{I1+2}, s{WQ+2}, s{W1+2}
s_mov_b32 s{I1+3}, 0x20000
""")
I2PG = {8: 6, 9: 8, 10: 0, 11: 2}
I3AD = {8: 7*PG, 9: 7*PG+8192, 10: 1*PG, 11: 1*PG+8192}
def dma(c, piece, x=None):
    x = x or a
    t = f"C{c}"
    if c < 8:
        sl = (c % 5)*SLOT
        if piece < 2:
            x(f"s_add_u32 s71, s76, {c*128 + 8192*piece}\ns_add_u32 m0, s69, {sl+1024*piece}")
            x(f"buffer_load_dwordx4 v{2+piece}, {R(X)}, s71 offen lds", t)
        elif piece == 2:
            x(f"s_add_u32 s71, s82, {c*64*3072}\ns_add_u32 m0, s70, {sl+16384}")
            x(f"buffer_load_dwordx4 v4, {R(WQ)}, s71 offen lds", t)
        else:
            x(f"s_add_u32 m0, s70, {sl+24576}\ns_nop 0")
            x(f"buffer_load_dwordx4 v5, {R(I1)}, s83 offen lds", t)
            x("s_add_u32 s83, s83, s75")
    else:
        kb = (c-8)*128*3584
        if piece == 0:
            x(f"s_cmp_eq_u32 s5, 0\ns_cbranch_scc1 {L(f'sk3_{c}')}")
            with x.skippable():
                x(f"s_add_u32 m0, s70, {I3AD[c]}\ns_add_u32 s71, s65, {kb}")
                x(f"buffer_load_dwordx4 v7, {R(W1)}, s71 offen lds")
            x.label(L(f"sk3_{c}"))
        elif piece < 3:
            e = piece-1
            x(f"s_add_u32 m0, s69, {I2PG[c]*PG+1024*e}\ns_add_u32 s71, s64, {kb + e*8*3584}")
            x(f"buffer_load_dwordx4 v6, {R(W1)}, s71 offen lds", t)
def dmac(c):
    for p in range(4): dma(c, p)
dmac(0)
fin(a, "ws", WS); fin(a, "dbg", DBG); fin(a, "wphi", WPHI)
a(f"""
s_add_u32 s67, s66, 1
s_cmp_eq_u32 s5, 0
s_cselect_b32 s67, s6, s67          ; I2 block
s_add_u32 s68, s9, 2
s_lshl_b32 s68, s68, 1
s_add_u32 s68, s68, s10
s_lshl_b32 s64, s67, 7
s_lshl_b32 s65, s68, 6
s_lshl_b32 s79, s5, 3
s_add_u32 s79, s79, s6              ; slot
v_lshrrev_b32 v9, 2, v1
v_and_b32 v10, 3, v1
v_mul_u32_u24 v13, 3584, v9
v_lshl_add_u32 v7, v10, 4, v13
v_lshlrev_b32 v26, 4, v1
v_mov_b32 v19, 0
s_lshl_b32 s9, s79, 13
s_add_u32 s9, s9, s70
s_add_u32 s9, s9, s60
s_lshl_b32 s10, s4, 5
s_lshl_b32 s11, s7, 3
s_add_u32 s10, s10, s11
""")
EARLY = 4*SLOT
a(f"buffer_load_dwordx4 v[120:123], v26, {R(X)}, s9 offen", "E")
a(f"s_or_b32 s9, s2, s3\ns_cmp_eq_u32 s9, 0\ns_cbranch_scc0 {L('nononce')}")
with a.skippable():
    a(f"""
    s_memrealtime s[80:81]
    s_waitcnt lgkmcnt(0)
    s_or_b32 s80, s80, 1
    v_mov_b32 v10, s80
    s_mov_b64 exec, 1
    buffer_store_dword v10, v19, {R(DBG)}, 0 offen {SC}
    s_mov_b64 exec, -1
    """)
a.label(L('nononce'))
a(f"s_lshl_b32 s11, s7, 10\ns_cmp_eq_u32 s8, 0\ns_cbranch_scc0 {L('e1')}")
with a.skippable():
    a(f"""
    s_add_u32 m0, s11, {EARLY}
    s_mul_i32 s71, s10, 3072
    s_add_u32 s71, s71, s61
    buffer_load_dwordx4 v4, {R(WQ)}, s71 offen lds
    s_add_u32 m0, s11, {EARLY+8192}
    s_mul_i32 s71, s10, 3584
    s_add_u32 s71, s71, s64
    buffer_load_dwordx4 v6, {R(W1)}, s71 offen lds
    s_branch {L('e2')}
    """)
a.label(L('e1'))
with a.skippable():
    a(f"""
    s_add_u32 m0, s11, {EARLY+4096}
    s_mul_i32 s71, s10, s63
    s_add_u32 s71, s71, s62
    buffer_load_dwordx4 v5, {R(I1)}, s71 offen lds
    s_add_u32 m0, s11, {EARLY+12288}
    s_cmp_lt_u32 s7, 2
    s_cbranch_scc1 {L('e1b')}
    s_lshl_b32 s9, s6, 11
    s_add_u32 s9, s9, s11
    s_sub_u32 s9, s9, 2048
    buffer_load_dwordx4 v26, {R(WPHI)}, s9 offen lds
    s_branch {L('e2')}
    """)
    a.label(L('e1b'))
    a(f"""
    s_cmp_eq_u32 s5, 0
    s_cbranch_scc1 {L('e2')}
    s_lshl_b32 s9, s7, 3
    s_add_u32 s9, s9, s10
    s_mul_i32 s71, s9, 3584
    s_add_u32 s71, s71, s65
    buffer_load_dwordx4 v7, {R(W1)}, s71 offen lds
    """)
a.label(L('e2'))
dma(1, 0)
a(f"""
s_mul_i32 s11, s3, {16*3584}
s_add_u32 s64, s64, s11
s_add_u32 s65, s65, s11
s_mul_i32 s72, s6, {KV_J}
s_add_u32 s72, s72, {KVACC}
s_cmp_eq_u32 s5, 1
s_cselect_b32 s9, s4, 1
s_cmp_eq_u32 s9, 0
s_cbranch_scc0 {L('nozero')}
""")
with a.skippable():
    a(f"""
    v_lshlrev_b32 v9, 4, v0
    v_mov_b32 v10, 0
    v_mov_b32 v11, 0
    v_mov_b32 v12, 0
    v_mov_b32 v13, 0
    buffer_store_dwordx4 v[10:13], v9, {R(WS)}, s72 offen {SC}
    s_add_u32 s9, s72, 8192
    s_cmp_eq_u32 s3, 0
    s_cbranch_scc0 {L('nozero')}
    buffer_store_dwordx4 v[10:13], v9, {R(WS)}, s9 offen {SC}
    """)
a.label(L('nozero'))
a.items.append(("retag", ("C1", "C1a")))
dma(1, 1); dma(1, 2); dma(1, 3)
a(f"""
v_and_b32 v29, 31, v1
v_lshrrev_b32 v30, 5, v1
v_bfe_u32 v31, v1, 1, 3
v_xor_b32 v31, v31, v30
v_lshlrev_b32 v32, 7, v29
v_lshl_add_u32 v8, v31, 4, v32
s_lshl_b32 s9, s7, 12
v_add_u32 v8, s9, v8
v_xor_b32 v9, 32, v8
v_xor_b32 v10, 64, v8
v_xor_b32 v11, 96, v8
v_bfe_u32 v31, v1, 2, 2
v_lshl_add_u32 v32, v30, 3, v31
v_and_b32 v33, 3, v1
v_lshlrev_b32 v33, 3, v33
v_lshl_add_u32 v34, v32, 7, v33
v_lshl_add_u32 v21, v32, 6, v33
v_lshl_add_u32 v38, v30, 2, v31
v_lshl_add_u32 v38, v38, 5, v33
v_bfe_u32 v33, v1, 4, 1
v_lshl_add_u32 v21, v33, 5, v21
v_and_b32 v31, 2, v31
v_xor_b32 v31, v31, v33
v_lshl_add_u32 v35, v31, 5, v34
s_lshl_b32 s9, s8, 6
v_xor_b32 v20, s9, v35
v_lshlrev_b32 v33, 13, v33
v_add_u32 v34, v20, v33
v_xor_b32 v36, 32, v34
v_add_u32 v37, 8192, v20
v_cndmask_b32 v12, v20, v34, vcc
v_cndmask_b32 v13, v37, v36, vcc
v_add_u32 v12, 16384, v12
v_add_u32 v13, 16384, v13
v_mov_b32 v22, 0x3f803f80
s_lshl_b32 s9, s8, 10
s_add_u32 s9, s9, {EARLY+14336}
v_add_u32 v18, s9, v38
s_and_b32 s9, s3, 1
s_lshl_b32 s9, s9, 6
s_lshr_b32 s10, s3, 1
s_cmp_eq_u32 s10, 1
s_cselect_b32 s11, 32, 0
s_cmp_eq_u32 s5, 0
s_cselect_b32 s11, s11, 0
s_or_b32 s9, s9, s11
v_xor_b32 v14, s9, v35
s_lshl_b32 s10, s10, 12
s_add_u32 s10, s10, {EARLY}
v_add_u32 v14, s10, v14
v_add_u32 v15, 512, v14
v_add_u32 v16, 2048, v14
v_add_u32 v17, 2560, v14
s_cmp_ge_u32 s3, 6
s_cbranch_scc0 {L('e3')}
""")
with a.skippable():
    a(f"v_add_u32 v14, {EARLY+12288}, v21\nv_add_u32 v15, 256, v14\nv_add_u32 v16, 1024, v14\nv_add_u32 v17, 1280, v14")
a.label(L('e3'))
a(f"buffer_load_dword v127, v19, {R(DBG)}, 0 offen {SC}", "N0")
st()
ACC0, ACC1, ACC2, XF = 64, 80, 112, 128
a.wv("C1a"); a("s_barrier")
st(grp="A")
CSL = 9*PG
def rdA(p):
    i = p & 3; b = 96 + 8*(p % 3); c = p >> 2
    a(f"ds_read_b128 {V(XF+4*p)}, v{8+i}", f"P{p}")
    for t in range(2):
        for e in range(2):
            a(f"ds_read_b64_tr_b16 {V(b+4*t+2*e,2)}, v{12+t} offset:{i*2048+e*512}", f"P{p}")
    if c < 7:
        d = (SLOT if (c % 5) != 4 else -4*SLOT) & 0xffffffff
        a(f"v_add_u32 v{8+i}, {d}, v{8+i}")
        if i == 3: a(f"v_add_u32 v12, {d}, v12\nv_add_u32 v13, {d}, v13")
for k, ad in enumerate((14, 15, 16, 17)): a(f"ds_read_b64_tr_b16 {V(48+2*k,2)}, v{ad}", "EW")
for h in range(2):
    for e in range(2): a(f"ds_read_b64_tr_b16 {V(32+4*h+2*e,2)}, v18 offset:{h*512+e*256}", "EW2")
rdA(0); rdA(1)
a("v_mov_b32 v124, 0\nv_mov_b32 v125, 0\nv_mov_b32 v126, 0")
for q in range(4):
    a(f"v_dot2_f32_bf16 v124, v{120+q}, v22, v124\nv_dot2_f32_bf16 v125, v{120+q}, v{120+q}, v125")
a.wl("EW")
for q in range(8): a(f"v_dot2_f32_bf16 v126, v{48+q}, v22, v126")
for dpp in ("quad_perm:[1,0,3,2]", "quad_perm:[2,3,0,1]", "row_half_mirror", "row_mirror"):
    a(f"v_add_f32_dpp v124, v124, v124 {dpp} row_mask:0xf bank_mask:0xf\nv_add_f32_dpp v125, v125, v125 {dpp} row_mask:0xf bank_mask:0xf")
a(f"""
v_permlane16_swap_b32 v124, v125
v_add_f32 v124, v124, v125
v_mov_b32 v56, v126
v_mov_b32 v125, v124
v_permlane32_swap_b32 v126, v56
v_permlane32_swap_b32 v124, v125
v_add_f32 v126, v126, v56
v_add_f32 v124, v124, v125
v_mov_b32 v125, v124
v_permlane16_swap_b32 v124, v125
v_mul_f32 v124, 0x3b000000, v124
v_mul_f32 v125, 0x3b000000, v125
v_fma_f32 v125, -v124, v124, v125
v_max_f32 v125, 0, v125
v_add_f32 v125, 0x3727c5ac, v125
v_rsq_f32 v122, v125
v_sub_f32 v124, 0, v124
v_mul_f32 v125, v125, v122
v_cvt_pk_bf16_f32 v56, v124, v125
v_and_b32 v57, 0xffff0000, v56
v_lshlrev_b32 v58, 16, v56
v_sub_f32 v59, v124, v58
v_sub_f32 v60, v125, v57
v_cvt_pk_bf16_f32 v120, v58, v59
v_cvt_pk_bf16_f32 v121, v57, v60
s_lshl_b32 s10, s4, 7
s_lshl_b32 s11, s79, 3
s_add_u32 s10, s10, s11
s_add_u32 s10, s10, s3
s_lshl_b32 s10, s10, 4
s_add_u32 s10, s10, {STAT}
s_lshl_b32 s11, s79, 14
s_lshl_b32 s71, s4, 10
s_add_u32 s11, s11, s71
s_lshl_b32 s71, s3, 7
s_add_u32 s11, s11, s71
s_add_u32 s11, s11, {CSP}
v_lshlrev_b32 v56, 2, v1
s_mov_b64 exec, 1
buffer_store_dwordx4 v[120:123], v19, {R(WS)}, s10 offen {SC}
s_mov_b32 exec_lo, -1
buffer_store_dword v126, v56, {R(WS)}, s11 offen {SC}
s_mov_b64 exec, -1
""")
dmac(2)
for p in range(32):
    c = p >> 2; i = p & 3
    if i == 2 and c < 7:
        a.wv(f"C{c+1}"); a("s_barrier")
        st(grp="A")
        if c == 1:
            a(f"s_cmp_eq_u32 s3, 0\ns_cbranch_scc0 {L('nofl')}")
            with a.skippable():
                a("s_mov_b32 s71, 0")
                a.label(L('nspin'))
                a(f"""
                v_readfirstlane_b32 s9, v127
                s_add_u32 s71, s71, 1
                s_cmp_gt_u32 s71, {SPIN}
                s_cbranch_scc1 {L('nok')}
                s_cmp_lg_u32 s9, 0
                s_cbranch_scc1 {L('nok')}
                buffer_load_dword v127, v19, {R(DBG)}, 0 offen {SC}
                s_waitcnt vmcnt(0)
                s_branch {L('nspin')}
                """)
                a.label(L('nok'))
                a(f"""
                s_lshl_b32 s10, s4, 7
                s_lshl_b32 s11, s79, 2
                s_add_u32 s10, s10, s11
                s_lshl_b32 s11, s79, 7
                s_lshl_b32 s71, s4, 2
                s_add_u32 s11, s11, s71
                s_add_u32 s11, s11, {EFC-EFS}
                v_mov_b32 v14, s10
                v_writelane_b32 v14, s11, 1
                s_mov_b32 s10, {EFS}
                s_mov_b64 exec, 3
                buffer_store_dword v127, v14, {R(WS)}, s10 offen {SC}
                s_mov_b64 exec, -1
                """)
            a.label(L('nofl'))
        if c == 5:
            a(f"buffer_load_dword v127, v19, {R(DBG)}, 0 offen {SC}", "FL")
            a(f"buffer_load_dword v15, v18, {R(WS)}, 0 offen {SC}", "FL")
        if c == 6:
            a.wv("FL")
            a("s_mov_b32 s71, 0")
            a.label(L('fspin'))
            a(f"""
            v_readfirstlane_b32 s75, v127
            v_cmp_ne_u32 vcc, v15, v127
            s_cmp_eq_u32 s75, 0
            s_cselect_b64 vcc, -1, vcc
            s_cmp_eq_u64 vcc, 0
            s_cbranch_scc1 {L('fok')}
            s_add_u32 s71, s71, 1
            s_cmp_gt_u32 s71, {SPIN}
            s_cbranch_scc1 {L('fok')}
            """)
            with a.skippable():
                a(f"buffer_load_dword v127, v19, {R(DBG)}, 0 offen {SC}\nbuffer_load_dword v15, v18, {R(WS)}, 0 offen {SC}\ns_waitcnt vmcnt(0)\ns_branch {L('fspin')}")
            a.label(L('fok'))
            a(f"""
            v_and_b32 v14, 31, v1
            v_lshlrev_b32 v14, 4, v14
            s_lshl_b32 s9, s4, 11
            s_lshl_b32 s10, s7, 9
            s_add_u32 s9, s9, s10
            s_add_u32 s9, s9, {STAT}
            """)
            a(f"buffer_load_dwordx4 v[120:123], v14, {R(WS)}, s9 offen {SC}", "ST")
            a(f"s_lshl_b32 s9, s79, 14\ns_add_u32 s9, s9, s69\ns_add_u32 s9, s9, {CSP}\ns_add_u32 m0, s69, {CSL}")
            a(f"buffer_load_dwordx4 v26, {R(WS)}, s9 offen {SC} lds", "ST")
            a(f"buffer_load_dwordx4 v26, {R(WS)}, s9 offen offset:1024 {SC} lds", "ST")
    if p < 2: dma(3, 2*p); dma(3, 2*p+1)
    else:
        cc = ((p-2) >> 2) + 4
        if cc <= 10: dma(cc, (p-2) & 3)
        if p == 29: dma(11, 0)
    if p+2 < 32: rdA(p+2)
    a.wl(f"P{p}")
    b = 96 + 8*(p % 3)
    for t in range(2):
        acc = (ACC0, ACC1)[t]
        a(f"{MF} {V(acc,16)}, {V(b+4*t)}, {V(XF+4*p)}, {V(acc,16) if p else 0}")
    if p == 3:
        fin(a, "b1", B1)
        a(f"""
        s_lshl_b32 s66, s66, 1
        s_lshl_b32 s67, s67, 1
        s_add_u32 s66, s66, s8
        s_add_u32 s67, s67, s8
        v_lshlrev_b32 v40, 1, v29
        s_lshl_b32 s9, s66, 6
        s_lshl_b32 s10, s67, 6
        s_lshl_b32 s11, s68, 6
        """)
        a(f"buffer_load_ushort v29, v40, {R(B1)}, s9 offen", "S")
        a(f"buffer_load_ushort v30, v40, {R(B1)}, s10 offen", "S")
        a(f"buffer_load_ushort v31, v40, {R(B1)}, s11 offen", "S")
    if p == 4:
        fin(a, "w2", W2); fin(a, "wo", WO); fin(a, "b2", B2); fin(a, "out", OUT)
    if p == 5:
        a(f"""
        s_lshl_b32 s9, s6, 2
        s_lshl_b32 s10, s8, 1
        s_add_u32 s73, s9, s10
        s_lshl_b32 s74, s4, 2
        s_add_u32 s74, s74, s7
        s_mul_i32 s74, s74, {AF_TG}
        """)
    if p == 8:
        a(f"""
        v_and_b32 v40, 15, v1
        v_lshlrev_b32 v40, 2, v40
        s_lshl_b32 s9, s4, 7
        s_add_u32 s9, s9, {EFS}
        s_lshl_b32 s10, s79, 7
        s_add_u32 s10, s10, {EFC}
        v_add_u32 v18, s9, v40
        v_add_u32 v41, s10, v40
        v_lshrrev_b32 v42, 4, v1
        v_cmp_eq_u32 vcc, 1, v42
        v_cndmask_b32 v18, v18, v41, vcc
        s_lshl_b32 s9, s6, 2
        s_add_u32 s9, s9, {EFS+32}
        v_writelane_b32 v18, s9, 32
        """)
    if p == 4 and "nopf" not in EXP:
        a(f"""
        s_lshr_b32 s9, s2, 3
        s_lshl_b32 s9, s9, 3
        s_add_u32 s9, s9, s3               ; unit 0..255
        s_mul_i32 s10, s9, {56*128}
        s_lshl_b32 s11, s9, 11
        v_lshlrev_b32 v40, 7, v1
        v_min_u32 v41, {55*128}, v40
        v_and_b32 v40, {15*128}, v40
        """)
        a(f"buffer_load_dword v124, v41, {R(W2)}, s10 offen", "PF")
        a(f"buffer_load_dword v125, v40, {R(WO)}, s11 offen", "PF")
    if p == 14:
        a.wv("S")
        a("v_cmp_gt_u32 vcc, 32, v1")
        for q in range(3): a(f"v_lshl_or_b32 v{29+q}, v{29+q}, 16, v{29+q}\nv_cndmask_b32 v{29+q}, 0, v{29+q}, vcc")
        a("v_and_b32 v40, 31, v1\nv_lshrrev_b32 v41, 5, v1\nv_lshlrev_b32 v42, 2, v41\nv_sub_u32 v42, v40, v42\nv_mov_b32 v43, 0x3f80\nv_mov_b32 v44, 0x3f800000")
    if 15 <= p < 23:
        k = p-15; sg = k >> 2; q = k & 3
        f0 = (2*q & 3) + 8*((2*q) >> 2) + 16*sg; dst = 48 + k
        a(f"v_cmp_eq_u32 vcc, {f0}, v42\nv_cndmask_b32 v{dst}, 0, v43, vcc\nv_cmp_eq_u32 vcc, {f0+1}, v42\nv_cndmask_b32 v{dst}, v{dst}, v44, vcc")
    if p == 24:
        a(f"""
        v_lshlrev_b32 v45, 13, v41
        v_lshl_add_u32 v27, v40, 2, v45
        v_add_u32 v27, {CSL}, v27
        v_bfe_u32 v42, v1, 4, 1
        v_mul_u32_u24 v42, 192, v42
        v_add_u32 v28, v27, v42
        s_lshl_b32 s9, s8, 7
        v_add_u32 v28, s9, v28
        v_add_u32 v27, s9, v27
        """)
    if p == 25:
        a(f"""
        v_lshl_add_u32 v42, v41, 4, v40
        v_lshlrev_b32 v42, 6, v42           ; (half*16+col)*64
        s_lshl_b32 s9, s7, 12
        s_mul_i32 s10, s8, {6*PG}
        s_add_u32 s9, s9, s10
        s_add_u32 s9, s9, {PG}
        v_add_u32 v42, s9, v42
        v_lshlrev_b32 v43, 6, v41
        s_lshl_b32 s9, s7, 12
        s_lshl_b32 s10, s8, 7
        s_add_u32 s9, s9, s10
        v_add_u32 v43, s9, v43
        v_cmp_eq_u32 vcc, 16, v40
        v_cndmask_b32 v0, v42, v43, vcc
        v_cndmask_b32 v17, 0, v22, vcc
        v_cmp_gt_u32 s[80:81], 17, v40
        """)
    if p == 26 or p == 27:
        pass
st(); st(grp="B")
a.wv("ST"); a("s_barrier")
st(grp="B")
dma(11, 1); dma(11, 2)
a(f"""
v_and_b32 v44, 0xffff, v120
v_lshl_or_b32 v40, v44, 16, v44
v_lshrrev_b32 v44, 16, v120
v_lshl_or_b32 v41, v44, 16, v44
v_mov_b32 v42, v121
v_mov_b32 v43, 0
v_mov_b32 v23, v122
v_mul_f32 v24, {LOG2E}, v122
v_mul_f32 v25, 0.5, v122
v_mov_b32 v47, 0
""")
a(f"""
v_lshrrev_b32 v14, 3, v1
v_and_b32 v15, 7, v1
v_lshrrev_b32 v16, 2, v1
v_and_b32 v16, 4, v16
v_xor_b32 v15, v15, v16
v_lshlrev_b32 v14, 10, v14
v_lshl_add_u32 v18, v15, 4, v14
s_and_b32 s82, s2, 7
s_lshl_b32 s82, s82, 2
s_bfe_u32 s9, s2, 0x20003
s_add_u32 s82, s82, s9
s_lshr_b32 s62, s2, 5
s_lshl_b32 s62, s62, 7
s_mul_i32 s60, s3, {14*16*1024}
s_add_u32 s60, s60, s62
s_add_u32 s83, s60, {14*16384}
s_lshl_b32 s63, s3, 16
s_add_u32 s63, s63, s62
s_lshr_b32 s76, s2, 5
s_mul_i32 s76, s76, 7
s_lshr_b32 s76, s76, 2
s_mul_i32 s9, s9, 3
s_add_u32 s76, s76, s9
s_cmp_ge_u32 s76, 14
s_cselect_b32 s9, 14, 0
s_sub_u32 s76, s76, s9
{"s_mov_b32 s76, 0" if "norot" in EXP else ""}
s_lshl_b32 s61, s76, 14
s_add_u32 s61, s61, s60
""")
W2PG = [3, 4, 5, 6, 8, 9, 0, 2, 1]
def p2_dma(x, u, tag):
    pg = W2PG[u % 9]
    for half in range(2):
        x(f"s_add_u32 m0, s69, {pg*PG + half*1024}")
        if u < 14:
            if half == 0:
                x(f"s_add_u32 s71, s61, 8192\nbuffer_load_dwordx4 v18, {R(W2)}, s61 offen lds", tag)
            else:
                x(f"s_add_u32 s61, s61, 16384\nbuffer_load_dwordx4 v18, {R(W2)}, s71 offen lds", tag)
                x("s_cmp_eq_u32 s61, s83\ns_cselect_b32 s61, s60, s61")
        else:
            x(f"s_add_u32 s71, s63, {((u-14)*16+half*8)*1024}")
            x(f"buffer_load_dwordx4 v18, {R(WO)}, s71 offen lds", tag)
def cs_rd(x, dst, addr, off, tag):
    for g in range(8): x(f"ds_read_b32 v{dst+g}, v{addr} offset:{g*1024+off}", tag)
def corr(x, acc, src, b1reg, first):
    x(f"""
    v_add_f32 v{src}, v{src}, v{src+1}
    v_add_f32 v{src+2}, v{src+2}, v{src+3}
    v_add_f32 v{src+4}, v{src+4}, v{src+5}
    v_add_f32 v{src+6}, v{src+6}, v{src+7}
    v_add_f32 v{src}, v{src}, v{src+2}
    v_add_f32 v{src+4}, v{src+4}, v{src+6}
    v_add_f32 v{src}, v{src}, v{src+4}
    v_cvt_pk_bf16_f32 v{src+1}, v{src}, v{src}
    v_and_b32 v{src+1}, 0xffff0000, v{src+1}
    v_sub_f32 v{src+2}, v{src}, v{src+1}
    v_cvt_pk_bf16_f32 v44, v{src+1}, v{src+2}
    v_cvt_pk_bf16_f32 v45, v{src+1}, v{src+2}
    v_mov_b32 v46, {b1reg}
    {MF} {V(acc,16)}, v[44:47], v[40:43], {0 if first else V(acc,16)}
    """)
def softmax(x, P, Pp, Pm):
    E = 56
    x(f"""
    v_max3_f32 v6, v{P}, v{P+1}, v{P+2}
    v_max3_f32 v7, -v{P}, -v{P+1}, -v{P+2}
    v_max3_f32 v6, v6, v{P+3}, v{P+4}
    v_max3_f32 v7, v7, -v{P+3}, -v{P+4}
    v_max3_f32 v6, v6, v{P+5}, v{P+6}
    v_max3_f32 v7, v7, -v{P+5}, -v{P+6}
    v_max_f32 v6, v6, v{P+7}
    v_max_f32_e64 v7, v7, -v{P+7}
    v_permlane32_swap_b32 v6, v7
    v_max_f32 v6, v6, v7
    v_mul_f32_e64 v6, -v6, v24
    v_mov_b32 v7, v6
    v_permlane32_swap_b32 v6, v7
    """)
    for r in range(8): x(f"v_fma_f32 v{E+r}, -v{P+r}, v24, v7\nv_fma_f32 v{P+r}, v{P+r}, v24, v6")
    for r in range(8): x(f"v_exp_f32 v{E+r}, v{E+r}\nv_exp_f32 v{P+r}, v{P+r}")
    x(f"v_add_f32 v6, v{P}, v{P+1}\nv_add_f32 v7, v{E}, v{E+1}")
    for r in range(2, 8): x(f"v_add_f32 v6, v6, v{P+r}\nv_add_f32 v7, v7, v{E+r}")
    x("v_permlane32_swap_b32 v6, v7\nv_add_f32 v6, v6, v7\nv_rcp_f32 v6, v6\nv_mov_b32 v7, v6\nv_permlane32_swap_b32 v6, v7")
    for r in range(8): x(f"v_mul_f32 v{P+r}, v{P+r}, v6\nv_mul_f32 v{E+r}, v{E+r}, v7")
    for q in range(4): x(f"v_cvt_pk_bf16_f32 v{Pp+q}, v{P+2*q}, v{P+2*q+1}\nv_cvt_pk_bf16_f32 v{Pm+q}, v{E+2*q}, v{E+2*q+1}")
def ffn_epi(x, acc, s_tile):
    for r in range(16): x(f"v_add_f32_e64 v{acc+r}, v{acc+r}, |v{acc+r}|")
    for r in range(16): x(f"v_mul_f32 v{acc+r}, v{acc+r}, v25")
    for r in range(16): x(f"v_mul_f32 v{acc+r}, v{acc+r}, v{acc+r}")
    for q in range(8): x(f"v_cvt_pk_bf16_f32 v{acc+q}, v{acc+2*q}, v{acc+2*q+1}")
    x(f"s_lshl_b32 s9, s{s_tile}, 11\ns_add_u32 s9, s9, s74")
    x(f"buffer_store_dwordx4 {V(acc)}, v26, {R(WS)}, s9 offen {SC}", "H")
    x(f"buffer_store_dwordx4 {V(acc+4)}, v26, {R(WS)}, s9 offen offset:1024 {SC}", "H")
def passB(x, two, bufs):
    def rd(k):
        c = 8 + k//8; kk = k % 8
        if kk == 0:
            x(f"v_add_u32 v{12+(c&1)}, {I2PG[c]*PG}, v20")
            if two: x(f"v_add_u32 v{14+(c&1)}, {I3AD[c]}, v21")
        lo, hi = bufs[k % 3]
        for e in range(2): x(f"ds_read_b64_tr_b16 {V(lo+2*e,2)}, v{12+(c&1)} offset:{kk*2048+e*512}", f"B{k}")
        if two:
            for e in range(2): x(f"ds_read_b64_tr_b16 {V(hi+2*e,2)}, v{14+(c&1)} offset:{kk*1024+e*256}", f"B{k}")
    rd(0); rd(1)
    for k in range(32):
        if k == 22: x.wv("C11"); x("s_barrier")
        if "latedma" in EXP:
            if k == 31:
                for u in range(6): p2_dma(x, u, "D1")
        else:
            if k in (2, 8, 14): p2_dma(x, (k-2)//6, "D1")
            if k in (23, 26, 29): p2_dma(x, 3 + (k-23)//3, "D1")
        if k+2 < 32: rd(k+2)
        x.wl(f"B{k}")
        lo, hi = bufs[k % 3]
        x(f"{MF} {V(ACC2,16)}, {V(lo)}, {V(XF+4*k)}, {V(ACC2,16)}")
        if two: x(f"{MF} {V(ACC1,16)}, {V(hi)}, {V(XF+4*k)}, {V(ACC1,16)}")
def domerge(E, Bs):
    if "noE" in EXP: a.extend(Bs)
    elif "noB" in EXP:
        a.extend(E); a.wv("C11"); a("s_barrier")
        for u in range(6): p2_dma(a, u, "D1")
    elif "seq" in EXP: a.extend(E); a.extend(Bs)
    else: a.merge(E, Bs)
def flag_store(soff):
    a(f"""
    v_mov_b32 v8, s75
    s_mov_b64 exec, 1
    buffer_store_dword v8, v19, {R(WS)}, {soff} offen {SC}
    s_mov_b64 exec, -1
    """)
def poll(tagl, soff, nlanes_mask, wide=False, drain=True):
    a(f"s_cmp_eq_u32 s3, 0\ns_cbranch_scc0 {L(tagl+'ok')}")
    with a.skippable():
        a(f"s_mov_b32 s79, 0\nv_lshlrev_b32 v8, {3 if wide else 2}, v1")
        a.label(L(tagl))
        if wide: a(f"buffer_load_dwordx2 v[10:11], v8, {R(WS)}, {soff} offen {SC}")
        else: a(f"buffer_load_dword v10, v8, {R(WS)}, {soff} offen {SC}")
        a("s_waitcnt vmcnt(0)\nv_cmp_ne_u32 vcc, s75, v10")
        if wide: a("v_cmp_ne_u32 s[80:81], s75, v11\ns_or_b64 vcc, vcc, s[80:81]")
        if nlanes_mask == 32: a("s_mov_b32 vcc_hi, 0")
        a(f"""
        s_cmp_eq_u64 vcc, 0
        s_cbranch_scc1 {L(tagl+'ok')}
        s_add_u32 s79, s79, 1
        s_cmp_gt_u32 s79, {SPIN}
        s_cbranch_scc1 {L(tagl+'ok')}
        s_sleep {SLEEP}
        s_branch {L(tagl)}
        """)
    a.label(L(tagl+'ok'))
    if drain: a("s_waitcnt vmcnt(0)")
    a("s_barrier")
WREG = 128; P2ACC = 64; WTMP = 48
def p2_traddr():
    a(f"""
    v_lshrrev_b32 v8, 5, v1
    v_bfe_u32 v9, v1, 2, 2
    v_lshl_add_u32 v8, v8, 2, v9
    v_lshlrev_b32 v8, 7, v8
    v_and_b32 v10, 3, v1
    v_lshl_add_u32 v8, v10, 3, v8
    v_bfe_u32 v10, v1, 4, 1
    v_and_b32 v9, 2, v9
    v_or_b32 v10, v10, v9
    v_lshl_add_u32 v2, v10, 5, v8
    v_add_u32 v2, s69, v2
    v_xor_b32 v3, 64, v2
    v_add_u32 v4, 0x10000, v2
    v_add_u32 v5, 0x10000, v3
    v_add_u32 v6, 0x20000, v2
    v_add_u32 v7, 0x20000, v3
    """)
def p2_tr(dst, u, tag):
    pg = W2PG[u % 9]
    for b in range(2):
        for e in range(2):
            a(f"ds_read_b64_tr_b16 {V(dst+4*b+2*e,2)}, v{2+2*(pg>>2)+b} offset:{(pg&3)*PG+e*1024}", tag)
def hflag():
    a(f"""
    s_lshl_b32 s9, s4, 1
    s_lshr_b32 s10, s7, 1
    s_add_u32 s9, s9, s10
    s_lshl_b32 s9, s9, 8
    s_lshl_b32 s10, s79, 2
    s_lshl_b32 s11, s8, 1
    s_add_u32 s10, s10, s11
    s_and_b32 s11, s7, 1
    s_add_u32 s10, s10, s11
    s_lshl_b32 s10, s10, 2
    s_add_u32 s77, s9, s10
    s_add_u32 s9, s77, {HF}
    """)
    flag_store("s9")

a(f"s_cmp_eq_u32 s5, 0\ns_cbranch_scc0 {L('typeB')}")
a.qsave("br")
cs_rd(a, 96, 28, 0, "Q0"); cs_rd(a, 104, 28, 64, "Q1"); cs_rd(a, 56, 27, 512, "Q2")
a("v_mov_b32 v21, v17")
a.wl("Q0"); corr(a, ACC0, 96, "0", False)
a.wl("Q1"); corr(a, ACC1, 104, "0", False)
a.wl("Q2"); corr(a, ACC2, 56, "v30", True)
st(grp="B")
E = a.sub(); Bs = a.sub()
T = 96
for h in range(2):
    acc = (ACC0, ACC1)[h]
    for q in range(4): E(f"v_cvt_pk_bf16_f32 v{44+q}, v{acc+2*q}, v{acc+2*q+1}")
    E(f"{MF} {V(T,16)}, {V(32+4*h)}, v[44:47], 0")
    for r in range(8, 16): E(f"v_mul_f32 v{acc+r}, v{acc+r}, v23")
    for q in range(4): E(f"v_cvt_pk_bf16_f32 v{44+q}, v{acc+8+2*q}, v{acc+9+2*q}")
    E(f"{MF} {V(acc,16)}, v[44:47], v[48:51], 0")
    softmax(E, T, 44, 56)
    E(f"{MF} {V(T,16)}, v[44:47], v[48:51], 0")
    E(f"{MF} {V(T,16)}, v[56:59], v[52:55], {V(T,16)}")
    for q in range(8): E(f"v_cvt_pk_bf16_f32 v{56+q}, v{acc+2*q}, v{acc+2*q+1}\nv_or_b32 v{56+q}, v{56+q}, v21")
    for q in range(8): E(f"v_cvt_pk_bf16_f32 v{T+q}, v{T+2*q}, v{T+2*q+1}")
    E(f"{MF} {V(acc,16)}, {V(T)}, v[56:59], 0")
    E(f"{MF} {V(acc,16)}, {V(T+4)}, v[60:63], {V(acc,16)}")
passB(Bs, False, ((2,0),(8,0),(14,0)))
domerge(E, Bs)
st(grp="B")
a("s_mov_b64 exec, s[80:81]")
for h in range(2):
    for q in range(4): a(f"ds_write_b128 v0, {V((ACC0,ACC1)[h]+4*q)} offset:{h*2048+16*q}")
a("s_mov_b64 exec, -1")
a(f"""
v_lshlrev_b32 v8, 2, v1
s_lshl_b32 s9, s3, 8
v_add_u32 v11, s9, v8
v_add_u32 v12, {7*PG}, v11
v_and_b32 v13, 0x7c, v8
v_lshrrev_b32 v14, 5, v1
v_lshl_add_u32 v13, v14, 11, v13
s_lshl_b32 s9, s3, 7
v_add_u32 v13, s9, v13
""")
a("s_waitcnt lgkmcnt(0)\ns_barrier")
st(); st(grp="B")
for rho in range(4):
    for g in range(4):
        if rho < 2: a(f"ds_read_b32 v{64+4*rho+g}, v11 offset:{PG+g*4096+rho*2048}", f"KV{rho}")
        else: a(f"ds_read_b32 v{64+4*rho+g}, v12 offset:{g*4096+(rho-2)*2048}", f"KV{rho}")
for g in range(4): a(f"ds_read_b32 v{80+g}, v13 offset:{g*4096}", "KV4")
for rho in range(5):
    b = 64+4*rho
    a.wl(f"KV{rho}")
    a(f"v_add_f32 v{b}, v{b}, v{b+1}\nv_add_f32 v{b+2}, v{b+2}, v{b+3}\nv_add_f32 v{b}, v{b}, v{b+2}")
    if rho == 4:
        pass
a(f"s_cmp_lt_u32 s3, 2\ns_cbranch_scc0 {L('noat')}")
with a.skippable():
    a(f"s_add_u32 s9, s72, 8192\nbuffer_atomic_add_f32 v80, v11, {R(WS)}, s9 offen")
a.label(L('noat'))
a("s_add_u32 s9, s72, 4096")
for rho in range(4):
    a(f"buffer_atomic_add_f32 v{64+4*rho}, v11, {R(WS)}, {'s72' if rho < 2 else 's9'} offen offset:{(rho&1)*2048}", "AT")
ffn_epi(a, ACC2, 67)
p2_traddr()
a("s_barrier")
st(grp="B")
a.wv("D1")
for u in range(6): p2_tr(WREG+8*u, u, "W1")
for u in range(6, 8): p2_dma(a, u, "D1b")
a.wv("H")
st(grp="B")
a(f"""
s_lshl_b32 s9, s6, 9
s_lshl_b32 s10, s4, 5
s_add_u32 s9, s9, s10
s_lshl_b32 s10, s3, 2
s_add_u32 s9, s9, s10
s_add_u32 s9, s9, {KVF}
""")
flag_store("s9")
hflag()
st()
a("s_barrier")
p2_dma(a, 8, "D1b")
a.wl("W1")
for u in range(9, 15): p2_dma(a, u, "D2")
a.wv("D1b")
for u in range(6, 9): p2_tr(WREG+8*u, u, "W1")
a.wl("W1")
for u in range(15, 18): p2_dma(a, u, "D2")
a(f"s_branch {L('phase2')}")
a.label(L('typeB'))
a.qload("br")
a("s_nop 7")
cs_rd(a, 96, 27, 256, "Q1"); cs_rd(a, 104, 27, 0, "Q0"); cs_rd(a, 56, 27, 512, "Q2")
a.wl("Q1"); corr(a, ACC1, 96, "v29", False)
a.wl("Q0"); corr(a, ACC0, 104, "0", False)
a.wl("Q2"); corr(a, ACC2, 56, "v30", True)
cs_rd(a, 96, 27, 768, "Q3")
ffn_epi(a, ACC1, 66)
for q in range(8): a(f"v_cvt_pk_bf16_f32 v{48+q}, v{ACC0+2*q}, v{ACC0+2*q+1}")
a.wl("Q3")
def epiB(x):
    for h in range(2):
        x(f"{MF} {V(ACC0,16)}, {V(32+4*h)}, {V(48+4*h)}, 0")
        softmax(x, ACC0, 32+4*h, 48+4*h)
st(3, grp="B")
a(f"s_cmp_eq_u32 s8, 0\ns_cbranch_scc1 {L('B2')}")
a.qsave("b2")
E = a.sub(); Bs = a.sub(); epiB(E); passB(Bs, False, ((96,0),(104,0),(2,0))); domerge(E, Bs)
ffn_epi(a, ACC2, 67)
a(f"s_branch {L('Bj')}")
a.label(L('B2'))
a.qload("b2")
corr(a, ACC1, 96, "v31", True)
E = a.sub(); Bs = a.sub(); epiB(E); passB(Bs, True, ((96,100),(104,108),(2,8))); domerge(E, Bs)
ffn_epi(a, ACC2, 67); ffn_epi(a, ACC1, 68)
a.label(L('Bj'))
st(3); st(4, grp="B"); st(grp="B")
p2_traddr()
a("s_barrier")
st(grp="B")
for u in range(6, 8): p2_dma(a, u, "D1b")
a.wv("H")
st(grp="B")
hflag()
for u in range(6): p2_tr(WREG+8*u, u, "W1")
a("s_barrier")
p2_dma(a, 8, "D1b")
a.wl("W1")
for u in range(9, 15): p2_dma(a, u, "D2")
a.wv("D1b")
for u in range(6, 9): p2_tr(WREG+8*u, u, "W1")
a.wl("W1")
for u in range(15, 18): p2_dma(a, u, "D2")
a(f"s_lshl_b32 s9, s6, 9\ns_add_u32 s64, s9, {KVF}")
poll("pk", "s64", 64, wide=True)
st()
KVL = 7*PG
a(f"s_add_u32 m0, s70, {KVL}\ns_add_u32 s9, s72, s70")
a(f"buffer_load_dwordx4 v26, {R(WS)}, s9 offen {SC} lds")
a(f"s_cmp_eq_u32 s3, 0\ns_cbranch_scc0 {L('k9')}")
with a.skippable():
    a(f"s_mov_b32 m0, {KVL+8192}\ns_add_u32 s9, s72, 8192\nbuffer_load_dwordx4 v26, {R(WS)}, s9 offen {SC} lds")
a.label(L('k9'))
a(f"""
v_and_b32 v11, 31, v1
v_lshrrev_b32 v12, 5, v1
v_lshl_add_u32 v13, v12, 4, v11
v_lshlrev_b32 v13, 6, v13
s_lshl_b32 s10, s8, 12
s_add_u32 s10, s10, {KVL}
v_add_u32 v13, s10, v13
v_add_u32 v14, 2048, v13
v_lshlrev_b32 v12, 6, v12
s_lshl_b32 s10, s8, 8
s_add_u32 s10, s10, {KVL+8192}
v_add_u32 v12, s10, v12
v_add_u32 v15, 128, v12
v_cmp_gt_u32 vcc, 16, v11
v_cndmask_b32 v12, v12, v13, vcc
v_cndmask_b32 v13, v15, v14, vcc
s_waitcnt vmcnt(0)
s_barrier
""")
for h in range(2):
    for q in range(4): a(f"ds_read_b128 {V(64+16*h+4*q)}, v{12+h} offset:{16*q}", f"K{h}")
a(f"s_add_u32 s9, s73, 112\ns_lshl_b32 s9, s9, 10\ns_add_u32 s9, s9, s74")
for h in range(2):
    acc = 64+16*h; T = 96+16*h
    a.wl(f"K{h}")
    for q in range(8): a(f"v_cvt_pk_bf16_f32 v{acc+q}, v{acc+2*q}, v{acc+2*q+1}")
    a(f"{MF} {V(T,16)}, {V(acc)}, {V(32+4*h)}, 0")
    a(f"{MF} {V(T,16)}, {V(acc+4)}, {V(48+4*h)}, {V(T,16)}")
for h in range(2):
    acc = 64+16*h; T = 96+16*h
    a(f"v_add_f32 v9, 0x358637bd, v{T+8}\nv_rcp_f32 v9, v9")
    for r in range(8): a(f"v_mul_f32 v{T+r}, v{T+r}, v9")
    for q in range(4): a(f"v_cvt_pk_bf16_f32 v{acc+8+q}, v{T+2*q}, v{T+2*q+1}")
    a(f"buffer_store_dwordx4 {V(acc+8)}, v26, {R(WS)}, s9 offen offset:{h*1024} {SC}", "O")
a.wv("O")
a(f"s_add_u32 s9, s77, {OF - 128}")
flag_store("s9")
a.label(L('phase2'))
st()
a(f"""
s_mul_i32 s64, s82, {2*AF_TG}
s_mul_i32 s65, s3, {14*1024}
s_add_u32 s65, s65, s64
s_lshl_b32 s66, s3, 12
s_add_u32 s66, s66, s64
s_add_u32 s66, s66, {112*1024}
s_add_u32 s67, s65, {AF_TG}
s_add_u32 s68, s66, {AF_TG}
s_lshl_b32 s9, s82, 8
s_add_u32 s72, s9, {HF}
s_add_u32 s73, s9, {OF}
v_lshlrev_b32 v0, 4, v1
s_waitcnt lgkmcnt(0)
""")
poll("ph", "s72", 64)
st()
abuf = [200+8*i for i in range(7)] + [16+8*i for i in range(4)]
NA = 11
a(f"""
s_mov_b32 s60, s65
s_add_u32 s83, s65, {14*1024}
s_lshl_b32 s9, s76, 10
s_add_u32 s65, s65, s9
""")
def aload(u):
    r = abuf[u % NA]
    if u < 14:
        a(f"s_add_u32 s71, s65, {AF_TG}")
        a(f"buffer_load_dwordx4 {V(r)}, v0, {R(WS)}, s65 offen {SC}", f"A{u}")
        a(f"buffer_load_dwordx4 {V(r+4)}, v0, {R(WS)}, s71 offen {SC}", f"A{u}")
        a("s_add_u32 s65, s65, 1024\ns_cmp_eq_u32 s65, s83\ns_cselect_b32 s65, s60, s65")
    else:
        for tb in range(2):
            a(f"buffer_load_dwordx4 {V(r+4*tb)}, v0, {R(WS)}, s{(66,68)[tb]} offen offset:{(u-14)*1024} {SC}", f"A{u}")
for u in range(NA):
    aload(u)
    if u == 6:
        a(f"v_lshlrev_b32 v8, 2, v1\nbuffer_load_dword v10, v8, {R(WS)}, s73 offen {SC}", "A6")
def mfmas(u, w):
    r = abuf[u % NA]
    for tb in range(2):
        for nb in range(2):
            d = P2ACC + 16*(2*tb+nb)
            a(f"{MF} {V(d,16)}, {V(w+4*nb)}, {V(r+4*tb)}, {V(d,16) if u else 0}")
a(f"""
v_lshrrev_b32 v12, 3, v1
v_lshlrev_b32 v12, 10, v12
v_and_b32 v13, 7, v1
v_lshlrev_b32 v13, 4, v13
v_add_u32 v12, v12, v13
s_lshl_b32 s74, s82, 16
s_lshl_b32 s9, s3, 13
s_add_u32 s74, s74, s9
s_add_u32 s74, s74, s62
""")
for u in range(18):
    if u == 8: p2_tr(WTMP, 9, "T9")
    if 9 <= u < 17: p2_tr(WTMP + 8*((u-8)&1), u+1, f"T{u+1}")
    if u >= 9: a.wl(f"T{u}")
    a.wv(f"A{u}")
    mfmas(u, WREG+8*u if u < 9 else WTMP+8*((u-9)&1))
    if u < 3: aload(u+NA)
    if u == 3:
        a(f"buffer_load_dwordx4 v[128:131], v12, {R(X)}, s74 offen", "X")
        a(f"buffer_load_dwordx4 v[132:135], v13, {R(B2)}, s62 offen", "X")
    if u == 6:
        a("s_mov_b32 s79, 0")
        a.label(L('po'))
        a(f"""
        v_cmp_ne_u32 vcc, s75, v10
        s_cmp_eq_u32 vcc_lo, 0
        s_cbranch_scc1 {L('pook')}
        s_add_u32 s79, s79, 1
        s_cmp_gt_u32 s79, {SPIN}
        s_cbranch_scc1 {L('pook')}
        """)
        with a.skippable():
            a(f"s_sleep 8\nbuffer_load_dword v10, v8, {R(WS)}, s73 offen {SC}\ns_waitcnt vmcnt(0)\ns_branch {L('po')}")
        a.label(L('pook'))
        for uu in range(14, 18): aload(uu)
st()
RPG = [0, 1, 2, 3, 4, 5, 6, 8]
a(f"""
v_bfe_u32 v8, v1, 3, 2
v_lshlrev_b32 v8, 14, v8
v_and_b32 v9, 7, v1
v_lshl_add_u32 v8, v9, 8, v8
v_lshrrev_b32 v10, 5, v1
v_xor_b32 v10, v10, v9
v_lshl_add_u32 v8, v10, 4, v8
v_add_u32 v8, s69, v8
v_xor_b32 v9, 32, v8
v_xor_b32 v10, 64, v8
v_xor_b32 v11, 96, v8
v_bfe_u32 v14, v1, 3, 2
v_cmp_eq_u32 vcc, 3, v14
v_mov_b32 v14, 0x10000
v_mov_b32 v15, 0x14000
v_cndmask_b32 v14, v14, v15, vcc
v_add_u32 v2, v14, v8
v_add_u32 v3, v14, v9
v_add_u32 v4, v14, v10
v_add_u32 v5, v14, v11
""")
for tb in range(2):
    for nb in range(2):
        for qq in range(4):
            d = P2ACC + 16*(2*tb+nb) + 4*qq
            a(f"ds_write_b128 v{(8,2)[tb]+qq}, {V(d)} offset:{nb*128}")
a("""
v_lshrrev_b32 v6, 3, v1
v_and_b32 v7, 7, v1
v_lshlrev_b32 v7, 1, v7
v_xor_b32 v7, v7, v6
v_lshlrev_b32 v6, 8, v6
v_lshl_add_u32 v6, v7, 4, v6
s_cmp_eq_u32 s3, 7
s_cselect_b32 s9, 8, s3
s_lshl_b32 s9, s9, 14
v_add_u32 v6, s9, v6
v_xor_b32 v7, 16, v6
s_waitcnt lgkmcnt(0)
s_barrier
""")
RR = 160
for w in range(8):
    for e in range(2):
        a(f"ds_read_b128 {V(RR+8*w+4*e)}, v{6+e} offset:{w*2048}", f"R{w}")
a.wv("X")
for i in range(4):
    a(f"v_lshlrev_b32 v{24+2*i}, 16, v{128+i}\nv_and_b32 v{25+2*i}, 0xffff0000, v{128+i}")
    a(f"v_lshlrev_b32 v{32+2*i}, 16, v{132+i}\nv_and_b32 v{33+2*i}, 0xffff0000, v{132+i}")
for i in range(8): a(f"v_add_f32 v{24+i}, v{24+i}, v{32+i}")
for w in range(8):
    a.wl(f"R{w}")
    for i in range(8): a(f"v_add_f32 v{24+i}, v{24+i}, v{RR+8*w+i}")
for i in range(4): a(f"v_cvt_pk_bf16_f32 v{32+i}, v{24+2*i}, v{25+2*i}")
a(f"buffer_store_dwordx4 v[32:35], v12, {R(OUT)}, s74 offen")
if INSTR:
    a("s_waitcnt vmcnt(0)"); st()
    nst[0] = 9
    a(f"s_waitcnt lgkmcnt(0)\ns_lshl_b32 s9, s2, 3\ns_add_u32 s9, s9, s3\ns_lshl_b32 s9, s9, 6\ns_add_u32 s9, s9, {STAMPS}")
    a("v_mov_b32 v0, 0\ns_mov_b64 exec, 1")
    if "dbgst" in EXP:
        a(f"s_not_b32 s9, s84\nv_mov_b32 v1, s9\nbuffer_atomic_umax v1, v0, {R(DBG)}, 0 offen offset:4\ns_nop 1")
        for i in range(nst[0]):
            a(f"v_mov_b32 v1, s{84+2*i}\nbuffer_atomic_umax v1, v0, {R(DBG)}, 0 offen offset:{8+4*i}\ns_nop 1")
        a(f"s_sub_u32 s9, s100, s84\nv_mov_b32 v1, s9\nbuffer_atomic_umax v1, v0, {R(DBG)}, 0 offen offset:44\ns_nop 1")
        a(f"s_sub_u32 s9, s88, s84\nv_mov_b32 v1, s9\nbuffer_atomic_umax v1, v0, {R(DBG)}, 0 offen offset:48\ns_nop 1")
        a(f"s_sub_u32 s9, s86, s84\nv_mov_b32 v1, s9\nbuffer_atomic_umax v1, v0, {R(DBG)}, 0 offen offset:52\ns_nop 1")
        a(f"s_sub_u32 s9, s90, s88\nv_mov_b32 v1, s9\nbuffer_atomic_umax v1, v0, {R(DBG)}, 0 offen offset:56\ns_nop 1")
    else:
      for i in range(nst[0]):
        a(f"v_mov_b32 v1, s{84+2*i}\nbuffer_store_dword v1, v0, {R(WS)}, s9 offen offset:{4*i}\ns_nop 1")
a.label(L('end')); a("s_endpgm")
desc = f""".section .rodata,"a"
.p2align 6
.amdhsa_kernel {NAME}
  .amdhsa_next_free_vgpr 256
  .amdhsa_next_free_sgpr 102
  .amdhsa_accum_offset 256
  .amdhsa_group_segment_fixed_size 0
  .amdhsa_kernarg_size 96
  .amdhsa_user_sgpr_count 2
  .amdhsa_user_sgpr_kernarg_segment_ptr 1
  .amdhsa_system_sgpr_workgroup_id_x 1
  .amdhsa_float_denorm_mode_32 3
.end_amdhsa_kernel
"""
if __name__ == "__main__":
    open(sys.argv[1], "w").write("; @launch grid=(256,1,1) block=(512,1,1) lds=163840\n" + a.finish() + desc)
    print("stamps:", nst[0], "STAMPS", STAMPS)
```

```python
import sys, os
sys.path.insert(0, "work")
from asmlib import Asm
EXP = os.environ.get("EXP", "").split(",")
INSTR = "instr" in sys.argv
STG = os.environ.get("STG", "main")
def env(n, d): return int(os.environ.get(n, str(d)))
NAME = "parallel_sum__linear_kernel_hedgehog__dense_activation_squared_relu__prompt_kernel"
SZ = dict(x=2048*512*2, wqkv=512*1536*2, wphi=32*16*16*2, wo=512*512*2, w1=512*1792*2, b1=1792*2, w2=1792*512*2, b2=512*2, out=2048*512*2, dbg=256)
KSLOT = dict(x=0, wqkv=1, wphi=2, wo=3, w1=5, b1=6, w2=7, b2=8, out=9, dbg=10, ws=11)
AF_TG = 144*1024
KVACC = 64*AF_TG; KV_J = 9216
KVF = KVACC + 8*KV_J
HF = KVF + 8*512
OF = HF + 32*256
EFS = OF + 32*256
EFC = EFS + 16*128
CSP = EFC + 16*128
STAT = CSP + 16*14336
STAMPS = STAT + 2048*16
WS_END = STAMPS + 256*8*64
SZ["ws"] = WS_END
LOG2E = "0x3fb8aa3b"
SLOT = 49152; PG = 16384; RB = PG
SPIN = 400000
FLA = env("FLA", 18); FLC = env("FLC", 23); KPW = env("KPW", 4); FLB = env("FLB", 14); OCK = env("OCK", 6); NE = env("NE", 4); NB = env("NB", 8)
SC = "sc0 sc1"
SLP = env("SLP", 8)
X, WQ, W1, WS, DBG, WPHI, B1, I1, W2, WO, B2, OUT = 12, 16, 20, 24, 28, 32, 36, 40, 44, 48, 52, 56
def R(s): return f"s[{s}:{s+3}]"
def V(b, n=4): return f"v[{b}:{b+n-1}]"
MF = "v_mfma_f32_32x32x16_bf16"
a = Asm()
nst = [0]
def st(i=None, grp="main"):
    if not INSTR or grp != STG: return
    if i is not None: nst[0] = i
    a(f"s_memrealtime s[{84+2*nst[0]}:{85+2*nst[0]}]"); nst[0] += 1
def L(n): return f"L_{n}"
def fin(x, n, s): x(f"s_mov_b32 s{s+2}, {SZ[n]}\ns_mov_b32 s{s+3}, 0x20000")

a.raw('.amdgcn_target "amdgcn-amd-amdhsa--gfx950"\n.text')
a.raw(f".globl {NAME}\n.p2align 8\n.type {NAME},@function\n{NAME}:")
a(f"s_cmp_ge_u32 s2, 256\ns_cbranch_scc1 {L('end')}")
st(grp=STG)
names = (("x",X),("wqkv",WQ),("w1",W1),("ws",WS),("dbg",DBG),("wphi",WPHI),("b1",B1),("w2",W2),("wo",WO),("b2",B2),("out",OUT))
for n, s in names: a(f"s_load_dwordx2 s[{s}:{s+1}], s[0:1], {KSLOT[n]*8}")
a(f"""
v_and_b32 v1, 63, v0
v_lshrrev_b32 v2, 6, v0
v_readfirstlane_b32 s3, v2
s_bfe_u32 s4, s2, 0x30003
s_bfe_u32 s9, s2, 0x10002
s_lshl_b32 s9, s9, 3
s_add_u32 s4, s4, s9                ; m
s_lshr_b32 s5, s2, 7                ; type
s_and_b32 s6, s2, 3
s_lshl_b32 s6, s6, 1
s_bfe_u32 s10, s2, 0x10006
s_add_u32 s6, s6, s10               ; j
v_lshrrev_b32 v9, 3, v1
v_and_b32 v10, 7, v1
v_lshrrev_b32 v11, 4, v1
v_xor_b32 v12, v10, v11
v_lshlrev_b32 v13, 10, v9
v_lshl_add_u32 v2, v12, 4, v13
v_xor_b32 v3, 0x2040, v2
v_and_b32 v11, 1, v11
v_lshlrev_b32 v11, 6, v11
v_lshlrev_b32 v12, 4, v10
v_xor_b32 v12, v12, v11
v_mul_u32_u24 v13, 3072, v9
v_add_u32 v4, v13, v12
v_mul_u32_u24 v13, 3584, v9
v_add_u32 v6, v13, v12
v_xor_b32 v14, 32, v4
s_and_b32 s9, s2, 3
s_mul_i32 s9, s9, 5
s_add_u32 s9, s9, 8
s_mul_i32 s11, s10, 3
s_add_u32 s66, s9, s11              ; I1 block (B)
s_add_u32 s67, s66, 1
s_add_u32 s68, s9, 2                ; I3 block
s_lshl_b32 s61, s6, 7
s_add_u32 s62, s61, 2048
s_lshl_b32 s77, s66, 7
s_add_u32 s78, s61, 1024
s_movk_i32 s63, 3584
s_cmp_eq_u32 s5, 0
s_cselect_b64 vcc, -1, 0
s_cselect_b32 s61, s78, s61         ; I0 col
s_cselect_b32 s62, s62, s77         ; I1 col
s_cselect_b32 s63, 3072, s63
s_cselect_b32 s67, s6, s67          ; I2 block
v_cndmask_b32 v5, v6, v14, vcc
s_lshl_b32 s64, s67, 7              ; I2 col
s_lshl_b32 s65, s68, 7              ; I3 col
s_lshl_b32 s60, s4, 17
s_lshl_b32 s69, s3, 11
s_lshl_b32 s70, s3, 10
s_lshl_b32 s11, s3, 14
s_add_u32 s76, s60, s11
s_mul_i32 s11, s3, {8*3072}
s_add_u32 s11, s61, s11
v_add_u32 v4, s11, v4
s_lshl_b32 s11, s3, 3
s_mul_i32 s11, s11, s63
s_add_u32 s11, s62, s11
v_add_u32 v5, s11, v5
s_lshl_b32 s75, s63, 6
s_mul_i32 s11, s3, {8*3584}
s_add_u32 s73, s64, s11
s_add_u32 s74, s65, s11
v_add_u32 v7, s74, v6
v_add_u32 v6, s73, v6
s_mov_b32 s82, 0
s_mov_b32 s83, 0
s_mov_b32 s73, 0
s_lshl_b32 s79, s5, 3
s_add_u32 s79, s79, s6              ; slot
s_and_b32 s78, s3, 1                ; lo
s_lshr_b32 s77, s3, 1
v_lshlrev_b32 v26, 4, v1
s_waitcnt lgkmcnt(0)
""")
fin(a, "x", X); fin(a, "wqkv", WQ); fin(a, "w1", W1)
a(f"""
s_cmp_eq_u32 s5, 0
s_cselect_b32 s{I1}, s{WQ}, s{W1}
s_cselect_b32 s{I1+1}, s{WQ+1}, s{W1+1}
s_cselect_b32 s{I1+2}, s{WQ+2}, s{W1+2}
s_mov_b32 s{I1+3}, 0x20000
""")
a(f"""
s_lshl_b32 s9, s79, 13
s_add_u32 s9, s9, s70
s_add_u32 s9, s9, s60
""")
a(f"buffer_load_dwordx4 v[112:115], v26, {R(X)}, s9 offen", "E")
a(f"""
v_lshrrev_b32 v9, 2, v1
v_and_b32 v10, 3, v1
v_lshlrev_b32 v10, 4, v10
s_cmp_eq_u32 s77, 0
s_cselect_b32 s9, s61, s62
s_cselect_b32 s11, 3072, s63
s_cmp_eq_u32 s77, 2
s_cselect_b32 s9, s64, s9
s_cmp_eq_u32 s77, 3
s_cselect_b32 s9, s65, s9
s_cselect_b32 s71, s10, s78
s_cmp_ge_u32 s77, 2
s_cselect_b32 s11, 3584, s11
s_lshl_b32 s71, s71, 6
s_add_u32 s9, s9, s71
s_lshl_b32 s71, s4, 5
s_mul_i32 s71, s71, s11
s_add_u32 s9, s9, s71               ; + 32m rows
v_mul_lo_u32 v9, v9, s11
v_add_u32 v9, v9, v10
s_lshl_b32 s11, s11, 4
s_add_u32 s71, s9, s11
s_mov_b32 m0, s69
s_cmp_eq_u32 s11, {3072*16}
s_cbranch_scc1 {L('e1')}
""")
with a.skippable():
    a(f"buffer_load_dwordx4 v9, {R(W1)}, s9 offen lds\ns_add_u32 m0, s69, 1024\ns_nop 0\nbuffer_load_dwordx4 v9, {R(W1)}, s71 offen lds\ns_branch {L('e2')}")
a.label(L('e1'))
with a.skippable():
    a(f"buffer_load_dwordx4 v9, {R(WQ)}, s9 offen lds\ns_add_u32 m0, s69, 1024\ns_nop 0\nbuffer_load_dwordx4 v9, {R(WQ)}, s71 offen lds")
a.label(L('e2'))
def dma(c, piece):
    t = f"C{c}"; sl = RB + (c % 3)*SLOT
    if piece < 2:
        a(f"s_add_u32 m0, s69, {sl+1024*piece-c*128}")
        a(f"buffer_load_dwordx4 v{2+piece}, {R(X)}, s76 offen offset:{c*128} lds", t)
    elif piece == 2:
        a(f"s_add_u32 m0, s70, {sl+16384}")
        a(f"buffer_load_dwordx4 v4, {R(WQ)}, s82 offen lds", t)
        a(f"s_add_u32 s82, s82, {64*3072}")
    elif piece == 3:
        a(f"s_add_u32 m0, s70, {sl+24576}")
        a(f"buffer_load_dwordx4 v5, {R(I1)}, s83 offen lds", t)
        a("s_add_u32 s83, s83, s75")
    elif piece == 4:
        a(f"s_add_u32 m0, s70, {sl+32768}")
        a(f"buffer_load_dwordx4 v6, {R(W1)}, s73 offen lds", t)
    else:
        a(f"s_add_u32 m0, s70, {sl+40960}")
        a(f"buffer_load_dwordx4 v7, {R(W1)}, s73 offen lds", t)
        a(f"s_add_u32 s73, s73, {64*3584}")
dma(0, 0); a.items.append(("retag", ("C0", "E")))
a(f"s_cmp_eq_u32 s5, 0\ns_cbranch_scc1 {L('c0b')}")
with a.skippable():
    dma(0, 4); dma(0, 5)
a.label(L('c0b'))
dma(0, 1); dma(0, 2); dma(0, 3)
fin(a, "ws", WS); fin(a, "dbg", DBG)
a("v_mov_b32 v19, 0")
a(f"s_or_b32 s9, s2, s3\ns_cmp_eq_u32 s9, 0\ns_cbranch_scc0 {L('nononce')}")
with a.skippable():
    a(f"""
    s_memrealtime s[80:81]
    s_waitcnt lgkmcnt(0)
    s_or_b32 s80, s80, 1
    v_mov_b32 v10, s80
    s_mov_b64 exec, 1
    buffer_store_dword v10, v19, {R(DBG)}, 0 offen {SC}
    s_mov_b64 exec, -1
    """)
a.label(L('nononce'))
a(f"""
s_bfe_u32 s7, s3, 0x10001           ; mh
s_lshr_b32 s8, s3, 2                ; hi
s_mul_i32 s72, s6, {KV_J}
s_add_u32 s72, s72, {KVACC}
s_cmp_eq_u32 s5, 1
s_cselect_b32 s9, s4, 1
s_cmp_eq_u32 s9, 0
s_cbranch_scc0 {L('nozero')}
""")
with a.skippable():
    a(f"""
    v_lshlrev_b32 v9, 4, v0
    v_mov_b32 v10, 0
    v_mov_b32 v11, 0
    v_mov_b32 v12, 0
    v_mov_b32 v13, 0
    buffer_store_dwordx4 v[10:13], v9, {R(WS)}, s72 offen {SC}
    s_add_u32 s9, s72, 8192
    s_cmp_eq_u32 s3, 0
    s_cbranch_scc0 {L('nozero')}
    buffer_store_dwordx4 v[10:13], v9, {R(WS)}, s9 offen {SC}
    """)
a.label(L('nozero'))
a(f"""
s_and_b32 s9, s78, s8
s_cmp_eq_u32 s5, 0
s_cselect_b32 s61, s8, s9           ; sel
v_and_b32 v29, 31, v1
v_lshrrev_b32 v30, 5, v1
v_bfe_u32 v31, v1, 1, 3
v_xor_b32 v31, v31, v30
v_lshlrev_b32 v20, 7, v29
v_lshl_add_u32 v8, v31, 4, v20
s_lshl_b32 s9, s7, 1
s_add_u32 s62, s9, s61
s_lshl_b32 s9, s62, 12
s_add_u32 s9, s9, {RB}
v_add_u32 v8, s9, v8
v_xor_b32 v9, 32, v8
v_xor_b32 v10, 64, v8
v_xor_b32 v11, 96, v8
v_xor_b32 v12, 0x1000, v8
v_xor_b32 v13, 0x1000, v9
v_xor_b32 v14, 0x1000, v10
v_xor_b32 v15, 0x1000, v11
v_bfe_u32 v31, v1, 2, 2
v_lshl_add_u32 v20, v30, 3, v31
v_and_b32 v22, 3, v1
v_lshlrev_b32 v22, 3, v22
v_lshl_add_u32 v18, v20, 6, v22
v_lshl_add_u32 v20, v20, 7, v22
v_lshl_add_u32 v21, v30, 2, v31
v_lshl_add_u32 v21, v21, 5, v22
v_bfe_u32 v22, v1, 4, 1
v_lshl_add_u32 v18, v22, 5, v18
v_add_u32 v18, s69, v18
v_and_b32 v31, 2, v31
v_xor_b32 v31, v31, v22
v_lshl_add_u32 v20, v31, 5, v20     ; nat0
s_lshl_b32 s9, s8, 1
s_add_u32 s63, s9, s78              ; nq
s_lshl_b32 s9, s63, 5
v_xor_b32 v23, s9, v20
v_lshl_add_u32 v23, v22, 13, v23
s_lshl_b32 s9, s78, 6
v_xor_b32 v24, s9, v20
s_cmp_eq_u32 s8, 0
s_cselect_b32 s10, 8192, 0
v_add_u32 v25, s10, v24
v_cndmask_b32 v16, v25, v23, vcc
v_add_u32 v16, {RB+16384}, v16
s_and_b32 s9, s6, 1
s_lshl_b32 s9, s9, 6
v_xor_b32 v25, s9, v20
v_add_u32 v25, 8192, v25
s_and_b32 s9, s5, s8
s_cmp_eq_u32 s9, 1
s_cselect_b64 s[80:81], -1, 0
v_cndmask_b32 v17, v24, v25, s[80:81]
v_add_u32 v17, {RB+32768}, v17
v_mov_b32 v20, v24
v_mul_u32_u24 v23, 192, v22
v_lshlrev_b32 v24, 2, v29
s_lshl_b32 s9, s63, 6
v_add3_u32 v23, v23, v24, s9
s_lshl_b32 s9, s78, 7
s_cmp_eq_u32 s8, 0
s_cselect_b32 s10, 256, 0
s_add_u32 s10, s10, s9
v_add_u32 v25, s10, v24
v_cndmask_b32 v23, v25, v23, vcc
s_add_u32 s9, s9, 512
s_and_b32 s10, s5, s8
s_cmp_eq_u32 s10, 1
s_cselect_b32 s9, 768, s9
v_add_u32 v24, s9, v24
s_lshl_b32 s66, s66, 1
s_add_u32 s66, s66, s78
s_lshl_b32 s67, s67, 1
s_add_u32 s67, s67, s78
s_lshl_b32 s68, s68, 1
s_and_b32 s9, s6, 1
s_add_u32 s68, s68, s9
s_cmp_eq_u32 s10, 1
s_cselect_b32 s67, s68, s67
s_lshl_b32 s9, s78, 1
s_cmp_eq_u32 s5, 0
s_cselect_b32 s9, s63, s9
s_lshl_b32 s10, s6, 2
s_add_u32 s65, s10, s9
s_lshl_b32 s9, s9, 9
s_add_u32 s9, s9, 14336
v_add_u32 v21, s9, v21
v_mov_b32 v22, 0x3f803f80
v_and_b32 v27, 15, v1
v_lshlrev_b32 v27, 2, v27
s_lshl_b32 s9, s4, 7
s_add_u32 s9, s9, {EFS}
s_lshl_b32 s10, s79, 7
s_add_u32 s10, s10, {EFC}
v_add_u32 v25, s9, v27
v_add_u32 v28, s10, v27
v_lshrrev_b32 v27, 4, v1
v_cmp_eq_u32 vcc, 1, v27
v_cndmask_b32 v25, v25, v28, vcc
s_lshl_b32 s9, s6, 2
s_add_u32 s9, s9, {EFS+32}
v_writelane_b32 v25, s9, 32
""")
fin(a, "b1", B1); fin(a, "wphi", WPHI); fin(a, "w2", W2); fin(a, "wo", WO); fin(a, "b2", B2); fin(a, "out", OUT)
a.wv("E")
for k, off in enumerate((0, 256, 1024, 1280)): a(f"ds_read_b64_tr_b16 {V(120+2*k,2)}, v18 offset:{off}", "EW")
a("v_mov_b32 v116, 0\nv_mov_b32 v117, 0\nv_mov_b32 v118, 0")
for q in range(4):
    a(f"v_dot2_f32_bf16 v116, v{112+q}, v22, v116\nv_dot2_f32_bf16 v117, v{112+q}, v{112+q}, v117")
a.wl("EW")
for q in range(8): a(f"v_dot2_f32_bf16 v118, v{120+q}, v22, v118")
for dpp in ("quad_perm:[1,0,3,2]", "quad_perm:[2,3,0,1]", "row_half_mirror", "row_mirror"):
    a(f"v_add_f32_dpp v116, v116, v116 {dpp} row_mask:0xf bank_mask:0xf\nv_add_f32_dpp v117, v117, v117 {dpp} row_mask:0xf bank_mask:0xf")
a(f"""
v_permlane16_swap_b32 v116, v117
v_add_f32 v116, v116, v117
v_mov_b32 v119, v118
v_mov_b32 v117, v116
v_permlane32_swap_b32 v118, v119
v_permlane32_swap_b32 v116, v117
v_add_f32 v118, v118, v119
v_add_f32 v116, v116, v117
v_mov_b32 v117, v116
v_permlane16_swap_b32 v116, v117
v_mul_f32 v116, 0x3b000000, v116
v_mul_f32 v117, 0x3b000000, v117
v_fma_f32 v117, -v116, v116, v117
v_max_f32 v117, 0, v117
v_add_f32 v117, 0x3727c5ac, v117
v_rsq_f32 v114, v117
v_sub_f32 v116, 0, v116
v_mul_f32 v117, v117, v114
v_cvt_pk_bf16_f32 v120, v116, v117
v_and_b32 v121, 0xffff0000, v120
v_lshlrev_b32 v122, 16, v120
v_sub_f32 v123, v116, v122
v_sub_f32 v124, v117, v121
v_cvt_pk_bf16_f32 v112, v122, v123
v_cvt_pk_bf16_f32 v113, v121, v124
s_lshl_b32 s10, s4, 7
s_lshl_b32 s11, s79, 3
s_add_u32 s10, s10, s11
s_add_u32 s10, s10, s3
s_lshl_b32 s10, s10, 4
s_add_u32 s10, s10, {STAT}
s_mul_i32 s11, s79, 14336
s_mul_i32 s71, s4, 896
s_add_u32 s11, s11, s71
s_lshl_b32 s71, s3, 7
s_add_u32 s11, s11, s71
s_add_u32 s11, s11, {CSP}
v_lshlrev_b32 v120, 2, v1
s_mov_b64 exec, 1
buffer_store_dwordx4 v[112:115], v19, {R(WS)}, s10 offen {SC}
s_cmp_lt_u32 s3, 7
s_cselect_b32 exec_lo, -1, 0
s_cbranch_scc0 {L('nocs')}
""")
with a.skippable():
    a(f"buffer_store_dword v118, v120, {R(WS)}, s11 offen {SC}")
a.label(L('nocs'))
a("s_mov_b64 exec, -1")
a(f"buffer_load_dword v31, v19, {R(DBG)}, 0 offen {SC}", "N0")
a("v_lshlrev_b32 v120, 1, v29\ns_lshl_b32 s9, s66, 6\ns_lshl_b32 s10, s67, 6")
a(f"buffer_load_ushort v27, v120, {R(B1)}, s9 offen", "S")
a(f"buffer_load_ushort v28, v120, {R(B1)}, s10 offen", "S")
st()

def side_flags(tg, tmp):
    a(f"s_cmp_eq_u32 s3, 0\ns_cbranch_scc0 {L('nofl'+tg)}")
    with a.skippable():
        a("s_mov_b32 s71, 0")
        a.label(L('nspin'+tg))
        a(f"""
        v_readfirstlane_b32 s9, v31
        s_add_u32 s71, s71, 1
        s_cmp_gt_u32 s71, {SPIN}
        s_cbranch_scc1 {L('nok'+tg)}
        s_cmp_lg_u32 s9, 0
        s_cbranch_scc1 {L('nok'+tg)}
        buffer_load_dword v31, v19, {R(DBG)}, 0 offen {SC}
        s_waitcnt vmcnt(0)
        s_branch {L('nspin'+tg)}
        """)
        a.label(L('nok'+tg))
        a(f"""
        s_lshl_b32 s10, s4, 7
        s_lshl_b32 s11, s79, 2
        s_add_u32 s10, s10, s11
        s_lshl_b32 s11, s79, 7
        s_lshl_b32 s71, s4, 2
        s_add_u32 s11, s11, s71
        s_add_u32 s11, s11, {EFC-EFS}
        v_mov_b32 v{tmp}, s10
        v_writelane_b32 v{tmp}, s11, 1
        s_mov_b32 s10, {EFS}
        s_mov_b64 exec, 3
        buffer_store_dword v31, v{tmp}, {R(WS)}, s10 offen {SC}
        s_mov_b64 exec, -1
        """)
    a.label(L('nofl'+tg))
def side_wphi_dma(tg):
    a(f"s_cmp_lt_u32 s3, 2\ns_cbranch_scc0 {L('nowp'+tg)}")
    with a.skippable():
        a(f"s_add_u32 m0, s70, 14336\ns_lshl_b32 s9, s6, 11\ns_add_u32 s9, s9, s70\nbuffer_load_dwordx4 v26, {R(WPHI)}, s9 offen lds")
    a.label(L('nowp'+tg))
def side_poll_issue():
    a(f"buffer_load_dword v31, v19, {R(DBG)}, 0 offen {SC}", "FL")
    a(f"buffer_load_dword v18, v25, {R(WS)}, 0 offen {SC}", "FL")
def side_poll_check(tg, raw, tmp, restore_vcc):
    a.wv("FL")
    a("s_mov_b32 s71, 0")
    a.label(L('fspin'+tg))
    a(f"""
    v_readfirstlane_b32 s60, v31
    v_cmp_ne_u32 vcc, v18, v31
    s_cmp_eq_u32 s60, 0
    s_cselect_b64 vcc, -1, vcc
    s_cmp_eq_u64 vcc, 0
    s_cbranch_scc1 {L('fok'+tg)}
    s_add_u32 s71, s71, 1
    s_cmp_gt_u32 s71, {SPIN}
    s_cbranch_scc1 {L('fok'+tg)}
    """)
    with a.skippable():
        a(f"s_sleep 4\nbuffer_load_dword v31, v19, {R(DBG)}, 0 offen {SC}\nbuffer_load_dword v18, v25, {R(WS)}, 0 offen {SC}\ns_waitcnt vmcnt(0)\ns_branch {L('fspin'+tg)}")
    a.label(L('fok'+tg))
    if restore_vcc: a("s_mov_b64 vcc, s[80:81]")
    a(f"""
    v_lshlrev_b32 v{tmp}, 4, v29
    s_lshl_b32 s9, s4, 11
    s_lshl_b32 s10, s62, 9
    s_add_u32 s9, s9, s10
    s_add_u32 s9, s9, {STAT}
    s_xor_b32 s10, s9, 512
    """)
    a(f"s_cmp_lt_u32 s3, 7\ns_cbranch_scc0 {L('nocsd'+tg)}")
    with a.skippable():
        a(f"s_mul_i32 s11, s79, 14336\ns_add_u32 s11, s11, s69\ns_add_u32 s11, s11, {CSP}\ns_mov_b32 m0, s69")
        a(f"buffer_load_dwordx4 v26, {R(WS)}, s11 offen {SC} lds")
        a(f"buffer_load_dwordx4 v26, {R(WS)}, s11 offen offset:1024 {SC} lds")
    a.label(L('nocsd'+tg))
    a(f"buffer_load_dwordx4 {V(raw)}, v{tmp}, {R(WS)}, s9 offen {SC}", "ST")
    a(f"buffer_load_dwordx4 {V(raw+4)}, v{tmp}, {R(WS)}, s10 offen {SC}", "ST")
def side_csred(tg, t16, tmp):
    a(f"s_cmp_lt_u32 s3, 4\ns_cbranch_scc0 {L('nored'+tg)}")
    with a.skippable():
        a(f"v_min_u32 v{tmp}, 223, v0\nv_lshlrev_b32 v{tmp}, 2, v{tmp}")
        for g in range(16): a(f"ds_read_b32 v{t16+g}, v{tmp} offset:{g*896}")
        a("s_waitcnt lgkmcnt(0)")
        for w in (8, 4, 2, 1):
            for g in range(w): a(f"v_add_f32 v{t16+g}, v{t16+g}, v{t16+g+w}")
        a(f"""
        v_cvt_pk_bf16_f32 v{t16+1}, v{t16}, v{t16}
        v_and_b32 v{t16+1}, 0xffff0000, v{t16+1}
        v_sub_f32 v{t16+2}, v{t16}, v{t16+1}
        v_cvt_pk_bf16_f32 v{t16}, v{t16+1}, v{t16+2}
        ds_write_b32 v{tmp}, v{t16}
        """)
    a.label(L('nored'+tg))
def side_bext(raw, BX, RR, tmp):
    for t in range(2):
        s0 = raw+4*t; B = BX+4*t; rr = RR+3*t
        a(f"""
        v_and_b32 v{tmp}, 0xffff, v{s0}
        v_lshl_or_b32 v{B}, v{tmp}, 16, v{tmp}
        v_lshrrev_b32 v{tmp}, 16, v{s0}
        v_lshl_or_b32 v{B+1}, v{tmp}, 16, v{tmp}
        v_mov_b32 v{B+2}, v{s0+1}
        v_mov_b32 v{B+3}, 0
        v_mov_b32 v{rr}, v{s0+2}
        v_mul_f32 v{rr+1}, {LOG2E}, v{s0+2}
        v_mul_f32 v{rr+2}, 0.5, v{s0+2}
        """)
MAP = env("MAP", 1)
if MAP == 0:
    P2MAP = f"""
    s_and_b32 s82, s2, 7
    s_lshl_b32 s82, s82, 2
    s_bfe_u32 s9, s2, 0x20003
    s_add_u32 s82, s82, s9
    s_lshr_b32 s62, s2, 5
    s_mul_i32 s76, s62, 7
    s_lshr_b32 s76, s76, 2
    s_mul_i32 s9, s9, 3
    """
else:
    P2MAP = f"""
    s_bfe_u32 s82, s2, 0x20001
    s_lshl_b32 s82, s82, 3
    s_lshr_b32 s76, s2, 5
    s_add_u32 s82, s82, s76
    s_and_b32 s62, s2, 1
    s_lshl_b32 s62, s62, 2
    s_bfe_u32 s9, s2, 0x20003
    s_add_u32 s62, s62, s9
    s_mul_i32 s76, s76, 7
    s_lshr_b32 s76, s76, 2
    s_mul_i32 s9, s9, 3
    """
P2MAP += f"""
    s_add_u32 s76, s76, s9
    s_lshl_b32 s62, s62, 7
    s_mul_i32 s60, s3, {14*16*1024}
    s_add_u32 s60, s60, s62
    s_add_u32 s83, s60, {14*16384}
    s_lshl_b32 s68, s3, 16
    s_add_u32 s68, s68, s62
"""
TP0 = env("TP0", -1); TPS = env("TPS", 2)
def side_touch(tg, p, r1, r2):
    if TP0 < 0 or p < TP0 or (p-TP0) % TPS or (p-TP0)//TPS >= 8: return
    w = (p-TP0)//TPS
    a(f"s_cmp_eq_u32 s3, {w}\ns_cbranch_scc0 {L(f'pf{tg}{w}')}")
    with a.skippable():
        a(f"""
        s_lshr_b32 s9, s2, 3
        s_lshl_b32 s9, s9, 3
        s_add_u32 s9, s9, s3
        s_and_b32 s71, s2, 1
        s_lshl_b32 s71, s71, 9
        s_mul_i32 s10, s9, {7*1024}
        s_add_u32 s10, s10, s71
        s_lshl_b32 s11, s9, 11
        s_add_u32 s11, s11, s71
        v_lshrrev_b32 v{r1}, 2, v1
        v_and_b32 v{r2}, 3, v1
        v_lshlrev_b32 v{r2}, 7, v{r2}
        v_lshl_add_u32 v{r1}, v{r1}, 10, v{r2}
        s_mov_b64 exec, 0xfffffff
        buffer_load_dword v{r2}, v{r1}, {R(W2)}, s10 offen
        s_mov_b64 exec, 0xff
        buffer_load_dword v{r1}, v{r1}, {R(WO)}, s11 offen
        s_mov_b64 exec, -1
        """)
    a.label(L(f'pf{tg}{w}'))
def side_p2(t3):
    a(f"""
    s_mov_b32 s75, s60
    v_lshrrev_b32 v{t3}, 3, v1
    v_and_b32 v{t3+1}, 7, v1
    v_lshrrev_b32 v{t3+2}, 2, v1
    v_and_b32 v{t3+2}, 4, v{t3+2}
    v_xor_b32 v{t3+1}, v{t3+1}, v{t3+2}
    v_lshlrev_b32 v{t3}, 10, v{t3}
    v_lshl_add_u32 v18, v{t3+1}, 4, v{t3}
    s_lshl_b32 s74, s4, 2
    s_add_u32 s74, s74, s62
    s_xor_b32 s64, s74, 1
    s_mul_i32 s74, s74, {AF_TG}
    s_mul_i32 s64, s64, {AF_TG}
    {P2MAP}
    s_cmp_ge_u32 s76, 14
    s_cselect_b32 s9, 14, 0
    s_sub_u32 s76, s76, s9
    s_lshl_b32 s61, s76, 14
    s_add_u32 s61, s61, s60
    """)
def p2_adv(x):
    x("s_add_u32 s61, s61, 16384\ns_cmp_eq_u32 s61, s83\ns_cselect_b32 s61, s60, s61")
W2PG = [7, 8, 9, 1, 2, 3, 4, 5, 6]
def p2_dma(x, u, tag, partner=False):
    pg = W2PG[u % 9]
    for half in range(2):
        x(f"s_add_u32 m0, s69, {pg*PG + half*1024}")
        if u < 14:
            if half == 0: x(f"s_add_u32 s71, s61, 8192\nbuffer_load_dwordx4 v18, {R(W2)}, s61 offen lds", tag)
            else: x(f"buffer_load_dwordx4 v18, {R(W2)}, s71 offen lds", tag)
        else:
            x(f"s_add_u32 s71, s68, {((u-14)*16+half*8)*1024}")
            x(f"buffer_load_dwordx4 v18, {R(WO)}, s71 offen lds", tag)
    if partner:
        for half in range(2):
            x(f"s_add_u32 m0, s69, {pg*PG + half*1024 + 8192}\ns_add_u32 s71, s61, {4*14*16384 + half*8192}")
            x(f"buffer_load_dwordx4 v18, {R(W2)}, s71 offen lds", tag)
    if u < 14: p2_adv(x)
def softmax(x, P, Pp, Pm, c):
    E = 112
    x(f"""
    v_max3_f32 v2, v{P}, v{P+1}, v{P+2}
    v_max3_f32 v3, -v{P}, -v{P+1}, -v{P+2}
    v_max3_f32 v2, v2, v{P+3}, v{P+4}
    v_max3_f32 v3, v3, -v{P+3}, -v{P+4}
    v_max3_f32 v2, v2, v{P+5}, v{P+6}
    v_max3_f32 v3, v3, -v{P+5}, -v{P+6}
    v_max_f32 v2, v2, v{P+7}
    v_max_f32_e64 v3, v3, -v{P+7}
    v_permlane32_swap_b32 v2, v3
    v_max_f32 v2, v2, v3
    v_mul_f32_e64 v2, -v2, v{c}
    v_mov_b32 v3, v2
    v_permlane32_swap_b32 v2, v3
    """)
    for r in range(8): x(f"v_fma_f32 v{E+r}, -v{P+r}, v{c}, v3\nv_fma_f32 v{P+r}, v{P+r}, v{c}, v2")
    for r in range(8): x(f"v_exp_f32 v{E+r}, v{E+r}\nv_exp_f32 v{P+r}, v{P+r}")
    x(f"v_add_f32 v2, v{P}, v{P+1}\nv_add_f32 v3, v{E}, v{E+1}")
    for r in range(2, 8): x(f"v_add_f32 v2, v2, v{P+r}\nv_add_f32 v3, v3, v{E+r}")
    x("v_permlane32_swap_b32 v2, v3\nv_add_f32 v2, v2, v3\nv_rcp_f32 v2, v2\nv_mov_b32 v3, v2\nv_permlane32_swap_b32 v2, v3")
    for r in range(8): x(f"v_mul_f32 v{P+r}, v{P+r}, v2\nv_mul_f32 v{E+r}, v{E+r}, v3")
    for q in range(4): x(f"v_cvt_pk_bf16_f32 v{Pp+q}, v{P+2*q}, v{P+2*q+1}\nv_cvt_pk_bf16_f32 v{Pm+q}, v{E+2*q}, v{E+2*q+1}")
def ffn_epi(x, acc, s_tile, f, rh, so=9):
    a(f"s_lshl_b32 s{so}, s{s_tile}, 11\ns_add_u32 s{so}, s{so}, s{(74,64)[f]}")
    for r in range(16): x(f"v_add_f32_e64 v{acc+r}, v{acc+r}, |v{acc+r}|")
    for r in range(16): x(f"v_mul_f32 v{acc+r}, v{acc+r}, v{rh}")
    for r in range(16): x(f"v_mul_f32 v{acc+r}, v{acc+r}, v{acc+r}")
    for q in range(8): x(f"v_cvt_pk_bf16_f32 v{acc+q}, v{acc+2*q}, v{acc+2*q+1}")
    x(f"buffer_store_dwordx4 {V(acc)}, v26, {R(WS)}, s{so} offen {SC}", "H")
    x(f"buffer_store_dwordx4 {V(acc+4)}, v26, {R(WS)}, s{so} offen offset:1024 {SC}", "H")
def flag_store(soff):
    a(f"""
    v_mov_b32 v31, s75
    s_mov_b64 exec, 1
    buffer_store_dword v31, v19, {R(WS)}, {soff} offen {SC}
    s_mov_b64 exec, -1
    """)
WREG = 128; P2ACC = 64; WTMP = 48; TRA = 2
def p2_traddr(t=2):
    a(f"""
    v_lshrrev_b32 v8, 5, v1
    v_bfe_u32 v9, v1, 2, 2
    v_lshl_add_u32 v8, v8, 2, v9
    v_lshlrev_b32 v8, 7, v8
    v_and_b32 v10, 3, v1
    v_lshl_add_u32 v8, v10, 3, v8
    v_bfe_u32 v10, v1, 4, 1
    v_and_b32 v9, 2, v9
    v_or_b32 v10, v10, v9
    v_lshl_add_u32 v{t}, v10, 5, v8
    v_add_u32 v{t}, s69, v{t}
    v_xor_b32 v{t+1}, 64, v{t}
    v_add_u32 v{t+2}, 0x10000, v{t}
    v_add_u32 v{t+3}, 0x10000, v{t+1}
    v_add_u32 v{t+4}, 0x20000, v{t}
    v_add_u32 v{t+5}, 0x20000, v{t+1}
    """)
def p2_tr(x, dst, u, tag):
    pg = W2PG[u % 9]
    for b in range(2):
        for e in range(2):
            x(f"ds_read_b64_tr_b16 {V(dst+4*b+2*e,2)}, v{TRA+2*(pg>>2)+b} offset:{(pg&3)*PG+e*1024}", tag)
def hflag():
    a(f"""
    s_lshl_b32 s9, s4, 1
    s_add_u32 s9, s9, s7
    s_lshl_b32 s77, s9, 8
    s_lshl_b32 s10, s79, 2
    s_add_u32 s10, s10, s63
    s_lshl_b32 s10, s10, 2
    s_add_u32 s9, s77, s10
    s_add_u32 s9, s9, {HF}
    """)
    flag_store("s9")
def kvpoll(w, lab):
    a(f"s_cmp_eq_u32 s3, {w}\ns_cbranch_scc0 {L(lab)}")
    with a.skippable():
        a("s_mov_b32 s71, 0")
        a.label(L('pk'))
        a(f"""
        buffer_load_dwordx2 v[10:11], v8, {R(WS)}, s66 offen {SC}
        s_waitcnt vmcnt(0)
        v_cmp_ne_u32 vcc, s75, v10
        v_cmp_ne_u32 s[80:81], s75, v11
        s_or_b64 vcc, vcc, s[80:81]
        s_cmp_eq_u64 vcc, 0
        s_cbranch_scc1 {L('pk2')}
        s_add_u32 s71, s71, 1
        s_cmp_gt_u32 s71, {SPIN}
        s_cbranch_scc1 {L('pk2')}
        s_sleep {SLP}
        s_branch {L('pk')}
        """)
        a.label(L('pk2'))
        for q in range(9):
            a(f"s_mov_b32 m0, {q*1024}\ns_add_u32 s10, s72, {q*1024}\nbuffer_load_dwordx4 v26, {R(WS)}, s10 offen {SC} lds")
        a("s_waitcnt vmcnt(0)\nv_mov_b32 v10, s75\nds_write_b32 v19, v10 offset:12288")
    a.label(L(lab))
ACC = [32, 48, 64, 80]
T = 96; KP = 2*PG; XF = 128
a(f"s_cmp_eq_u32 s5, 0\ns_cbranch_scc0 {L('typeB')}")
a.qsave("br")
for p in range(4): dma(1, p)
for i in range(8): a(f"v_add_u32 v{112+i}, {2*SLOT}, v{8+i}")
a(f"v_add_u32 v17, {2*SLOT}, v16")
a("v_lshlrev_b32 v121, 2, v30\nv_sub_u32 v121, v29, v121\nv_mov_b32 v122, 0x3f80\nv_mov_b32 v123, 0x3f800000")
SEL, WPH, BX, RRA, RAW = 64, 72, 76, 84, 120
for k in range(8):
    sg = k >> 2; q = k & 3
    f0 = (2*q & 3) + 8*((2*q) >> 2) + 16*sg
    a(f"v_cmp_eq_u32 vcc, {f0}, v121\nv_cndmask_b32 v{SEL+k}, 0, v122, vcc\nv_cmp_eq_u32 vcc, {f0+1}, v121\nv_cndmask_b32 v{SEL+k}, v{SEL+k}, v123, vcc")
a.wv("C0"); a("s_barrier")
st(grp="A")
def rdA(p):
    i = p & 3; b = 96 + 8*(p & 1); c = p >> 2; sl = c % 3
    ab = 8 if sl < 2 else 112; so = SLOT if sl == 1 else 0
    a(f"ds_read_b128 {V(XF+4*p)}, v{ab+i} offset:{so}", f"P{p}")
    for e in range(2): a(f"ds_read_b64_tr_b16 {V(b+4+2*e,2)}, v{16 if sl < 2 else 17} offset:{so+i*2048+e*512}", f"P{p}")
    a(f"ds_read_b128 {V(b)}, v{ab+4+i} offset:{so}", f"P{p}")
rdA(0)
for p in range(32):
    c = p >> 2; i = p & 3
    a.wl(f"P{p}")
    if i == 3 and c < 7:
        a.wv(f"C{c+1}"); a("s_barrier"); st(grp="A")
    if p+1 < 32: rdA(p+1)
    b = 96 + 8*(p & 1)
    a(f"{MF} {V(ACC[0],16)}, {V(b+4)}, {V(XF+4*p)}, {V(ACC[0],16) if p else 0}")
    if p < 2: dma(2, 2*p); dma(2, 2*p+1)
    elif p >= 3:
        cc = ((p-3) >> 2) + 3
        if cc <= 7: dma(cc, (p-3) & 3)
    a(f"{MF} {V(ACC[1],16)}, {V(b+4)}, {V(b)}, {V(ACC[1],16) if p else 0}")
    side_touch("A", p, 94, 95)
    if p == 0: side_wphi_dma("A")
    if p == 3: side_flags("A", 90)
    if p == 8:
        for e in range(2): a(f"ds_read_b64_tr_b16 {V(WPH+2*e,2)}, v21 offset:{e*256}", f"P{p+1}")
    if p == FLA: side_poll_issue()
    if p == FLC: side_poll_check("A", RAW, 92, False)
    if p == FLC: side_p2(90)
    if p in (24, 25, 26): p2_dma(a, p-24, "D1")
    if p == 28: p2_dma(a, 3, "D1")
st(); st(grp="B")
a.wv("ST"); a("s_barrier")
side_csred("A", 96, 92)
side_bext(RAW, BX, RRA, 92)
for c in range(8):
    a(f"s_add_u32 m0, s70, {3*PG + c*8192}")
    a(f"buffer_load_dwordx4 v6, {R(W1)}, s73 offen lds", "I2")
    a(f"s_add_u32 s73, s73, {64*3584}")
a("s_waitcnt lgkmcnt(0)\ns_barrier")
st(grp="B")
a(f"""
ds_read_b32 v120, v23
ds_read_b32 v4, v24
v_cmp_gt_u32 vcc, 32, v1
v_lshl_or_b32 v28, v28, 16, v28
v_cndmask_b32 v6, 0, v28, vcc
v_cmp_eq_u32 s[80:81], 16, v29
v_cndmask_b32 v27, 0, v22, s[80:81]
v_mov_b32 v122, 0
v_mov_b32 v123, 0
v_mov_b32 v7, 0
s_waitcnt lgkmcnt(0)
v_cndmask_b32 v120, 0, v120, vcc
v_cndmask_b32 v4, 0, v4, vcc
v_mov_b32 v121, v120
v_mov_b32 v5, v4
{MF} {V(ACC[0],16)}, v[120:123], {V(BX)}, {V(ACC[0],16)}
{MF} {V(ACC[1],16)}, v[120:123], {V(BX+4)}, {V(ACC[1],16)}
""")
KVA = 8
a("v_mov_b32 v90, v18\nv_mov_b32 v91, v20")
E = a.sub(); D = a.sub()
for f in range(2):
    acc = ACC[f]; rr = RRA+3*f
    for q in range(4): E(f"v_cvt_pk_bf16_f32 v{120+q}, v{acc+2*q}, v{acc+2*q+1}")
    E(f"{MF} {V(T,16)}, {V(WPH)}, v[120:123], 0")
    for r in range(8, 16): E(f"v_mul_f32 v{acc+r}, v{acc+r}, v{rr}")
    for q in range(4): E(f"v_cvt_pk_bf16_f32 v{120+q}, v{acc+8+2*q}, v{acc+9+2*q}")
    E(f"{MF} {V(acc,16)}, v[120:123], {V(SEL)}, 0")
    softmax(E, T, 120, 124, rr+1)
    E(f"{MF} {V(T,16)}, v[120:123], {V(SEL)}, 0")
    E(f"{MF} {V(T,16)}, v[124:127], {V(SEL+4)}, {V(T,16)}")
    for q in range(8): E(f"v_cvt_pk_bf16_f32 v{112+q}, v{acc+2*q}, v{acc+2*q+1}\nv_or_b32 v{112+q}, v{112+q}, v27")
    for q in range(8): E(f"v_cvt_pk_bf16_f32 v{T+q}, v{T+2*q}, v{T+2*q+1}")
    E(f"{MF} {V(KVA,16)}, {V(T)}, v[112:115], {V(KVA,16) if f else 0}")
    E(f"{MF} {V(KVA,16)}, {V(T+4)}, v[116:119], {V(KVA,16)}")
a.extend(E)
st(grp="B")
a(f"""
s_lshl_b32 s9, s63, 12
s_lshl_b32 s10, s7, 11
s_add_u32 s9, s9, s10
s_add_u32 s9, s9, {KP}
v_add_u32 v92, s9, v26
v_xor_b32 v93, 0x800, v92
v_mul_u32_u24 v94, 17, v30
v_add_u32 v94, v94, v29
v_lshlrev_b32 v94, 2, v94
s_mul_i32 s10, s63, 2176
s_mul_i32 s11, s7, {8*136}
s_add_u32 s10, s10, s11
s_add_u32 s10, s10, s72
v_cmp_gt_u32 s[80:81], 17, v29
s_cmp_eq_u32 s7, 0
s_cbranch_scc1 {L('kv0')}
""")
with a.skippable():
    for q in range(2): a(f"ds_write_b128 v92, {V(KVA+4*q)} offset:{q*1024}")
    for r in range(8): a(f"v_mov_b32 v{KVA+r}, v{KVA+8+r}")
    a(f"s_branch {L('kv1')}")
a.label(L('kv0'))
with a.skippable():
    for q in range(2): a(f"ds_write_b128 v92, {V(KVA+8+4*q)} offset:{q*1024}")
a.label(L('kv1'))
a.wv("I2")
a("s_waitcnt lgkmcnt(0)\ns_barrier")
for q in range(2): a(f"ds_read_b128 {V(T+4*q)}, v93 offset:{q*1024}")
a(f"v_mov_b32 v18, v90\nv_mov_b32 v19, 0\nv_add_u32 v20, {3*PG}, v91")
a("s_waitcnt lgkmcnt(0)")
for r in range(8): a(f"v_add_f32 v{KVA+r}, v{KVA+r}, v{T+r}")
a("s_mov_b64 exec, s[80:81]")
for r in range(8): a(f"buffer_atomic_add_f32 v{KVA+r}, v94, {R(WS)}, s10 offen offset:{r*136}", "AT")
a("s_mov_b64 exec, -1")
st(grp="B")
A2 = 32
def rd2(k):
    b = 48 + 4*(k % 4)
    for e in range(2): a(f"ds_read_b64_tr_b16 {V(b+2*e,2)}, v20 offset:{k*2048+e*512}", f"B{k}")
a(f"{MF} {V(A2,16)}, v[4:7], {V(BX)}, 0")
rd2(0); rd2(1); rd2(2)
for k in range(32):
    if k+3 < 32: rd2(k+3)
    a.wl(f"B{k}")
    a(f"{MF} {V(A2,16)}, {V(48+4*(k%4))}, {V(XF+4*k)}, {V(A2,16)}")
    if k == env("KVK", 20):
        a.wv("AT")
        a(f"""
        s_lshl_b32 s9, s6, 9
        s_lshl_b32 s10, s4, 5
        s_add_u32 s9, s9, s10
        s_lshl_b32 s10, s3, 2
        s_add_u32 s9, s9, s10
        s_add_u32 s9, s9, {KVF}
        """)
        flag_store("s9")
        st(grp="B")
ffn_epi(a, A2, 67, 0, RRA+2)
st()
p2_traddr()
for u in range(4): p2_tr(a, WREG+8*u, u, "W1")
a("s_barrier")
for u in range(4, 6): p2_dma(a, u, "D1")
a.wv("H")
hflag()
st()
a("s_barrier")
for u in range(6, 9): p2_dma(a, u, "D1")
a.wl("W1")
for u in range(9, 13): p2_dma(a, u, "D2")
a.wv("D1")
for u in range(4, 9): p2_tr(a, WREG+8*u, u, "W1")
a.wl("W1")
for u in range(13, 18): p2_dma(a, u, "D2")
a(f"s_branch {L('tail')}")
a.label(L('typeB'))
a.qload("br")
for p in range(6): dma(1, p)
for i in range(10): a(f"v_add_u32 v{160+i}, {2*SLOT}, v{8+i}")
a("s_cmp_eq_u32 s8, 0\ns_cselect_b64 s[80:81], -1, 0\ns_mov_b64 vcc, s[80:81]")
a.wv("C0"); a("s_barrier")
st(1, grp="A")
def rdB(p):
    i = p & 3; b = 96 + 16*(p & 1); c = p >> 2; sl = c % 3
    ab = 8 if sl < 2 else 160; so = SLOT if sl == 1 else 0
    a(f"ds_read_b128 {V(b)}, v{ab+i} offset:{so}", f"P{p}")
    for e in range(2): a(f"ds_read_b64_tr_b16 {V(b+8+2*e,2)}, v{ab+8} offset:{so+i*2048+e*512}", f"P{p}")
    a(f"ds_read_b128 {V(b+4)}, v{ab+4+i} offset:{so}", f"P{p}")
    for e in range(2): a(f"ds_read_b64_tr_b16 {V(b+12+2*e,2)}, v{ab+9} offset:{so+i*2048+e*512}", f"P{p}")
rdB(0)
WPB, BXB, RRB, RAWB = 200, 208, 220, 232
for p in range(32):
    c = p >> 2; i = p & 3
    a.wl(f"P{p}")
    if i == 3 and c < 7:
        a.wv(f"C{c+1}"); a("s_barrier"); st(grp="A")
    if p+1 < 32: rdB(p+1)
    b = 96 + 16*(p & 1)
    a(f"{MF} {V(ACC[0],16)}, {V(b+8)}, {V(b)}, {V(ACC[0],16) if p else 0}")
    a(f"{MF} {V(ACC[1],16)}, {V(b+8)}, {V(b+4)}, {V(ACC[1],16) if p else 0}")
    if p < 3: dma(2, 2*p); dma(2, 2*p+1)
    else:
        cc = ((p-3) >> 2) + 3; q = (p-3) & 3
        if cc <= 7:
            for piece in ((0,1),(2,3),(4,),(5,))[q]: dma(cc, piece)
    a(f"{MF} {V(ACC[2],16)}, {V(b+12)}, {V(b)}, {V(ACC[2],16) if p else 0}")
    a(f"s_cbranch_vccz {L(f'm4_{p}')}")
    with a.skippable():
        a(f"{MF} {V(ACC[3],16)}, {V(b+12)}, {V(b+4)}, {V(ACC[3],16) if p else 0}")
    a.label(L(f"m4_{p}"))
    side_touch("B", p, 250, 251)
    if p == 0: side_wphi_dma("B")
    if p == 3: side_flags("B", 240)
    if p == 8:
        for h in range(2):
            for e in range(2): a(f"ds_read_b64_tr_b16 {V(WPB+4*h+2*e,2)}, v21 offset:{h*512+e*256}", f"P{p+1}")
    if p == FLB: side_poll_issue()
    if p == FLB+4: side_poll_check("B", RAWB, 240, True)
    if p == 26: a.wv("ST")
    if p == 28: side_csred("B", 144, 240)
    if p == 29: side_bext(RAWB, BXB, RRB, 240)
    if p == 22: side_p2(240)
    if p in (23, 24, 25): p2_dma(a, p-23, "D1a")
    if p in (27, 29, 30): p2_dma(a, {27:3, 29:4, 30:5}[p], "D1b")
st(2)
a("s_waitcnt lgkmcnt(0)\ns_barrier")
a(f"""
ds_read_b32 v216, v23
ds_read_b32 v240, v24
v_cmp_gt_u32 vcc, 32, v1
v_lshl_or_b32 v27, v27, 16, v27
v_lshl_or_b32 v28, v28, 16, v28
s_and_b64 s[80:81], s[80:81], vcc
v_cndmask_b32 v218, 0, v27, s[80:81]
v_cndmask_b32 v242, 0, v28, vcc
v_mov_b32 v219, 0
v_mov_b32 v243, 0
s_waitcnt lgkmcnt(0)
v_cndmask_b32 v216, 0, v216, vcc
v_cndmask_b32 v240, 0, v240, vcc
v_mov_b32 v217, v216
v_mov_b32 v241, v240
{MF} {V(ACC[0],16)}, v[216:219], {V(BXB)}, {V(ACC[0],16)}
{MF} {V(ACC[1],16)}, v[216:219], {V(BXB+4)}, {V(ACC[1],16)}
{MF} {V(ACC[2],16)}, v[240:243], {V(BXB)}, {V(ACC[2],16)}
{MF} {V(ACC[3],16)}, v[240:243], {V(BXB+4)}, {V(ACC[3],16)}
""")
for u in range(6, 9): p2_dma(a, u, "D1c")
TRA = 12
p2_traddr(12)
def w2step(k):
    if k == 0:
        a.wv("D1a")
        for u in range(0, 3): p2_tr(a, WREG+8*u, u, "W1")
    elif k == 1:
        a.wl("W1")
        for u in range(9, 12): p2_dma(a, u, "D2")
        a.wv("D1b")
        for u in range(3, 6): p2_tr(a, WREG+8*u, u, "W1")
    elif k == 2:
        a.wl("W1")
        for u in range(12, 15): p2_dma(a, u, "D2")
        a.wv("D1c")
        for u in range(6, 9): p2_tr(a, WREG+8*u, u, "W1")
    elif k == 3:
        a.wl("W1")
        for u in range(15, 18): p2_dma(a, u, "D2")
a(f"s_cmp_eq_u32 s8, 0\ns_cbranch_scc0 {L('Bq')}")
a.qsave("bq")
w2step(0)
ffn_epi(a, ACC[0], 66, 0, RRB+2); w2step(1)
ffn_epi(a, ACC[1], 66, 1, RRB+5); w2step(2)
ffn_epi(a, ACC[2], 67, 0, RRB+2)
ffn_epi(a, ACC[3], 67, 1, RRB+5)
st(3)
w2step(3)
a.wv("H")
hflag()
st(4)
a(f"s_branch {L('tailB')}")
a.label(L('Bq'))
a.qload("bq")
stor = {(0,0): (80, 84), (0,1): (88, 92), (1,0): (232, 236), (1,1): (240, 244)}
w2step(0)
ffn_epi(a, ACC[2], 67, 0, RRB+2)
a(f"v_lshlrev_b32 v8, 3, v1\ns_lshl_b32 s66, s6, 9\ns_add_u32 s66, s66, {KVF}\ns_mul_i32 s11, s78, 4352")
for f in range(2):
    acc = ACC[f]
    for q in range(8): a(f"v_cvt_pk_bf16_f32 v{acc+q}, v{acc+2*q}, v{acc+2*q+1}")
    for h in range(2):
        a(f"{MF} {V(T,16)}, {V(WPB+4*h)}, {V(acc+4*h)}, 0")
        if 2*f+h < 3: w2step(2*f+h+1)
        if f == 1 and h == 0:
            a.wv("H"); hflag()
        softmax(a, T, stor[(f,h)][0], stor[(f,h)][1], RRB+1+3*f)
st(3)
a(f"""
v_min_u32 v9, 16, v29
v_mul_u32_u24 v10, 17, v30
v_add_u32 v9, v9, v10
v_lshlrev_b32 v9, 2, v9
v_add_u32 v9, s11, v9
""")
kvpoll(4, 'nopk')
a("s_mov_b32 s71, 0")
a.label(L('lf1'))
a(f"""
ds_read_b32 v10, v19 offset:12288
s_waitcnt lgkmcnt(0)
v_readfirstlane_b32 s9, v10
s_add_u32 s71, s71, 1
s_cmp_gt_u32 s71, {SPIN*8}
s_cbranch_scc1 {L('lf2')}
s_cmp_eq_u32 s9, s75
s_cbranch_scc1 {L('lf2')}
s_sleep 1
s_branch {L('lf1')}
""")
a.label(L('lf2'))
for h in range(2):
    for r in range(16): a(f"ds_read_b32 v{32+16*h+r}, v9 offset:{h*2176+r*136}", f"K{h}")
a(f"s_add_u32 s9, s65, 112\ns_lshl_b32 s9, s9, 10\ns_add_u32 s10, s9, s64\ns_add_u32 s9, s9, s74")
for h in range(2):
    kb = 32+16*h
    a.wl(f"K{h}")
    for q in range(8): a(f"v_cvt_pk_bf16_f32 v{kb+q}, v{kb+2*q}, v{kb+2*q+1}")
    for f in range(2):
        Tt = 96+16*f
        a(f"{MF} {V(Tt,16)}, {V(kb)}, {V(stor[(f,h)][0])}, 0")
        a(f"{MF} {V(Tt,16)}, {V(kb+4)}, {V(stor[(f,h)][1])}, {V(Tt,16)}")
    for f in range(2):
        Tt = 96+16*f; o = kb+8+4*f
        a(f"v_add_f32 v8, 0x358637bd, v{Tt+8}\nv_rcp_f32 v8, v8")
        for r in range(8): a(f"v_mul_f32 v{Tt+r}, v{Tt+r}, v8")
        for q in range(4): a(f"v_cvt_pk_bf16_f32 v{o+q}, v{Tt+2*q}, v{Tt+2*q+1}")
        a(f"buffer_store_dwordx4 {V(o)}, v26, {R(WS)}, {('s9','s10')[f]} offen offset:{h*1024} {SC}", "O")
a.wv("O")
a(f"s_lshl_b32 s9, s6, 3\ns_lshl_b32 s10, s78, 2\ns_add_u32 s9, s9, s10\ns_add_u32 s9, s9, s77\ns_add_u32 s9, s9, {OF}")
flag_store("s9")
st()
a.label(L('tailB'))
for i in range(6): a(f"v_mov_b32 v{2+i}, v{12+i}")
TRA = 2
a.label(L('tail'))
a(f"""
s_mul_i32 s64, s82, {2*AF_TG}
s_mul_i32 s65, s3, {14*1024}
s_add_u32 s65, s65, s64
s_lshl_b32 s66, s3, 12
s_add_u32 s66, s66, s64
s_add_u32 s66, s66, {112*1024}
s_add_u32 s67, s66, {AF_TG}
s_lshl_b32 s9, s82, 8
s_add_u32 s72, s9, {HF}
s_add_u32 s73, s9, {OF}
v_lshlrev_b32 v0, 4, v1
v_lshlrev_b32 v8, 2, v1
""")
st(5)
a(f"s_cmp_eq_u32 s3, 0\ns_cbranch_scc0 {L('phok')}")
with a.skippable():
    a("s_mov_b32 s79, 0")
    a.label(L('ph'))
    a(f"""
    buffer_load_dword v10, v8, {R(WS)}, s72 offen {SC}
    s_waitcnt vmcnt(0)
    v_cmp_ne_u32 vcc, s75, v10
    s_cmp_eq_u64 vcc, 0
    s_cbranch_scc1 {L('phok')}
    s_add_u32 s79, s79, 1
    s_cmp_gt_u32 s79, {SPIN}
    s_cbranch_scc1 {L('phok')}
    s_sleep {SLP}
    s_branch {L('ph')}
    """)
a.label(L('phok'))
a("s_barrier")
st()
abuf = [200+8*i for i in range(7)] + [16+8*i for i in range(4)]
NA = 11
a(f"""
s_mov_b32 s60, s65
s_add_u32 s83, s65, {14*1024}
s_lshl_b32 s9, s76, 10
s_add_u32 s65, s65, s9
""")
def aload(u):
    r = abuf[u % NA]
    if u < 14:
        a(f"s_add_u32 s71, s65, {AF_TG}")
        a(f"buffer_load_dwordx4 {V(r)}, v0, {R(WS)}, s65 offen {SC}", f"A{u}")
        a(f"buffer_load_dwordx4 {V(r+4)}, v0, {R(WS)}, s71 offen {SC}", f"A{u}")
        a("s_add_u32 s65, s65, 1024\ns_cmp_eq_u32 s65, s83\ns_cselect_b32 s65, s60, s65")
    else:
        for tb in range(2):
            a(f"buffer_load_dwordx4 {V(r+4*tb)}, v0, {R(WS)}, s{(66,67)[tb]} offen offset:{(u-14)*1024} {SC}", f"A{u}")
for u in range(NA):
    aload(u)
    if u == OCK: a(f"buffer_load_dword v10, v8, {R(WS)}, s73 offen {SC}", f"A{OCK}")
def mfmas(u, w):
    r = abuf[u % NA]
    for tb in range(2):
        for nb in range(2):
            d = P2ACC + 16*(2*tb+nb)
            a(f"{MF} {V(d,16)}, {V(w+4*nb)}, {V(r+4*tb)}, {V(d,16) if u else 0}")
a(f"""
v_lshrrev_b32 v12, 3, v1
v_lshlrev_b32 v12, 10, v12
v_and_b32 v13, 7, v1
v_lshlrev_b32 v13, 4, v13
v_add_u32 v12, v12, v13
s_lshl_b32 s74, s82, 16
s_lshl_b32 s9, s3, 13
s_add_u32 s74, s74, s9
s_add_u32 s74, s74, s62
""")
for u in range(18):
    if u == 8: p2_tr(a, WTMP, 9, "T9")
    if 9 <= u < 17: p2_tr(a, WTMP + 8*((u-8)&1), u+1, f"T{u+1}")
    if u >= 9: a.wl(f"T{u}")
    a.wv(f"A{u}")
    mfmas(u, WREG+8*u if u < 9 else WTMP+8*((u-9)&1))
    if u < 3: aload(u+NA)
    if u == 3:
        a(f"buffer_load_dwordx4 v[128:131], v12, {R(X)}, s74 offen", "X")
        a(f"buffer_load_dwordx4 v[132:135], v13, {R(B2)}, s62 offen", "X")
    if u == OCK:
        a("s_mov_b32 s79, 0")
        a.label(L('po'))
        a(f"""
        v_cmp_ne_u32 vcc, s75, v10
        s_and_b32 s9, vcc_lo, 0xffff
        s_cmp_eq_u32 s9, 0
        s_cbranch_scc1 {L('pook')}
        s_add_u32 s79, s79, 1
        s_cmp_gt_u32 s79, {SPIN}
        s_cbranch_scc1 {L('pook')}
        """)
        with a.skippable():
            a(f"s_sleep 16\nbuffer_load_dword v10, v8, {R(WS)}, s73 offen {SC}\ns_waitcnt vmcnt(0)\ns_branch {L('po')}")
        a.label(L('pook'))
        for uu in range(14, 18): aload(uu)
st()
a(f"""
v_bfe_u32 v8, v1, 3, 2
v_lshlrev_b32 v8, 14, v8
v_and_b32 v9, 7, v1
v_lshl_add_u32 v8, v9, 8, v8
v_lshrrev_b32 v10, 5, v1
v_xor_b32 v10, v10, v9
v_lshl_add_u32 v8, v10, 4, v8
s_add_u32 s9, s69, {PG}
v_add_u32 v8, s9, v8
v_xor_b32 v9, 32, v8
v_xor_b32 v10, 64, v8
v_xor_b32 v11, 96, v8
v_add_u32 v2, 0x10000, v8
v_add_u32 v3, 0x10000, v9
v_add_u32 v4, 0x10000, v10
v_add_u32 v5, 0x10000, v11
""")
for tb in range(2):
    for nb in range(2):
        for qq in range(4):
            d = P2ACC + 16*(2*tb+nb) + 4*qq
            a(f"ds_write_b128 v{(8,2)[tb]+qq}, {V(d)} offset:{nb*128}")
a("""
v_lshrrev_b32 v6, 3, v1
v_and_b32 v7, 7, v1
v_lshlrev_b32 v7, 1, v7
v_xor_b32 v7, v7, v6
v_lshlrev_b32 v6, 8, v6
v_lshl_add_u32 v6, v7, 4, v6
s_lshl_b32 s9, s3, 14
s_add_u32 s9, s9, 16384
v_add_u32 v6, s9, v6
v_xor_b32 v7, 16, v6
s_waitcnt lgkmcnt(0)
s_barrier
""")
RR = 160
for w in range(8):
    for e in range(2):
        a(f"ds_read_b128 {V(RR+8*w+4*e)}, v{6+e} offset:{w*2048}", f"R{w}")
a.wv("X")
for i in range(4):
    a(f"v_lshlrev_b32 v{24+2*i}, 16, v{128+i}\nv_and_b32 v{25+2*i}, 0xffff0000, v{128+i}")
    a(f"v_lshlrev_b32 v{32+2*i}, 16, v{132+i}\nv_and_b32 v{33+2*i}, 0xffff0000, v{132+i}")
for i in range(8): a(f"v_add_f32 v{24+i}, v{24+i}, v{32+i}")
for w in range(8):
    a.wl(f"R{w}")
    for i in range(8): a(f"v_add_f32 v{24+i}, v{24+i}, v{RR+8*w+i}")
for i in range(4): a(f"v_cvt_pk_bf16_f32 v{32+i}, v{24+2*i}, v{25+2*i}")
a(f"buffer_store_dwordx4 v[32:35], v12, {R(OUT)}, s74 offen")
if INSTR:
    a("s_waitcnt vmcnt(0)"); st()
    nst[0] = 9
    a(f"s_waitcnt lgkmcnt(0)\ns_lshl_b32 s9, s2, 3\ns_add_u32 s9, s9, s3\ns_lshl_b32 s9, s9, 6\ns_add_u32 s9, s9, {STAMPS}")
    a("v_mov_b32 v0, 0\ns_mov_b64 exec, 1")
    for i in range(nst[0]):
        a(f"v_mov_b32 v1, s{84+2*i}\nbuffer_store_dword v1, v0, {R(WS)}, s9 offen offset:{4*i}\ns_nop 1")
a.label(L('end')); a("s_endpgm")
desc = f""".section .rodata,"a"
.p2align 6
.amdhsa_kernel {NAME}
  .amdhsa_next_free_vgpr 256
  .amdhsa_next_free_sgpr 102
  .amdhsa_accum_offset 256
  .amdhsa_group_segment_fixed_size 0
  .amdhsa_kernarg_size 96
  .amdhsa_user_sgpr_count 2
  .amdhsa_user_sgpr_kernarg_segment_ptr 1
  .amdhsa_system_sgpr_workgroup_id_x 1
  .amdhsa_float_denorm_mode_32 3
.end_amdhsa_kernel
"""
if __name__ == "__main__":
    open(sys.argv[1], "w").write("; @launch grid=(256,1,1) block=(512,1,1) lds=163840\n" + a.finish() + desc)
    print("stamps:", nst[0], "STAMPS", STAMPS)
```

```python
import re
class Ins:
    __slots__ = ("text","cls","vw","vr","sw","sr","a","b","c","skip","nops","passes","tag")
def _regs(tok):
    tok = tok.strip()
    tok = tok.lstrip("-")
    m = re.match(r"^(?:abs\()?\|?([vsa])(\d+)\|?\)?$", tok)
    if m: return m.group(1), {int(m.group(2))}
    m = re.match(r"^(?:abs\()?\|?([vsa])\[(\d+):(\d+)\]\|?\)?$", tok)
    if m: return m.group(1), set(range(int(m.group(2)), int(m.group(3))+1))
    if tok == "vcc": return "s", {106,107}
    if tok == "exec": return "s", {126,127}
    if tok == "m0": return "s", {124}
    return None, set()
TRANS = ("v_exp_f32","v_log_f32","v_rcp_f32","v_rsq_f32","v_sqrt_f32","v_sin_f32","v_cos_f32")
class Asm:
    def __init__(self):
        self.items = []
        self.skipdepth = 0
        self.skipid = 0
    def raw(self, s): self.items.append(s)
    def label(self, name): self.items.append(name + ":")
    def __call__(self, text, tag=None):
        for line in text.strip().split("\n"):
            line = line.split(";")[0].strip()
            if not line: continue
            if line.endswith(":") or line.startswith("."):
                self.items.append(line); continue
            I = self._parse(line); I.tag = tag
            self.items.append(I)
    def wv(self, tag): self.items.append(("wv", tag))
    def wl(self, tag): self.items.append(("wl", tag))
    def qsave(self, key): self.items.append(("qsave", key))
    def qload(self, key): self.items.append(("qload", key))
    def sub(self):
        b = Asm(); b.parent = self; return b
    def merge(self, *streams):
        idx = [0]*len(streams); n = [len(s.items) for s in streams]
        tot = sum(n)
        for _ in range(tot):
            best = min((i for i in range(len(streams)) if idx[i] < n[i]), key=lambda i: (idx[i]+0.5)/n[i])
            self.items.append(streams[best].items[idx[best]]); idx[best] += 1
    def extend(self, s): self.items.extend(s.items)
    def _parse(self, line):
        I = Ins(); I.tag = None; I.text = line; I.vw=set(); I.vr=set(); I.sw=set(); I.sr=set(); I.a=I.b=I.c=set(); I.skip = self.skipid if self.skipdepth>0 else 0; I.nops=1; I.passes=0
        parts = line.split(None, 1); op = parts[0]
        ops = []
        if len(parts) > 1:
            ops = [o.strip() for o in re.split(r",(?![^\[]*\])", parts[1])]
            if ops:
                last = ops[-1].split()
                ops[-1] = last[0] if last else ""
                mods = last[1:]
            else: mods = []
        else: mods = []
        def add(tok, w):
            k, r = _regs(tok)
            if k == "v": (I.vw if w else I.vr).update(r)
            elif k == "a": (I.vw if w else I.vr).update({x+1000 for x in r})
            elif k == "s": (I.sw if w else I.sr).update(r)
        def vset(tok):
            k, r = _regs(tok)
            return r if k == "v" else ({x+1000 for x in r} if k=="a" else set())
        base = op.replace("_e32","").replace("_e64","").replace("_dpp","").replace("_sdwa","")
        if op == "s_nop":
            I.cls = "nop"; I.nops = int(ops[0],0)+1
        elif op.startswith("v_mfma"):
            I.cls = "mfma"; I.passes = 8 if "32x32" in op else 4
            add(ops[0], True); I.a = vset(ops[1]); I.b = vset(ops[2]); I.c = vset(ops[3])
            I.vr = I.a | I.b | I.c
        elif op.startswith("v_permlane") and "swap" in op:
            I.cls = "perm"
            for o in ops[:2]: add(o, True); add(o, False)
        elif op.startswith("v_cmp"):
            I.cls = "valu"; add(ops[0], True)
            for o in ops[1:]: add(o, False)
        elif op.startswith("v_readfirstlane") or op.startswith("v_readlane"):
            I.cls = "rdlane"; add(ops[0], True)
            for o in ops[1:]: add(o, False)
        elif op.startswith("v_"):
            I.cls = "trans" if base in TRANS else ("dot" if op.startswith("v_dot") else ("dpp" if "_dpp" in op else "valu"))
            add(ops[0], True)
            for o in ops[1:]: add(o, False)
            if base.startswith("v_fmac") or base.startswith("v_dot2c"): add(ops[0], False)
        elif op.startswith("ds_read") or op.startswith("ds_bpermute") or op.endswith("_rtn_u32"):
            I.cls = "ds"; add(ops[0], True)
            for o in ops[1:]: add(o, False)
        elif op.startswith("ds_"):
            I.cls = "ds"
            for o in ops: add(o, False)
        elif op.startswith("buffer_load") or op.startswith("global_load"):
            if "lds" in mods or "_lds_" in op:
                I.cls = "dma"
                for o in ops: add(o, False)
                I.sr.add(124)
            else:
                I.cls = "vmem"; add(ops[0], True)
                for o in ops[1:]: add(o, False)
                if "d16" in op: add(ops[0], False)
        elif op.startswith("buffer_store") or op.startswith("global_store") or "atomic" in op:
            I.cls = "vmemst"
            for o in ops: add(o, False)
            if "x4" in op or "x3" in op:
                I.a = vset(ops[0]) if op.startswith("buffer") else vset(ops[1])
        elif op.startswith("s_"):
            I.cls = "salu"
            if not (op.startswith("s_cmp") or op.startswith("s_cbranch") or op.startswith("s_branch") or op in ("s_waitcnt","s_barrier","s_endpgm","s_sleep","s_setprio")):
                add(ops[0], True)
                for o in ops[1:]: add(o, False)
                if "saveexec" in op: I.sw.update({126,127})
            else:
                for o in ops: add(o, False)
        else:
            raise ValueError("unknown op " + line)
        return I
    def skippable(self):
        a = self
        class C:
            def __enter__(s):
                if a.skipdepth == 0: a.skipid += 1
                a.skipdepth += 1
            def __exit__(s, *x): a.skipdepth -= 1
        return C()
    @staticmethod
    def _need(p, c):
        n = 0
        VAL = ("valu","trans","dot","dpp","perm","rdlane")
        pv = p.cls in VAL; cv = c.cls in VAL
        if p.cls == "mfma":
            d = p.vw
            big = {8:12, 4:8}[p.passes]
            if c.cls == "mfma":
                if d & (c.a | c.b): n = max(n, big)
                if d & c.c:
                    if not (c.c == d and c.passes == p.passes): n = max(n, big-2)
                elif d & c.vw: n = max(n, big)
            else:
                if d & (c.vr | c.vw): n = max(n, big)
            if cv and (p.c & c.vw): n = max(n, {8:7,4:3}[p.passes])
        if pv:
            if c.cls == "mfma" and (p.vw & c.vr): n = max(n, 3 if p.cls=="dot" else 2)
            if c.cls == "perm" and (p.vw & c.vr): n = max(n, 2)
            if c.cls == "dpp" and (p.vw & c.vr): n = max(n, 2)
            if c.cls == "rdlane" and (p.vw & c.vr): n = max(n, 1)
            if p.cls == "trans" and cv and c.cls != "trans" and (p.vw & c.vr): n = max(n, 1)
            if p.cls == "trans" and c.cls in ("vmemst","ds","vmem","dma") and (p.vw & c.vr): n = max(n, 1)
            if p.cls == "dot" and (p.vw & (c.vr | c.vw)):
                same = c.cls == "dot" and c.text.split()[0] == p.text.split()[0]
                if same:
                    ops = [o.strip() for o in c.text.split(None,1)[1].split(",")]
                    ab = set()
                    for o in ops[1:3]:
                        k, r = _regs(o)
                        if k == "v": ab |= r
                    if p.vw & ab: n = max(n, 3)
                else: n = max(n, 3)
            if p.sw:
                if c.cls in ("vmem","vmemst","dma") and (p.sw & c.sr): n = max(n, 5)
                if cv and (p.sw & c.sr): n = max(n, 4 if c.cls=="rdlane" else 2)
                if cv and c.text.startswith("v_cndmask") and ({106,107} & p.sw): n = max(n, 2)
                if (p.sw & {126,127}) and c.cls == "mfma": n = max(n, 4)
        if p.cls == "salu" and 124 in p.sw and c.cls == "dma": n = max(n, 1)
        if p.cls == "vmemst" and p.a and (p.a & c.vw): n = max(n, 2 if cv else 1)
        return n
    def finish(self):
        out = []
        hist = []
        qv = []; ql = []; saved = {}
        for it in self.items:
            if isinstance(it, str):
                out.append(it); continue
            if isinstance(it, tuple):
                kind, tag = it
                if kind == "retag":
                    qv = [tag[1] if t == tag[0] else t for t in qv]; continue
                if kind == "qins":
                    ix = [i for i, t in enumerate(qv) if t == tag[0]]
                    pos = ix[-1]+1 if ix else 0
                    qv[pos:pos] = [None]*tag[1]; continue
                if kind == "qsave": saved[tag] = (list(qv), list(ql)); continue
                if kind == "qload": qv, ql = list(saved[tag][0]), list(saved[tag][1]); continue
                q = qv if kind == "wv" else ql
                ix = [i for i, t in enumerate(q) if t == tag]
                if not ix: continue
                nleft = len(q) - 1 - ix[-1]
                lim = 63 if kind == "wv" else 15
                nleft = min(nleft, lim)
                del q[:len(q)-nleft]
                it = self._parse(f"s_waitcnt {'vmcnt' if kind=='wv' else 'lgkmcnt'}({nleft})")
            else:
                if it.text.startswith("s_waitcnt"):
                    m = re.search(r"vmcnt\((\d+)\)", it.text)
                    if m and not it.skip:
                        k = int(m.group(1)); del qv[:max(0, len(qv)-k)]
                    m = re.search(r"lgkmcnt\((\d+)\)", it.text)
                    if m and not it.skip:
                        k = int(m.group(1)); del ql[:max(0, len(ql)-k)]
                elif not it.skip:
                    if it.cls in ("vmem", "vmemst", "dma"): qv.append(it.tag)
                    elif it.cls == "ds": ql.append(it.tag)
            need = 0; dist = 0
            for p in reversed(hist[-40:]):
                r = self._need(p, it)
                if r > dist: need = max(need, r - dist)
                if not p.skip or p.skip == it.skip: dist += p.nops
                if dist >= 24: break
            while need > 0:
                k = min(need, 16)
                N = self._parse(f"s_nop {k-1}"); N.skip = it.skip
                out.append("    " + N.text); hist.append(N); need -= k
            out.append("    " + it.text); hist.append(it)
        return "\n".join(out) + "\n"
```

```python
import sys, os
sys.path.insert(0, "work")
from asmlib import Asm
EXP = os.environ.get("EXP", "").split(",")
INSTR = "instr" in sys.argv
STG = os.environ.get("STG", "main")
def env(n, d): return int(os.environ.get(n, str(d)))
NAME = "parallel_sum__linear_kernel_hedgehog__dense_activation_squared_relu__prompt_kernel"
SZ = dict(x=2048*512*2, wqkv=512*1536*2, wphi=32*16*16*2, wo=512*512*2, w1=512*1792*2, b1=1792*2, w2=1792*512*2, b2=512*2, out=2048*512*2, dbg=256)
KSLOT = dict(x=0, wqkv=1, wphi=2, wo=3, w1=5, b1=6, w2=7, b2=8, out=9, dbg=10, ws=11)
AF_TG = 144*1024
KVACC = 64*AF_TG; KV_J = 9216
KVF = KVACC + 8*KV_J
HF = KVF + 8*512
OF = HF + 32*256
EFS = OF + 32*256
EFC = EFS + 16*128
CSP = EFC + 16*128
STAT = CSP + 16*14336
STAMPS = STAT + 2048*16
WS_END = STAMPS + 256*8*64
SZ["ws"] = WS_END
LOG2E = "0x3fb8aa3b"
SLOT = 49152; PG = 16384; RB = PG
SPIN = 400000
FLA = env("FLA", 18); FLC = env("FLC", 23); KPW = env("KPW", 4); FLB = env("FLB", 14); OCK = env("OCK", 6); TRP = env("TRP", 1); NE = env("NE", 4); NB = env("NB", 8)
SC = "sc0 sc1"
SLP = env("SLP", 8)
X, WQ, W1, WS, DBG, WPHI, B1, I1, W2, WO, B2, OUT = 12, 16, 20, 24, 28, 32, 36, 40, 44, 48, 52, 56
def R(s): return f"s[{s}:{s+3}]"
def V(b, n=4): return f"v[{b}:{b+n-1}]"
MF = "v_mfma_f32_32x32x16_bf16"
a = Asm()
nst = [0]
def st(i=None, grp="main"):
    if not INSTR or grp != STG: return
    if i is not None: nst[0] = i
    a(f"s_memrealtime s[{84+2*nst[0]}:{85+2*nst[0]}]"); nst[0] += 1
def L(n): return f"L_{n}"
def fin(x, n, s): x(f"s_mov_b32 s{s+2}, {SZ[n]}\ns_mov_b32 s{s+3}, 0x20000")

a.raw('.amdgcn_target "amdgcn-amd-amdhsa--gfx950"\n.text')
a.raw(f".globl {NAME}\n.p2align 8\n.type {NAME},@function\n{NAME}:")
a(f"s_cmp_ge_u32 s2, 256\ns_cbranch_scc1 {L('end')}")
st(grp=STG)
names = (("x",X),("wqkv",WQ),("w1",W1),("ws",WS),("dbg",DBG),("wphi",WPHI),("b1",B1),("w2",W2),("wo",WO),("b2",B2),("out",OUT))
for n, s in names: a(f"s_load_dwordx2 s[{s}:{s+1}], s[0:1], {KSLOT[n]*8}")
a(f"""
v_and_b32 v1, 63, v0
v_lshrrev_b32 v2, 6, v0
v_readfirstlane_b32 s3, v2
s_bfe_u32 s4, s2, 0x30003
s_bfe_u32 s9, s2, 0x10002
s_lshl_b32 s9, s9, 3
s_add_u32 s4, s4, s9                ; m
s_lshr_b32 s5, s2, 7                ; type
s_and_b32 s6, s2, 3
s_lshl_b32 s6, s6, 1
s_bfe_u32 s10, s2, 0x10006
s_add_u32 s6, s6, s10               ; j
v_lshrrev_b32 v9, 3, v1
v_and_b32 v10, 7, v1
v_lshrrev_b32 v11, 4, v1
v_xor_b32 v12, v10, v11
v_lshlrev_b32 v13, 10, v9
v_lshl_add_u32 v2, v12, 4, v13
v_xor_b32 v3, 0x2040, v2
v_and_b32 v11, 1, v11
v_lshlrev_b32 v11, 6, v11
v_lshlrev_b32 v12, 4, v10
v_xor_b32 v12, v12, v11
v_mul_u32_u24 v13, 3072, v9
v_add_u32 v4, v13, v12
v_mul_u32_u24 v13, 3584, v9
v_add_u32 v6, v13, v12
v_xor_b32 v14, 32, v4
s_and_b32 s9, s2, 3
s_mul_i32 s9, s9, 5
s_add_u32 s9, s9, 8
s_mul_i32 s11, s10, 3
s_add_u32 s66, s9, s11              ; I1 block (B)
s_add_u32 s67, s66, 1
s_add_u32 s68, s9, 2                ; I3 block
s_lshl_b32 s61, s6, 7
s_add_u32 s62, s61, 2048
s_lshl_b32 s77, s66, 7
s_add_u32 s78, s61, 1024
s_movk_i32 s63, 3584
s_cmp_eq_u32 s5, 0
s_cselect_b64 vcc, -1, 0
s_cselect_b32 s61, s78, s61         ; I0 col
s_cselect_b32 s62, s62, s77         ; I1 col
s_cselect_b32 s63, 3072, s63
s_cselect_b32 s67, s6, s67          ; I2 block
v_cndmask_b32 v5, v6, v14, vcc
s_lshl_b32 s64, s67, 7              ; I2 col
s_lshl_b32 s65, s68, 7              ; I3 col
s_lshl_b32 s60, s4, 17
s_lshl_b32 s69, s3, 11
s_lshl_b32 s70, s3, 10
s_lshl_b32 s11, s3, 14
s_add_u32 s76, s60, s11
s_mul_i32 s11, s3, {8*3072}
s_add_u32 s11, s61, s11
v_add_u32 v4, s11, v4
s_lshl_b32 s11, s3, 3
s_mul_i32 s11, s11, s63
s_add_u32 s11, s62, s11
v_add_u32 v5, s11, v5
s_lshl_b32 s75, s63, 6
s_mul_i32 s11, s3, {8*3584}
s_add_u32 s73, s64, s11
s_add_u32 s74, s65, s11
v_add_u32 v7, s74, v6
v_add_u32 v6, s73, v6
s_mov_b32 s82, 0
s_mov_b32 s83, 0
s_mov_b32 s73, 0
s_lshl_b32 s79, s5, 3
s_add_u32 s79, s79, s6              ; slot
s_and_b32 s78, s3, 1                ; lo
s_lshr_b32 s77, s3, 1
v_lshlrev_b32 v26, 4, v1
s_waitcnt lgkmcnt(0)
""")
st(8, grp="P"); nst[0] = 1
fin(a, "x", X); fin(a, "wqkv", WQ); fin(a, "w1", W1)
a(f"""
s_cmp_eq_u32 s5, 0
s_cselect_b32 s{I1}, s{WQ}, s{W1}
s_cselect_b32 s{I1+1}, s{WQ+1}, s{W1+1}
s_cselect_b32 s{I1+2}, s{WQ+2}, s{W1+2}
s_mov_b32 s{I1+3}, 0x20000
""")
a(f"""
s_lshl_b32 s9, s79, 13
s_add_u32 s9, s9, s70
s_add_u32 s9, s9, s60
""")
a(f"buffer_load_dwordx4 v[112:115], v26, {R(X)}, s9 offen", "E")
a(f"""
v_lshrrev_b32 v9, 2, v1
v_and_b32 v10, 3, v1
v_lshlrev_b32 v10, 4, v10
s_cmp_eq_u32 s77, 0
s_cselect_b32 s9, s61, s62
s_cselect_b32 s11, 3072, s63
s_cmp_eq_u32 s77, 2
s_cselect_b32 s9, s64, s9
s_cmp_eq_u32 s77, 3
s_cselect_b32 s9, s65, s9
s_cselect_b32 s71, s10, s78
s_cmp_ge_u32 s77, 2
s_cselect_b32 s11, 3584, s11
s_lshl_b32 s71, s71, 6
s_add_u32 s9, s9, s71
s_lshl_b32 s71, s4, 5
s_mul_i32 s71, s71, s11
s_add_u32 s9, s9, s71               ; + 32m rows
v_mul_lo_u32 v9, v9, s11
v_add_u32 v9, v9, v10
s_lshl_b32 s11, s11, 4
s_add_u32 s71, s9, s11
s_mov_b32 m0, s69
s_cmp_eq_u32 s11, {3072*16}
s_cbranch_scc1 {L('e1')}
""")
with a.skippable():
    a(f"buffer_load_dwordx4 v9, {R(W1)}, s9 offen lds\ns_add_u32 m0, s69, 1024\ns_nop 0\nbuffer_load_dwordx4 v9, {R(W1)}, s71 offen lds\ns_branch {L('e2')}")
a.label(L('e1'))
with a.skippable():
    a(f"buffer_load_dwordx4 v9, {R(WQ)}, s9 offen lds\ns_add_u32 m0, s69, 1024\ns_nop 0\nbuffer_load_dwordx4 v9, {R(WQ)}, s71 offen lds")
a.label(L('e2'))
def dma(c, piece):
    t = f"C{c}"; sl = RB + (c % 3)*SLOT
    if piece < 2:
        a(f"s_add_u32 m0, s69, {sl+1024*piece-c*128}")
        a(f"buffer_load_dwordx4 v{2+piece}, {R(X)}, s76 offen offset:{c*128} lds", t)
    elif piece == 2:
        a(f"s_add_u32 m0, s70, {sl+16384}")
        a(f"buffer_load_dwordx4 v4, {R(WQ)}, s82 offen lds", t)
        a(f"s_add_u32 s82, s82, {64*3072}")
    elif piece == 3:
        a(f"s_add_u32 m0, s70, {sl+24576}")
        a(f"buffer_load_dwordx4 v5, {R(I1)}, s83 offen lds", t)
        a("s_add_u32 s83, s83, s75")
    elif piece == 4:
        a(f"s_add_u32 m0, s70, {sl+32768}")
        a(f"buffer_load_dwordx4 v6, {R(W1)}, s73 offen lds", t)
    else:
        a(f"s_add_u32 m0, s70, {sl+40960}")
        a(f"buffer_load_dwordx4 v7, {R(W1)}, s73 offen lds", t)
        a(f"s_add_u32 s73, s73, {64*3584}")
dma(0, 0); a.items.append(("retag", ("C0", "E")))
a(f"s_cmp_eq_u32 s5, 0\ns_cbranch_scc1 {L('c0b')}")
with a.skippable():
    dma(0, 4); dma(0, 5)
a.label(L('c0b'))
dma(0, 1); dma(0, 2); dma(0, 3)
st(grp="P")
fin(a, "ws", WS); fin(a, "dbg", DBG)
a("v_mov_b32 v19, 0")
a(f"s_or_b32 s9, s2, s3\ns_cmp_eq_u32 s9, 0\ns_cbranch_scc0 {L('nononce')}")
with a.skippable():
    a(f"""
    s_memrealtime s[80:81]
    s_waitcnt lgkmcnt(0)
    s_or_b32 s80, s80, 1
    v_mov_b32 v10, s80
    s_mov_b64 exec, 1
    buffer_store_dword v10, v19, {R(DBG)}, 0 offen {SC}
    s_mov_b64 exec, -1
    """)
a.label(L('nononce'))
a(f"""
s_bfe_u32 s7, s3, 0x10001           ; mh
s_lshr_b32 s8, s3, 2                ; hi
s_mul_i32 s72, s6, {KV_J}
s_add_u32 s72, s72, {KVACC}
s_cmp_eq_u32 s5, 1
s_cselect_b32 s9, s4, 1
s_cmp_eq_u32 s9, 0
s_cbranch_scc0 {L('nozero')}
""")
with a.skippable():
    a(f"""
    v_lshlrev_b32 v9, 4, v0
    v_mov_b32 v10, 0
    v_mov_b32 v11, 0
    v_mov_b32 v12, 0
    v_mov_b32 v13, 0
    buffer_store_dwordx4 v[10:13], v9, {R(WS)}, s72 offen {SC}
    s_add_u32 s9, s72, 8192
    s_cmp_eq_u32 s3, 0
    s_cbranch_scc0 {L('nozero')}
    buffer_store_dwordx4 v[10:13], v9, {R(WS)}, s9 offen {SC}
    """)
a.label(L('nozero'))
a(f"""
s_and_b32 s9, s78, s8
s_cmp_eq_u32 s5, 0
s_cselect_b32 s61, s8, s9           ; sel
v_and_b32 v29, 31, v1
v_lshrrev_b32 v30, 5, v1
v_bfe_u32 v31, v1, 1, 3
v_xor_b32 v31, v31, v30
v_lshlrev_b32 v20, 7, v29
v_lshl_add_u32 v8, v31, 4, v20
s_lshl_b32 s9, s7, 1
s_add_u32 s62, s9, s61
s_lshl_b32 s9, s62, 12
s_add_u32 s9, s9, {RB}
v_add_u32 v8, s9, v8
v_xor_b32 v9, 32, v8
v_xor_b32 v10, 64, v8
v_xor_b32 v11, 96, v8
v_xor_b32 v12, 0x1000, v8
v_xor_b32 v13, 0x1000, v9
v_xor_b32 v14, 0x1000, v10
v_xor_b32 v15, 0x1000, v11
v_bfe_u32 v31, v1, 2, 2
v_lshl_add_u32 v20, v30, 3, v31
v_and_b32 v22, 3, v1
v_lshlrev_b32 v22, 3, v22
v_lshl_add_u32 v18, v20, 6, v22
v_lshl_add_u32 v20, v20, 7, v22
v_lshl_add_u32 v21, v30, 2, v31
v_lshl_add_u32 v21, v21, 5, v22
v_bfe_u32 v22, v1, 4, 1
v_lshl_add_u32 v18, v22, 5, v18
v_add_u32 v18, s69, v18
v_and_b32 v31, 2, v31
v_xor_b32 v31, v31, v22
v_lshl_add_u32 v20, v31, 5, v20     ; nat0
s_lshl_b32 s9, s8, 1
s_add_u32 s63, s9, s78              ; nq
s_lshl_b32 s9, s63, 5
v_xor_b32 v23, s9, v20
v_lshl_add_u32 v23, v22, 13, v23
s_lshl_b32 s9, s78, 6
v_xor_b32 v24, s9, v20
s_cmp_eq_u32 s8, 0
s_cselect_b32 s10, 8192, 0
v_add_u32 v25, s10, v24
v_cndmask_b32 v16, v25, v23, vcc
v_add_u32 v16, {RB+16384}, v16
s_and_b32 s9, s6, 1
s_lshl_b32 s9, s9, 6
v_xor_b32 v25, s9, v20
v_add_u32 v25, 8192, v25
s_and_b32 s9, s5, s8
s_cmp_eq_u32 s9, 1
s_cselect_b64 s[80:81], -1, 0
v_cndmask_b32 v17, v24, v25, s[80:81]
v_add_u32 v17, {RB+32768}, v17
v_mov_b32 v20, v24
v_mul_u32_u24 v23, 192, v22
v_lshlrev_b32 v24, 2, v29
s_lshl_b32 s9, s63, 6
v_add3_u32 v23, v23, v24, s9
s_lshl_b32 s9, s78, 7
s_cmp_eq_u32 s8, 0
s_cselect_b32 s10, 256, 0
s_add_u32 s10, s10, s9
v_add_u32 v25, s10, v24
v_cndmask_b32 v23, v25, v23, vcc
s_add_u32 s9, s9, 512
s_and_b32 s10, s5, s8
s_cmp_eq_u32 s10, 1
s_cselect_b32 s9, 768, s9
v_add_u32 v24, s9, v24
s_lshl_b32 s66, s66, 1
s_add_u32 s66, s66, s78
s_lshl_b32 s67, s67, 1
s_add_u32 s67, s67, s78
s_lshl_b32 s68, s68, 1
s_and_b32 s9, s6, 1
s_add_u32 s68, s68, s9
s_cmp_eq_u32 s10, 1
s_cselect_b32 s67, s68, s67
s_lshl_b32 s9, s78, 1
s_cmp_eq_u32 s5, 0
s_cselect_b32 s9, s63, s9
s_lshl_b32 s10, s6, 2
s_add_u32 s65, s10, s9
s_lshl_b32 s9, s9, 9
s_add_u32 s9, s9, 14336
v_add_u32 v21, s9, v21
v_mov_b32 v22, 0x3f803f80
v_and_b32 v27, 15, v1
v_lshlrev_b32 v27, 2, v27
s_lshl_b32 s9, s4, 7
s_add_u32 s9, s9, {EFS}
s_lshl_b32 s10, s79, 7
s_add_u32 s10, s10, {EFC}
v_add_u32 v25, s9, v27
v_add_u32 v28, s10, v27
v_lshrrev_b32 v27, 4, v1
v_cmp_eq_u32 vcc, 1, v27
v_cndmask_b32 v25, v25, v28, vcc
s_lshl_b32 s9, s6, 2
s_add_u32 s9, s9, {EFS+32}
v_writelane_b32 v25, s9, 32
""")
fin(a, "b1", B1); fin(a, "wphi", WPHI); fin(a, "w2", W2); fin(a, "wo", WO); fin(a, "b2", B2); fin(a, "out", OUT)
st(grp="P")
a.wv("E")
st(grp="P")
for k, off in enumerate((0, 256, 1024, 1280)): a(f"ds_read_b64_tr_b16 {V(120+2*k,2)}, v18 offset:{off}", "EW")
a("v_mov_b32 v116, 0\nv_mov_b32 v117, 0\nv_mov_b32 v118, 0")
for q in range(4):
    a(f"v_dot2_f32_bf16 v116, v{112+q}, v22, v116\nv_dot2_f32_bf16 v117, v{112+q}, v{112+q}, v117")
a.wl("EW")
for q in range(8): a(f"v_dot2_f32_bf16 v118, v{120+q}, v22, v118")
for dpp in ("quad_perm:[1,0,3,2]", "quad_perm:[2,3,0,1]", "row_half_mirror", "row_mirror"):
    a(f"v_add_f32_dpp v116, v116, v116 {dpp} row_mask:0xf bank_mask:0xf\nv_add_f32_dpp v117, v117, v117 {dpp} row_mask:0xf bank_mask:0xf")
a(f"""
v_permlane16_swap_b32 v116, v117
v_add_f32 v116, v116, v117
v_mov_b32 v119, v118
v_mov_b32 v117, v116
v_permlane32_swap_b32 v118, v119
v_permlane32_swap_b32 v116, v117
v_add_f32 v118, v118, v119
v_add_f32 v116, v116, v117
v_mov_b32 v117, v116
v_permlane16_swap_b32 v116, v117
v_mul_f32 v116, 0x3b000000, v116
v_mul_f32 v117, 0x3b000000, v117
v_fma_f32 v117, -v116, v116, v117
v_max_f32 v117, 0, v117
v_add_f32 v117, 0x3727c5ac, v117
v_rsq_f32 v114, v117
v_sub_f32 v116, 0, v116
v_mul_f32 v117, v117, v114
v_cvt_pk_bf16_f32 v120, v116, v117
v_and_b32 v121, 0xffff0000, v120
v_lshlrev_b32 v122, 16, v120
v_sub_f32 v123, v116, v122
v_sub_f32 v124, v117, v121
v_cvt_pk_bf16_f32 v112, v122, v123
v_cvt_pk_bf16_f32 v113, v121, v124
s_lshl_b32 s10, s4, 7
s_lshl_b32 s11, s79, 3
s_add_u32 s10, s10, s11
s_add_u32 s10, s10, s3
s_lshl_b32 s10, s10, 4
s_add_u32 s10, s10, {STAT}
s_mul_i32 s11, s79, 14336
s_mul_i32 s71, s4, 896
s_add_u32 s11, s11, s71
s_lshl_b32 s71, s3, 7
s_add_u32 s11, s11, s71
s_add_u32 s11, s11, {CSP}
v_lshlrev_b32 v120, 2, v1
s_mov_b64 exec, 1
buffer_store_dwordx4 v[112:115], v19, {R(WS)}, s10 offen {SC}
s_cmp_lt_u32 s3, 7
s_cselect_b32 exec_lo, -1, 0
s_cbranch_scc0 {L('nocs')}
""")
with a.skippable():
    a(f"buffer_store_dword v118, v120, {R(WS)}, s11 offen {SC}")
a.label(L('nocs'))
a("s_mov_b64 exec, -1")
a(f"buffer_load_dword v31, v19, {R(DBG)}, 0 offen {SC}", "N0")
a("v_lshlrev_b32 v120, 1, v29\ns_lshl_b32 s9, s66, 6\ns_lshl_b32 s10, s67, 6")
a(f"buffer_load_ushort v27, v120, {R(B1)}, s9 offen", "S")
a(f"buffer_load_ushort v28, v120, {R(B1)}, s10 offen", "S")
st(); st(grp="P")

def side_flags(tg, tmp):
    a(f"s_cmp_eq_u32 s3, 0\ns_cbranch_scc0 {L('nofl'+tg)}")
    with a.skippable():
        a("s_mov_b32 s71, 0")
        a.label(L('nspin'+tg))
        a(f"""
        v_readfirstlane_b32 s9, v31
        s_add_u32 s71, s71, 1
        s_cmp_gt_u32 s71, {SPIN}
        s_cbranch_scc1 {L('nok'+tg)}
        s_cmp_lg_u32 s9, 0
        s_cbranch_scc1 {L('nok'+tg)}
        buffer_load_dword v31, v19, {R(DBG)}, 0 offen {SC}
        s_waitcnt vmcnt(0)
        s_branch {L('nspin'+tg)}
        """)
        a.label(L('nok'+tg))
        a(f"""
        s_lshl_b32 s10, s4, 7
        s_lshl_b32 s11, s79, 2
        s_add_u32 s10, s10, s11
        s_lshl_b32 s11, s79, 7
        s_lshl_b32 s71, s4, 2
        s_add_u32 s11, s11, s71
        s_add_u32 s11, s11, {EFC-EFS}
        v_mov_b32 v{tmp}, s10
        v_writelane_b32 v{tmp}, s11, 1
        s_mov_b32 s10, {EFS}
        s_mov_b64 exec, 3
        buffer_store_dword v31, v{tmp}, {R(WS)}, s10 offen {SC}
        s_mov_b64 exec, -1
        """)
    a.label(L('nofl'+tg))
def side_wphi_dma(tg):
    a(f"s_cmp_lt_u32 s3, 2\ns_cbranch_scc0 {L('nowp'+tg)}")
    with a.skippable():
        a(f"s_add_u32 m0, s70, 14336\ns_lshl_b32 s9, s6, 11\ns_add_u32 s9, s9, s70\nbuffer_load_dwordx4 v26, {R(WPHI)}, s9 offen lds")
    a.label(L('nowp'+tg))
def side_poll_issue(tg):
    a(f"s_cmp_eq_u32 s3, 0\ns_cbranch_scc0 {L('npi'+tg)}")
    with a.skippable():
        a(f"buffer_load_dword v18, v25, {R(WS)}, 0 offen {SC}")
    a.label(L('npi'+tg))
def side_poll_wait(tg, restore_vcc):
    a(f"s_cmp_eq_u32 s3, 0\ns_cbranch_scc0 {L('fok2'+tg)}")
    with a.skippable():
        a("s_mov_b32 s71, 0")
        a.label(L('fspin'+tg))
        a(f"""
        v_cmp_ne_u32 vcc, v18, v31
        s_cmp_eq_u64 vcc, 0
        s_cbranch_scc1 {L('fok'+tg)}
        s_add_u32 s71, s71, 1
        s_cmp_gt_u32 s71, {SPIN}
        s_cbranch_scc1 {L('fok'+tg)}
        s_sleep {SLP}
        buffer_load_dword v18, v25, {R(WS)}, 0 offen {SC}
        s_waitcnt vmcnt(0)
        s_branch {L('fspin'+tg)}
        """)
        a.label(L('fok'+tg))
        if restore_vcc: a("s_mov_b64 vcc, s[80:81]")
        a("ds_write_b32 v19, v31 offset:16380\ns_waitcnt lgkmcnt(0)")
    a.label(L('fok2'+tg))
def side_poll_check(tg, raw, tmp, ptag):
    a(f"ds_read_b32 v31, v19 offset:16380", ptag)
    a(f"""
    v_lshlrev_b32 v{tmp}, 4, v29
    s_lshl_b32 s9, s4, 11
    s_lshl_b32 s10, s62, 9
    s_add_u32 s9, s9, s10
    s_add_u32 s9, s9, {STAT}
    s_xor_b32 s10, s9, 512
    """)
    a(f"s_cmp_lt_u32 s3, 7\ns_cbranch_scc0 {L('nocsd'+tg)}")
    with a.skippable():
        a(f"s_mul_i32 s11, s79, 14336\ns_add_u32 s11, s11, s69\ns_add_u32 s11, s11, {CSP}\ns_mov_b32 m0, s69")
        a(f"buffer_load_dwordx4 v26, {R(WS)}, s11 offen {SC} lds")
        a(f"buffer_load_dwordx4 v26, {R(WS)}, s11 offen offset:1024 {SC} lds")
    a.label(L('nocsd'+tg))
    a(f"buffer_load_dwordx4 {V(raw)}, v{tmp}, {R(WS)}, s9 offen {SC}", "ST")
    a(f"buffer_load_dwordx4 {V(raw+4)}, v{tmp}, {R(WS)}, s10 offen {SC}", "ST")
def side_csred(tg, t16, tmp):
    a(f"s_cmp_lt_u32 s3, 4\ns_cbranch_scc0 {L('nored'+tg)}")
    with a.skippable():
        a(f"v_min_u32 v{tmp}, 223, v0\nv_lshlrev_b32 v{tmp}, 2, v{tmp}")
        for g in range(16): a(f"ds_read_b32 v{t16+g}, v{tmp} offset:{g*896}")
        a("s_waitcnt lgkmcnt(0)")
        for w in (8, 4, 2, 1):
            for g in range(w): a(f"v_add_f32 v{t16+g}, v{t16+g}, v{t16+g+w}")
        a(f"""
        v_cvt_pk_bf16_f32 v{t16+1}, v{t16}, v{t16}
        v_and_b32 v{t16+1}, 0xffff0000, v{t16+1}
        v_sub_f32 v{t16+2}, v{t16}, v{t16+1}
        v_cvt_pk_bf16_f32 v{t16}, v{t16+1}, v{t16+2}
        ds_write_b32 v{tmp}, v{t16}
        """)
    a.label(L('nored'+tg))
def side_bext(raw, BX, RR, tmp):
    for t in range(2):
        s0 = raw+4*t; B = BX+4*t; rr = RR+3*t
        a(f"""
        v_and_b32 v{tmp}, 0xffff, v{s0}
        v_lshl_or_b32 v{B}, v{tmp}, 16, v{tmp}
        v_lshrrev_b32 v{tmp}, 16, v{s0}
        v_lshl_or_b32 v{B+1}, v{tmp}, 16, v{tmp}
        v_mov_b32 v{B+2}, v{s0+1}
        v_mov_b32 v{B+3}, 0
        v_mov_b32 v{rr}, v{s0+2}
        v_mul_f32 v{rr+1}, {LOG2E}, v{s0+2}
        v_mul_f32 v{rr+2}, 0.5, v{s0+2}
        """)
MAP = env("MAP", 0)
if MAP == 0:
    P2MAP = f"""
    s_and_b32 s82, s2, 7
    s_lshl_b32 s82, s82, 2
    s_bfe_u32 s9, s2, 0x20003
    s_add_u32 s82, s82, s9
    s_lshr_b32 s62, s2, 5
    s_mul_i32 s76, s62, 7
    s_lshr_b32 s76, s76, 2
    s_mul_i32 s9, s9, 3
    """
else:
    P2MAP = f"""
    s_bfe_u32 s82, s2, 0x20001
    s_lshl_b32 s82, s82, 3
    s_lshr_b32 s76, s2, 5
    s_add_u32 s82, s82, s76
    s_and_b32 s62, s2, 1
    s_lshl_b32 s62, s62, 2
    s_bfe_u32 s9, s2, 0x20003
    s_add_u32 s62, s62, s9
    s_mul_i32 s76, s76, 7
    s_lshr_b32 s76, s76, 2
    s_mul_i32 s9, s9, 3
    """
P2MAP += f"""
    s_add_u32 s76, s76, s9
    s_lshl_b32 s62, s62, 7
    s_mul_i32 s60, s3, {14*16*1024}
    s_add_u32 s60, s60, s62
    s_add_u32 s83, s60, {14*16384}
    s_lshl_b32 s68, s3, 16
    s_add_u32 s68, s68, s62
"""
TP0 = env("TP0", -1); TPS = env("TPS", 2)
def side_touch(tg, p, r1, r2):
    if TP0 < 0 or p < TP0 or (p-TP0) % TPS or (p-TP0)//TPS >= 8: return
    w = (p-TP0)//TPS
    a(f"s_cmp_eq_u32 s3, {w}\ns_cbranch_scc0 {L(f'pf{tg}{w}')}")
    with a.skippable():
        a(f"""
        s_lshr_b32 s9, s2, 3
        s_lshl_b32 s9, s9, 3
        s_add_u32 s9, s9, s3
        s_and_b32 s71, s2, 1
        s_lshl_b32 s71, s71, 9
        s_mul_i32 s10, s9, {7*1024}
        s_add_u32 s10, s10, s71
        s_lshl_b32 s11, s9, 11
        s_add_u32 s11, s11, s71
        v_lshrrev_b32 v{r1}, 2, v1
        v_and_b32 v{r2}, 3, v1
        v_lshlrev_b32 v{r2}, 7, v{r2}
        v_lshl_add_u32 v{r1}, v{r1}, 10, v{r2}
        s_mov_b64 exec, 0xfffffff
        buffer_load_dword v{r2}, v{r1}, {R(W2)}, s10 offen
        s_mov_b64 exec, 0xff
        buffer_load_dword v{r1}, v{r1}, {R(WO)}, s11 offen
        s_mov_b64 exec, -1
        """)
    a.label(L(f'pf{tg}{w}'))
def side_p2(t3):
    a(f"""
    v_readfirstlane_b32 s75, v31
    v_lshrrev_b32 v{t3}, 3, v1
    v_and_b32 v{t3+1}, 7, v1
    v_lshrrev_b32 v{t3+2}, 2, v1
    v_and_b32 v{t3+2}, 4, v{t3+2}
    v_xor_b32 v{t3+1}, v{t3+1}, v{t3+2}
    v_lshlrev_b32 v{t3}, 10, v{t3}
    v_lshl_add_u32 v18, v{t3+1}, 4, v{t3}
    s_lshl_b32 s74, s4, 2
    s_add_u32 s74, s74, s62
    s_xor_b32 s64, s74, 1
    s_mul_i32 s74, s74, {AF_TG}
    s_mul_i32 s64, s64, {AF_TG}
    {P2MAP}
    s_cmp_ge_u32 s76, 14
    s_cselect_b32 s9, 14, 0
    s_sub_u32 s76, s76, s9
    s_lshl_b32 s61, s76, 14
    s_add_u32 s61, s61, s60
    """)
def p2_adv(x):
    x("s_add_u32 s61, s61, 16384\ns_cmp_eq_u32 s61, s83\ns_cselect_b32 s61, s60, s61")
W2PG = [7, 8, 9, 1, 2, 3, 4, 5, 6]
def p2_dma(x, u, tag, partner=False):
    pg = W2PG[u % 9]
    for half in range(2):
        x(f"s_add_u32 m0, s69, {pg*PG + half*1024}")
        if u < 14:
            if half == 0: x(f"s_add_u32 s71, s61, 8192\nbuffer_load_dwordx4 v18, {R(W2)}, s61 offen lds", tag)
            else: x(f"buffer_load_dwordx4 v18, {R(W2)}, s71 offen lds", tag)
        else:
            x(f"s_add_u32 s71, s68, {((u-14)*16+half*8)*1024}")
            x(f"buffer_load_dwordx4 v18, {R(WO)}, s71 offen lds", tag)
    if partner:
        for half in range(2):
            x(f"s_add_u32 m0, s69, {pg*PG + half*1024 + 8192}\ns_add_u32 s71, s61, {4*14*16384 + half*8192}")
            x(f"buffer_load_dwordx4 v18, {R(W2)}, s71 offen lds", tag)
    if u < 14: p2_adv(x)
def p2_dma_partner(x, u, tag):
    pg = W2PG[u % 9]
    for half in range(2):
        x(f"s_add_u32 m0, s69, {pg*PG + half*1024 + 8192}")
        if u < 14:
            x(f"s_add_u32 s71, s81, {4*14*16384 + half*8192}")
            x(f"buffer_load_dwordx4 v18, {R(W2)}, s71 offen lds", tag)
        else:
            x(f"s_add_u32 s71, s68, {4*65536 + ((u-14)*16+half*8)*1024}")
            x(f"buffer_load_dwordx4 v18, {R(WO)}, s71 offen lds", tag)
    if u < 14: x("s_add_u32 s81, s81, 16384\ns_cmp_eq_u32 s81, s83\ns_cselect_b32 s81, s60, s81")
def p2_dma2(x, u, tag):
    pg = W2PG[u % 9]
    for half in range(2):
        x(f"s_add_u32 m0, s69, {pg*PG + half*1024}")
        if u < 14:
            x(f"s_add_u32 s71, s81, {half*8192}")
            x(f"buffer_load_dwordx4 v18, {R(W2)}, s71 offen lds", tag)
        else:
            x(f"s_add_u32 s71, s68, {((u-14)*16+half*8)*1024}")
            x(f"buffer_load_dwordx4 v18, {R(WO)}, s71 offen lds", tag)
    if u < 14: x("s_add_u32 s81, s81, 16384\ns_cmp_eq_u32 s81, s83\ns_cselect_b32 s81, s60, s81")
def lds_wait(lab, off):
    a("s_mov_b32 s71, 0")
    a.label(L(lab))
    a(f"""
    ds_read_b32 v10, v11 offset:{off}
    s_waitcnt lgkmcnt(0)
    v_readfirstlane_b32 s9, v10
    s_add_u32 s71, s71, 1
    s_cmp_gt_u32 s71, {SPIN*8}
    s_cbranch_scc1 {L(lab+'x')}
    s_cmp_eq_u32 s9, s75
    s_cbranch_scc1 {L(lab+'x')}
    s_sleep 1
    s_branch {L(lab)}
    """)
    a.label(L(lab+'x'))
def softmax(x, P, Pp, Pm, c):
    E = 112
    x(f"""
    v_max3_f32 v2, v{P}, v{P+1}, v{P+2}
    v_max3_f32 v3, -v{P}, -v{P+1}, -v{P+2}
    v_max3_f32 v2, v2, v{P+3}, v{P+4}
    v_max3_f32 v3, v3, -v{P+3}, -v{P+4}
    v_max3_f32 v2, v2, v{P+5}, v{P+6}
    v_max3_f32 v3, v3, -v{P+5}, -v{P+6}
    v_max_f32 v2, v2, v{P+7}
    v_max_f32_e64 v3, v3, -v{P+7}
    v_permlane32_swap_b32 v2, v3
    v_max_f32 v2, v2, v3
    v_mul_f32_e64 v2, -v2, v{c}
    v_mov_b32 v3, v2
    v_permlane32_swap_b32 v2, v3
    """)
    for r in range(8): x(f"v_fma_f32 v{E+r}, -v{P+r}, v{c}, v3\nv_fma_f32 v{P+r}, v{P+r}, v{c}, v2")
    for r in range(8): x(f"v_exp_f32 v{E+r}, v{E+r}\nv_exp_f32 v{P+r}, v{P+r}")
    x(f"v_add_f32 v2, v{P}, v{P+1}\nv_add_f32 v3, v{E}, v{E+1}")
    for r in range(2, 8): x(f"v_add_f32 v2, v2, v{P+r}\nv_add_f32 v3, v3, v{E+r}")
    x("v_permlane32_swap_b32 v2, v3\nv_add_f32 v2, v2, v3\nv_rcp_f32 v2, v2\nv_mov_b32 v3, v2\nv_permlane32_swap_b32 v2, v3")
    for r in range(8): x(f"v_mul_f32 v{P+r}, v{P+r}, v2\nv_mul_f32 v{E+r}, v{E+r}, v3")
    for q in range(4): x(f"v_cvt_pk_bf16_f32 v{Pp+q}, v{P+2*q}, v{P+2*q+1}\nv_cvt_pk_bf16_f32 v{Pm+q}, v{E+2*q}, v{E+2*q+1}")
def ffn_epi(x, acc, s_tile, f, rh, so=9):
    a(f"s_lshl_b32 s{so}, s{s_tile}, 11\ns_add_u32 s{so}, s{so}, s{(74,64)[f]}")
    for r in range(16): x(f"v_add_f32_e64 v{acc+r}, v{acc+r}, |v{acc+r}|")
    for r in range(16): x(f"v_mul_f32 v{acc+r}, v{acc+r}, v{rh}")
    for r in range(16): x(f"v_mul_f32 v{acc+r}, v{acc+r}, v{acc+r}")
    for q in range(8): x(f"v_cvt_pk_bf16_f32 v{acc+q}, v{acc+2*q}, v{acc+2*q+1}")
    x(f"buffer_store_dwordx4 {V(acc)}, v26, {R(WS)}, s{so} offen {SC}", "H")
    x(f"buffer_store_dwordx4 {V(acc+4)}, v26, {R(WS)}, s{so} offen offset:1024 {SC}", "H")
def flag_store(soff):
    a(f"""
    v_mov_b32 v31, s75
    s_mov_b64 exec, 1
    buffer_store_dword v31, v19, {R(WS)}, {soff} offen {SC}
    s_mov_b64 exec, -1
    """)
WREG = 128; P2ACC = 64; WTMP = 48; TRA = 2
def p2_traddr(t=2, q=8):
    a(f"""
    v_lshrrev_b32 v{q}, 5, v1
    v_bfe_u32 v{q+1}, v1, 2, 2
    v_lshl_add_u32 v{q}, v{q}, 2, v{q+1}
    v_lshlrev_b32 v{q}, 7, v{q}
    v_and_b32 v{q+2}, 3, v1
    v_lshl_add_u32 v{q}, v{q+2}, 3, v{q}
    v_bfe_u32 v{q+2}, v1, 4, 1
    v_and_b32 v{q+1}, 2, v{q+1}
    v_or_b32 v{q+2}, v{q+2}, v{q+1}
    v_lshl_add_u32 v{t}, v{q+2}, 5, v{q}
    v_add_u32 v{t}, s69, v{t}
    v_xor_b32 v{t+1}, 64, v{t}
    v_add_u32 v{t+2}, 0x10000, v{t}
    v_add_u32 v{t+3}, 0x10000, v{t+1}
    v_add_u32 v{t+4}, 0x20000, v{t}
    v_add_u32 v{t+5}, 0x20000, v{t+1}
    """)
def p2_tr(x, dst, u, tag):
    pg = W2PG[u % 9]
    for b in range(2):
        for e in range(2):
            x(f"ds_read_b64_tr_b16 {V(dst+4*b+2*e,2)}, v{TRA+2*(pg>>2)+b} offset:{(pg&3)*PG+e*1024}", tag)
def hflag():
    a(f"""
    s_lshl_b32 s9, s4, 1
    s_add_u32 s9, s9, s7
    s_lshl_b32 s77, s9, 8
    s_lshl_b32 s10, s79, 2
    s_add_u32 s10, s10, s63
    s_lshl_b32 s10, s10, 2
    s_add_u32 s9, s77, s10
    s_add_u32 s9, s9, {HF}
    """)
    flag_store("s9")
def kvpoll(w, lab):
    a(f"s_cmp_eq_u32 s3, {w}\ns_cbranch_scc0 {L(lab)}")
    with a.skippable():
        a("s_mov_b32 s71, 0")
        a.label(L('pk'))
        a(f"""
        buffer_load_dwordx2 v[10:11], v8, {R(WS)}, s66 offen {SC}
        s_waitcnt vmcnt(0)
        v_cmp_ne_u32 vcc, s75, v10
        v_cmp_ne_u32 s[80:81], s75, v11
        s_or_b64 vcc, vcc, s[80:81]
        s_cmp_eq_u64 vcc, 0
        s_cbranch_scc1 {L('pk2')}
        s_add_u32 s71, s71, 1
        s_cmp_gt_u32 s71, {SPIN}
        s_cbranch_scc1 {L('pk2')}
        s_sleep {SLP}
        s_branch {L('pk')}
        """)
        a.label(L('pk2'))
        for q in range(9):
            a(f"s_mov_b32 m0, {q*1024}\ns_add_u32 s10, s72, {q*1024}\nbuffer_load_dwordx4 v26, {R(WS)}, s10 offen {SC} lds")
        a("s_waitcnt vmcnt(0)\nv_mov_b32 v10, s75\nds_write_b32 v19, v10 offset:12288")
    a.label(L(lab))
ACC = [32, 48, 64, 80]
T = 96; KP = 2*PG; XF = 128
a(f"s_cmp_eq_u32 s5, 0\ns_cbranch_scc0 {L('typeB')}")
a.qsave("br")
for p in range(4): dma(1, p)
for i in range(8): a(f"v_add_u32 v{112+i}, {2*SLOT}, v{8+i}")
a(f"v_add_u32 v17, {2*SLOT}, v16")
a("v_lshlrev_b32 v121, 2, v30\nv_sub_u32 v121, v29, v121\nv_mov_b32 v122, 0x3f80\nv_mov_b32 v123, 0x3f800000")
SEL, WPH, BX, RRA, RAW = 64, 72, 76, 84, 120
for k in range(8):
    sg = k >> 2; q = k & 3
    f0 = (2*q & 3) + 8*((2*q) >> 2) + 16*sg
    a(f"v_cmp_eq_u32 vcc, {f0}, v121\nv_cndmask_b32 v{SEL+k}, 0, v122, vcc\nv_cmp_eq_u32 vcc, {f0+1}, v121\nv_cndmask_b32 v{SEL+k}, v{SEL+k}, v123, vcc")
st(grp="P"); a.wv("C0"); st(grp="P"); a("s_barrier"); st(grp="P")
st(grp="A")
def rdA(p):
    i = p & 3; b = 96 + 8*(p & 1); c = p >> 2; sl = c % 3
    ab = 8 if sl < 2 else 112; so = SLOT if sl == 1 else 0
    a(f"ds_read_b128 {V(XF+4*p)}, v{ab+i} offset:{so}", f"P{p}")
    for e in range(2): a(f"ds_read_b64_tr_b16 {V(b+4+2*e,2)}, v{16 if sl < 2 else 17} offset:{so+i*2048+e*512}", f"P{p}")
    a(f"ds_read_b128 {V(b)}, v{ab+4+i} offset:{so}", f"P{p}")
rdA(0)
for p in range(32):
    c = p >> 2; i = p & 3
    a.wl(f"P{p}")
    if i == 3 and c < 7:
        a.wv(f"C{c+1}")
        if p == 23: side_poll_wait("A", False)
        a("s_barrier"); st(grp="A")
    if p+1 < 32: rdA(p+1)
    b = 96 + 8*(p & 1)
    a(f"{MF} {V(ACC[0],16)}, {V(b+4)}, {V(XF+4*p)}, {V(ACC[0],16) if p else 0}")
    if p < 2: dma(2, 2*p); dma(2, 2*p+1)
    elif p >= 3:
        cc = ((p-3) >> 2) + 3
        if cc <= 7: dma(cc, (p-3) & 3)
    a(f"{MF} {V(ACC[1],16)}, {V(b+4)}, {V(b)}, {V(ACC[1],16) if p else 0}")
    side_touch("A", p, 94, 95)
    if p == 0: side_wphi_dma("A")
    if p == 3: side_flags("A", 90)
    if p == 8:
        for e in range(2): a(f"ds_read_b64_tr_b16 {V(WPH+2*e,2)}, v21 offset:{e*256}", f"P{p+1}")
    if p == 17: side_poll_issue("A")
    if p == 23: side_poll_check("A", RAW, 92, "P24")
    if p == 24: side_p2(90)
    if p in (24, 25, 26): p2_dma(a, p-24, "D1")
    if p == 28: p2_dma(a, 3, "D1")
st(); st(grp="B")
a.wv("ST"); a("s_barrier")
side_csred("A", 96, 92)
side_bext(RAW, BX, RRA, 92)
for c in range(8):
    a(f"s_add_u32 m0, s70, {3*PG + c*8192}")
    a(f"buffer_load_dwordx4 v6, {R(W1)}, s73 offen lds", "I2")
    a(f"s_add_u32 s73, s73, {64*3584}")
a("s_waitcnt lgkmcnt(0)\ns_barrier")
st(grp="B")
a(f"""
ds_read_b32 v120, v23
ds_read_b32 v4, v24
v_cmp_gt_u32 vcc, 32, v1
v_lshl_or_b32 v28, v28, 16, v28
v_cndmask_b32 v6, 0, v28, vcc
v_cmp_eq_u32 s[80:81], 16, v29
v_cndmask_b32 v27, 0, v22, s[80:81]
v_mov_b32 v122, 0
v_mov_b32 v123, 0
v_mov_b32 v7, 0
s_waitcnt lgkmcnt(0)
v_cndmask_b32 v120, 0, v120, vcc
v_cndmask_b32 v4, 0, v4, vcc
v_mov_b32 v121, v120
v_mov_b32 v5, v4
{MF} {V(ACC[0],16)}, v[120:123], {V(BX)}, {V(ACC[0],16)}
{MF} {V(ACC[1],16)}, v[120:123], {V(BX+4)}, {V(ACC[1],16)}
""")
KVA = 8
a("v_mov_b32 v90, v18\nv_mov_b32 v91, v20")
E = a.sub(); D = a.sub()
for f in range(2):
    acc = ACC[f]; rr = RRA+3*f
    for q in range(4): E(f"v_cvt_pk_bf16_f32 v{120+q}, v{acc+2*q}, v{acc+2*q+1}")
    E(f"{MF} {V(T,16)}, {V(WPH)}, v[120:123], 0")
    for r in range(8, 16): E(f"v_mul_f32 v{acc+r}, v{acc+r}, v{rr}")
    for q in range(4): E(f"v_cvt_pk_bf16_f32 v{120+q}, v{acc+8+2*q}, v{acc+9+2*q}")
    E(f"{MF} {V(acc,16)}, v[120:123], {V(SEL)}, 0")
    softmax(E, T, 120, 124, rr+1)
    E(f"{MF} {V(T,16)}, v[120:123], {V(SEL)}, 0")
    E(f"{MF} {V(T,16)}, v[124:127], {V(SEL+4)}, {V(T,16)}")
    for q in range(8): E(f"v_cvt_pk_bf16_f32 v{112+q}, v{acc+2*q}, v{acc+2*q+1}\nv_or_b32 v{112+q}, v{112+q}, v27")
    for q in range(8): E(f"v_cvt_pk_bf16_f32 v{T+q}, v{T+2*q}, v{T+2*q+1}")
    E(f"{MF} {V(KVA,16)}, {V(T)}, v[112:115], {V(KVA,16) if f else 0}")
    E(f"{MF} {V(KVA,16)}, {V(T+4)}, v[116:119], {V(KVA,16)}")
a.extend(E)
st(grp="B")
a(f"""
s_lshl_b32 s9, s63, 12
s_lshl_b32 s10, s7, 11
s_add_u32 s9, s9, s10
s_add_u32 s9, s9, {KP}
v_add_u32 v92, s9, v26
v_xor_b32 v93, 0x800, v92
v_mul_u32_u24 v94, 17, v30
v_add_u32 v94, v94, v29
v_lshlrev_b32 v94, 2, v94
s_mul_i32 s10, s63, 2176
s_mul_i32 s11, s7, {8*136}
s_add_u32 s10, s10, s11
s_add_u32 s10, s10, s72
v_cmp_gt_u32 s[80:81], 17, v29
s_cmp_eq_u32 s7, 0
s_cbranch_scc1 {L('kv0')}
""")
with a.skippable():
    for q in range(2): a(f"ds_write_b128 v92, {V(KVA+4*q)} offset:{q*1024}")
    for r in range(8): a(f"v_mov_b32 v{KVA+r}, v{KVA+8+r}")
    a(f"s_branch {L('kv1')}")
a.label(L('kv0'))
with a.skippable():
    for q in range(2): a(f"ds_write_b128 v92, {V(KVA+8+4*q)} offset:{q*1024}")
a.label(L('kv1'))
a.wv("I2")
a("s_waitcnt lgkmcnt(0)\ns_barrier")
for q in range(2): a(f"ds_read_b128 {V(T+4*q)}, v93 offset:{q*1024}")
a(f"v_mov_b32 v18, v90\nv_mov_b32 v19, 0\nv_add_u32 v20, {3*PG}, v91")
a("s_waitcnt lgkmcnt(0)")
for r in range(8): a(f"v_add_f32 v{KVA+r}, v{KVA+r}, v{T+r}")
a("s_mov_b64 exec, s[80:81]")
for r in range(8): a(f"buffer_atomic_add_f32 v{KVA+r}, v94, {R(WS)}, s10 offen offset:{r*136}", "AT")
a("s_mov_b64 exec, -1")
st(grp="B")
A2 = 32
def rd2(k):
    b = 48 + 4*(k % 4)
    for e in range(2): a(f"ds_read_b64_tr_b16 {V(b+2*e,2)}, v20 offset:{k*2048+e*512}", f"B{k}")
a(f"{MF} {V(A2,16)}, v[4:7], {V(BX)}, 0")
rd2(0); rd2(1); rd2(2)
K1 = env("K1", 0); K2 = env("K2", 17)
TRA = 96
if K1: p2_traddr(96, 104)
a(f"s_add_u32 s81, s61, {5*16384}\ns_sub_u32 s9, s81, {14*16384}\ns_cmp_ge_u32 s81, s83\ns_cselect_b32 s81, s9, s81")
for k in range(32):
    if k+3 < 32: rd2(k+3)
    a.wl(f"B{k}")
    a(f"{MF} {V(A2,16)}, {V(48+4*(k%4))}, {V(XF+4*k)}, {V(A2,16)}")
    if K1 and k == K1:
        for u in range(4): p2_tr(a, WREG+8*u, u, f"B{k+4}")
    if K1 and K1+4 <= k < K1+8: p2_dma2(a, 9+k-K1-4, "D2")
    if K1 and k == K2: a("s_barrier")
    if K1 and k in (K2+5, K2+7, K2+9): p2_dma(a, 4+(k-K2-5)//2, "D1")
    if k == env("KVK", 20):
        a.wv("AT")
        a(f"""
        s_lshl_b32 s9, s6, 9
        s_lshl_b32 s10, s4, 5
        s_add_u32 s9, s9, s10
        s_lshl_b32 s10, s3, 2
        s_add_u32 s9, s9, s10
        s_add_u32 s9, s9, {KVF}
        """)
        flag_store("s9")
        st(grp="B")
ffn_epi(a, A2, 67, 0, RRA+2)
st()
TRA = 2
p2_traddr()
if K1:
    a("s_barrier")
    for u in range(7, 9): p2_dma(a, u, "D1x")
    a.wv("H")
    hflag()
    st()
    for u in range(4, 7): p2_tr(a, WREG+8*u, u, "W1")
    a("s_barrier")
    a.wl("W1")
    for u in range(13, 16): p2_dma2(a, u, "D2")
    a.wv("D1x")
    for u in range(7, 9): p2_tr(a, WREG+8*u, u, "W1")
    a.wl("W1")
    for u in range(16, 18): p2_dma2(a, u, "D2")
else:
    for u in range(4): p2_tr(a, WREG+8*u, u, "W1")
    a("s_barrier")
    for u in range(4, 6): p2_dma(a, u, "D1")
    a.wv("H")
    hflag()
    st()
    a("s_barrier")
    for u in range(6, 9): p2_dma(a, u, "D1")
    a.wl("W1")
    for u in range(9, 13): p2_dma(a, u, "D2")
    a.wv("D1")
    for u in range(4, 9): p2_tr(a, WREG+8*u, u, "W1")
    a.wl("W1")
    for u in range(13, 18): p2_dma(a, u, "D2")
a(f"s_branch {L('tail')}")
a.label(L('typeB'))
a.qload("br")
for p in range(6): dma(1, p)
for i in range(10): a(f"v_add_u32 v{160+i}, {2*SLOT}, v{8+i}")
a("s_cmp_eq_u32 s8, 0\ns_cselect_b64 s[80:81], -1, 0\ns_mov_b64 vcc, s[80:81]")
st(5, grp="P"); a.wv("C0"); st(grp="P"); a("s_barrier"); st(grp="P")
st(1, grp="A")
def rdB(p):
    i = p & 3; b = 96 + 16*(p & 1); c = p >> 2; sl = c % 3
    ab = 8 if sl < 2 else 160; so = SLOT if sl == 1 else 0
    a(f"ds_read_b128 {V(b)}, v{ab+i} offset:{so}", f"P{p}")
    for e in range(2): a(f"ds_read_b64_tr_b16 {V(b+8+2*e,2)}, v{ab+8} offset:{so+i*2048+e*512}", f"P{p}")
    a(f"ds_read_b128 {V(b+4)}, v{ab+4+i} offset:{so}", f"P{p}")
    for e in range(2): a(f"ds_read_b64_tr_b16 {V(b+12+2*e,2)}, v{ab+9} offset:{so+i*2048+e*512}", f"P{p}")
rdB(0)
WPB, BXB, RRB, RAWB = 200, 208, 220, 232
for p in range(32):
    c = p >> 2; i = p & 3
    a.wl(f"P{p}")
    if i == 3 and c < 7:
        a.wv(f"C{c+1}")
        if p == 19: side_poll_wait("B", True)
        a("s_barrier"); st(grp="A")
    if p+1 < 32: rdB(p+1)
    b = 96 + 16*(p & 1)
    a(f"{MF} {V(ACC[0],16)}, {V(b+8)}, {V(b)}, {V(ACC[0],16) if p else 0}")
    a(f"{MF} {V(ACC[1],16)}, {V(b+8)}, {V(b+4)}, {V(ACC[1],16) if p else 0}")
    if p < 3: dma(2, 2*p); dma(2, 2*p+1)
    else:
        cc = ((p-3) >> 2) + 3; q = (p-3) & 3
        if cc <= 7:
            for piece in ((0,1),(2,3),(4,),(5,))[q]: dma(cc, piece)
    a(f"{MF} {V(ACC[2],16)}, {V(b+12)}, {V(b)}, {V(ACC[2],16) if p else 0}")
    a(f"s_cbranch_vccz {L(f'm4_{p}')}")
    with a.skippable():
        a(f"{MF} {V(ACC[3],16)}, {V(b+12)}, {V(b+4)}, {V(ACC[3],16) if p else 0}")
    a.label(L(f"m4_{p}"))
    side_touch("B", p, 250, 251)
    if p == 0: side_wphi_dma("B")
    if p == 3: side_flags("B", 240)
    if p == 8:
        for h in range(2):
            for e in range(2): a(f"ds_read_b64_tr_b16 {V(WPB+4*h+2*e,2)}, v21 offset:{h*512+e*256}", f"P{p+1}")
    if p == 13: side_poll_issue("B")
    if p == 19: side_poll_check("B", RAWB, 240, "P20")
    if p == 26: a.wv("ST")
    if p == 28: side_csred("B", 144, 240)
    if p == 29: side_bext(RAWB, BXB, RRB, 240)
    if p == 22: side_p2(240)
    if p in (23, 24, 25): p2_dma(a, p-23, "D1a")
    if p in (27, 29, 30): p2_dma(a, {27:3, 29:4, 30:5}[p], "D1b")
st(2)
a("s_waitcnt lgkmcnt(0)\ns_barrier")
a(f"""
ds_read_b32 v216, v23
ds_read_b32 v240, v24
v_cmp_gt_u32 vcc, 32, v1
v_lshl_or_b32 v27, v27, 16, v27
v_lshl_or_b32 v28, v28, 16, v28
s_and_b64 s[80:81], s[80:81], vcc
v_cndmask_b32 v218, 0, v27, s[80:81]
v_cndmask_b32 v242, 0, v28, vcc
v_mov_b32 v219, 0
v_mov_b32 v243, 0
s_waitcnt lgkmcnt(0)
v_cndmask_b32 v216, 0, v216, vcc
v_cndmask_b32 v240, 0, v240, vcc
v_mov_b32 v217, v216
v_mov_b32 v241, v240
{MF} {V(ACC[0],16)}, v[216:219], {V(BXB)}, {V(ACC[0],16)}
{MF} {V(ACC[1],16)}, v[216:219], {V(BXB+4)}, {V(ACC[1],16)}
{MF} {V(ACC[2],16)}, v[240:243], {V(BXB)}, {V(ACC[2],16)}
{MF} {V(ACC[3],16)}, v[240:243], {V(BXB+4)}, {V(ACC[3],16)}
""")
for u in range(6, 9): p2_dma(a, u, "D1c")
TRA = 12
p2_traddr(12)
def w2step(k):
    if k == 0:
        a.wv("D1a")
        for u in range(0, 3): p2_tr(a, WREG+8*u, u, "W1")
    elif k == 1:
        a.wl("W1")
        for u in range(9, 12): p2_dma(a, u, "D2")
        a.wv("D1b")
        for u in range(3, 6): p2_tr(a, WREG+8*u, u, "W1")
    elif k == 2:
        a.wl("W1")
        for u in range(12, 15): p2_dma(a, u, "D2")
        a.wv("D1c")
        for u in range(6, 9): p2_tr(a, WREG+8*u, u, "W1")
    elif k == 3:
        a.wl("W1")
        for u in range(15, 18): p2_dma(a, u, "D2")
a(f"s_cmp_eq_u32 s8, 0\ns_cbranch_scc0 {L('Bq')}")
a.qsave("bq")
ffn_epi(a, ACC[0], 66, 0, RRB+2)
ffn_epi(a, ACC[1], 66, 1, RRB+5)
ffn_epi(a, ACC[2], 67, 0, RRB+2)
ffn_epi(a, ACC[3], 67, 1, RRB+5)
st(3)
a.wv("D1c")
for u in range(9): p2_tr(a, WREG+8*u, u, "W1")
a.wv("H")
hflag()
a("s_mov_b32 s81, s61\ns_lshl_b32 s9, s3, 2\nv_mov_b32 v11, s9")
a.wl("W1")
for u in range(9, 18): p2_dma(a, u, "D2")
lds_wait("pw", 12304)
for u in range(9, 18): p2_dma_partner(a, u, "D2")
a("s_waitcnt vmcnt(0)")
st(4)
a(f"s_branch {L('tailB')}")
a.label(L('Bq'))
a.qload("bq")
stor = {(0,0): (80, 84), (0,1): (88, 92), (1,0): (232, 236), (1,1): (240, 244)}
ffn_epi(a, ACC[2], 67, 0, RRB+2)
a(f"v_lshlrev_b32 v8, 3, v1\ns_lshl_b32 s66, s6, 9\ns_add_u32 s66, s66, {KVF}\ns_mul_i32 s11, s78, 4352")
for f in range(2):
    acc = ACC[f]
    for q in range(8): a(f"v_cvt_pk_bf16_f32 v{acc+q}, v{acc+2*q}, v{acc+2*q+1}")
    for h in range(2):
        a(f"{MF} {V(T,16)}, {V(WPB+4*h)}, {V(acc+4*h)}, 0")
        if 2*f+h == TRP:
            a.wv("H"); hflag()
            for u in range(9): p2_tr(a, WREG+8*u, u, "W1")
        if 2*f+h == TRP+1:
            a.wl("W1")
            a("s_lshl_b32 s9, s3, 2\nv_mov_b32 v9, s9\nv_mov_b32 v10, s75\nds_write_b32 v9, v10 offset:12288")
        softmax(a, T, stor[(f,h)][0], stor[(f,h)][1], RRB+1+3*f)
st(3)
a(f"""
v_min_u32 v9, 16, v29
v_mul_u32_u24 v10, 17, v30
v_add_u32 v9, v9, v10
v_lshlrev_b32 v9, 2, v9
v_add_u32 v9, s11, v9
""")
kvpoll(4, 'nopk')
a("s_mov_b32 s71, 0")
a.label(L('lf1'))
a(f"""
ds_read_b32 v10, v19 offset:12288
s_waitcnt lgkmcnt(0)
v_readfirstlane_b32 s9, v10
s_add_u32 s71, s71, 1
s_cmp_gt_u32 s71, {SPIN*8}
s_cbranch_scc1 {L('lf2')}
s_cmp_eq_u32 s9, s75
s_cbranch_scc1 {L('lf2')}
s_sleep 1
s_branch {L('lf1')}
""")
a.label(L('lf2'))
for h in range(2):
    for r in range(16): a(f"ds_read_b32 v{32+16*h+r}, v9 offset:{h*2176+r*136}", f"K{h}")
a(f"s_add_u32 s9, s65, 112\ns_lshl_b32 s9, s9, 10\ns_add_u32 s10, s9, s64\ns_add_u32 s9, s9, s74")
for h in range(2):
    kb = 32+16*h
    a.wl(f"K{h}")
    for q in range(8): a(f"v_cvt_pk_bf16_f32 v{kb+q}, v{kb+2*q}, v{kb+2*q+1}")
    for f in range(2):
        Tt = 96+16*f
        a(f"{MF} {V(Tt,16)}, {V(kb)}, {V(stor[(f,h)][0])}, 0")
        a(f"{MF} {V(Tt,16)}, {V(kb+4)}, {V(stor[(f,h)][1])}, {V(Tt,16)}")
    for f in range(2):
        Tt = 96+16*f; o = kb+8+4*f
        a(f"v_add_f32 v8, 0x358637bd, v{Tt+8}\nv_rcp_f32 v8, v8")
        for r in range(8): a(f"v_mul_f32 v{Tt+r}, v{Tt+r}, v8")
        for q in range(4): a(f"v_cvt_pk_bf16_f32 v{o+q}, v{Tt+2*q}, v{Tt+2*q+1}")
        a(f"buffer_store_dwordx4 {V(o)}, v26, {R(WS)}, {('s9','s10')[f]} offen offset:{h*1024} {SC}", "O")
a.wv("O")
a(f"s_lshl_b32 s9, s6, 3\ns_lshl_b32 s10, s78, 2\ns_add_u32 s9, s9, s10\ns_add_u32 s9, s9, s77\ns_add_u32 s9, s9, {OF}")
flag_store("s9")
st()
a.label(L('tailB'))
for i in range(6): a(f"v_mov_b32 v{2+i}, v{12+i}")
TRA = 2
a.label(L('tail'))
a(f"""
s_mul_i32 s64, s82, {2*AF_TG}
s_mul_i32 s65, s3, {14*1024}
s_add_u32 s65, s65, s64
s_lshl_b32 s66, s3, 12
s_add_u32 s66, s66, s64
s_add_u32 s66, s66, {112*1024}
s_add_u32 s67, s66, {AF_TG}
s_lshl_b32 s9, s82, 8
s_add_u32 s72, s9, {HF}
s_add_u32 s73, s9, {OF}
v_lshlrev_b32 v0, 4, v1
v_lshlrev_b32 v8, 2, v1
""")
st(5)
a(f"s_cmp_eq_u32 s3, 0\ns_cbranch_scc0 {L('phok')}")
with a.skippable():
    a("s_mov_b32 s79, 0")
    a.label(L('ph'))
    a(f"""
    buffer_load_dword v10, v8, {R(WS)}, s72 offen {SC}
    s_waitcnt vmcnt(0)
    v_cmp_ne_u32 vcc, s75, v10
    s_cmp_eq_u64 vcc, 0
    s_cbranch_scc1 {L('phok')}
    s_add_u32 s79, s79, 1
    s_cmp_gt_u32 s79, {SPIN}
    s_cbranch_scc1 {L('phok')}
    s_sleep {SLP}
    s_branch {L('ph')}
    """)
a.label(L('phok'))
a("s_barrier")
st()
abuf = [200+8*i for i in range(7)] + [16+8*i for i in range(4)]
NA = 11
a(f"""
s_mov_b32 s60, s65
s_add_u32 s83, s65, {14*1024}
s_lshl_b32 s9, s76, 10
s_add_u32 s65, s65, s9
""")
def aload(u):
    r = abuf[u % NA]
    if u < 14:
        a(f"s_add_u32 s71, s65, {AF_TG}")
        a(f"buffer_load_dwordx4 {V(r)}, v0, {R(WS)}, s65 offen {SC}", f"A{u}")
        a(f"buffer_load_dwordx4 {V(r+4)}, v0, {R(WS)}, s71 offen {SC}", f"A{u}")
        a("s_add_u32 s65, s65, 1024\ns_cmp_eq_u32 s65, s83\ns_cselect_b32 s65, s60, s65")
    else:
        for tb in range(2):
            a(f"buffer_load_dwordx4 {V(r+4*tb)}, v0, {R(WS)}, s{(66,67)[tb]} offen offset:{(u-14)*1024} {SC}", f"A{u}")
for u in range(NA):
    aload(u)
    if u == OCK: a(f"buffer_load_dword v10, v8, {R(WS)}, s73 offen {SC}", f"A{OCK}")
def mfmas(u, w):
    r = abuf[u % NA]
    for tb in range(2):
        for nb in range(2):
            d = P2ACC + 16*(2*tb+nb)
            a(f"{MF} {V(d,16)}, {V(w+4*nb)}, {V(r+4*tb)}, {V(d,16) if u else 0}")
a(f"""
v_lshrrev_b32 v12, 3, v1
v_lshlrev_b32 v12, 10, v12
v_and_b32 v13, 7, v1
v_lshlrev_b32 v13, 4, v13
v_add_u32 v12, v12, v13
s_lshl_b32 s74, s82, 16
s_lshl_b32 s9, s3, 13
s_add_u32 s74, s74, s9
s_add_u32 s74, s74, s62
""")
for u in range(18):
    if u == 8: p2_tr(a, WTMP, 9, "T9")
    if 9 <= u < 17: p2_tr(a, WTMP + 8*((u-8)&1), u+1, f"T{u+1}")
    if u >= 9: a.wl(f"T{u}")
    a.wv(f"A{u}")
    mfmas(u, WREG+8*u if u < 9 else WTMP+8*((u-9)&1))
    if u < 3: aload(u+NA)
    if u == 3:
        a(f"buffer_load_dwordx4 v[128:131], v12, {R(X)}, s74 offen", "X")
        a(f"buffer_load_dwordx4 v[132:135], v13, {R(B2)}, s62 offen", "X")
    if u == OCK:
        a("s_mov_b32 s79, 0")
        a.label(L('po'))
        a(f"""
        v_cmp_ne_u32 vcc, s75, v10
        s_and_b32 s9, vcc_lo, 0xffff
        s_cmp_eq_u32 s9, 0
        s_cbranch_scc1 {L('pook')}
        s_add_u32 s79, s79, 1
        s_cmp_gt_u32 s79, {SPIN}
        s_cbranch_scc1 {L('pook')}
        """)
        with a.skippable():
            a(f"s_sleep 16\nbuffer_load_dword v10, v8, {R(WS)}, s73 offen {SC}\ns_waitcnt vmcnt(0)\ns_branch {L('po')}")
        a.label(L('pook'))
        for uu in range(14, 18): aload(uu)
st()
a(f"""
v_bfe_u32 v8, v1, 3, 2
v_lshlrev_b32 v8, 14, v8
v_and_b32 v9, 7, v1
v_lshl_add_u32 v8, v9, 8, v8
v_lshrrev_b32 v10, 5, v1
v_xor_b32 v10, v10, v9
v_lshl_add_u32 v8, v10, 4, v8
s_add_u32 s9, s69, {PG}
v_add_u32 v8, s9, v8
v_xor_b32 v9, 32, v8
v_xor_b32 v10, 64, v8
v_xor_b32 v11, 96, v8
v_add_u32 v2, 0x10000, v8
v_add_u32 v3, 0x10000, v9
v_add_u32 v4, 0x10000, v10
v_add_u32 v5, 0x10000, v11
""")
for tb in range(2):
    for nb in range(2):
        for qq in range(4):
            d = P2ACC + 16*(2*tb+nb) + 4*qq
            a(f"ds_write_b128 v{(8,2)[tb]+qq}, {V(d)} offset:{nb*128}")
a("""
v_lshrrev_b32 v6, 3, v1
v_and_b32 v7, 7, v1
v_lshlrev_b32 v7, 1, v7
v_xor_b32 v7, v7, v6
v_lshlrev_b32 v6, 8, v6
v_lshl_add_u32 v6, v7, 4, v6
s_lshl_b32 s9, s3, 14
s_add_u32 s9, s9, 16384
v_add_u32 v6, s9, v6
v_xor_b32 v7, 16, v6
s_waitcnt lgkmcnt(0)
s_barrier
""")
RR = 160
for w in range(8):
    for e in range(2):
        a(f"ds_read_b128 {V(RR+8*w+4*e)}, v{6+e} offset:{w*2048}", f"R{w}")
a.wv("X")
for i in range(4):
    a(f"v_lshlrev_b32 v{24+2*i}, 16, v{128+i}\nv_and_b32 v{25+2*i}, 0xffff0000, v{128+i}")
    a(f"v_lshlrev_b32 v{32+2*i}, 16, v{132+i}\nv_and_b32 v{33+2*i}, 0xffff0000, v{132+i}")
for i in range(8): a(f"v_add_f32 v{24+i}, v{24+i}, v{32+i}")
for w in range(8):
    a.wl(f"R{w}")
    for i in range(8): a(f"v_add_f32 v{24+i}, v{24+i}, v{RR+8*w+i}")
for i in range(4): a(f"v_cvt_pk_bf16_f32 v{32+i}, v{24+2*i}, v{25+2*i}")
a(f"buffer_store_dwordx4 v[32:35], v12, {R(OUT)}, s74 offen")
if INSTR:
    a("s_waitcnt vmcnt(0)"); st()
    nst[0] = 9
    a(f"s_waitcnt lgkmcnt(0)\ns_lshl_b32 s9, s2, 3\ns_add_u32 s9, s9, s3\ns_lshl_b32 s9, s9, 6\ns_add_u32 s9, s9, {STAMPS}")
    a("v_mov_b32 v0, 0\ns_mov_b64 exec, 1")
    for i in range(nst[0]):
        a(f"v_mov_b32 v1, s{84+2*i}\nbuffer_store_dword v1, v0, {R(WS)}, s9 offen offset:{4*i}\ns_nop 1")
a.label(L('end')); a("s_endpgm")
desc = f""".section .rodata,"a"
.p2align 6
.amdhsa_kernel {NAME}
  .amdhsa_next_free_vgpr 256
  .amdhsa_next_free_sgpr 102
  .amdhsa_accum_offset 256
  .amdhsa_group_segment_fixed_size 0
  .amdhsa_kernarg_size 96
  .amdhsa_user_sgpr_count 2
  .amdhsa_user_sgpr_kernarg_segment_ptr 1
  .amdhsa_system_sgpr_workgroup_id_x 1
  .amdhsa_float_denorm_mode_32 3
.end_amdhsa_kernel
"""
if __name__ == "__main__":
    open(sys.argv[1], "w").write("; @launch grid=(256,1,1) block=(512,1,1) lds=163840\n" + a.finish() + desc)
    print("stamps:", nst[0], "STAMPS", STAMPS)
```

```python
import sys, os
sys.path.insert(0, "work")
from asmlib import Asm
EXP = os.environ.get("EXP", "").split(",")
INSTR = "instr" in sys.argv
STG = os.environ.get("STG", "main")
def env(n, d): return int(os.environ.get(n, str(d)))
NAME = "parallel_sum__linear_kernel_hedgehog__dense_activation_squared_relu__prompt_kernel"
SZ = dict(x=2048*512*2, wqkv=512*1536*2, wphi=32*16*16*2, wo=512*512*2, w1=512*1792*2, b1=1792*2, w2=1792*512*2, b2=512*2, out=2048*512*2, dbg=256)
KSLOT = dict(x=0, wqkv=1, wphi=2, wo=3, w1=5, b1=6, w2=7, b2=8, out=9, dbg=10, ws=11)
AF_TG = 144*1024
KVACC = 64*AF_TG; KV_J = 9216
KVF = KVACC + 8*KV_J
HF = KVF + 8*512
OF = HF + 32*256
EFS = OF + 32*256
EFC = EFS + 16*128
CSP = EFC + 16*128
STAT = CSP + 16*14336
STAMPS = STAT + 2048*16
WS_END = STAMPS + 256*8*64
SZ["ws"] = WS_END
LOG2E = "0x3fb8aa3b"
SLOT = 49152; PG = 16384; RB = PG
SPIN = 400000
FLA = env("FLA", 18); FLC = env("FLC", 23); KPW = env("KPW", 4); FLB = env("FLB", 14); OCK = env("OCK", 6 if env("NW", 11) == 11 else 14-env("NW", 11)); TRP = env("TRP", 1); NE = env("NE", 4); NB = env("NB", 8)
SC = "sc0 sc1"
ASC = os.environ.get("ASC", "sc0 sc1")
SLP = env("SLP", 8)
X, WQ, W1, WS, DBG, WPHI, B1, I1, W2, WO, B2, OUT = 12, 16, 20, 24, 28, 32, 36, 40, 44, 48, 52, 56
def R(s): return f"s[{s}:{s+3}]"
def V(b, n=4): return f"v[{b}:{b+n-1}]"
MF = "v_mfma_f32_32x32x16_bf16"
a = Asm()
nst = [0]
def st(i=None, grp="main"):
    if not INSTR or grp != STG: return
    if i is not None: nst[0] = i
    a(f"s_memrealtime s[{84+2*nst[0]}:{85+2*nst[0]}]"); nst[0] += 1
def L(n): return f"L_{n}"
def fin(x, n, s): x(f"s_mov_b32 s{s+2}, {SZ[n]}\ns_mov_b32 s{s+3}, 0x20000")

a.raw('.amdgcn_target "amdgcn-amd-amdhsa--gfx950"\n.text')
a.raw(f".globl {NAME}\n.p2align 8\n.type {NAME},@function\n{NAME}:")
a(f"s_cmp_ge_u32 s2, 256\ns_cbranch_scc1 {L('end')}")
st(grp=STG)
names = (("x",X),("wqkv",WQ),("w1",W1),("ws",WS),("dbg",DBG),("wphi",WPHI),("b1",B1),("w2",W2),("wo",WO),("b2",B2),("out",OUT))
for n, s in names: a(f"s_load_dwordx2 s[{s}:{s+1}], s[0:1], {KSLOT[n]*8}")
a(f"""
v_and_b32 v1, 63, v0
v_lshrrev_b32 v2, 6, v0
v_readfirstlane_b32 s3, v2
s_bfe_u32 s4, s2, 0x30003
s_bfe_u32 s9, s2, 0x10002
s_lshl_b32 s9, s9, 3
s_add_u32 s4, s4, s9                ; m
s_lshr_b32 s5, s2, 7                ; type
s_and_b32 s6, s2, 3
s_lshl_b32 s6, s6, 1
s_bfe_u32 s10, s2, 0x10006
s_add_u32 s6, s6, s10               ; j
v_lshrrev_b32 v9, 3, v1
v_and_b32 v10, 7, v1
v_lshrrev_b32 v11, 4, v1
v_xor_b32 v12, v10, v11
v_lshlrev_b32 v13, 10, v9
v_lshl_add_u32 v2, v12, 4, v13
v_xor_b32 v3, 0x2040, v2
v_and_b32 v11, 1, v11
v_lshlrev_b32 v11, 6, v11
v_lshlrev_b32 v12, 4, v10
v_xor_b32 v12, v12, v11
v_mul_u32_u24 v13, 3072, v9
v_add_u32 v4, v13, v12
v_mul_u32_u24 v13, 3584, v9
v_add_u32 v6, v13, v12
v_xor_b32 v14, 32, v4
s_and_b32 s9, s2, 3
s_mul_i32 s9, s9, 5
s_add_u32 s9, s9, 8
s_mul_i32 s11, s10, 3
s_add_u32 s66, s9, s11              ; I1 block (B)
s_add_u32 s67, s66, 1
s_add_u32 s68, s9, 2                ; I3 block
s_lshl_b32 s61, s6, 7
s_add_u32 s62, s61, 2048
s_lshl_b32 s77, s66, 7
s_add_u32 s78, s61, 1024
s_movk_i32 s63, 3584
s_cmp_eq_u32 s5, 0
s_cselect_b64 vcc, -1, 0
s_cselect_b32 s61, s78, s61         ; I0 col
s_cselect_b32 s62, s62, s77         ; I1 col
s_cselect_b32 s63, 3072, s63
s_cselect_b32 s67, s6, s67          ; I2 block
v_cndmask_b32 v5, v6, v14, vcc
s_lshl_b32 s64, s67, 7              ; I2 col
s_lshl_b32 s65, s68, 7              ; I3 col
s_lshl_b32 s60, s4, 17
s_lshl_b32 s69, s3, 11
s_lshl_b32 s70, s3, 10
s_lshl_b32 s11, s3, 14
s_add_u32 s76, s60, s11
s_mul_i32 s11, s3, {8*3072}
s_add_u32 s11, s61, s11
v_add_u32 v4, s11, v4
s_lshl_b32 s11, s3, 3
s_mul_i32 s11, s11, s63
s_add_u32 s11, s62, s11
v_add_u32 v5, s11, v5
s_lshl_b32 s75, s63, 6
s_mul_i32 s11, s3, {8*3584}
s_add_u32 s73, s64, s11
s_add_u32 s74, s65, s11
v_add_u32 v7, s74, v6
v_add_u32 v6, s73, v6
s_mov_b32 s82, 0
s_mov_b32 s83, 0
s_mov_b32 s73, 0
s_lshl_b32 s79, s5, 3
s_add_u32 s79, s79, s6              ; slot
s_and_b32 s78, s3, 1                ; lo
s_lshr_b32 s77, s3, 1
v_lshlrev_b32 v26, 4, v1
s_waitcnt lgkmcnt(0)
""")
st(8, grp="P"); nst[0] = 1
fin(a, "x", X); fin(a, "wqkv", WQ); fin(a, "w1", W1)
a(f"""
s_cmp_eq_u32 s5, 0
s_cselect_b32 s{I1}, s{WQ}, s{W1}
s_cselect_b32 s{I1+1}, s{WQ+1}, s{W1+1}
s_cselect_b32 s{I1+2}, s{WQ+2}, s{W1+2}
s_mov_b32 s{I1+3}, 0x20000
""")
a(f"""
s_lshl_b32 s9, s79, 13
s_add_u32 s9, s9, s70
s_add_u32 s9, s9, s60
""")
a(f"buffer_load_dwordx4 v[112:115], v26, {R(X)}, s9 offen", "E")
a(f"""
v_lshrrev_b32 v9, 2, v1
v_and_b32 v10, 3, v1
v_lshlrev_b32 v10, 4, v10
s_cmp_eq_u32 s77, 0
s_cselect_b32 s9, s61, s62
s_cselect_b32 s11, 3072, s63
s_cmp_eq_u32 s77, 2
s_cselect_b32 s9, s64, s9
s_cmp_eq_u32 s77, 3
s_cselect_b32 s9, s65, s9
s_cselect_b32 s71, s10, s78
s_cmp_ge_u32 s77, 2
s_cselect_b32 s11, 3584, s11
s_lshl_b32 s71, s71, 6
s_add_u32 s9, s9, s71
s_lshl_b32 s71, s4, 5
s_mul_i32 s71, s71, s11
s_add_u32 s9, s9, s71               ; + 32m rows
v_mul_lo_u32 v9, v9, s11
v_add_u32 v9, v9, v10
s_lshl_b32 s11, s11, 4
s_add_u32 s71, s9, s11
s_mov_b32 m0, s69
s_cmp_eq_u32 s11, {3072*16}
s_cbranch_scc1 {L('e1')}
""")
with a.skippable():
    a(f"buffer_load_dwordx4 v9, {R(W1)}, s9 offen lds\ns_add_u32 m0, s69, 1024\ns_nop 0\nbuffer_load_dwordx4 v9, {R(W1)}, s71 offen lds\ns_branch {L('e2')}")
a.label(L('e1'))
with a.skippable():
    a(f"buffer_load_dwordx4 v9, {R(WQ)}, s9 offen lds\ns_add_u32 m0, s69, 1024\ns_nop 0\nbuffer_load_dwordx4 v9, {R(WQ)}, s71 offen lds")
a.label(L('e2'))
def dma(c, piece):
    t = f"C{c}"; sl = RB + (c % 3)*SLOT
    if piece < 2:
        a(f"s_add_u32 m0, s69, {sl+1024*piece-c*128}")
        a(f"buffer_load_dwordx4 v{2+piece}, {R(X)}, s76 offen offset:{c*128} lds", t)
    elif piece == 2:
        a(f"s_add_u32 m0, s70, {sl+16384}")
        a(f"buffer_load_dwordx4 v4, {R(WQ)}, s82 offen lds", t)
        a(f"s_add_u32 s82, s82, {64*3072}")
    elif piece == 3:
        a(f"s_add_u32 m0, s70, {sl+24576}")
        a(f"buffer_load_dwordx4 v5, {R(I1)}, s83 offen lds", t)
        a("s_add_u32 s83, s83, s75")
    elif piece == 4:
        a(f"s_add_u32 m0, s70, {sl+32768}")
        a(f"buffer_load_dwordx4 v6, {R(W1)}, s73 offen lds", t)
    else:
        a(f"s_add_u32 m0, s70, {sl+40960}")
        a(f"buffer_load_dwordx4 v7, {R(W1)}, s73 offen lds", t)
        a(f"s_add_u32 s73, s73, {64*3584}")
dma(0, 0); a.items.append(("retag", ("C0", "E")))
a(f"s_cmp_eq_u32 s5, 0\ns_cbranch_scc1 {L('c0b')}")
with a.skippable():
    dma(0, 4); dma(0, 5)
a.label(L('c0b'))
dma(0, 1); dma(0, 2); dma(0, 3)
st(grp="P")
if env("ICP", 0):
    a(f"s_cmp_lt_u32 s3, 4\ns_cbranch_scc0 {L('noicp')}")
    with a.skippable():
        a(f"""
        s_getpc_b64 s[80:81]
        v_lshlrev_b32 v127, 7, v1
        s_lshl_b32 s9, s3, 13
        v_add_u32 v127, s9, v127
        v_min_u32 v127, {env("ICP", 0)}, v127
        global_load_dword v127, v127, s[80:81]
        """)
    a.label(L('noicp'))
fin(a, "ws", WS); fin(a, "dbg", DBG)
a("v_mov_b32 v19, 0")
a(f"s_or_b32 s9, s2, s3\ns_cmp_eq_u32 s9, 0\ns_cbranch_scc0 {L('nononce')}")
with a.skippable():
    a(f"""
    s_memrealtime s[80:81]
    s_waitcnt lgkmcnt(0)
    s_or_b32 s80, s80, 1
    v_mov_b32 v10, s80
    s_mov_b64 exec, 1
    buffer_store_dword v10, v19, {R(DBG)}, 0 offen {SC}
    s_mov_b64 exec, -1
    """)
a.label(L('nononce'))
a(f"""
s_bfe_u32 s7, s3, 0x10001           ; mh
s_lshr_b32 s8, s3, 2                ; hi
s_mul_i32 s72, s6, {KV_J}
s_add_u32 s72, s72, {KVACC}
s_cmp_eq_u32 s5, 1
s_cselect_b32 s9, s4, 1
s_cmp_eq_u32 s9, 0
s_cbranch_scc0 {L('nozero')}
""")
with a.skippable():
    a(f"""
    v_lshlrev_b32 v9, 4, v0
    v_mov_b32 v10, 0
    v_mov_b32 v11, 0
    v_mov_b32 v12, 0
    v_mov_b32 v13, 0
    buffer_store_dwordx4 v[10:13], v9, {R(WS)}, s72 offen {SC}
    s_add_u32 s9, s72, 8192
    s_cmp_eq_u32 s3, 0
    s_cbranch_scc0 {L('nozero')}
    buffer_store_dwordx4 v[10:13], v9, {R(WS)}, s9 offen {SC}
    """)
a.label(L('nozero'))
a(f"""
s_and_b32 s9, s78, s8
s_cmp_eq_u32 s5, 0
s_cselect_b32 s61, s8, s9           ; sel
v_and_b32 v29, 31, v1
v_lshrrev_b32 v30, 5, v1
v_bfe_u32 v31, v1, 1, 3
v_xor_b32 v31, v31, v30
v_lshlrev_b32 v20, 7, v29
v_lshl_add_u32 v8, v31, 4, v20
s_lshl_b32 s9, s7, 1
s_add_u32 s62, s9, s61
s_lshl_b32 s9, s62, 12
s_add_u32 s9, s9, {RB}
v_add_u32 v8, s9, v8
v_xor_b32 v9, 32, v8
v_xor_b32 v10, 64, v8
v_xor_b32 v11, 96, v8
v_xor_b32 v12, 0x1000, v8
v_xor_b32 v13, 0x1000, v9
v_xor_b32 v14, 0x1000, v10
v_xor_b32 v15, 0x1000, v11
v_bfe_u32 v31, v1, 2, 2
v_lshl_add_u32 v20, v30, 3, v31
v_and_b32 v22, 3, v1
v_lshlrev_b32 v22, 3, v22
v_lshl_add_u32 v18, v20, 6, v22
v_lshl_add_u32 v20, v20, 7, v22
v_lshl_add_u32 v21, v30, 2, v31
v_lshl_add_u32 v21, v21, 5, v22
v_bfe_u32 v22, v1, 4, 1
v_lshl_add_u32 v18, v22, 5, v18
v_add_u32 v18, s69, v18
v_and_b32 v31, 2, v31
v_xor_b32 v31, v31, v22
v_lshl_add_u32 v20, v31, 5, v20     ; nat0
s_lshl_b32 s9, s8, 1
s_add_u32 s63, s9, s78              ; nq
s_lshl_b32 s9, s63, 5
v_xor_b32 v23, s9, v20
v_lshl_add_u32 v23, v22, 13, v23
s_lshl_b32 s9, s78, 6
v_xor_b32 v24, s9, v20
s_cmp_eq_u32 s8, 0
s_cselect_b32 s10, 8192, 0
v_add_u32 v25, s10, v24
v_cndmask_b32 v16, v25, v23, vcc
v_add_u32 v16, {RB+16384}, v16
s_and_b32 s9, s6, 1
s_lshl_b32 s9, s9, 6
v_xor_b32 v25, s9, v20
v_add_u32 v25, 8192, v25
s_and_b32 s9, s5, s8
s_cmp_eq_u32 s9, 1
s_cselect_b64 s[80:81], -1, 0
v_cndmask_b32 v17, v24, v25, s[80:81]
v_add_u32 v17, {RB+32768}, v17
v_mov_b32 v20, v24
v_mul_u32_u24 v23, 192, v22
v_lshlrev_b32 v24, 2, v29
s_lshl_b32 s9, s63, 6
v_add3_u32 v23, v23, v24, s9
s_lshl_b32 s9, s78, 7
s_cmp_eq_u32 s8, 0
s_cselect_b32 s10, 256, 0
s_add_u32 s10, s10, s9
v_add_u32 v25, s10, v24
v_cndmask_b32 v23, v25, v23, vcc
s_add_u32 s9, s9, 512
s_and_b32 s10, s5, s8
s_cmp_eq_u32 s10, 1
s_cselect_b32 s9, 768, s9
v_add_u32 v24, s9, v24
s_lshl_b32 s66, s66, 1
s_add_u32 s66, s66, s78
s_lshl_b32 s67, s67, 1
s_add_u32 s67, s67, s78
s_lshl_b32 s68, s68, 1
s_and_b32 s9, s6, 1
s_add_u32 s68, s68, s9
s_cmp_eq_u32 s10, 1
s_cselect_b32 s67, s68, s67
s_lshl_b32 s9, s78, 1
s_cmp_eq_u32 s5, 0
s_cselect_b32 s9, s63, s9
s_lshl_b32 s10, s6, 2
s_add_u32 s65, s10, s9
s_lshl_b32 s9, s9, 9
s_add_u32 s9, s9, 14336
v_add_u32 v21, s9, v21
v_mov_b32 v22, 0x3f803f80
v_and_b32 v27, 15, v1
v_lshlrev_b32 v27, 2, v27
s_lshl_b32 s9, s4, 7
s_add_u32 s9, s9, {EFS}
s_lshl_b32 s10, s79, 7
s_add_u32 s10, s10, {EFC}
v_add_u32 v25, s9, v27
v_add_u32 v28, s10, v27
v_lshrrev_b32 v27, 4, v1
v_cmp_eq_u32 vcc, 1, v27
v_cndmask_b32 v25, v25, v28, vcc
s_lshl_b32 s9, s6, 2
s_add_u32 s9, s9, {EFS+32}
v_writelane_b32 v25, s9, 32
""")
fin(a, "b1", B1); fin(a, "wphi", WPHI); fin(a, "w2", W2); fin(a, "wo", WO); fin(a, "b2", B2); fin(a, "out", OUT)
st(grp="P")
a.wv("E")
st(grp="P")
for k, off in enumerate((0, 256, 1024, 1280)): a(f"ds_read_b64_tr_b16 {V(120+2*k,2)}, v18 offset:{off}", "EW")
a("v_mov_b32 v116, 0\nv_mov_b32 v117, 0\nv_mov_b32 v118, 0")
for q in range(4):
    a(f"v_dot2_f32_bf16 v116, v{112+q}, v22, v116\nv_dot2_f32_bf16 v117, v{112+q}, v{112+q}, v117")
a.wl("EW")
for q in range(8): a(f"v_dot2_f32_bf16 v118, v{120+q}, v22, v118")
for dpp in ("quad_perm:[1,0,3,2]", "quad_perm:[2,3,0,1]", "row_half_mirror", "row_mirror"):
    a(f"v_add_f32_dpp v116, v116, v116 {dpp} row_mask:0xf bank_mask:0xf\nv_add_f32_dpp v117, v117, v117 {dpp} row_mask:0xf bank_mask:0xf")
a(f"""
v_permlane16_swap_b32 v116, v117
v_add_f32 v116, v116, v117
v_mov_b32 v119, v118
v_mov_b32 v117, v116
v_permlane32_swap_b32 v118, v119
v_permlane32_swap_b32 v116, v117
v_add_f32 v118, v118, v119
v_add_f32 v116, v116, v117
v_mov_b32 v117, v116
v_permlane16_swap_b32 v116, v117
v_mul_f32 v116, 0x3b000000, v116
v_mul_f32 v117, 0x3b000000, v117
v_fma_f32 v117, -v116, v116, v117
v_max_f32 v117, 0, v117
v_add_f32 v117, 0x3727c5ac, v117
v_rsq_f32 v114, v117
v_sub_f32 v116, 0, v116
v_mul_f32 v117, v117, v114
v_cvt_pk_bf16_f32 v120, v116, v117
v_and_b32 v121, 0xffff0000, v120
v_lshlrev_b32 v122, 16, v120
v_sub_f32 v123, v116, v122
v_sub_f32 v124, v117, v121
v_cvt_pk_bf16_f32 v112, v122, v123
v_cvt_pk_bf16_f32 v113, v121, v124
s_lshl_b32 s10, s4, 7
s_lshl_b32 s11, s79, 3
s_add_u32 s10, s10, s11
s_add_u32 s10, s10, s3
s_lshl_b32 s10, s10, 4
s_add_u32 s10, s10, {STAT}
s_mul_i32 s11, s79, 14336
s_mul_i32 s71, s4, 896
s_add_u32 s11, s11, s71
s_lshl_b32 s71, s3, 7
s_add_u32 s11, s11, s71
s_add_u32 s11, s11, {CSP}
v_lshlrev_b32 v120, 2, v1
s_mov_b64 exec, 1
buffer_store_dwordx4 v[112:115], v19, {R(WS)}, s10 offen {SC}
s_cmp_lt_u32 s3, 7
s_cselect_b32 exec_lo, -1, 0
s_cbranch_scc0 {L('nocs')}
""")
with a.skippable():
    a(f"buffer_store_dword v118, v120, {R(WS)}, s11 offen {SC}")
a.label(L('nocs'))
a("s_mov_b64 exec, -1")
a(f"buffer_load_dword v31, v19, {R(DBG)}, 0 offen {SC}", "N0")
a("v_lshlrev_b32 v120, 1, v29\ns_lshl_b32 s9, s66, 6\ns_lshl_b32 s10, s67, 6")
a(f"buffer_load_ushort v27, v120, {R(B1)}, s9 offen", "S")
a(f"buffer_load_ushort v28, v120, {R(B1)}, s10 offen", "S")
st(); st(grp="P")

def side_flags(tg, tmp):
    a(f"s_cmp_eq_u32 s3, 0\ns_cbranch_scc0 {L('nofl'+tg)}")
    with a.skippable():
        a("s_mov_b32 s71, 0")
        a.label(L('nspin'+tg))
        a(f"""
        v_readfirstlane_b32 s9, v31
        s_add_u32 s71, s71, 1
        s_cmp_gt_u32 s71, {SPIN}
        s_cbranch_scc1 {L('nok'+tg)}
        s_cmp_lg_u32 s9, 0
        s_cbranch_scc1 {L('nok'+tg)}
        buffer_load_dword v31, v19, {R(DBG)}, 0 offen {SC}
        s_waitcnt vmcnt(0)
        s_branch {L('nspin'+tg)}
        """)
        a.label(L('nok'+tg))
        a(f"""
        s_lshl_b32 s10, s4, 7
        s_lshl_b32 s11, s79, 2
        s_add_u32 s10, s10, s11
        s_lshl_b32 s11, s79, 7
        s_lshl_b32 s71, s4, 2
        s_add_u32 s11, s11, s71
        s_add_u32 s11, s11, {EFC-EFS}
        v_mov_b32 v{tmp}, s10
        v_writelane_b32 v{tmp}, s11, 1
        s_mov_b32 s10, {EFS}
        s_mov_b64 exec, 3
        buffer_store_dword v31, v{tmp}, {R(WS)}, s10 offen {SC}
        s_mov_b64 exec, -1
        """)
    a.label(L('nofl'+tg))
def side_wphi_dma(tg):
    a(f"s_cmp_lt_u32 s3, 2\ns_cbranch_scc0 {L('nowp'+tg)}")
    with a.skippable():
        a(f"s_add_u32 m0, s70, 14336\ns_lshl_b32 s9, s6, 11\ns_add_u32 s9, s9, s70\nbuffer_load_dwordx4 v26, {R(WPHI)}, s9 offen lds")
    a.label(L('nowp'+tg))
def side_poll_issue(tg):
    a(f"s_cmp_eq_u32 s3, 0\ns_cbranch_scc0 {L('npi'+tg)}")
    with a.skippable():
        a(f"buffer_load_dword v18, v25, {R(WS)}, 0 offen {SC}")
    a.label(L('npi'+tg))
def side_poll_wait(tg, restore_vcc):
    a(f"s_cmp_eq_u32 s3, 0\ns_cbranch_scc0 {L('fok2'+tg)}")
    with a.skippable():
        a("s_mov_b32 s71, 0")
        a.label(L('fspin'+tg))
        a(f"""
        v_cmp_ne_u32 vcc, v18, v31
        s_cmp_eq_u64 vcc, 0
        s_cbranch_scc1 {L('fok'+tg)}
        s_add_u32 s71, s71, 1
        s_cmp_gt_u32 s71, {SPIN}
        s_cbranch_scc1 {L('fok'+tg)}
        s_sleep {SLP}
        buffer_load_dword v18, v25, {R(WS)}, 0 offen {SC}
        s_waitcnt vmcnt(0)
        s_branch {L('fspin'+tg)}
        """)
        a.label(L('fok'+tg))
        if restore_vcc: a("s_mov_b64 vcc, s[80:81]")
        a("ds_write_b32 v19, v31 offset:16380\ns_waitcnt lgkmcnt(0)")
    a.label(L('fok2'+tg))
def side_poll_check(tg, raw, tmp, ptag):
    a(f"ds_read_b32 v31, v19 offset:16380", ptag)
    a(f"""
    v_lshlrev_b32 v{tmp}, 4, v29
    s_lshl_b32 s9, s4, 11
    s_lshl_b32 s10, s62, 9
    s_add_u32 s9, s9, s10
    s_add_u32 s9, s9, {STAT}
    s_xor_b32 s10, s9, 512
    """)
    a(f"s_cmp_lt_u32 s3, 7\ns_cbranch_scc0 {L('nocsd'+tg)}")
    with a.skippable():
        a(f"s_mul_i32 s11, s79, 14336\ns_add_u32 s11, s11, s69\ns_add_u32 s11, s11, {CSP}\ns_mov_b32 m0, s69")
        a(f"buffer_load_dwordx4 v26, {R(WS)}, s11 offen {SC} lds")
        a(f"buffer_load_dwordx4 v26, {R(WS)}, s11 offen offset:1024 {SC} lds")
    a.label(L('nocsd'+tg))
    a(f"buffer_load_dwordx4 {V(raw)}, v{tmp}, {R(WS)}, s9 offen {SC}", "ST")
    a(f"buffer_load_dwordx4 {V(raw+4)}, v{tmp}, {R(WS)}, s10 offen {SC}", "ST")
def side_csred(tg, t16, tmp):
    a(f"s_cmp_lt_u32 s3, 4\ns_cbranch_scc0 {L('nored'+tg)}")
    with a.skippable():
        a(f"v_min_u32 v{tmp}, 223, v0\nv_lshlrev_b32 v{tmp}, 2, v{tmp}")
        for g in range(16): a(f"ds_read_b32 v{t16+g}, v{tmp} offset:{g*896}")
        a("s_waitcnt lgkmcnt(0)")
        for w in (8, 4, 2, 1):
            for g in range(w): a(f"v_add_f32 v{t16+g}, v{t16+g}, v{t16+g+w}")
        a(f"""
        v_cvt_pk_bf16_f32 v{t16+1}, v{t16}, v{t16}
        v_and_b32 v{t16+1}, 0xffff0000, v{t16+1}
        v_sub_f32 v{t16+2}, v{t16}, v{t16+1}
        v_cvt_pk_bf16_f32 v{t16}, v{t16+1}, v{t16+2}
        ds_write_b32 v{tmp}, v{t16}
        """)
    a.label(L('nored'+tg))
def side_bext(raw, BX, RR, tmp):
    for t in range(2):
        s0 = raw+4*t; B = BX+4*t; rr = RR+3*t
        a(f"""
        v_and_b32 v{tmp}, 0xffff, v{s0}
        v_lshl_or_b32 v{B}, v{tmp}, 16, v{tmp}
        v_lshrrev_b32 v{tmp}, 16, v{s0}
        v_lshl_or_b32 v{B+1}, v{tmp}, 16, v{tmp}
        v_mov_b32 v{B+2}, v{s0+1}
        v_mov_b32 v{B+3}, 0
        v_mov_b32 v{rr}, v{s0+2}
        v_mul_f32 v{rr+1}, {LOG2E}, v{s0+2}
        v_mul_f32 v{rr+2}, 0.5, v{s0+2}
        """)
MAP = env("MAP", 0)
if MAP == 0:
    P2MAP = f"""
    s_and_b32 s82, s2, 7
    s_lshl_b32 s82, s82, 2
    s_bfe_u32 s9, s2, 0x20003
    s_add_u32 s82, s82, s9
    s_lshr_b32 s62, s2, 5
    s_mul_i32 s76, s62, 7
    s_lshr_b32 s76, s76, 2
    s_mul_i32 s9, s9, 3
    """
else:
    P2MAP = f"""
    s_bfe_u32 s82, s2, 0x20001
    s_lshl_b32 s82, s82, 3
    s_lshr_b32 s76, s2, 5
    s_add_u32 s82, s82, s76
    s_and_b32 s62, s2, 1
    s_lshl_b32 s62, s62, 2
    s_bfe_u32 s9, s2, 0x20003
    s_add_u32 s62, s62, s9
    s_mul_i32 s76, s76, 7
    s_lshr_b32 s76, s76, 2
    s_mul_i32 s9, s9, 3
    """
P2MAP += f"""
    s_add_u32 s76, s76, s9
    s_lshl_b32 s62, s62, 7
    s_mul_i32 s60, s3, {14*16*1024}
    s_add_u32 s60, s60, s62
    s_add_u32 s83, s60, {14*16384}
    s_lshl_b32 s68, s3, 16
    s_add_u32 s68, s68, s62
"""
TP0 = env("TP0", -1); TPS = env("TPS", 2)
def side_touch(tg, p, r1, r2):
    if TP0 < 0 or p < TP0 or (p-TP0) % TPS or (p-TP0)//TPS >= 8: return
    w = (p-TP0)//TPS
    a(f"s_cmp_eq_u32 s3, {w}\ns_cbranch_scc0 {L(f'pf{tg}{w}')}")
    with a.skippable():
        a(f"""
        s_lshr_b32 s9, s2, 3
        s_lshl_b32 s9, s9, 3
        s_add_u32 s9, s9, s3
        s_and_b32 s71, s2, 1
        s_lshl_b32 s71, s71, 9
        s_mul_i32 s10, s9, {7*1024}
        s_add_u32 s10, s10, s71
        s_lshl_b32 s11, s9, 11
        s_add_u32 s11, s11, s71
        v_lshrrev_b32 v{r1}, 2, v1
        v_and_b32 v{r2}, 3, v1
        v_lshlrev_b32 v{r2}, 7, v{r2}
        v_lshl_add_u32 v{r1}, v{r1}, 10, v{r2}
        s_mov_b64 exec, 0xfffffff
        buffer_load_dword v{r2}, v{r1}, {R(W2)}, s10 offen
        s_mov_b64 exec, 0xff
        buffer_load_dword v{r1}, v{r1}, {R(WO)}, s11 offen
        s_mov_b64 exec, -1
        """)
    a.label(L(f'pf{tg}{w}'))
def side_p2(t3):
    a(f"""
    v_readfirstlane_b32 s75, v31
    v_lshrrev_b32 v{t3}, 3, v1
    v_and_b32 v{t3+1}, 7, v1
    v_lshrrev_b32 v{t3+2}, 2, v1
    v_and_b32 v{t3+2}, 4, v{t3+2}
    v_xor_b32 v{t3+1}, v{t3+1}, v{t3+2}
    v_lshlrev_b32 v{t3}, 10, v{t3}
    v_lshl_add_u32 v18, v{t3+1}, 4, v{t3}
    s_lshl_b32 s74, s4, 2
    s_add_u32 s74, s74, s62
    s_xor_b32 s64, s74, 1
    s_mul_i32 s74, s74, {AF_TG}
    s_mul_i32 s64, s64, {AF_TG}
    {P2MAP}
    s_cmp_ge_u32 s76, 14
    s_cselect_b32 s9, 14, 0
    s_sub_u32 s76, s76, s9
    s_lshl_b32 s61, s76, 14
    s_add_u32 s61, s61, s60
    """)
def p2_adv(x):
    x("s_add_u32 s61, s61, 16384\ns_cmp_eq_u32 s61, s83\ns_cselect_b32 s61, s60, s61")
W2PG = [7, 8, 9, 1, 2, 3, 4, 5, 6]
def p2_dma(x, u, tag, partner=False):
    pg = W2PG[u % 9]
    for half in range(2):
        x(f"s_add_u32 m0, s69, {pg*PG + half*1024}")
        if u < 14:
            if half == 0: x(f"s_add_u32 s71, s61, 8192\nbuffer_load_dwordx4 v18, {R(W2)}, s61 offen lds", tag)
            else: x(f"buffer_load_dwordx4 v18, {R(W2)}, s71 offen lds", tag)
        else:
            x(f"s_add_u32 s71, s68, {((u-14)*16+half*8)*1024}")
            x(f"buffer_load_dwordx4 v18, {R(WO)}, s71 offen lds", tag)
    if partner:
        for half in range(2):
            x(f"s_add_u32 m0, s69, {pg*PG + half*1024 + 8192}\ns_add_u32 s71, s61, {4*14*16384 + half*8192}")
            x(f"buffer_load_dwordx4 v18, {R(W2)}, s71 offen lds", tag)
    if u < 14: p2_adv(x)
def p2_dma_partner(x, u, tag):
    pg = W2PG[u % 9]
    for half in range(2):
        x(f"s_add_u32 m0, s69, {pg*PG + half*1024 + 8192}")
        if u < 14:
            x(f"s_add_u32 s71, s81, {4*14*16384 + half*8192}")
            x(f"buffer_load_dwordx4 v18, {R(W2)}, s71 offen lds", tag)
        else:
            x(f"s_add_u32 s71, s68, {4*65536 + ((u-14)*16+half*8)*1024}")
            x(f"buffer_load_dwordx4 v18, {R(WO)}, s71 offen lds", tag)
    if u < 14: x("s_add_u32 s81, s81, 16384\ns_cmp_eq_u32 s81, s83\ns_cselect_b32 s81, s60, s81")
def p2_dma2(x, u, tag):
    pg = W2PG[u % 9]
    for half in range(2):
        x(f"s_add_u32 m0, s69, {pg*PG + half*1024}")
        if u < 14:
            x(f"s_add_u32 s71, s81, {half*8192}")
            x(f"buffer_load_dwordx4 v18, {R(W2)}, s71 offen lds", tag)
        else:
            x(f"s_add_u32 s71, s68, {((u-14)*16+half*8)*1024}")
            x(f"buffer_load_dwordx4 v18, {R(WO)}, s71 offen lds", tag)
    if u < 14: x("s_add_u32 s81, s81, 16384\ns_cmp_eq_u32 s81, s83\ns_cselect_b32 s81, s60, s81")
def lds_wait(lab, off):
    a("s_mov_b32 s71, 0")
    a.label(L(lab))
    a(f"""
    ds_read_b32 v10, v11 offset:{off}
    s_waitcnt lgkmcnt(0)
    v_readfirstlane_b32 s9, v10
    s_add_u32 s71, s71, 1
    s_cmp_gt_u32 s71, {SPIN*8}
    s_cbranch_scc1 {L(lab+'x')}
    s_cmp_eq_u32 s9, s75
    s_cbranch_scc1 {L(lab+'x')}
    s_sleep 1
    s_branch {L(lab)}
    """)
    a.label(L(lab+'x'))
def softmax(x, P, Pp, Pm, c):
    E = 112
    x(f"""
    v_max3_f32 v2, v{P}, v{P+1}, v{P+2}
    v_max3_f32 v3, -v{P}, -v{P+1}, -v{P+2}
    v_max3_f32 v2, v2, v{P+3}, v{P+4}
    v_max3_f32 v3, v3, -v{P+3}, -v{P+4}
    v_max3_f32 v2, v2, v{P+5}, v{P+6}
    v_max3_f32 v3, v3, -v{P+5}, -v{P+6}
    v_max_f32 v2, v2, v{P+7}
    v_max_f32_e64 v3, v3, -v{P+7}
    v_permlane32_swap_b32 v2, v3
    v_max_f32 v2, v2, v3
    v_mul_f32_e64 v2, -v2, v{c}
    v_mov_b32 v3, v2
    v_permlane32_swap_b32 v2, v3
    """)
    for r in range(8): x(f"v_fma_f32 v{E+r}, -v{P+r}, v{c}, v3\nv_fma_f32 v{P+r}, v{P+r}, v{c}, v2")
    for r in range(8): x(f"v_exp_f32 v{E+r}, v{E+r}\nv_exp_f32 v{P+r}, v{P+r}")
    x(f"v_add_f32 v2, v{P}, v{P+1}\nv_add_f32 v3, v{E}, v{E+1}")
    for r in range(2, 8): x(f"v_add_f32 v2, v2, v{P+r}\nv_add_f32 v3, v3, v{E+r}")
    x("v_permlane32_swap_b32 v2, v3\nv_add_f32 v2, v2, v3\nv_rcp_f32 v2, v2\nv_mov_b32 v3, v2\nv_permlane32_swap_b32 v2, v3")
    for r in range(8): x(f"v_mul_f32 v{P+r}, v{P+r}, v2\nv_mul_f32 v{E+r}, v{E+r}, v3")
    for q in range(4): x(f"v_cvt_pk_bf16_f32 v{Pp+q}, v{P+2*q}, v{P+2*q+1}\nv_cvt_pk_bf16_f32 v{Pm+q}, v{E+2*q}, v{E+2*q+1}")
def ffn_epi(x, acc, s_tile, f, rh, so=9):
    a(f"s_lshl_b32 s{so}, s{s_tile}, 11\ns_add_u32 s{so}, s{so}, s{(74,64)[f]}")
    for r in range(16): x(f"v_add_f32_e64 v{acc+r}, v{acc+r}, |v{acc+r}|")
    for r in range(16): x(f"v_mul_f32 v{acc+r}, v{acc+r}, v{rh}")
    for r in range(16): x(f"v_mul_f32 v{acc+r}, v{acc+r}, v{acc+r}")
    for q in range(8): x(f"v_cvt_pk_bf16_f32 v{acc+q}, v{acc+2*q}, v{acc+2*q+1}")
    x(f"buffer_store_dwordx4 {V(acc)}, v26, {R(WS)}, s{so} offen {SC}", "H")
    x(f"buffer_store_dwordx4 {V(acc+4)}, v26, {R(WS)}, s{so} offen offset:1024 {SC}", "H")
def flag_store(soff):
    a(f"""
    v_mov_b32 v31, s75
    s_mov_b64 exec, 1
    buffer_store_dword v31, v19, {R(WS)}, {soff} offen {SC}
    s_mov_b64 exec, -1
    """)
WREG = 128; P2ACC = 64; WTMP = 48; TRA = 2
def p2_traddr(t=2, q=8):
    a(f"""
    v_lshrrev_b32 v{q}, 5, v1
    v_bfe_u32 v{q+1}, v1, 2, 2
    v_lshl_add_u32 v{q}, v{q}, 2, v{q+1}
    v_lshlrev_b32 v{q}, 7, v{q}
    v_and_b32 v{q+2}, 3, v1
    v_lshl_add_u32 v{q}, v{q+2}, 3, v{q}
    v_bfe_u32 v{q+2}, v1, 4, 1
    v_and_b32 v{q+1}, 2, v{q+1}
    v_or_b32 v{q+2}, v{q+2}, v{q+1}
    v_lshl_add_u32 v{t}, v{q+2}, 5, v{q}
    v_add_u32 v{t}, s69, v{t}
    v_xor_b32 v{t+1}, 64, v{t}
    v_add_u32 v{t+2}, 0x10000, v{t}
    v_add_u32 v{t+3}, 0x10000, v{t+1}
    v_add_u32 v{t+4}, 0x20000, v{t}
    v_add_u32 v{t+5}, 0x20000, v{t+1}
    """)
def p2_tr(x, dst, u, tag):
    pg = W2PG[u % 9]
    for b in range(2):
        for e in range(2):
            x(f"ds_read_b64_tr_b16 {V(dst+4*b+2*e,2)}, v{TRA+2*(pg>>2)+b} offset:{(pg&3)*PG+e*1024}", tag)
def hflag():
    a(f"""
    s_lshl_b32 s9, s4, 1
    s_add_u32 s9, s9, s7
    s_lshl_b32 s77, s9, 8
    s_lshl_b32 s10, s79, 2
    s_add_u32 s10, s10, s63
    s_lshl_b32 s10, s10, 2
    s_add_u32 s9, s77, s10
    s_add_u32 s9, s9, {HF}
    """)
    flag_store("s9")
def kvpoll(w, lab):
    a(f"s_cmp_eq_u32 s3, {w}\ns_cbranch_scc0 {L(lab)}")
    with a.skippable():
        a("s_mov_b32 s71, 0")
        a.label(L('pk'))
        a(f"""
        buffer_load_dwordx2 v[10:11], v8, {R(WS)}, s66 offen {SC}
        s_waitcnt vmcnt(0)
        v_cmp_ne_u32 vcc, s75, v10
        v_cmp_ne_u32 s[80:81], s75, v11
        s_or_b64 vcc, vcc, s[80:81]
        s_cmp_eq_u64 vcc, 0
        s_cbranch_scc1 {L('pk2')}
        s_add_u32 s71, s71, 1
        s_cmp_gt_u32 s71, {SPIN}
        s_cbranch_scc1 {L('pk2')}
        s_sleep {SLP}
        s_branch {L('pk')}
        """)
        a.label(L('pk2'))
        for q in range(9):
            a(f"s_mov_b32 m0, {q*1024}\ns_add_u32 s10, s72, {q*1024}\nbuffer_load_dwordx4 v26, {R(WS)}, s10 offen {SC} lds")
        a("s_waitcnt vmcnt(0)\nv_mov_b32 v10, s75\nds_write_b32 v19, v10 offset:12288")
    a.label(L(lab))
ACC = [32, 48, 64, 80]
T = 96; KP = 2*PG; XF = 128
a(f"s_cmp_eq_u32 s5, 0\ns_cbranch_scc0 {L('typeB')}")
a.qsave("br")
for p in range(4): dma(1, p)
for i in range(8): a(f"v_add_u32 v{112+i}, {2*SLOT}, v{8+i}")
a(f"v_add_u32 v17, {2*SLOT}, v16")
a("v_lshlrev_b32 v121, 2, v30\nv_sub_u32 v121, v29, v121\nv_mov_b32 v122, 0x3f80\nv_mov_b32 v123, 0x3f800000")
SEL, WPH, BX, RRA, RAW = 64, 72, 76, 84, 120
for k in range(8):
    sg = k >> 2; q = k & 3
    f0 = (2*q & 3) + 8*((2*q) >> 2) + 16*sg
    a(f"v_cmp_eq_u32 vcc, {f0}, v121\nv_cndmask_b32 v{SEL+k}, 0, v122, vcc\nv_cmp_eq_u32 vcc, {f0+1}, v121\nv_cndmask_b32 v{SEL+k}, v{SEL+k}, v123, vcc")
st(grp="P"); a.wv("C0"); st(grp="P"); a("s_barrier"); st(grp="P")
st(grp="A")
def rdA(p):
    i = p & 3; b = 96 + 8*(p & 1); c = p >> 2; sl = c % 3
    ab = 8 if sl < 2 else 112; so = SLOT if sl == 1 else 0
    a(f"ds_read_b128 {V(XF+4*p)}, v{ab+i} offset:{so}", f"P{p}")
    for e in range(2): a(f"ds_read_b64_tr_b16 {V(b+4+2*e,2)}, v{16 if sl < 2 else 17} offset:{so+i*2048+e*512}", f"P{p}")
    a(f"ds_read_b128 {V(b)}, v{ab+4+i} offset:{so}", f"P{p}")
rdA(0)
for p in range(32):
    c = p >> 2; i = p & 3
    a.wl(f"P{p}")
    if i == 3 and c < 7:
        a.wv(f"C{c+1}")
        if p == 23: side_poll_wait("A", False)
        a("s_barrier"); st(grp="A")
    if p+1 < 32: rdA(p+1)
    b = 96 + 8*(p & 1)
    a(f"{MF} {V(ACC[0],16)}, {V(b+4)}, {V(XF+4*p)}, {V(ACC[0],16) if p else 0}")
    if p < 2: dma(2, 2*p); dma(2, 2*p+1)
    elif p >= 3:
        cc = ((p-3) >> 2) + 3
        if cc <= 7: dma(cc, (p-3) & 3)
    a(f"{MF} {V(ACC[1],16)}, {V(b+4)}, {V(b)}, {V(ACC[1],16) if p else 0}")
    side_touch("A", p, 94, 95)
    if p == 0: side_wphi_dma("A")
    if p == 3: side_flags("A", 90)
    if p == 8:
        for e in range(2): a(f"ds_read_b64_tr_b16 {V(WPH+2*e,2)}, v21 offset:{e*256}", f"P{p+1}")
    if p == 17: side_poll_issue("A")
    if p == 23: side_poll_check("A", RAW, 92, "P24")
    if p == 24: side_p2(90)
    if p in (24, 25, 26): p2_dma(a, p-24, "D1")
    if p == 28: p2_dma(a, 3, "D1")
st(); st(grp="B")
a.wv("ST"); a("s_barrier")
side_csred("A", 96, 92)
side_bext(RAW, BX, RRA, 92)
for c in range(8):
    a(f"s_add_u32 m0, s70, {3*PG + c*8192}")
    a(f"buffer_load_dwordx4 v6, {R(W1)}, s73 offen lds", "I2")
    a(f"s_add_u32 s73, s73, {64*3584}")
a("s_waitcnt lgkmcnt(0)\ns_barrier")
st(grp="B")
a(f"""
ds_read_b32 v120, v23
ds_read_b32 v4, v24
v_cmp_gt_u32 vcc, 32, v1
v_lshl_or_b32 v28, v28, 16, v28
v_cndmask_b32 v6, 0, v28, vcc
v_cmp_eq_u32 s[80:81], 16, v29
v_cndmask_b32 v27, 0, v22, s[80:81]
v_mov_b32 v122, 0
v_mov_b32 v123, 0
v_mov_b32 v7, 0
s_waitcnt lgkmcnt(0)
v_cndmask_b32 v120, 0, v120, vcc
v_cndmask_b32 v4, 0, v4, vcc
v_mov_b32 v121, v120
v_mov_b32 v5, v4
{MF} {V(ACC[0],16)}, v[120:123], {V(BX)}, {V(ACC[0],16)}
{MF} {V(ACC[1],16)}, v[120:123], {V(BX+4)}, {V(ACC[1],16)}
""")
KVA = 8
a("v_mov_b32 v90, v18\nv_mov_b32 v91, v20")
E = a.sub(); D = a.sub()
for f in range(2):
    acc = ACC[f]; rr = RRA+3*f
    for q in range(4): E(f"v_cvt_pk_bf16_f32 v{120+q}, v{acc+2*q}, v{acc+2*q+1}")
    E(f"{MF} {V(T,16)}, {V(WPH)}, v[120:123], 0")
    for r in range(8, 16): E(f"v_mul_f32 v{acc+r}, v{acc+r}, v{rr}")
    for q in range(4): E(f"v_cvt_pk_bf16_f32 v{120+q}, v{acc+8+2*q}, v{acc+9+2*q}")
    E(f"{MF} {V(acc,16)}, v[120:123], {V(SEL)}, 0")
    softmax(E, T, 120, 124, rr+1)
    E(f"{MF} {V(T,16)}, v[120:123], {V(SEL)}, 0")
    E(f"{MF} {V(T,16)}, v[124:127], {V(SEL+4)}, {V(T,16)}")
    for q in range(8): E(f"v_cvt_pk_bf16_f32 v{112+q}, v{acc+2*q}, v{acc+2*q+1}\nv_or_b32 v{112+q}, v{112+q}, v27")
    for q in range(8): E(f"v_cvt_pk_bf16_f32 v{T+q}, v{T+2*q}, v{T+2*q+1}")
    E(f"{MF} {V(KVA,16)}, {V(T)}, v[112:115], {V(KVA,16) if f else 0}")
    E(f"{MF} {V(KVA,16)}, {V(T+4)}, v[116:119], {V(KVA,16)}")
a.extend(E)
st(grp="B")
a(f"""
s_lshl_b32 s9, s63, 12
s_lshl_b32 s10, s7, 11
s_add_u32 s9, s9, s10
s_add_u32 s9, s9, {KP}
v_add_u32 v92, s9, v26
v_xor_b32 v93, 0x800, v92
v_mul_u32_u24 v94, 17, v30
v_add_u32 v94, v94, v29
v_lshlrev_b32 v94, 2, v94
s_mul_i32 s10, s63, 2176
s_mul_i32 s11, s7, {8*136}
s_add_u32 s10, s10, s11
s_add_u32 s10, s10, s72
v_cmp_gt_u32 s[80:81], 17, v29
s_cmp_eq_u32 s7, 0
s_cbranch_scc1 {L('kv0')}
""")
with a.skippable():
    for q in range(2): a(f"ds_write_b128 v92, {V(KVA+4*q)} offset:{q*1024}")
    for r in range(8): a(f"v_mov_b32 v{KVA+r}, v{KVA+8+r}")
    a(f"s_branch {L('kv1')}")
a.label(L('kv0'))
with a.skippable():
    for q in range(2): a(f"ds_write_b128 v92, {V(KVA+8+4*q)} offset:{q*1024}")
a.label(L('kv1'))
a.wv("I2")
a("s_waitcnt lgkmcnt(0)\ns_barrier")
for q in range(2): a(f"ds_read_b128 {V(T+4*q)}, v93 offset:{q*1024}")
a(f"v_mov_b32 v18, v90\nv_mov_b32 v19, 0\nv_add_u32 v20, {3*PG}, v91")
a("s_waitcnt lgkmcnt(0)")
for r in range(8): a(f"v_add_f32 v{KVA+r}, v{KVA+r}, v{T+r}")
a("s_mov_b64 exec, s[80:81]")
for r in range(8): a(f"buffer_atomic_add_f32 v{KVA+r}, v94, {R(WS)}, s10 offen offset:{r*136}", "AT")
a("s_mov_b64 exec, -1")
st(grp="B")
A2 = 32
def rd2(k):
    b = 48 + 4*(k % 4)
    for e in range(2): a(f"ds_read_b64_tr_b16 {V(b+2*e,2)}, v20 offset:{k*2048+e*512}", f"B{k}")
a(f"{MF} {V(A2,16)}, v[4:7], {V(BX)}, 0")
rd2(0); rd2(1); rd2(2)
K1 = env("K1", 0); K2 = env("K2", 17)
TRA = 96
if K1: p2_traddr(96, 104)
a(f"s_add_u32 s81, s61, {5*16384}\ns_sub_u32 s9, s81, {14*16384}\ns_cmp_ge_u32 s81, s83\ns_cselect_b32 s81, s9, s81")
for k in range(32):
    if k+3 < 32: rd2(k+3)
    a.wl(f"B{k}")
    a(f"{MF} {V(A2,16)}, {V(48+4*(k%4))}, {V(XF+4*k)}, {V(A2,16)}")
    if K1 and k == K1:
        for u in range(4): p2_tr(a, WREG+8*u, u, f"B{k+4}")
    if K1 and K1+4 <= k < K1+8: p2_dma2(a, 9+k-K1-4, "D2")
    if K1 and k == K2: a("s_barrier")
    if K1 and k in (K2+5, K2+7, K2+9): p2_dma(a, 4+(k-K2-5)//2, "D1")
    if k == env("KVK", 20):
        a.wv("AT")
        a(f"""
        s_lshl_b32 s9, s6, 9
        s_lshl_b32 s10, s4, 5
        s_add_u32 s9, s9, s10
        s_lshl_b32 s10, s3, 2
        s_add_u32 s9, s9, s10
        s_add_u32 s9, s9, {KVF}
        """)
        flag_store("s9")
        st(grp="B")
ffn_epi(a, A2, 67, 0, RRA+2)
st()
TRA = 2
p2_traddr()
if K1:
    a("s_barrier")
    for u in range(7, 9): p2_dma(a, u, "D1x")
    a.wv("H")
    hflag()
    st()
    for u in range(4, 7): p2_tr(a, WREG+8*u, u, "W1")
    a("s_barrier")
    a.wl("W1")
    for u in range(13, 16): p2_dma2(a, u, "D2")
    a.wv("D1x")
    for u in range(7, 9): p2_tr(a, WREG+8*u, u, "W1")
    a.wl("W1")
    for u in range(16, 18): p2_dma2(a, u, "D2")
else:
    for u in range(4): p2_tr(a, WREG+8*u, u, "W1")
    a("s_barrier")
    for u in range(4, 6): p2_dma(a, u, "D1")
    a.wv("H")
    hflag()
    st()
    a("s_barrier")
    for u in range(6, 9): p2_dma(a, u, "D1")
    a.wl("W1")
    for u in range(9, 13): p2_dma(a, u, "D2")
    a.wv("D1")
    for u in range(4, 9): p2_tr(a, WREG+8*u, u, "W1")
    a.wl("W1")
    for u in range(13, 18): p2_dma(a, u, "D2")
a(f"s_branch {L('tail')}")
a.label(L('typeB'))
a.qload("br")
for p in range(6): dma(1, p)
for i in range(10): a(f"v_add_u32 v{160+i}, {2*SLOT}, v{8+i}")
a("s_cmp_eq_u32 s8, 0\ns_cselect_b64 s[80:81], -1, 0\ns_mov_b64 vcc, s[80:81]")
st(5, grp="P"); a.wv("C0"); st(grp="P"); a("s_barrier"); st(grp="P")
st(1, grp="A")
def rdB(p):
    i = p & 3; b = 96 + 16*(p & 1); c = p >> 2; sl = c % 3
    ab = 8 if sl < 2 else 160; so = SLOT if sl == 1 else 0
    a(f"ds_read_b128 {V(b)}, v{ab+i} offset:{so}", f"P{p}")
    for e in range(2): a(f"ds_read_b64_tr_b16 {V(b+8+2*e,2)}, v{ab+8} offset:{so+i*2048+e*512}", f"P{p}")
    a(f"ds_read_b128 {V(b+4)}, v{ab+4+i} offset:{so}", f"P{p}")
    for e in range(2): a(f"ds_read_b64_tr_b16 {V(b+12+2*e,2)}, v{ab+9} offset:{so+i*2048+e*512}", f"P{p}")
rdB(0)
WPB, BXB, RRB, RAWB = 200, 208, 220, 232
for p in range(32):
    c = p >> 2; i = p & 3
    a.wl(f"P{p}")
    if i == 3 and c < 7:
        a.wv(f"C{c+1}")
        if p == 19: side_poll_wait("B", True)
        a("s_barrier"); st(grp="A")
    if p+1 < 32: rdB(p+1)
    b = 96 + 16*(p & 1)
    a(f"{MF} {V(ACC[0],16)}, {V(b+8)}, {V(b)}, {V(ACC[0],16) if p else 0}")
    a(f"{MF} {V(ACC[1],16)}, {V(b+8)}, {V(b+4)}, {V(ACC[1],16) if p else 0}")
    if p < 3: dma(2, 2*p); dma(2, 2*p+1)
    else:
        cc = ((p-3) >> 2) + 3; q = (p-3) & 3
        if cc <= 7:
            for piece in ((0,1),(2,3),(4,),(5,))[q]: dma(cc, piece)
    a(f"{MF} {V(ACC[2],16)}, {V(b+12)}, {V(b)}, {V(ACC[2],16) if p else 0}")
    a(f"s_cbranch_vccz {L(f'm4_{p}')}")
    with a.skippable():
        a(f"{MF} {V(ACC[3],16)}, {V(b+12)}, {V(b+4)}, {V(ACC[3],16) if p else 0}")
    a.label(L(f"m4_{p}"))
    side_touch("B", p, 250, 251)
    if p == 0: side_wphi_dma("B")
    if p == 3: side_flags("B", 240)
    if p == 8:
        for h in range(2):
            for e in range(2): a(f"ds_read_b64_tr_b16 {V(WPB+4*h+2*e,2)}, v21 offset:{h*512+e*256}", f"P{p+1}")
    if p == 13: side_poll_issue("B")
    if p == 19: side_poll_check("B", RAWB, 240, "P20")
    if p == 26: a.wv("ST")
    if p == 28: side_csred("B", 144, 240)
    if p == 29: side_bext(RAWB, BXB, RRB, 240)
    if p == 22: side_p2(240)
    if p in (23, 24, 25): p2_dma(a, p-23, "D1a")
    if p in (27, 29, 30): p2_dma(a, {27:3, 29:4, 30:5}[p], "D1b")
st(2)
a("s_waitcnt lgkmcnt(0)\ns_barrier")
a(f"""
ds_read_b32 v216, v23
ds_read_b32 v240, v24
v_cmp_gt_u32 vcc, 32, v1
v_lshl_or_b32 v27, v27, 16, v27
v_lshl_or_b32 v28, v28, 16, v28
s_and_b64 s[80:81], s[80:81], vcc
v_cndmask_b32 v218, 0, v27, s[80:81]
v_cndmask_b32 v242, 0, v28, vcc
v_mov_b32 v219, 0
v_mov_b32 v243, 0
s_waitcnt lgkmcnt(0)
v_cndmask_b32 v216, 0, v216, vcc
v_cndmask_b32 v240, 0, v240, vcc
v_mov_b32 v217, v216
v_mov_b32 v241, v240
{MF} {V(ACC[0],16)}, v[216:219], {V(BXB)}, {V(ACC[0],16)}
{MF} {V(ACC[1],16)}, v[216:219], {V(BXB+4)}, {V(ACC[1],16)}
{MF} {V(ACC[2],16)}, v[240:243], {V(BXB)}, {V(ACC[2],16)}
{MF} {V(ACC[3],16)}, v[240:243], {V(BXB+4)}, {V(ACC[3],16)}
""")
for u in range(6, 9): p2_dma(a, u, "D1c")
TRA = 12
p2_traddr(12)
def w2step(k):
    if k == 0:
        a.wv("D1a")
        for u in range(0, 3): p2_tr(a, WREG+8*u, u, "W1")
    elif k == 1:
        a.wl("W1")
        for u in range(9, 12): p2_dma(a, u, "D2")
        a.wv("D1b")
        for u in range(3, 6): p2_tr(a, WREG+8*u, u, "W1")
    elif k == 2:
        a.wl("W1")
        for u in range(12, 15): p2_dma(a, u, "D2")
        a.wv("D1c")
        for u in range(6, 9): p2_tr(a, WREG+8*u, u, "W1")
    elif k == 3:
        a.wl("W1")
        for u in range(15, 18): p2_dma(a, u, "D2")
a(f"s_cmp_eq_u32 s8, 0\ns_cbranch_scc0 {L('Bq')}")
a.qsave("bq")
ffn_epi(a, ACC[0], 66, 0, RRB+2)
ffn_epi(a, ACC[1], 66, 1, RRB+5)
ffn_epi(a, ACC[2], 67, 0, RRB+2)
ffn_epi(a, ACC[3], 67, 1, RRB+5)
st(3)
a.wv("D1c")
for u in range(9): p2_tr(a, WREG+8*u, u, "W1")
a.wv("H")
hflag()
a("s_mov_b32 s81, s61\ns_lshl_b32 s9, s3, 2\nv_mov_b32 v11, s9")
a.wl("W1")
for u in range(9, 18): p2_dma(a, u, "D2")
lds_wait("pw", 12304)
for u in range(9, 18): p2_dma_partner(a, u, "D2")
a("s_waitcnt vmcnt(0)")
st(4)
a(f"s_branch {L('tailB')}")
a.label(L('Bq'))
a.qload("bq")
stor = {(0,0): (80, 84), (0,1): (88, 92), (1,0): (232, 236), (1,1): (240, 244)}
ffn_epi(a, ACC[2], 67, 0, RRB+2)
a(f"v_lshlrev_b32 v8, 3, v1\ns_lshl_b32 s66, s6, 9\ns_add_u32 s66, s66, {KVF}\ns_mul_i32 s11, s78, 4352")
for f in range(2):
    acc = ACC[f]
    for q in range(8): a(f"v_cvt_pk_bf16_f32 v{acc+q}, v{acc+2*q}, v{acc+2*q+1}")
    for h in range(2):
        a(f"{MF} {V(T,16)}, {V(WPB+4*h)}, {V(acc+4*h)}, 0")
        if 2*f+h == TRP:
            a.wv("H"); hflag()
            for u in range(9): p2_tr(a, WREG+8*u, u, "W1")
        if 2*f+h == TRP+1:
            a.wl("W1")
            a("s_lshl_b32 s9, s3, 2\nv_mov_b32 v9, s9\nv_mov_b32 v10, s75\nds_write_b32 v9, v10 offset:12288")
        softmax(a, T, stor[(f,h)][0], stor[(f,h)][1], RRB+1+3*f)
st(3)
a(f"""
v_min_u32 v9, 16, v29
v_mul_u32_u24 v10, 17, v30
v_add_u32 v9, v9, v10
v_lshlrev_b32 v9, 2, v9
v_add_u32 v9, s11, v9
""")
kvpoll(4, 'nopk')
a("s_mov_b32 s71, 0")
a.label(L('lf1'))
a(f"""
ds_read_b32 v10, v19 offset:12288
s_waitcnt lgkmcnt(0)
v_readfirstlane_b32 s9, v10
s_add_u32 s71, s71, 1
s_cmp_gt_u32 s71, {SPIN*8}
s_cbranch_scc1 {L('lf2')}
s_cmp_eq_u32 s9, s75
s_cbranch_scc1 {L('lf2')}
s_sleep 1
s_branch {L('lf1')}
""")
a.label(L('lf2'))
for h in range(2):
    for r in range(16): a(f"ds_read_b32 v{32+16*h+r}, v9 offset:{h*2176+r*136}", f"K{h}")
a(f"s_add_u32 s9, s65, 112\ns_lshl_b32 s9, s9, 10\ns_add_u32 s10, s9, s64\ns_add_u32 s9, s9, s74")
for h in range(2):
    kb = 32+16*h
    a.wl(f"K{h}")
    for q in range(8): a(f"v_cvt_pk_bf16_f32 v{kb+q}, v{kb+2*q}, v{kb+2*q+1}")
    for f in range(2):
        Tt = 96+16*f
        a(f"{MF} {V(Tt,16)}, {V(kb)}, {V(stor[(f,h)][0])}, 0")
        a(f"{MF} {V(Tt,16)}, {V(kb+4)}, {V(stor[(f,h)][1])}, {V(Tt,16)}")
    for f in range(2):
        Tt = 96+16*f; o = kb+8+4*f
        a(f"v_add_f32 v8, 0x358637bd, v{Tt+8}\nv_rcp_f32 v8, v8")
        for r in range(8): a(f"v_mul_f32 v{Tt+r}, v{Tt+r}, v8")
        for q in range(4): a(f"v_cvt_pk_bf16_f32 v{o+q}, v{Tt+2*q}, v{Tt+2*q+1}")
        a(f"buffer_store_dwordx4 {V(o)}, v26, {R(WS)}, {('s9','s10')[f]} offen offset:{h*1024} {SC}", "O")
a.wv("O")
a(f"s_lshl_b32 s9, s6, 3\ns_lshl_b32 s10, s78, 2\ns_add_u32 s9, s9, s10\ns_add_u32 s9, s9, s77\ns_add_u32 s9, s9, {OF}")
flag_store("s9")
st()
a.label(L('tailB'))
for i in range(6): a(f"v_mov_b32 v{2+i}, v{12+i}")
TRA = 2
a.label(L('tail'))
a(f"""
s_mul_i32 s64, s82, {2*AF_TG}
s_mul_i32 s65, s3, {14*1024}
s_add_u32 s65, s65, s64
s_lshl_b32 s66, s3, 12
s_add_u32 s66, s66, s64
s_add_u32 s66, s66, {112*1024}
s_add_u32 s67, s66, {AF_TG}
s_lshl_b32 s9, s82, 8
s_add_u32 s72, s9, {HF}
s_add_u32 s73, s9, {OF}
v_lshlrev_b32 v0, 4, v1
v_lshlrev_b32 v8, 2, v1
""")
st(5)
a(f"s_cmp_eq_u32 s3, 0\ns_cbranch_scc0 {L('phok')}")
with a.skippable():
    a("s_mov_b32 s79, 0")
    a.label(L('ph'))
    a(f"""
    buffer_load_dword v10, v8, {R(WS)}, s72 offen {SC}
    s_waitcnt vmcnt(0)
    v_cmp_ne_u32 vcc, s75, v10
    s_cmp_eq_u64 vcc, 0
    s_cbranch_scc1 {L('phok')}
    s_add_u32 s79, s79, 1
    s_cmp_gt_u32 s79, {SPIN}
    s_cbranch_scc1 {L('phok')}
    s_sleep {SLP}
    s_branch {L('ph')}
    """)
a.label(L('phok'))
a("s_barrier")
st(); st(1, grp="T")
abuf = [200+8*i for i in range(7)] + [16+8*i for i in range(4)]
NA = 11
a(f"""
s_mov_b32 s60, s65
s_add_u32 s83, s65, {14*1024}
s_lshl_b32 s9, s76, 10
s_add_u32 s65, s65, s9
""")
def aload(u):
    r = abuf[u % NA]
    if u < 14:
        a(f"s_add_u32 s71, s65, {AF_TG}")
        a(f"buffer_load_dwordx4 {V(r)}, v0, {R(WS)}, s65 offen {ASC}", f"A{u}")
        a(f"buffer_load_dwordx4 {V(r+4)}, v0, {R(WS)}, s71 offen {ASC}", f"A{u}")
        a("s_add_u32 s65, s65, 1024\ns_cmp_eq_u32 s65, s83\ns_cselect_b32 s65, s60, s65")
    else:
        for tb in range(2):
            a(f"buffer_load_dwordx4 {V(r+4*tb)}, v0, {R(WS)}, s{(66,67)[tb]} offen offset:{(u-14)*1024} {SC}", f"A{u}")
NW = env("NW", 11)
OCK = min(OCK, 14-NW) if NW < 11 else OCK
FOP = max(0, OCK - 2)
for u in range(NW):
    aload(u)
    if NW == 11 and u == OCK: a(f"buffer_load_dword v10, v8, {R(WS)}, s73 offen {SC}", f"A{OCK}")
def mfmas(u, w):
    r = abuf[u % NA]
    for tb in range(2):
        for nb in range(2):
            d = P2ACC + 16*(2*tb+nb)
            a(f"{MF} {V(d,16)}, {V(w+4*nb)}, {V(r+4*tb)}, {V(d,16) if u else 0}")
a(f"""
v_lshrrev_b32 v12, 3, v1
v_lshlrev_b32 v12, 10, v12
v_and_b32 v13, 7, v1
v_lshlrev_b32 v13, 4, v13
v_add_u32 v12, v12, v13
s_lshl_b32 s74, s82, 16
s_lshl_b32 s9, s3, 13
s_add_u32 s74, s74, s9
s_add_u32 s74, s74, s62
""")
for u in range(18):
    if u == 8: p2_tr(a, WTMP, 9, "T9")
    if 9 <= u < 17: p2_tr(a, WTMP + 8*((u-8)&1), u+1, f"T{u+1}")
    if u >= 9: a.wl(f"T{u}")
    a.wv(f"A{u}")
    if u in (0, 7, 14): st(grp="T")
    mfmas(u, WREG+8*u if u < 9 else WTMP+8*((u-9)&1))
    if NW == 11:
        if u < 3: aload(u+NA)
    else:
        if u+NW < 14: aload(u+NW)
        if u+NW == OCK+0: a(f"buffer_load_dword v10, v8, {R(WS)}, s73 offen {SC}", f"A{OCK}")
        if u > OCK and u+NW < 18: aload(u+NW)  if u+NW >= 14 else None
    if u == 3:
        a(f"buffer_load_dwordx4 v[128:131], v12, {R(X)}, s74 offen", "X")
        a(f"buffer_load_dwordx4 v[132:135], v13, {R(B2)}, s62 offen", "X")
    if u == OCK:
        a("s_mov_b32 s79, 0")
        a.label(L('po'))
        a(f"""
        v_cmp_ne_u32 vcc, s75, v10
        s_and_b32 s9, vcc_lo, 0xffff
        s_cmp_eq_u32 s9, 0
        s_cbranch_scc1 {L('pook')}
        s_add_u32 s79, s79, 1
        s_cmp_gt_u32 s79, {SPIN}
        s_cbranch_scc1 {L('pook')}
        """)
        with a.skippable():
            a(f"s_sleep 16\nbuffer_load_dword v10, v8, {R(WS)}, s73 offen {SC}\ns_waitcnt vmcnt(0)\ns_branch {L('po')}")
        a.label(L('pook'))
        if NW == 11:
            for uu in range(14, 18): aload(uu)
        else: aload(14)
st(); st(grp="T")
a(f"""
v_bfe_u32 v8, v1, 3, 2
v_lshlrev_b32 v8, 14, v8
v_and_b32 v9, 7, v1
v_lshl_add_u32 v8, v9, 8, v8
v_lshrrev_b32 v10, 5, v1
v_xor_b32 v10, v10, v9
v_lshl_add_u32 v8, v10, 4, v8
s_add_u32 s9, s69, {PG}
v_add_u32 v8, s9, v8
v_xor_b32 v9, 32, v8
v_xor_b32 v10, 64, v8
v_xor_b32 v11, 96, v8
v_add_u32 v2, 0x10000, v8
v_add_u32 v3, 0x10000, v9
v_add_u32 v4, 0x10000, v10
v_add_u32 v5, 0x10000, v11
""")
for tb in range(2):
    for nb in range(2):
        for qq in range(4):
            d = P2ACC + 16*(2*tb+nb) + 4*qq
            a(f"ds_write_b128 v{(8,2)[tb]+qq}, {V(d)} offset:{nb*128}")
a("""
v_lshrrev_b32 v6, 3, v1
v_and_b32 v7, 7, v1
v_lshlrev_b32 v7, 1, v7
v_xor_b32 v7, v7, v6
v_lshlrev_b32 v6, 8, v6
v_lshl_add_u32 v6, v7, 4, v6
s_lshl_b32 s9, s3, 14
s_add_u32 s9, s9, 16384
v_add_u32 v6, s9, v6
v_xor_b32 v7, 16, v6
s_waitcnt lgkmcnt(0)
""")
st(grp="T"); a("s_barrier"); st(grp="T")
RR = 160
for w in range(8):
    for e in range(2):
        a(f"ds_read_b128 {V(RR+8*w+4*e)}, v{6+e} offset:{w*2048}", f"R{w}")
a.wv("X")
for i in range(4):
    a(f"v_lshlrev_b32 v{24+2*i}, 16, v{128+i}\nv_and_b32 v{25+2*i}, 0xffff0000, v{128+i}")
    a(f"v_lshlrev_b32 v{32+2*i}, 16, v{132+i}\nv_and_b32 v{33+2*i}, 0xffff0000, v{132+i}")
for i in range(8): a(f"v_add_f32 v{24+i}, v{24+i}, v{32+i}")
for w in range(8):
    a.wl(f"R{w}")
    for i in range(8): a(f"v_add_f32 v{24+i}, v{24+i}, v{RR+8*w+i}")
for i in range(4): a(f"v_cvt_pk_bf16_f32 v{32+i}, v{24+2*i}, v{25+2*i}")
a(f"buffer_store_dwordx4 v[32:35], v12, {R(OUT)}, s74 offen {os.environ.get('OSC','')}")
st(grp="T")
if INSTR:
    a("s_waitcnt vmcnt(0)"); st()
    nst[0] = 9
    a(f"s_waitcnt lgkmcnt(0)\ns_lshl_b32 s9, s2, 3\ns_add_u32 s9, s9, s3\ns_lshl_b32 s9, s9, 6\ns_add_u32 s9, s9, {STAMPS}")
    a("v_mov_b32 v0, 0\ns_mov_b64 exec, 1")
    for i in range(nst[0]):
        a(f"v_mov_b32 v1, s{84+2*i}\nbuffer_store_dword v1, v0, {R(WS)}, s9 offen offset:{4*i}\ns_nop 1")
a.label(L('end')); a("s_endpgm")
desc = f""".section .rodata,"a"
.p2align 6
.amdhsa_kernel {NAME}
  .amdhsa_next_free_vgpr 256
  .amdhsa_next_free_sgpr 102
  .amdhsa_accum_offset 256
  .amdhsa_group_segment_fixed_size 0
  .amdhsa_kernarg_size 96
  .amdhsa_user_sgpr_count 2
  .amdhsa_user_sgpr_kernarg_segment_ptr 1
  .amdhsa_system_sgpr_workgroup_id_x 1
  .amdhsa_float_denorm_mode_32 3
.end_amdhsa_kernel
"""
if __name__ == "__main__":
    open(sys.argv[1], "w").write("; @launch grid=(256,1,1) block=(512,1,1) lds=163840\n" + a.finish() + desc)
    print("stamps:", nst[0], "STAMPS", STAMPS)
```

```python
import sys, os
sys.path.insert(0, "work")
from asmlib import Asm
EXP = os.environ.get("EXP", "").split(",")
INSTR = "instr" in sys.argv
STG = os.environ.get("STG", "main")
def env(n, d): return int(os.environ.get(n, str(d)))
NAME = "parallel_sum__linear_kernel_hedgehog__dense_activation_squared_relu__prompt_kernel"
SZ = dict(x=2048*512*2, wqkv=512*1536*2, wphi=32*16*16*2, wo=512*512*2, w1=512*1792*2, b1=1792*2, w2=1792*512*2, b2=512*2, out=2048*512*2, dbg=256)
KSLOT = dict(x=0, wqkv=1, wphi=2, wo=3, w1=5, b1=6, w2=7, b2=8, out=9, dbg=10, ws=11)
AF_TG = 144*1024
KVACC = 64*AF_TG; KV_J = 9216
KVF = KVACC + 8*KV_J
HF = KVF + 8*512
OF = HF + 32*256
EFS = OF + 32*256
EFC = EFS + 16*128
CSP = EFC + 16*128
STAT = CSP + 16*14336
STAMPS = STAT + 2048*16
WS_END = STAMPS + 256*8*64
SZ["ws"] = WS_END
LOG2E = "0x3fb8aa3b"
SLOT = 49152; PG = 16384; RB = PG
SPIN = 400000
FLA = env("FLA", 18); FLC = env("FLC", 23); KPW = env("KPW", 4); FLB = env("FLB", 14); OCK = env("OCK", 6 if env("NW", 11) == 11 else 14-env("NW", 11)); TRP = env("TRP", 1); NE = env("NE", 4); NB = env("NB", 8)
SC = "sc0 sc1"
ASC = os.environ.get("ASC", "sc0 sc1")
SLP = env("SLP", 8)
X, WQ, W1, WS, DBG, WPHI, B1, I1, W2, WO, B2, OUT = 12, 16, 20, 24, 28, 32, 36, 40, 44, 48, 52, 56
def R(s): return f"s[{s}:{s+3}]"
def V(b, n=4): return f"v[{b}:{b+n-1}]"
MF = "v_mfma_f32_32x32x16_bf16"
a = Asm()
nst = [0]
def st(i=None, grp="main"):
    if not INSTR or grp != STG: return
    if i is not None: nst[0] = i
    a(f"s_memrealtime s[{84+2*nst[0]}:{85+2*nst[0]}]"); nst[0] += 1
def L(n): return f"L_{n}"
def fin(x, n, s): x(f"s_mov_b32 s{s+2}, {SZ[n]}\ns_mov_b32 s{s+3}, 0x20000")

a.raw('.amdgcn_target "amdgcn-amd-amdhsa--gfx950"\n.text')
a.raw(f".globl {NAME}\n.p2align 8\n.type {NAME},@function\n{NAME}:")
a(f"s_cmp_ge_u32 s2, 256\ns_cbranch_scc1 {L('end')}")
st(grp=STG)
names = (("x",X),("wqkv",WQ),("w1",W1),("ws",WS),("dbg",DBG),("wphi",WPHI),("b1",B1),("w2",W2),("wo",WO),("b2",B2),("out",OUT))
for n, s in names: a(f"s_load_dwordx2 s[{s}:{s+1}], s[0:1], {KSLOT[n]*8}")
a(f"""
v_and_b32 v1, 63, v0
v_lshrrev_b32 v2, 6, v0
v_readfirstlane_b32 s3, v2
s_bfe_u32 s4, s2, 0x30003
s_bfe_u32 s9, s2, 0x10002
s_lshl_b32 s9, s9, 3
s_add_u32 s4, s4, s9                ; m
s_lshr_b32 s5, s2, 7                ; type
s_and_b32 s6, s2, 3
s_lshl_b32 s6, s6, 1
s_bfe_u32 s10, s2, 0x10006
s_add_u32 s6, s6, s10               ; j
v_lshrrev_b32 v9, 3, v1
v_and_b32 v10, 7, v1
v_lshrrev_b32 v11, 4, v1
v_xor_b32 v12, v10, v11
v_lshlrev_b32 v13, 10, v9
v_lshl_add_u32 v2, v12, 4, v13
v_xor_b32 v3, 0x2040, v2
v_and_b32 v11, 1, v11
v_lshlrev_b32 v11, 6, v11
v_lshlrev_b32 v12, 4, v10
v_xor_b32 v12, v12, v11
v_mul_u32_u24 v13, 3072, v9
v_add_u32 v4, v13, v12
v_mul_u32_u24 v13, 3584, v9
v_add_u32 v6, v13, v12
v_xor_b32 v14, 32, v4
s_and_b32 s9, s2, 3
s_mul_i32 s9, s9, 5
s_add_u32 s9, s9, 8
s_mul_i32 s11, s10, 3
s_add_u32 s66, s9, s11              ; I1 block (B)
s_add_u32 s67, s66, 1
s_add_u32 s68, s9, 2                ; I3 block
s_lshl_b32 s61, s6, 7
s_add_u32 s62, s61, 2048
s_lshl_b32 s77, s66, 7
s_add_u32 s78, s61, 1024
s_movk_i32 s63, 3584
s_cmp_eq_u32 s5, 0
s_cselect_b64 vcc, -1, 0
s_cselect_b32 s61, s78, s61         ; I0 col
s_cselect_b32 s62, s62, s77         ; I1 col
s_cselect_b32 s63, 3072, s63
s_cselect_b32 s67, s6, s67          ; I2 block
v_cndmask_b32 v5, v6, v14, vcc
s_lshl_b32 s64, s67, 7              ; I2 col
s_lshl_b32 s65, s68, 7              ; I3 col
s_lshl_b32 s60, s4, 17
s_lshl_b32 s69, s3, 11
s_lshl_b32 s70, s3, 10
s_lshl_b32 s11, s3, 14
s_add_u32 s76, s60, s11
s_mul_i32 s11, s3, {8*3072}
s_add_u32 s11, s61, s11
v_add_u32 v4, s11, v4
s_lshl_b32 s11, s3, 3
s_mul_i32 s11, s11, s63
s_add_u32 s11, s62, s11
v_add_u32 v5, s11, v5
s_lshl_b32 s75, s63, 6
s_mul_i32 s11, s3, {8*3584}
s_add_u32 s73, s64, s11
s_add_u32 s74, s65, s11
v_add_u32 v7, s74, v6
v_add_u32 v6, s73, v6
s_mov_b32 s82, 0
s_mov_b32 s83, 0
s_mov_b32 s73, 0
s_lshl_b32 s79, s5, 3
s_add_u32 s79, s79, s6              ; slot
s_and_b32 s78, s3, 1                ; lo
s_lshr_b32 s77, s3, 1
v_lshlrev_b32 v26, 4, v1
s_waitcnt lgkmcnt(0)
""")
st(8, grp="P"); nst[0] = 1
fin(a, "x", X); fin(a, "wqkv", WQ); fin(a, "w1", W1)
a(f"""
s_cmp_eq_u32 s5, 0
s_cselect_b32 s{I1}, s{WQ}, s{W1}
s_cselect_b32 s{I1+1}, s{WQ+1}, s{W1+1}
s_cselect_b32 s{I1+2}, s{WQ+2}, s{W1+2}
s_mov_b32 s{I1+3}, 0x20000
""")
a(f"""
s_lshl_b32 s9, s79, 13
s_add_u32 s9, s9, s70
s_add_u32 s9, s9, s60
""")
a(f"buffer_load_dwordx4 v[112:115], v26, {R(X)}, s9 offen", "E")
a(f"""
v_lshrrev_b32 v9, 2, v1
v_and_b32 v10, 3, v1
v_lshlrev_b32 v10, 4, v10
s_cmp_eq_u32 s77, 0
s_cselect_b32 s9, s61, s62
s_cselect_b32 s11, 3072, s63
s_cmp_eq_u32 s77, 2
s_cselect_b32 s9, s64, s9
s_cmp_eq_u32 s77, 3
s_cselect_b32 s9, s65, s9
s_cselect_b32 s71, s10, s78
s_cmp_ge_u32 s77, 2
s_cselect_b32 s11, 3584, s11
s_lshl_b32 s71, s71, 6
s_add_u32 s9, s9, s71
s_lshl_b32 s71, s4, 5
s_mul_i32 s71, s71, s11
s_add_u32 s9, s9, s71               ; + 32m rows
v_mul_lo_u32 v9, v9, s11
v_add_u32 v9, v9, v10
s_lshl_b32 s11, s11, 4
s_add_u32 s71, s9, s11
s_mov_b32 m0, s69
s_cmp_eq_u32 s11, {3072*16}
s_cbranch_scc1 {L('e1')}
""")
with a.skippable():
    a(f"buffer_load_dwordx4 v9, {R(W1)}, s9 offen lds\ns_add_u32 m0, s69, 1024\ns_nop 0\nbuffer_load_dwordx4 v9, {R(W1)}, s71 offen lds\ns_branch {L('e2')}")
a.label(L('e1'))
with a.skippable():
    a(f"buffer_load_dwordx4 v9, {R(WQ)}, s9 offen lds\ns_add_u32 m0, s69, 1024\ns_nop 0\nbuffer_load_dwordx4 v9, {R(WQ)}, s71 offen lds")
a.label(L('e2'))
def dma(c, piece):
    t = f"C{c}"; sl = RB + (c % 3)*SLOT
    if piece < 2:
        a(f"s_add_u32 m0, s69, {sl+1024*piece-c*128}")
        a(f"buffer_load_dwordx4 v{2+piece}, {R(X)}, s76 offen offset:{c*128} lds", t)
    elif piece == 2:
        a(f"s_add_u32 m0, s70, {sl+16384}")
        a(f"buffer_load_dwordx4 v4, {R(WQ)}, s82 offen lds", t)
        a(f"s_add_u32 s82, s82, {64*3072}")
    elif piece == 3:
        a(f"s_add_u32 m0, s70, {sl+24576}")
        a(f"buffer_load_dwordx4 v5, {R(I1)}, s83 offen lds", t)
        a("s_add_u32 s83, s83, s75")
    elif piece == 4:
        a(f"s_add_u32 m0, s70, {sl+32768}")
        a(f"buffer_load_dwordx4 v6, {R(W1)}, s73 offen lds", t)
    else:
        a(f"s_add_u32 m0, s70, {sl+40960}")
        a(f"buffer_load_dwordx4 v7, {R(W1)}, s73 offen lds", t)
        a(f"s_add_u32 s73, s73, {64*3584}")
dma(0, 0); a.items.append(("retag", ("C0", "E")))
a(f"s_cmp_eq_u32 s5, 0\ns_cbranch_scc1 {L('c0b')}")
with a.skippable():
    dma(0, 4); dma(0, 5)
a.label(L('c0b'))
dma(0, 1); dma(0, 2); dma(0, 3)
st(grp="P")
if env("ICP", 0):
    a(f"s_cmp_lt_u32 s3, 4\ns_cbranch_scc0 {L('noicp')}")
    with a.skippable():
        a(f"""
        s_getpc_b64 s[80:81]
        v_lshlrev_b32 v127, 7, v1
        s_lshl_b32 s9, s3, 13
        v_add_u32 v127, s9, v127
        v_min_u32 v127, {env("ICP", 0)}, v127
        global_load_dword v127, v127, s[80:81]
        """)
    a.label(L('noicp'))
fin(a, "ws", WS); fin(a, "dbg", DBG)
a("v_mov_b32 v19, 0")
a(f"s_or_b32 s9, s2, s3\ns_cmp_eq_u32 s9, 0\ns_cbranch_scc0 {L('nononce')}")
with a.skippable():
    a(f"""
    s_memrealtime s[80:81]
    s_waitcnt lgkmcnt(0)
    s_or_b32 s80, s80, 1
    v_mov_b32 v10, s80
    s_mov_b64 exec, 1
    buffer_store_dword v10, v19, {R(DBG)}, 0 offen {SC}
    s_mov_b64 exec, -1
    """)
a.label(L('nononce'))
a(f"""
s_bfe_u32 s7, s3, 0x10001           ; mh
s_lshr_b32 s8, s3, 2                ; hi
s_mul_i32 s72, s6, {KV_J}
s_add_u32 s72, s72, {KVACC}
s_cmp_eq_u32 s5, 1
s_cselect_b32 s9, s4, 1
s_cmp_eq_u32 s9, 0
s_cbranch_scc0 {L('nozero')}
""")
with a.skippable():
    a(f"""
    v_lshlrev_b32 v9, 4, v0
    v_mov_b32 v10, 0
    v_mov_b32 v11, 0
    v_mov_b32 v12, 0
    v_mov_b32 v13, 0
    buffer_store_dwordx4 v[10:13], v9, {R(WS)}, s72 offen {SC}
    s_add_u32 s9, s72, 8192
    s_cmp_eq_u32 s3, 0
    s_cbranch_scc0 {L('nozero')}
    buffer_store_dwordx4 v[10:13], v9, {R(WS)}, s9 offen {SC}
    """)
a.label(L('nozero'))
a(f"""
s_and_b32 s9, s78, s8
s_cmp_eq_u32 s5, 0
s_cselect_b32 s61, s8, s9           ; sel
v_and_b32 v29, 31, v1
v_lshrrev_b32 v30, 5, v1
v_bfe_u32 v31, v1, 1, 3
v_xor_b32 v31, v31, v30
v_lshlrev_b32 v20, 7, v29
v_lshl_add_u32 v8, v31, 4, v20
s_lshl_b32 s9, s7, 1
s_add_u32 s62, s9, s61
s_lshl_b32 s9, s62, 12
s_add_u32 s9, s9, {RB}
v_add_u32 v8, s9, v8
v_xor_b32 v9, 32, v8
v_xor_b32 v10, 64, v8
v_xor_b32 v11, 96, v8
v_xor_b32 v12, 0x1000, v8
v_xor_b32 v13, 0x1000, v9
v_xor_b32 v14, 0x1000, v10
v_xor_b32 v15, 0x1000, v11
v_bfe_u32 v31, v1, 2, 2
v_lshl_add_u32 v20, v30, 3, v31
v_and_b32 v22, 3, v1
v_lshlrev_b32 v22, 3, v22
v_lshl_add_u32 v18, v20, 6, v22
v_lshl_add_u32 v20, v20, 7, v22
v_lshl_add_u32 v21, v30, 2, v31
v_lshl_add_u32 v21, v21, 5, v22
v_bfe_u32 v22, v1, 4, 1
v_lshl_add_u32 v18, v22, 5, v18
v_add_u32 v18, s69, v18
v_and_b32 v31, 2, v31
v_xor_b32 v31, v31, v22
v_lshl_add_u32 v20, v31, 5, v20     ; nat0
s_lshl_b32 s9, s8, 1
s_add_u32 s63, s9, s78              ; nq
s_lshl_b32 s9, s63, 5
v_xor_b32 v23, s9, v20
v_lshl_add_u32 v23, v22, 13, v23
s_lshl_b32 s9, s78, 6
v_xor_b32 v24, s9, v20
s_cmp_eq_u32 s8, 0
s_cselect_b32 s10, 8192, 0
v_add_u32 v25, s10, v24
v_cndmask_b32 v16, v25, v23, vcc
v_add_u32 v16, {RB+16384}, v16
s_and_b32 s9, s6, 1
s_lshl_b32 s9, s9, 6
v_xor_b32 v25, s9, v20
v_add_u32 v25, 8192, v25
s_and_b32 s9, s5, s8
s_cmp_eq_u32 s9, 1
s_cselect_b64 s[80:81], -1, 0
v_cndmask_b32 v17, v24, v25, s[80:81]
v_add_u32 v17, {RB+32768}, v17
v_mov_b32 v20, v24
v_mul_u32_u24 v23, 192, v22
v_lshlrev_b32 v24, 2, v29
s_lshl_b32 s9, s63, 6
v_add3_u32 v23, v23, v24, s9
s_lshl_b32 s9, s78, 7
s_cmp_eq_u32 s8, 0
s_cselect_b32 s10, 256, 0
s_add_u32 s10, s10, s9
v_add_u32 v25, s10, v24
v_cndmask_b32 v23, v25, v23, vcc
s_add_u32 s9, s9, 512
s_and_b32 s10, s5, s8
s_cmp_eq_u32 s10, 1
s_cselect_b32 s9, 768, s9
v_add_u32 v24, s9, v24
s_lshl_b32 s66, s66, 1
s_add_u32 s66, s66, s78
s_lshl_b32 s67, s67, 1
s_add_u32 s67, s67, s78
s_lshl_b32 s68, s68, 1
s_and_b32 s9, s6, 1
s_add_u32 s68, s68, s9
s_cmp_eq_u32 s10, 1
s_cselect_b32 s67, s68, s67
s_lshl_b32 s9, s78, 1
s_cmp_eq_u32 s5, 0
s_cselect_b32 s9, s63, s9
s_lshl_b32 s10, s6, 2
s_add_u32 s65, s10, s9
s_lshl_b32 s9, s9, 9
s_add_u32 s9, s9, 14336
v_add_u32 v21, s9, v21
v_mov_b32 v22, 0x3f803f80
v_and_b32 v27, 15, v1
v_lshlrev_b32 v27, 2, v27
s_lshl_b32 s9, s4, 7
s_add_u32 s9, s9, {EFS}
s_lshl_b32 s10, s79, 7
s_add_u32 s10, s10, {EFC}
v_add_u32 v25, s9, v27
v_add_u32 v28, s10, v27
v_lshrrev_b32 v27, 4, v1
v_cmp_eq_u32 vcc, 1, v27
v_cndmask_b32 v25, v25, v28, vcc
s_lshl_b32 s9, s6, 2
s_add_u32 s9, s9, {EFS+32}
v_writelane_b32 v25, s9, 32
""")
fin(a, "b1", B1); fin(a, "wphi", WPHI); fin(a, "w2", W2); fin(a, "wo", WO); fin(a, "b2", B2); fin(a, "out", OUT)
st(grp="P")
a.wv("E")
st(grp="P")
for k, off in enumerate((0, 256, 1024, 1280)): a(f"ds_read_b64_tr_b16 {V(120+2*k,2)}, v18 offset:{off}", "EW")
a("v_mov_b32 v116, 0\nv_mov_b32 v117, 0\nv_mov_b32 v118, 0")
for q in range(4):
    a(f"v_dot2_f32_bf16 v116, v{112+q}, v22, v116\nv_dot2_f32_bf16 v117, v{112+q}, v{112+q}, v117")
a.wl("EW")
for q in range(8): a(f"v_dot2_f32_bf16 v118, v{120+q}, v22, v118")
for dpp in ("quad_perm:[1,0,3,2]", "quad_perm:[2,3,0,1]", "row_half_mirror", "row_mirror"):
    a(f"v_add_f32_dpp v116, v116, v116 {dpp} row_mask:0xf bank_mask:0xf\nv_add_f32_dpp v117, v117, v117 {dpp} row_mask:0xf bank_mask:0xf")
a(f"""
v_permlane16_swap_b32 v116, v117
v_add_f32 v116, v116, v117
v_mov_b32 v119, v118
v_mov_b32 v117, v116
v_permlane32_swap_b32 v118, v119
v_permlane32_swap_b32 v116, v117
v_add_f32 v118, v118, v119
v_add_f32 v116, v116, v117
v_mov_b32 v117, v116
v_permlane16_swap_b32 v116, v117
v_mul_f32 v116, 0x3b000000, v116
v_mul_f32 v117, 0x3b000000, v117
v_fma_f32 v117, -v116, v116, v117
v_max_f32 v117, 0, v117
v_add_f32 v117, 0x3727c5ac, v117
v_rsq_f32 v114, v117
v_sub_f32 v116, 0, v116
v_mul_f32 v117, v117, v114
v_cvt_pk_bf16_f32 v120, v116, v117
v_and_b32 v121, 0xffff0000, v120
v_lshlrev_b32 v122, 16, v120
v_sub_f32 v123, v116, v122
v_sub_f32 v124, v117, v121
v_cvt_pk_bf16_f32 v112, v122, v123
v_cvt_pk_bf16_f32 v113, v121, v124
s_lshl_b32 s10, s4, 7
s_lshl_b32 s11, s79, 3
s_add_u32 s10, s10, s11
s_add_u32 s10, s10, s3
s_lshl_b32 s10, s10, 4
s_add_u32 s10, s10, {STAT}
s_mul_i32 s11, s79, 14336
s_mul_i32 s71, s4, 896
s_add_u32 s11, s11, s71
s_lshl_b32 s71, s3, 7
s_add_u32 s11, s11, s71
s_add_u32 s11, s11, {CSP}
v_lshlrev_b32 v120, 2, v1
s_mov_b64 exec, 1
buffer_store_dwordx4 v[112:115], v19, {R(WS)}, s10 offen {SC}
s_cmp_lt_u32 s3, 7
s_cselect_b32 exec_lo, -1, 0
s_cbranch_scc0 {L('nocs')}
""")
with a.skippable():
    a(f"buffer_store_dword v118, v120, {R(WS)}, s11 offen {SC}")
a.label(L('nocs'))
a("s_mov_b64 exec, -1")
a(f"buffer_load_dword v31, v19, {R(DBG)}, 0 offen {SC}", "N0")
a("v_lshlrev_b32 v120, 1, v29\ns_lshl_b32 s9, s66, 6\ns_lshl_b32 s10, s67, 6")
a(f"buffer_load_ushort v27, v120, {R(B1)}, s9 offen", "S")
a(f"buffer_load_ushort v28, v120, {R(B1)}, s10 offen", "S")
st(); st(grp="P")

def side_flags(tg, tmp):
    a(f"s_cmp_eq_u32 s3, 0\ns_cbranch_scc0 {L('nofl'+tg)}")
    with a.skippable():
        a("s_mov_b32 s71, 0")
        a.label(L('nspin'+tg))
        a(f"""
        v_readfirstlane_b32 s9, v31
        s_add_u32 s71, s71, 1
        s_cmp_gt_u32 s71, {SPIN}
        s_cbranch_scc1 {L('nok'+tg)}
        s_cmp_lg_u32 s9, 0
        s_cbranch_scc1 {L('nok'+tg)}
        buffer_load_dword v31, v19, {R(DBG)}, 0 offen {SC}
        s_waitcnt vmcnt(0)
        s_branch {L('nspin'+tg)}
        """)
        a.label(L('nok'+tg))
        a(f"""
        s_lshl_b32 s10, s4, 7
        s_lshl_b32 s11, s79, 2
        s_add_u32 s10, s10, s11
        s_lshl_b32 s11, s79, 7
        s_lshl_b32 s71, s4, 2
        s_add_u32 s11, s11, s71
        s_add_u32 s11, s11, {EFC-EFS}
        v_mov_b32 v{tmp}, s10
        v_writelane_b32 v{tmp}, s11, 1
        s_mov_b32 s10, {EFS}
        s_mov_b64 exec, 3
        buffer_store_dword v31, v{tmp}, {R(WS)}, s10 offen {SC}
        s_mov_b64 exec, -1
        """)
    a.label(L('nofl'+tg))
def side_wphi_dma(tg):
    a(f"s_cmp_lt_u32 s3, 2\ns_cbranch_scc0 {L('nowp'+tg)}")
    with a.skippable():
        a(f"s_add_u32 m0, s70, 14336\ns_lshl_b32 s9, s6, 11\ns_add_u32 s9, s9, s70\nbuffer_load_dwordx4 v26, {R(WPHI)}, s9 offen lds")
    a.label(L('nowp'+tg))
def side_poll_issue(tg):
    a(f"s_cmp_eq_u32 s3, 0\ns_cbranch_scc0 {L('npi'+tg)}")
    with a.skippable():
        a(f"buffer_load_dword v18, v25, {R(WS)}, 0 offen {SC}")
    a.label(L('npi'+tg))
def side_poll_wait(tg, restore_vcc):
    a(f"s_cmp_eq_u32 s3, 0\ns_cbranch_scc0 {L('fok2'+tg)}")
    with a.skippable():
        a("s_mov_b32 s71, 0")
        a.label(L('fspin'+tg))
        a(f"""
        v_cmp_ne_u32 vcc, v18, v31
        s_cmp_eq_u64 vcc, 0
        s_cbranch_scc1 {L('fok'+tg)}
        s_add_u32 s71, s71, 1
        s_cmp_gt_u32 s71, {SPIN}
        s_cbranch_scc1 {L('fok'+tg)}
        s_sleep {SLP}
        buffer_load_dword v18, v25, {R(WS)}, 0 offen {SC}
        s_waitcnt vmcnt(0)
        s_branch {L('fspin'+tg)}
        """)
        a.label(L('fok'+tg))
        if restore_vcc: a("s_mov_b64 vcc, s[80:81]")
        a("ds_write_b32 v19, v31 offset:16380\ns_waitcnt lgkmcnt(0)")
    a.label(L('fok2'+tg))
def side_poll_check(tg, raw, tmp, ptag):
    a(f"ds_read_b32 v31, v19 offset:16380", ptag)
    a(f"""
    v_lshlrev_b32 v{tmp}, 4, v29
    s_lshl_b32 s9, s4, 11
    s_lshl_b32 s10, s62, 9
    s_add_u32 s9, s9, s10
    s_add_u32 s9, s9, {STAT}
    s_xor_b32 s10, s9, 512
    """)
    a(f"s_cmp_lt_u32 s3, 7\ns_cbranch_scc0 {L('nocsd'+tg)}")
    with a.skippable():
        a(f"s_mul_i32 s11, s79, 14336\ns_add_u32 s11, s11, s69\ns_add_u32 s11, s11, {CSP}\ns_mov_b32 m0, s69")
        a(f"buffer_load_dwordx4 v26, {R(WS)}, s11 offen {SC} lds")
        a(f"buffer_load_dwordx4 v26, {R(WS)}, s11 offen offset:1024 {SC} lds")
    a.label(L('nocsd'+tg))
    a(f"buffer_load_dwordx4 {V(raw)}, v{tmp}, {R(WS)}, s9 offen {SC}", "ST")
    a(f"buffer_load_dwordx4 {V(raw+4)}, v{tmp}, {R(WS)}, s10 offen {SC}", "ST")
def side_csred(tg, t16, tmp):
    a(f"s_cmp_lt_u32 s3, 4\ns_cbranch_scc0 {L('nored'+tg)}")
    with a.skippable():
        a(f"v_min_u32 v{tmp}, 223, v0\nv_lshlrev_b32 v{tmp}, 2, v{tmp}")
        for g in range(16): a(f"ds_read_b32 v{t16+g}, v{tmp} offset:{g*896}")
        a("s_waitcnt lgkmcnt(0)")
        for w in (8, 4, 2, 1):
            for g in range(w): a(f"v_add_f32 v{t16+g}, v{t16+g}, v{t16+g+w}")
        a(f"""
        v_cvt_pk_bf16_f32 v{t16+1}, v{t16}, v{t16}
        v_and_b32 v{t16+1}, 0xffff0000, v{t16+1}
        v_sub_f32 v{t16+2}, v{t16}, v{t16+1}
        v_cvt_pk_bf16_f32 v{t16}, v{t16+1}, v{t16+2}
        ds_write_b32 v{tmp}, v{t16}
        """)
    a.label(L('nored'+tg))
def side_bext(raw, BX, RR, tmp):
    for t in range(2):
        s0 = raw+4*t; B = BX+4*t; rr = RR+3*t
        a(f"""
        v_and_b32 v{tmp}, 0xffff, v{s0}
        v_lshl_or_b32 v{B}, v{tmp}, 16, v{tmp}
        v_lshrrev_b32 v{tmp}, 16, v{s0}
        v_lshl_or_b32 v{B+1}, v{tmp}, 16, v{tmp}
        v_mov_b32 v{B+2}, v{s0+1}
        v_mov_b32 v{B+3}, 0
        v_mov_b32 v{rr}, v{s0+2}
        v_mul_f32 v{rr+1}, {LOG2E}, v{s0+2}
        v_mul_f32 v{rr+2}, 0.5, v{s0+2}
        """)
MAP = env("MAP", 0)
if MAP == 0:
    P2MAP = f"""
    s_and_b32 s82, s2, 7
    s_lshl_b32 s82, s82, 2
    s_bfe_u32 s9, s2, 0x20003
    s_add_u32 s82, s82, s9
    s_lshr_b32 s62, s2, 5
    s_mul_i32 s76, s62, 7
    s_lshr_b32 s76, s76, 2
    s_mul_i32 s9, s9, 3
    """
else:
    P2MAP = f"""
    s_bfe_u32 s82, s2, 0x20001
    s_lshl_b32 s82, s82, 3
    s_lshr_b32 s76, s2, 5
    s_add_u32 s82, s82, s76
    s_and_b32 s62, s2, 1
    s_lshl_b32 s62, s62, 2
    s_bfe_u32 s9, s2, 0x20003
    s_add_u32 s62, s62, s9
    s_mul_i32 s76, s76, 7
    s_lshr_b32 s76, s76, 2
    s_mul_i32 s9, s9, 3
    """
P2MAP += f"""
    s_add_u32 s76, s76, s9
    s_lshl_b32 s62, s62, 7
    s_mul_i32 s60, s3, {14*16*1024}
    s_add_u32 s60, s60, s62
    s_add_u32 s83, s60, {14*16384}
    s_lshl_b32 s68, s3, 16
    s_add_u32 s68, s68, s62
"""
TP0 = env("TP0", -1); TPS = env("TPS", 2)
def side_touch(tg, p, r1, r2):
    if TP0 < 0 or p < TP0 or (p-TP0) % TPS or (p-TP0)//TPS >= 8: return
    w = (p-TP0)//TPS
    a(f"s_cmp_eq_u32 s3, {w}\ns_cbranch_scc0 {L(f'pf{tg}{w}')}")
    with a.skippable():
        a(f"""
        s_lshr_b32 s9, s2, 3
        s_lshl_b32 s9, s9, 3
        s_add_u32 s9, s9, s3
        s_and_b32 s71, s2, 1
        s_lshl_b32 s71, s71, 9
        s_mul_i32 s10, s9, {7*1024}
        s_add_u32 s10, s10, s71
        s_lshl_b32 s11, s9, 11
        s_add_u32 s11, s11, s71
        v_lshrrev_b32 v{r1}, 2, v1
        v_and_b32 v{r2}, 3, v1
        v_lshlrev_b32 v{r2}, 7, v{r2}
        v_lshl_add_u32 v{r1}, v{r1}, 10, v{r2}
        s_mov_b64 exec, 0xfffffff
        buffer_load_dword v{r2}, v{r1}, {R(W2)}, s10 offen
        s_mov_b64 exec, 0xff
        buffer_load_dword v{r1}, v{r1}, {R(WO)}, s11 offen
        s_mov_b64 exec, -1
        """)
    a.label(L(f'pf{tg}{w}'))
def side_p2(t3):
    a(f"""
    v_readfirstlane_b32 s75, v31
    v_lshrrev_b32 v{t3}, 3, v1
    v_and_b32 v{t3+1}, 7, v1
    v_lshrrev_b32 v{t3+2}, 2, v1
    v_and_b32 v{t3+2}, 4, v{t3+2}
    v_xor_b32 v{t3+1}, v{t3+1}, v{t3+2}
    v_lshlrev_b32 v{t3}, 10, v{t3}
    v_lshl_add_u32 v18, v{t3+1}, 4, v{t3}
    s_lshl_b32 s74, s4, 2
    s_add_u32 s74, s74, s62
    s_xor_b32 s64, s74, 1
    s_mul_i32 s74, s74, {AF_TG}
    s_mul_i32 s64, s64, {AF_TG}
    {P2MAP}
    s_cmp_ge_u32 s76, 14
    s_cselect_b32 s9, 14, 0
    s_sub_u32 s76, s76, s9
    s_lshl_b32 s61, s76, 14
    s_add_u32 s61, s61, s60
    """)
def p2_adv(x):
    x("s_add_u32 s61, s61, 16384\ns_cmp_eq_u32 s61, s83\ns_cselect_b32 s61, s60, s61")
W2PG = [7, 8, 9, 1, 2, 3, 4, 5, 6]
def p2_dma(x, u, tag, partner=False):
    pg = W2PG[u % 9]
    for half in range(2):
        x(f"s_add_u32 m0, s69, {pg*PG + half*1024}")
        if u < 14:
            if half == 0: x(f"s_add_u32 s71, s61, 8192\nbuffer_load_dwordx4 v18, {R(W2)}, s61 offen lds", tag)
            else: x(f"buffer_load_dwordx4 v18, {R(W2)}, s71 offen lds", tag)
        else:
            x(f"s_add_u32 s71, s68, {((u-14)*16+half*8)*1024}")
            x(f"buffer_load_dwordx4 v18, {R(WO)}, s71 offen lds", tag)
    if partner:
        for half in range(2):
            x(f"s_add_u32 m0, s69, {pg*PG + half*1024 + 8192}\ns_add_u32 s71, s61, {4*14*16384 + half*8192}")
            x(f"buffer_load_dwordx4 v18, {R(W2)}, s71 offen lds", tag)
    if u < 14: p2_adv(x)
def p2_dma_partner(x, u, tag):
    pg = W2PG[u % 9]
    for half in range(2):
        x(f"s_add_u32 m0, s69, {pg*PG + half*1024 + 8192}")
        if u < 14:
            x(f"s_add_u32 s71, s81, {4*14*16384 + half*8192}")
            x(f"buffer_load_dwordx4 v18, {R(W2)}, s71 offen lds", tag)
        else:
            x(f"s_add_u32 s71, s68, {4*65536 + ((u-14)*16+half*8)*1024}")
            x(f"buffer_load_dwordx4 v18, {R(WO)}, s71 offen lds", tag)
    if u < 14: x("s_add_u32 s81, s81, 16384\ns_cmp_eq_u32 s81, s83\ns_cselect_b32 s81, s60, s81")
def p2_dma2(x, u, tag):
    pg = W2PG[u % 9]
    for half in range(2):
        x(f"s_add_u32 m0, s69, {pg*PG + half*1024}")
        if u < 14:
            x(f"s_add_u32 s71, s81, {half*8192}")
            x(f"buffer_load_dwordx4 v18, {R(W2)}, s71 offen lds", tag)
        else:
            x(f"s_add_u32 s71, s68, {((u-14)*16+half*8)*1024}")
            x(f"buffer_load_dwordx4 v18, {R(WO)}, s71 offen lds", tag)
    if u < 14: x("s_add_u32 s81, s81, 16384\ns_cmp_eq_u32 s81, s83\ns_cselect_b32 s81, s60, s81")
def lds_wait(lab, off):
    a("s_mov_b32 s71, 0")
    a.label(L(lab))
    a(f"""
    ds_read_b32 v10, v11 offset:{off}
    s_waitcnt lgkmcnt(0)
    v_readfirstlane_b32 s9, v10
    s_add_u32 s71, s71, 1
    s_cmp_gt_u32 s71, {SPIN*8}
    s_cbranch_scc1 {L(lab+'x')}
    s_cmp_eq_u32 s9, s75
    s_cbranch_scc1 {L(lab+'x')}
    s_sleep 1
    s_branch {L(lab)}
    """)
    a.label(L(lab+'x'))
def softmax(x, P, Pp, Pm, c):
    E = 112
    x(f"""
    v_max3_f32 v2, v{P}, v{P+1}, v{P+2}
    v_max3_f32 v3, -v{P}, -v{P+1}, -v{P+2}
    v_max3_f32 v2, v2, v{P+3}, v{P+4}
    v_max3_f32 v3, v3, -v{P+3}, -v{P+4}
    v_max3_f32 v2, v2, v{P+5}, v{P+6}
    v_max3_f32 v3, v3, -v{P+5}, -v{P+6}
    v_max_f32 v2, v2, v{P+7}
    v_max_f32_e64 v3, v3, -v{P+7}
    v_permlane32_swap_b32 v2, v3
    v_max_f32 v2, v2, v3
    v_mul_f32_e64 v2, -v2, v{c}
    v_mov_b32 v3, v2
    v_permlane32_swap_b32 v2, v3
    """)
    for r in range(8): x(f"v_fma_f32 v{E+r}, -v{P+r}, v{c}, v3\nv_fma_f32 v{P+r}, v{P+r}, v{c}, v2")
    for r in range(8): x(f"v_exp_f32 v{E+r}, v{E+r}\nv_exp_f32 v{P+r}, v{P+r}")
    x(f"v_add_f32 v2, v{P}, v{P+1}\nv_add_f32 v3, v{E}, v{E+1}")
    for r in range(2, 8): x(f"v_add_f32 v2, v2, v{P+r}\nv_add_f32 v3, v3, v{E+r}")
    x("v_permlane32_swap_b32 v2, v3\nv_add_f32 v2, v2, v3\nv_rcp_f32 v2, v2\nv_mov_b32 v3, v2\nv_permlane32_swap_b32 v2, v3")
    for r in range(8): x(f"v_mul_f32 v{P+r}, v{P+r}, v2\nv_mul_f32 v{E+r}, v{E+r}, v3")
    for q in range(4): x(f"v_cvt_pk_bf16_f32 v{Pp+q}, v{P+2*q}, v{P+2*q+1}\nv_cvt_pk_bf16_f32 v{Pm+q}, v{E+2*q}, v{E+2*q+1}")
def ffn_epi(x, acc, s_tile, f, rh, so=9):
    a(f"s_lshl_b32 s{so}, s{s_tile}, 11\ns_add_u32 s{so}, s{so}, s{(74,64)[f]}")
    for r in range(16): x(f"v_add_f32_e64 v{acc+r}, v{acc+r}, |v{acc+r}|")
    for r in range(16): x(f"v_mul_f32 v{acc+r}, v{acc+r}, v{rh}")
    for r in range(16): x(f"v_mul_f32 v{acc+r}, v{acc+r}, v{acc+r}")
    for q in range(8): x(f"v_cvt_pk_bf16_f32 v{acc+q}, v{acc+2*q}, v{acc+2*q+1}")
    x(f"buffer_store_dwordx4 {V(acc)}, v26, {R(WS)}, s{so} offen {SC}", "H")
    x(f"buffer_store_dwordx4 {V(acc+4)}, v26, {R(WS)}, s{so} offen offset:1024 {SC}", "H")
def flag_store(soff):
    a(f"""
    v_mov_b32 v31, s75
    s_mov_b64 exec, 1
    buffer_store_dword v31, v19, {R(WS)}, {soff} offen {SC}
    s_mov_b64 exec, -1
    """)
WREG = 128; P2ACC = 64; WTMP = 48; TRA = 2
def p2_traddr(t=2, q=8):
    a(f"""
    v_lshrrev_b32 v{q}, 5, v1
    v_bfe_u32 v{q+1}, v1, 2, 2
    v_lshl_add_u32 v{q}, v{q}, 2, v{q+1}
    v_lshlrev_b32 v{q}, 7, v{q}
    v_and_b32 v{q+2}, 3, v1
    v_lshl_add_u32 v{q}, v{q+2}, 3, v{q}
    v_bfe_u32 v{q+2}, v1, 4, 1
    v_and_b32 v{q+1}, 2, v{q+1}
    v_or_b32 v{q+2}, v{q+2}, v{q+1}
    v_lshl_add_u32 v{t}, v{q+2}, 5, v{q}
    v_add_u32 v{t}, s69, v{t}
    v_xor_b32 v{t+1}, 64, v{t}
    v_add_u32 v{t+2}, 0x10000, v{t}
    v_add_u32 v{t+3}, 0x10000, v{t+1}
    v_add_u32 v{t+4}, 0x20000, v{t}
    v_add_u32 v{t+5}, 0x20000, v{t+1}
    """)
def p2_tr(x, dst, u, tag):
    pg = W2PG[u % 9]
    for b in range(2):
        for e in range(2):
            x(f"ds_read_b64_tr_b16 {V(dst+4*b+2*e,2)}, v{TRA+2*(pg>>2)+b} offset:{(pg&3)*PG+e*1024}", tag)
def hflag():
    a(f"""
    s_lshl_b32 s9, s4, 1
    s_add_u32 s9, s9, s7
    s_lshl_b32 s77, s9, 8
    s_lshl_b32 s10, s79, 2
    s_add_u32 s10, s10, s63
    s_lshl_b32 s10, s10, 2
    s_add_u32 s9, s77, s10
    s_add_u32 s9, s9, {HF}
    """)
    flag_store("s9")
def kvpoll(w, lab):
    a(f"s_cmp_eq_u32 s3, {w}\ns_cbranch_scc0 {L(lab)}")
    with a.skippable():
        a("s_mov_b32 s71, 0")
        a.label(L('pk'))
        a(f"""
        buffer_load_dwordx2 v[10:11], v8, {R(WS)}, s66 offen {SC}
        s_waitcnt vmcnt(0)
        v_cmp_ne_u32 vcc, s75, v10
        v_cmp_ne_u32 s[80:81], s75, v11
        s_or_b64 vcc, vcc, s[80:81]
        s_cmp_eq_u64 vcc, 0
        s_cbranch_scc1 {L('pk2')}
        s_add_u32 s71, s71, 1
        s_cmp_gt_u32 s71, {SPIN}
        s_cbranch_scc1 {L('pk2')}
        s_sleep {SLP}
        s_branch {L('pk')}
        """)
        a.label(L('pk2'))
        for q in range(9):
            a(f"s_mov_b32 m0, {q*1024}\ns_add_u32 s10, s72, {q*1024}\nbuffer_load_dwordx4 v26, {R(WS)}, s10 offen {SC} lds")
        a("s_waitcnt vmcnt(0)\nv_mov_b32 v10, s75\nds_write_b32 v19, v10 offset:12288")
    a.label(L(lab))
ACC = [32, 48, 64, 80]
T = 96; KP = 2*PG; XF = 128
a(f"s_cmp_eq_u32 s5, 0\ns_cbranch_scc0 {L('typeB')}")
a.qsave("br")
for p in range(4): dma(1, p)
for i in range(8): a(f"v_add_u32 v{112+i}, {2*SLOT}, v{8+i}")
a(f"v_add_u32 v17, {2*SLOT}, v16")
a("v_lshlrev_b32 v121, 2, v30\nv_sub_u32 v121, v29, v121\nv_mov_b32 v122, 0x3f80\nv_mov_b32 v123, 0x3f800000")
SEL, WPH, BX, RRA, RAW = 64, 72, 76, 84, 120
for k in range(8):
    sg = k >> 2; q = k & 3
    f0 = (2*q & 3) + 8*((2*q) >> 2) + 16*sg
    a(f"v_cmp_eq_u32 vcc, {f0}, v121\nv_cndmask_b32 v{SEL+k}, 0, v122, vcc\nv_cmp_eq_u32 vcc, {f0+1}, v121\nv_cndmask_b32 v{SEL+k}, v{SEL+k}, v123, vcc")
st(grp="P"); a.wv("C0"); st(grp="P"); a("s_barrier"); st(grp="P")
st(grp="A")
def rdA(p):
    i = p & 3; b = 96 + 8*(p & 1); c = p >> 2; sl = c % 3
    ab = 8 if sl < 2 else 112; so = SLOT if sl == 1 else 0
    a(f"ds_read_b128 {V(XF+4*p)}, v{ab+i} offset:{so}", f"P{p}")
    for e in range(2): a(f"ds_read_b64_tr_b16 {V(b+4+2*e,2)}, v{16 if sl < 2 else 17} offset:{so+i*2048+e*512}", f"P{p}")
    a(f"ds_read_b128 {V(b)}, v{ab+4+i} offset:{so}", f"P{p}")
rdA(0)
for p in range(32):
    c = p >> 2; i = p & 3
    a.wl(f"P{p}")
    if i == 3 and c < 7:
        a.wv(f"C{c+1}")
        if p == 23: side_poll_wait("A", False)
        a("s_barrier"); st(grp="A")
    if p+1 < 32: rdA(p+1)
    b = 96 + 8*(p & 1)
    a(f"{MF} {V(ACC[0],16)}, {V(b+4)}, {V(XF+4*p)}, {V(ACC[0],16) if p else 0}")
    if p < 2: dma(2, 2*p); dma(2, 2*p+1)
    elif p >= 3:
        cc = ((p-3) >> 2) + 3
        if cc <= 7: dma(cc, (p-3) & 3)
    a(f"{MF} {V(ACC[1],16)}, {V(b+4)}, {V(b)}, {V(ACC[1],16) if p else 0}")
    side_touch("A", p, 94, 95)
    if p == 0: side_wphi_dma("A")
    if p == 3: side_flags("A", 90)
    if p == 8:
        for e in range(2): a(f"ds_read_b64_tr_b16 {V(WPH+2*e,2)}, v21 offset:{e*256}", f"P{p+1}")
    if p == 17: side_poll_issue("A")
    if p == 23: side_poll_check("A", RAW, 92, "P24")
    if p == 24: side_p2(90)
    if p in (24, 25, 26): p2_dma(a, p-24, "D1")
    if p == 28: p2_dma(a, 3, "D1")
st(); st(grp="B")
a.wv("ST"); a("s_barrier")
side_csred("A", 96, 92)
side_bext(RAW, BX, RRA, 92)
a("v_mov_b32 v95, v6")
a("s_waitcnt lgkmcnt(0)\ns_barrier")
st(grp="B")
a(f"""
ds_read_b32 v120, v23
ds_read_b32 v4, v24
v_cmp_gt_u32 vcc, 32, v1
v_lshl_or_b32 v28, v28, 16, v28
v_cndmask_b32 v6, 0, v28, vcc
v_cmp_eq_u32 s[80:81], 16, v29
v_cndmask_b32 v27, 0, v22, s[80:81]
v_mov_b32 v122, 0
v_mov_b32 v123, 0
v_mov_b32 v7, 0
s_waitcnt lgkmcnt(0)
v_cndmask_b32 v120, 0, v120, vcc
v_cndmask_b32 v4, 0, v4, vcc
v_mov_b32 v121, v120
v_mov_b32 v5, v4
{MF} {V(ACC[0],16)}, v[120:123], {V(BX)}, {V(ACC[0],16)}
{MF} {V(ACC[1],16)}, v[120:123], {V(BX+4)}, {V(ACC[1],16)}
""")
KVA = 8
a("v_mov_b32 v90, v18\nv_mov_b32 v91, v20")
E = a.sub(); D = a.sub()
for f in range(2):
    acc = ACC[f]; rr = RRA+3*f
    for q in range(4): E(f"v_cvt_pk_bf16_f32 v{120+q}, v{acc+2*q}, v{acc+2*q+1}")
    E(f"{MF} {V(T,16)}, {V(WPH)}, v[120:123], 0")
    for r in range(8, 16): E(f"v_mul_f32 v{acc+r}, v{acc+r}, v{rr}")
    for q in range(4): E(f"v_cvt_pk_bf16_f32 v{120+q}, v{acc+8+2*q}, v{acc+9+2*q}")
    E(f"{MF} {V(acc,16)}, v[120:123], {V(SEL)}, 0")
    softmax(E, T, 120, 124, rr+1)
    E(f"{MF} {V(T,16)}, v[120:123], {V(SEL)}, 0")
    E(f"{MF} {V(T,16)}, v[124:127], {V(SEL+4)}, {V(T,16)}")
    for q in range(8): E(f"v_cvt_pk_bf16_f32 v{112+q}, v{acc+2*q}, v{acc+2*q+1}\nv_or_b32 v{112+q}, v{112+q}, v27")
    for q in range(8): E(f"v_cvt_pk_bf16_f32 v{T+q}, v{T+2*q}, v{T+2*q+1}")
    E(f"{MF} {V(KVA,16)}, {V(T)}, v[112:115], {V(KVA,16) if f else 0}")
    E(f"{MF} {V(KVA,16)}, {V(T+4)}, v[116:119], {V(KVA,16)}")
for c in range(8):
    D(f"s_add_u32 m0, s70, {3*PG + c*8192}")
    D(f"buffer_load_dwordx4 v95, {R(W1)}, s73 offen lds", "I2")
    D(f"s_add_u32 s73, s73, {64*3584}")
nE = len(E.items)*env("EFR", 6)//10
E1 = a.sub(); E1.items = E.items[:nE]; E2 = a.sub(); E2.items = E.items[nE:]
a.merge(E1, D); a.extend(E2)
st(grp="B")
a(f"""
s_lshl_b32 s9, s63, 12
s_lshl_b32 s10, s7, 11
s_add_u32 s9, s9, s10
s_add_u32 s9, s9, {KP}
v_add_u32 v92, s9, v26
v_xor_b32 v93, 0x800, v92
v_mul_u32_u24 v94, 17, v30
v_add_u32 v94, v94, v29
v_lshlrev_b32 v94, 2, v94
s_mul_i32 s10, s63, 2176
s_mul_i32 s11, s7, {8*136}
s_add_u32 s10, s10, s11
s_add_u32 s10, s10, s72
v_cmp_gt_u32 s[80:81], 17, v29
s_cmp_eq_u32 s7, 0
s_cbranch_scc1 {L('kv0')}
""")
with a.skippable():
    for q in range(2): a(f"ds_write_b128 v92, {V(KVA+4*q)} offset:{q*1024}")
    for r in range(8): a(f"v_mov_b32 v{KVA+r}, v{KVA+8+r}")
    a(f"s_branch {L('kv1')}")
a.label(L('kv0'))
with a.skippable():
    for q in range(2): a(f"ds_write_b128 v92, {V(KVA+8+4*q)} offset:{q*1024}")
a.label(L('kv1'))
a.wv("I2")
a("s_waitcnt lgkmcnt(0)\ns_barrier")
for q in range(2): a(f"ds_read_b128 {V(T+4*q)}, v93 offset:{q*1024}")
a(f"v_mov_b32 v18, v90\nv_mov_b32 v19, 0\nv_add_u32 v20, {3*PG}, v91")
a("s_waitcnt lgkmcnt(0)")
for r in range(8): a(f"v_add_f32 v{KVA+r}, v{KVA+r}, v{T+r}")
a("s_mov_b64 exec, s[80:81]")
for r in range(8): a(f"buffer_atomic_add_f32 v{KVA+r}, v94, {R(WS)}, s10 offen offset:{r*136}", "AT")
a("s_mov_b64 exec, -1")
st(grp="B")
A2 = 32
def rd2(k):
    b = 48 + 4*(k % 4)
    for e in range(2): a(f"ds_read_b64_tr_b16 {V(b+2*e,2)}, v20 offset:{k*2048+e*512}", f"B{k}")
a(f"{MF} {V(A2,16)}, v[4:7], {V(BX)}, 0")
rd2(0); rd2(1); rd2(2)
K1 = env("K1", 0); K2 = env("K2", 17)
TRA = 96
if K1: p2_traddr(96, 104)
a(f"s_add_u32 s81, s61, {5*16384}\ns_sub_u32 s9, s81, {14*16384}\ns_cmp_ge_u32 s81, s83\ns_cselect_b32 s81, s9, s81")
for k in range(32):
    if k+3 < 32: rd2(k+3)
    a.wl(f"B{k}")
    a(f"{MF} {V(A2,16)}, {V(48+4*(k%4))}, {V(XF+4*k)}, {V(A2,16)}")
    if K1 and k == K1:
        for u in range(4): p2_tr(a, WREG+8*u, u, f"B{k+4}")
    if K1 and K1+4 <= k < K1+8: p2_dma2(a, 9+k-K1-4, "D2")
    if K1 and k == K2: a("s_barrier")
    if K1 and k in (K2+5, K2+7, K2+9): p2_dma(a, 4+(k-K2-5)//2, "D1")
    if k == env("KVK", 20):
        a.wv("AT")
        a(f"""
        s_lshl_b32 s9, s6, 9
        s_lshl_b32 s10, s4, 5
        s_add_u32 s9, s9, s10
        s_lshl_b32 s10, s3, 2
        s_add_u32 s9, s9, s10
        s_add_u32 s9, s9, {KVF}
        """)
        flag_store("s9")
        st(grp="B")
ffn_epi(a, A2, 67, 0, RRA+2)
st()
TRA = 2
p2_traddr()
if K1:
    a("s_barrier")
    for u in range(7, 9): p2_dma(a, u, "D1x")
    a.wv("H")
    hflag()
    st()
    for u in range(4, 7): p2_tr(a, WREG+8*u, u, "W1")
    a("s_barrier")
    a.wl("W1")
    for u in range(13, 16): p2_dma2(a, u, "D2")
    a.wv("D1x")
    for u in range(7, 9): p2_tr(a, WREG+8*u, u, "W1")
    a.wl("W1")
    for u in range(16, 18): p2_dma2(a, u, "D2")
else:
    for u in range(4): p2_tr(a, WREG+8*u, u, "W1")
    a("s_barrier")
    for u in range(4, 6): p2_dma(a, u, "D1")
    a.wv("H")
    hflag()
    st()
    a("s_barrier")
    for u in range(6, 9): p2_dma(a, u, "D1")
    a.wl("W1")
    for u in range(9, 13): p2_dma(a, u, "D2")
    a.wv("D1")
    for u in range(4, 9): p2_tr(a, WREG+8*u, u, "W1")
    a.wl("W1")
    for u in range(13, 18): p2_dma(a, u, "D2")
a(f"s_branch {L('tail')}")
a.label(L('typeB'))
a.qload("br")
for p in range(6): dma(1, p)
for i in range(10): a(f"v_add_u32 v{160+i}, {2*SLOT}, v{8+i}")
a("s_cmp_eq_u32 s8, 0\ns_cselect_b64 s[80:81], -1, 0\ns_mov_b64 vcc, s[80:81]")
st(5, grp="P"); a.wv("C0"); st(grp="P"); a("s_barrier"); st(grp="P")
st(1, grp="A")
def rdB(p):
    i = p & 3; b = 96 + 16*(p & 1); c = p >> 2; sl = c % 3
    ab = 8 if sl < 2 else 160; so = SLOT if sl == 1 else 0
    a(f"ds_read_b128 {V(b)}, v{ab+i} offset:{so}", f"P{p}")
    for e in range(2): a(f"ds_read_b64_tr_b16 {V(b+8+2*e,2)}, v{ab+8} offset:{so+i*2048+e*512}", f"P{p}")
    a(f"ds_read_b128 {V(b+4)}, v{ab+4+i} offset:{so}", f"P{p}")
    for e in range(2): a(f"ds_read_b64_tr_b16 {V(b+12+2*e,2)}, v{ab+9} offset:{so+i*2048+e*512}", f"P{p}")
rdB(0)
WPB, BXB, RRB, RAWB = 200, 208, 220, 232
for p in range(32):
    c = p >> 2; i = p & 3
    a.wl(f"P{p}")
    if i == 3 and c < 7:
        a.wv(f"C{c+1}")
        if p == 19: side_poll_wait("B", True)
        a("s_barrier"); st(grp="A")
    if p+1 < 32: rdB(p+1)
    b = 96 + 16*(p & 1)
    a(f"{MF} {V(ACC[0],16)}, {V(b+8)}, {V(b)}, {V(ACC[0],16) if p else 0}")
    a(f"{MF} {V(ACC[1],16)}, {V(b+8)}, {V(b+4)}, {V(ACC[1],16) if p else 0}")
    if p < 3: dma(2, 2*p); dma(2, 2*p+1)
    else:
        cc = ((p-3) >> 2) + 3; q = (p-3) & 3
        if cc <= 7:
            for piece in ((0,1),(2,3),(4,),(5,))[q]: dma(cc, piece)
    a(f"{MF} {V(ACC[2],16)}, {V(b+12)}, {V(b)}, {V(ACC[2],16) if p else 0}")
    a(f"s_cbranch_vccz {L(f'm4_{p}')}")
    with a.skippable():
        a(f"{MF} {V(ACC[3],16)}, {V(b+12)}, {V(b+4)}, {V(ACC[3],16) if p else 0}")
    a.label(L(f"m4_{p}"))
    side_touch("B", p, 250, 251)
    if p == 0: side_wphi_dma("B")
    if p == 3: side_flags("B", 240)
    if p == 8:
        for h in range(2):
            for e in range(2): a(f"ds_read_b64_tr_b16 {V(WPB+4*h+2*e,2)}, v21 offset:{h*512+e*256}", f"P{p+1}")
    if p == 13: side_poll_issue("B")
    if p == 19: side_poll_check("B", RAWB, 240, "P20")
    if p == 26: a.wv("ST")
    if p == 28: side_csred("B", 144, 240)
    if p == 29: side_bext(RAWB, BXB, RRB, 240)
    if p == 22: side_p2(240)
    if p in (23, 24, 25): p2_dma(a, p-23, "D1a")
    if p in (27, 29, 30): p2_dma(a, {27:3, 29:4, 30:5}[p], "D1b")
st(2)
a("s_waitcnt lgkmcnt(0)\ns_barrier")
a(f"""
ds_read_b32 v216, v23
ds_read_b32 v240, v24
v_cmp_gt_u32 vcc, 32, v1
v_lshl_or_b32 v27, v27, 16, v27
v_lshl_or_b32 v28, v28, 16, v28
s_and_b64 s[80:81], s[80:81], vcc
v_cndmask_b32 v218, 0, v27, s[80:81]
v_cndmask_b32 v242, 0, v28, vcc
v_mov_b32 v219, 0
v_mov_b32 v243, 0
s_waitcnt lgkmcnt(0)
v_cndmask_b32 v216, 0, v216, vcc
v_cndmask_b32 v240, 0, v240, vcc
v_mov_b32 v217, v216
v_mov_b32 v241, v240
{MF} {V(ACC[0],16)}, v[216:219], {V(BXB)}, {V(ACC[0],16)}
{MF} {V(ACC[1],16)}, v[216:219], {V(BXB+4)}, {V(ACC[1],16)}
{MF} {V(ACC[2],16)}, v[240:243], {V(BXB)}, {V(ACC[2],16)}
{MF} {V(ACC[3],16)}, v[240:243], {V(BXB+4)}, {V(ACC[3],16)}
""")
for u in range(6, 9): p2_dma(a, u, "D1c")
TRA = 12
p2_traddr(12)
def w2step(k):
    if k == 0:
        a.wv("D1a")
        for u in range(0, 3): p2_tr(a, WREG+8*u, u, "W1")
    elif k == 1:
        a.wl("W1")
        for u in range(9, 12): p2_dma(a, u, "D2")
        a.wv("D1b")
        for u in range(3, 6): p2_tr(a, WREG+8*u, u, "W1")
    elif k == 2:
        a.wl("W1")
        for u in range(12, 15): p2_dma(a, u, "D2")
        a.wv("D1c")
        for u in range(6, 9): p2_tr(a, WREG+8*u, u, "W1")
    elif k == 3:
        a.wl("W1")
        for u in range(15, 18): p2_dma(a, u, "D2")
a(f"s_cmp_eq_u32 s8, 0\ns_cbranch_scc0 {L('Bq')}")
a.qsave("bq")
ffn_epi(a, ACC[0], 66, 0, RRB+2)
ffn_epi(a, ACC[1], 66, 1, RRB+5)
ffn_epi(a, ACC[2], 67, 0, RRB+2)
ffn_epi(a, ACC[3], 67, 1, RRB+5)
st(3)
a.wv("D1c")
for u in range(9): p2_tr(a, WREG+8*u, u, "W1")
a.wv("H")
hflag()
a("s_mov_b32 s81, s61\ns_lshl_b32 s9, s3, 2\nv_mov_b32 v11, s9")
a.wl("W1")
for u in range(9, 18): p2_dma(a, u, "D2")
lds_wait("pw", 12304)
for u in range(9, 18): p2_dma_partner(a, u, "D2")
a("s_waitcnt vmcnt(0)\nv_mov_b32 v10, s75\nds_write_b32 v11, v10 offset:12320")
st(4)
a(f"s_branch {L('tailB')}")
a.label(L('Bq'))
a.qload("bq")
stor = {(0,0): (80, 84), (0,1): (88, 92), (1,0): (232, 236), (1,1): (240, 244)}
ffn_epi(a, ACC[2], 67, 0, RRB+2)
a(f"v_lshlrev_b32 v8, 3, v1\ns_lshl_b32 s66, s6, 9\ns_add_u32 s66, s66, {KVF}\ns_mul_i32 s11, s78, 4352")
for f in range(2):
    acc = ACC[f]
    for q in range(8): a(f"v_cvt_pk_bf16_f32 v{acc+q}, v{acc+2*q}, v{acc+2*q+1}")
    for h in range(2):
        a(f"{MF} {V(T,16)}, {V(WPB+4*h)}, {V(acc+4*h)}, 0")
        if 2*f+h == TRP:
            a.wv("H"); hflag()
            for u in range(9): p2_tr(a, WREG+8*u, u, "W1")
        if 2*f+h == TRP+1:
            a.wl("W1")
            a("s_lshl_b32 s9, s3, 2\nv_mov_b32 v9, s9\nv_mov_b32 v10, s75\nds_write_b32 v9, v10 offset:12288")
        softmax(a, T, stor[(f,h)][0], stor[(f,h)][1], RRB+1+3*f)
st(3)
a(f"""
v_min_u32 v9, 16, v29
v_mul_u32_u24 v10, 17, v30
v_add_u32 v9, v9, v10
v_lshlrev_b32 v9, 2, v9
v_add_u32 v9, s11, v9
""")
kvpoll(4, 'nopk')
a("s_mov_b32 s71, 0")
a.label(L('lf1'))
a(f"""
ds_read_b32 v10, v19 offset:12288
s_waitcnt lgkmcnt(0)
v_readfirstlane_b32 s9, v10
s_add_u32 s71, s71, 1
s_cmp_gt_u32 s71, {SPIN*8}
s_cbranch_scc1 {L('lf2')}
s_cmp_eq_u32 s9, s75
s_cbranch_scc1 {L('lf2')}
s_sleep 1
s_branch {L('lf1')}
""")
a.label(L('lf2'))
for h in range(2):
    for r in range(16): a(f"ds_read_b32 v{32+16*h+r}, v9 offset:{h*2176+r*136}", f"K{h}")
a(f"s_add_u32 s9, s65, 112\ns_lshl_b32 s9, s9, 10\ns_add_u32 s10, s9, s64\ns_add_u32 s9, s9, s74")
for h in range(2):
    kb = 32+16*h
    a.wl(f"K{h}")
    for q in range(8): a(f"v_cvt_pk_bf16_f32 v{kb+q}, v{kb+2*q}, v{kb+2*q+1}")
    for f in range(2):
        Tt = 96+16*f
        a(f"{MF} {V(Tt,16)}, {V(kb)}, {V(stor[(f,h)][0])}, 0")
        a(f"{MF} {V(Tt,16)}, {V(kb+4)}, {V(stor[(f,h)][1])}, {V(Tt,16)}")
    for f in range(2):
        Tt = 96+16*f; o = kb+8+4*f
        a(f"v_add_f32 v8, 0x358637bd, v{Tt+8}\nv_rcp_f32 v8, v8")
        for r in range(8): a(f"v_mul_f32 v{Tt+r}, v{Tt+r}, v8")
        for q in range(4): a(f"v_cvt_pk_bf16_f32 v{o+q}, v{Tt+2*q}, v{Tt+2*q+1}")
        a(f"buffer_store_dwordx4 {V(o)}, v26, {R(WS)}, {('s9','s10')[f]} offen offset:{h*1024} {SC}", "O")
a.wv("O")
a(f"s_lshl_b32 s9, s6, 3\ns_lshl_b32 s10, s78, 2\ns_add_u32 s9, s9, s10\ns_add_u32 s9, s9, s77\ns_add_u32 s9, s9, {OF}")
flag_store("s9")
st()
a("s_lshl_b32 s9, s3, 2\nv_mov_b32 v11, s9")
lds_wait("r2w", 12320-16)
a.label(L('tailB'))
for i in range(6): a(f"v_mov_b32 v{2+i}, v{12+i}")
TRA = 2
a.label(L('tail'))
a(f"""
s_mul_i32 s64, s82, {2*AF_TG}
s_mul_i32 s65, s3, {14*1024}
s_add_u32 s65, s65, s64
s_lshl_b32 s66, s3, 12
s_add_u32 s66, s66, s64
s_add_u32 s66, s66, {112*1024}
s_add_u32 s67, s66, {AF_TG}
s_lshl_b32 s9, s82, 8
s_add_u32 s72, s9, {HF}
s_add_u32 s73, s9, {OF}
v_lshlrev_b32 v0, 4, v1
v_lshlrev_b32 v8, 2, v1
""")
st(5)
a(f"s_cmp_eq_u32 s3, 0\ns_cbranch_scc0 {L('phok')}")
with a.skippable():
    a("s_mov_b32 s79, 0")
    a.label(L('ph'))
    a(f"""
    buffer_load_dword v10, v8, {R(WS)}, s72 offen {SC}
    s_waitcnt vmcnt(0)
    v_cmp_ne_u32 vcc, s75, v10
    s_cmp_eq_u64 vcc, 0
    s_cbranch_scc1 {L('phok')}
    s_add_u32 s79, s79, 1
    s_cmp_gt_u32 s79, {SPIN}
    s_cbranch_scc1 {L('phok')}
    s_sleep {SLP}
    s_branch {L('ph')}
    """)
if env("DEC", 1):
    a.label(L('phok2')) if False else None
a.label(L('phok'))
if env("DEC", 1):
    a(f"s_cmp_eq_u32 s3, 0\ns_cbranch_scc0 {L('hw0')}")
    with a.skippable():
        a("v_mov_b32 v10, s75\nds_write_b32 v19, v10 offset:12352")
    a.label(L('hw0'))
    a("v_mov_b32 v11, 0")
    lds_wait("hw", 12352)
else:
    a("s_barrier")
st(); st(1, grp="T")
abuf = [200+8*i for i in range(7)] + [16+8*i for i in range(4)]
NA = 11
a(f"""
s_mov_b32 s60, s65
s_add_u32 s83, s65, {14*1024}
s_lshl_b32 s9, s76, 10
s_add_u32 s65, s65, s9
""")
def aload(u):
    r = abuf[u % NA]
    if u < 14:
        a(f"s_add_u32 s71, s65, {AF_TG}")
        a(f"buffer_load_dwordx4 {V(r)}, v0, {R(WS)}, s65 offen {ASC}", f"A{u}")
        a(f"buffer_load_dwordx4 {V(r+4)}, v0, {R(WS)}, s71 offen {ASC}", f"A{u}")
        a("s_add_u32 s65, s65, 1024\ns_cmp_eq_u32 s65, s83\ns_cselect_b32 s65, s60, s65")
    else:
        for tb in range(2):
            a(f"buffer_load_dwordx4 {V(r+4*tb)}, v0, {R(WS)}, s{(66,67)[tb]} offen offset:{(u-14)*1024} {SC}", f"A{u}")
NW = env("NW", 11)
OCK = min(OCK, 14-NW) if NW < 11 else OCK
FOP = max(0, OCK - 2)
for u in range(NW):
    aload(u)
    if NW == 11 and u == OCK: a(f"buffer_load_dword v10, v8, {R(WS)}, s73 offen {SC}", f"A{OCK}")
def mfmas(u, w):
    r = abuf[u % NA]
    for tb in range(2):
        for nb in range(2):
            d = P2ACC + 16*(2*tb+nb)
            a(f"{MF} {V(d,16)}, {V(w+4*nb)}, {V(r+4*tb)}, {V(d,16) if u else 0}")
a(f"""
v_lshrrev_b32 v12, 3, v1
v_lshlrev_b32 v12, 10, v12
v_and_b32 v13, 7, v1
v_lshlrev_b32 v13, 4, v13
v_add_u32 v12, v12, v13
s_lshl_b32 s74, s82, 16
s_lshl_b32 s9, s3, 13
s_add_u32 s74, s74, s9
s_add_u32 s74, s74, s62
""")
for u in range(18):
    if u == 8: p2_tr(a, WTMP, 9, "T9")
    if 9 <= u < 17: p2_tr(a, WTMP + 8*((u-8)&1), u+1, f"T{u+1}")
    if u >= 9: a.wl(f"T{u}")
    a.wv(f"A{u}")
    if u in (0, 7, 14): st(grp="T")
    mfmas(u, WREG+8*u if u < 9 else WTMP+8*((u-9)&1))
    if NW == 11:
        if u < 3: aload(u+NA)
    else:
        if u+NW < 14: aload(u+NW)
        if u+NW == OCK+0: a(f"buffer_load_dword v10, v8, {R(WS)}, s73 offen {SC}", f"A{OCK}")
        if u > OCK and u+NW < 18: aload(u+NW)  if u+NW >= 14 else None
    if u == 3:
        a(f"buffer_load_dwordx4 v[128:131], v12, {R(X)}, s74 offen", "X")
        a(f"buffer_load_dwordx4 v[132:135], v13, {R(B2)}, s62 offen", "X")
    if u == OCK:
        a("s_mov_b32 s79, 0")
        a.label(L('po'))
        a(f"""
        v_cmp_ne_u32 vcc, s75, v10
        s_and_b32 s9, vcc_lo, 0xffff
        s_cmp_eq_u32 s9, 0
        s_cbranch_scc1 {L('pook')}
        s_add_u32 s79, s79, 1
        s_cmp_gt_u32 s79, {SPIN}
        s_cbranch_scc1 {L('pook')}
        """)
        with a.skippable():
            a(f"s_sleep 16\nbuffer_load_dword v10, v8, {R(WS)}, s73 offen {SC}\ns_waitcnt vmcnt(0)\ns_branch {L('po')}")
        a.label(L('pook'))
        if NW == 11:
            for uu in range(14, 18): aload(uu)
        else: aload(14)
st(); st(grp="T")
a(f"""
v_bfe_u32 v8, v1, 3, 2
v_lshlrev_b32 v8, 14, v8
v_and_b32 v9, 7, v1
v_lshl_add_u32 v8, v9, 8, v8
v_lshrrev_b32 v10, 5, v1
v_xor_b32 v10, v10, v9
v_lshl_add_u32 v8, v10, 4, v8
s_add_u32 s9, s69, {PG}
v_add_u32 v8, s9, v8
v_xor_b32 v9, 32, v8
v_xor_b32 v10, 64, v8
v_xor_b32 v11, 96, v8
v_add_u32 v2, 0x10000, v8
v_add_u32 v3, 0x10000, v9
v_add_u32 v4, 0x10000, v10
v_add_u32 v5, 0x10000, v11
""")
for tb in range(2):
    for nb in range(2):
        for qq in range(4):
            d = P2ACC + 16*(2*tb+nb) + 4*qq
            a(f"ds_write_b128 v{(8,2)[tb]+qq}, {V(d)} offset:{nb*128}")
a("""
v_lshrrev_b32 v6, 3, v1
v_and_b32 v7, 7, v1
v_lshlrev_b32 v7, 1, v7
v_xor_b32 v7, v7, v6
v_lshlrev_b32 v6, 8, v6
v_lshl_add_u32 v6, v7, 4, v6
s_lshl_b32 s9, s3, 14
s_add_u32 s9, s9, 16384
v_add_u32 v6, s9, v6
v_xor_b32 v7, 16, v6
s_waitcnt lgkmcnt(0)
""")
st(grp="T"); a("s_barrier"); st(grp="T")
RR = 160
for w in range(8):
    for e in range(2):
        a(f"ds_read_b128 {V(RR+8*w+4*e)}, v{6+e} offset:{w*2048}", f"R{w}")
a.wv("X")
for i in range(4):
    a(f"v_lshlrev_b32 v{24+2*i}, 16, v{128+i}\nv_and_b32 v{25+2*i}, 0xffff0000, v{128+i}")
    a(f"v_lshlrev_b32 v{32+2*i}, 16, v{132+i}\nv_and_b32 v{33+2*i}, 0xffff0000, v{132+i}")
for i in range(8): a(f"v_add_f32 v{24+i}, v{24+i}, v{32+i}")
for w in range(8):
    a.wl(f"R{w}")
    for i in range(8): a(f"v_add_f32 v{24+i}, v{24+i}, v{RR+8*w+i}")
for i in range(4): a(f"v_cvt_pk_bf16_f32 v{32+i}, v{24+2*i}, v{25+2*i}")
a(f"buffer_store_dwordx4 v[32:35], v12, {R(OUT)}, s74 offen {os.environ.get('OSC','')}")
st(grp="T")
if INSTR:
    a("s_waitcnt vmcnt(0)"); st()
    nst[0] = 9
    a(f"s_waitcnt lgkmcnt(0)\ns_lshl_b32 s9, s2, 3\ns_add_u32 s9, s9, s3\ns_lshl_b32 s9, s9, 6\ns_add_u32 s9, s9, {STAMPS}")
    a("v_mov_b32 v0, 0\ns_mov_b64 exec, 1")
    for i in range(nst[0]):
        a(f"v_mov_b32 v1, s{84+2*i}\nbuffer_store_dword v1, v0, {R(WS)}, s9 offen offset:{4*i}\ns_nop 1")
a.label(L('end')); a("s_endpgm")
desc = f""".section .rodata,"a"
.p2align 6
.amdhsa_kernel {NAME}
  .amdhsa_next_free_vgpr 256
  .amdhsa_next_free_sgpr 102
  .amdhsa_accum_offset 256
  .amdhsa_group_segment_fixed_size 0
  .amdhsa_kernarg_size 96
  .amdhsa_user_sgpr_count 2
  .amdhsa_user_sgpr_kernarg_segment_ptr 1
  .amdhsa_system_sgpr_workgroup_id_x 1
  .amdhsa_float_denorm_mode_32 3
.end_amdhsa_kernel
"""
if __name__ == "__main__":
    open(sys.argv[1], "w").write("; @launch grid=(256,1,1) block=(512,1,1) lds=163840\n" + a.finish() + desc)
    print("stamps:", nst[0], "STAMPS", STAMPS)
```

```python
import sys, os
sys.path.insert(0, "work")
from asmlib import Asm
EXP = os.environ.get("EXP", "").split(",")
INSTR = "instr" in sys.argv
STG = os.environ.get("STG", "main")
def env(n, d): return int(os.environ.get(n, str(d)))
NAME = "parallel_sum__linear_kernel_hedgehog__dense_activation_squared_relu__prompt_kernel"
SZ = dict(x=2048*512*2, wqkv=512*1536*2, wphi=32*16*16*2, wo=512*512*2, w1=512*1792*2, b1=1792*2, w2=1792*512*2, b2=512*2, out=2048*512*2, dbg=256)
KSLOT = dict(x=0, wqkv=1, wphi=2, wo=3, w1=5, b1=6, w2=7, b2=8, out=9, dbg=10, ws=11)
AF_TG = 144*1024
KVACC = 64*AF_TG; KV_J = 9216
KVF = KVACC + 8*KV_J
HF = KVF + 8*512
OF = HF + 32*256
EFS = OF + 32*256
EFC = EFS + 16*128
CSP = EFC + 16*128
STAT = CSP + 16*14336
STAMPS = STAT + 2048*16
WS_END = STAMPS + 256*8*64
SZ["ws"] = WS_END
LOG2E = "0x3fb8aa3b"
SLOT = 49152; PG = 16384; RB = PG
SPIN = 400000
FLA = env("FLA", 18); FLC = env("FLC", 23); KPW = env("KPW", 4); FLB = env("FLB", 14); OCK = env("OCK", 6 if env("NW", 11) == 11 else 14-env("NW", 11)); AW = env("AW", 0); TRP = env("TRP", 1); NE = env("NE", 4); NB = env("NB", 8)
SC = "sc0 sc1"
ASC = os.environ.get("ASC", "sc0 sc1")
SLP = env("SLP", 8)
X, WQ, W1, WS, DBG, WPHI, B1, I1, W2, WO, B2, OUT = 12, 16, 20, 24, 28, 32, 36, 40, 44, 48, 52, 56
def R(s): return f"s[{s}:{s+3}]"
def V(b, n=4): return f"v[{b}:{b+n-1}]"
MF = "v_mfma_f32_32x32x16_bf16"
a = Asm()
nst = [0]
def st(i=None, grp="main"):
    if not INSTR or grp != STG: return
    if i is not None: nst[0] = i
    a(f"s_memrealtime s[{84+2*nst[0]}:{85+2*nst[0]}]"); nst[0] += 1
def L(n): return f"L_{n}"
def fin(x, n, s): x(f"s_mov_b32 s{s+2}, {SZ[n]}\ns_mov_b32 s{s+3}, 0x20000")

a.raw('.amdgcn_target "amdgcn-amd-amdhsa--gfx950"\n.text')
a.raw(f".globl {NAME}\n.p2align 8\n.type {NAME},@function\n{NAME}:")
a(f"s_cmp_ge_u32 s2, 256\ns_cbranch_scc1 {L('end')}")
st(grp=STG)
names = (("x",X),("wqkv",WQ),("w1",W1),("ws",WS),("dbg",DBG),("wphi",WPHI),("b1",B1),("w2",W2),("wo",WO),("b2",B2),("out",OUT))
for n, s in names: a(f"s_load_dwordx2 s[{s}:{s+1}], s[0:1], {KSLOT[n]*8}")
a(f"""
v_and_b32 v1, 63, v0
v_lshrrev_b32 v2, 6, v0
v_readfirstlane_b32 s3, v2
s_bfe_u32 s4, s2, 0x30003
s_bfe_u32 s9, s2, 0x10002
s_lshl_b32 s9, s9, 3
s_add_u32 s4, s4, s9                ; m
s_lshr_b32 s5, s2, 7                ; type
s_and_b32 s6, s2, 3
s_lshl_b32 s6, s6, 1
s_bfe_u32 s10, s2, 0x10006
s_add_u32 s6, s6, s10               ; j
v_lshrrev_b32 v9, 3, v1
v_and_b32 v10, 7, v1
v_lshrrev_b32 v11, 4, v1
v_xor_b32 v12, v10, v11
v_lshlrev_b32 v13, 10, v9
v_lshl_add_u32 v2, v12, 4, v13
v_xor_b32 v3, 0x2040, v2
v_and_b32 v11, 1, v11
v_lshlrev_b32 v11, 6, v11
v_lshlrev_b32 v12, 4, v10
v_xor_b32 v12, v12, v11
v_mul_u32_u24 v13, 3072, v9
v_add_u32 v4, v13, v12
v_mul_u32_u24 v13, 3584, v9
v_add_u32 v6, v13, v12
v_xor_b32 v14, 32, v4
s_and_b32 s9, s2, 3
s_mul_i32 s9, s9, 5
s_add_u32 s9, s9, 8
s_mul_i32 s11, s10, 3
s_add_u32 s66, s9, s11              ; I1 block (B)
s_add_u32 s67, s66, 1
s_add_u32 s68, s9, 2                ; I3 block
s_lshl_b32 s61, s6, 7
s_add_u32 s62, s61, 2048
s_lshl_b32 s77, s66, 7
s_add_u32 s78, s61, 1024
s_movk_i32 s63, 3584
s_cmp_eq_u32 s5, 0
s_cselect_b64 vcc, -1, 0
s_cselect_b32 s61, s78, s61         ; I0 col
s_cselect_b32 s62, s62, s77         ; I1 col
s_cselect_b32 s63, 3072, s63
s_cselect_b32 s67, s6, s67          ; I2 block
v_cndmask_b32 v5, v6, v14, vcc
s_lshl_b32 s64, s67, 7              ; I2 col
s_lshl_b32 s65, s68, 7              ; I3 col
s_lshl_b32 s60, s4, 17
s_lshl_b32 s69, s3, 11
s_lshl_b32 s70, s3, 10
s_lshl_b32 s11, s3, 14
s_add_u32 s76, s60, s11
s_mul_i32 s11, s3, {8*3072}
s_add_u32 s11, s61, s11
v_add_u32 v4, s11, v4
s_lshl_b32 s11, s3, 3
s_mul_i32 s11, s11, s63
s_add_u32 s11, s62, s11
v_add_u32 v5, s11, v5
s_lshl_b32 s75, s63, 6
s_mul_i32 s11, s3, {8*3584}
s_add_u32 s73, s64, s11
s_add_u32 s74, s65, s11
v_add_u32 v7, s74, v6
v_add_u32 v6, s73, v6
s_mov_b32 s82, 0
s_mov_b32 s83, 0
s_mov_b32 s73, 0
s_lshl_b32 s79, s5, 3
s_add_u32 s79, s79, s6              ; slot
s_and_b32 s78, s3, 1                ; lo
s_lshr_b32 s77, s3, 1
v_lshlrev_b32 v26, 4, v1
s_waitcnt lgkmcnt(0)
""")
st(8, grp="P"); nst[0] = 1
fin(a, "x", X); fin(a, "wqkv", WQ); fin(a, "w1", W1)
a(f"""
s_cmp_eq_u32 s5, 0
s_cselect_b32 s{I1}, s{WQ}, s{W1}
s_cselect_b32 s{I1+1}, s{WQ+1}, s{W1+1}
s_cselect_b32 s{I1+2}, s{WQ+2}, s{W1+2}
s_mov_b32 s{I1+3}, 0x20000
""")
a(f"""
s_lshl_b32 s9, s79, 13
s_add_u32 s9, s9, s70
s_add_u32 s9, s9, s60
""")
a(f"buffer_load_dwordx4 v[112:115], v26, {R(X)}, s9 offen", "E")
a(f"""
v_lshrrev_b32 v9, 2, v1
v_and_b32 v10, 3, v1
v_lshlrev_b32 v10, 4, v10
s_cmp_eq_u32 s77, 0
s_cselect_b32 s9, s61, s62
s_cselect_b32 s11, 3072, s63
s_cmp_eq_u32 s77, 2
s_cselect_b32 s9, s64, s9
s_cmp_eq_u32 s77, 3
s_cselect_b32 s9, s65, s9
s_cselect_b32 s71, s10, s78
s_cmp_ge_u32 s77, 2
s_cselect_b32 s11, 3584, s11
s_lshl_b32 s71, s71, 6
s_add_u32 s9, s9, s71
s_lshl_b32 s71, s4, 5
s_mul_i32 s71, s71, s11
s_add_u32 s9, s9, s71               ; + 32m rows
v_mul_lo_u32 v9, v9, s11
v_add_u32 v9, v9, v10
s_lshl_b32 s11, s11, 4
s_add_u32 s71, s9, s11
s_mov_b32 m0, s69
s_cmp_eq_u32 s11, {3072*16}
s_cbranch_scc1 {L('e1')}
""")
with a.skippable():
    a(f"buffer_load_dwordx4 v9, {R(W1)}, s9 offen lds\ns_add_u32 m0, s69, 1024\ns_nop 0\nbuffer_load_dwordx4 v9, {R(W1)}, s71 offen lds\ns_branch {L('e2')}")
a.label(L('e1'))
with a.skippable():
    a(f"buffer_load_dwordx4 v9, {R(WQ)}, s9 offen lds\ns_add_u32 m0, s69, 1024\ns_nop 0\nbuffer_load_dwordx4 v9, {R(WQ)}, s71 offen lds")
a.label(L('e2'))
def dma(c, piece):
    t = f"C{c}"; sl = RB + (c % 3)*SLOT
    if piece < 2:
        a(f"s_add_u32 m0, s69, {sl+1024*piece-c*128}")
        a(f"buffer_load_dwordx4 v{2+piece}, {R(X)}, s76 offen offset:{c*128} lds", t)
    elif piece == 2:
        a(f"s_add_u32 m0, s70, {sl+16384}")
        a(f"buffer_load_dwordx4 v4, {R(WQ)}, s82 offen lds", t)
        a(f"s_add_u32 s82, s82, {64*3072}")
    elif piece == 3:
        a(f"s_add_u32 m0, s70, {sl+24576}")
        a(f"buffer_load_dwordx4 v5, {R(I1)}, s83 offen lds", t)
        a("s_add_u32 s83, s83, s75")
    elif piece == 4:
        a(f"s_add_u32 m0, s70, {sl+32768}")
        a(f"buffer_load_dwordx4 v6, {R(W1)}, s73 offen lds", t)
    else:
        a(f"s_add_u32 m0, s70, {sl+40960}")
        a(f"buffer_load_dwordx4 v7, {R(W1)}, s73 offen lds", t)
        a(f"s_add_u32 s73, s73, {64*3584}")
dma(0, 0); a.items.append(("retag", ("C0", "E")))
a(f"s_cmp_eq_u32 s5, 0\ns_cbranch_scc1 {L('c0b')}")
with a.skippable():
    dma(0, 4); dma(0, 5)
a.label(L('c0b'))
dma(0, 1); dma(0, 2); dma(0, 3)
st(grp="P")
if env("ICP", 0):
    a(f"s_cmp_lt_u32 s3, 4\ns_cbranch_scc0 {L('noicp')}")
    with a.skippable():
        a(f"""
        s_getpc_b64 s[80:81]
        v_lshlrev_b32 v127, 7, v1
        s_lshl_b32 s9, s3, 13
        v_add_u32 v127, s9, v127
        v_min_u32 v127, {env("ICP", 0)}, v127
        global_load_dword v127, v127, s[80:81]
        """)
    a.label(L('noicp'))
fin(a, "ws", WS); fin(a, "dbg", DBG)
a("v_mov_b32 v19, 0")
a(f"s_or_b32 s9, s2, s3\ns_cmp_eq_u32 s9, 0\ns_cbranch_scc0 {L('nononce')}")
with a.skippable():
    a(f"""
    s_memrealtime s[80:81]
    s_waitcnt lgkmcnt(0)
    s_or_b32 s80, s80, 1
    v_mov_b32 v10, s80
    s_mov_b64 exec, 1
    buffer_store_dword v10, v19, {R(DBG)}, 0 offen {SC}
    s_mov_b64 exec, -1
    """)
a.label(L('nononce'))
a(f"""
s_bfe_u32 s7, s3, 0x10001           ; mh
s_lshr_b32 s8, s3, 2                ; hi
s_mul_i32 s72, s6, {KV_J}
s_add_u32 s72, s72, {KVACC}
s_cmp_eq_u32 s5, 1
s_cselect_b32 s9, s4, 1
s_cmp_eq_u32 s9, 0
s_cbranch_scc0 {L('nozero')}
""")
with a.skippable():
    a(f"""
    v_lshlrev_b32 v9, 4, v0
    v_mov_b32 v10, 0
    v_mov_b32 v11, 0
    v_mov_b32 v12, 0
    v_mov_b32 v13, 0
    buffer_store_dwordx4 v[10:13], v9, {R(WS)}, s72 offen {SC}
    s_add_u32 s9, s72, 8192
    s_cmp_eq_u32 s3, 0
    s_cbranch_scc0 {L('nozero')}
    buffer_store_dwordx4 v[10:13], v9, {R(WS)}, s9 offen {SC}
    """)
a.label(L('nozero'))
a(f"""
s_and_b32 s9, s78, s8
s_cmp_eq_u32 s5, 0
s_cselect_b32 s61, s8, s9           ; sel
v_and_b32 v29, 31, v1
v_lshrrev_b32 v30, 5, v1
v_bfe_u32 v31, v1, 1, 3
v_xor_b32 v31, v31, v30
v_lshlrev_b32 v20, 7, v29
v_lshl_add_u32 v8, v31, 4, v20
s_lshl_b32 s9, s7, 1
s_add_u32 s62, s9, s61
s_lshl_b32 s9, s62, 12
s_add_u32 s9, s9, {RB}
v_add_u32 v8, s9, v8
v_xor_b32 v9, 32, v8
v_xor_b32 v10, 64, v8
v_xor_b32 v11, 96, v8
v_xor_b32 v12, 0x1000, v8
v_xor_b32 v13, 0x1000, v9
v_xor_b32 v14, 0x1000, v10
v_xor_b32 v15, 0x1000, v11
v_bfe_u32 v31, v1, 2, 2
v_lshl_add_u32 v20, v30, 3, v31
v_and_b32 v22, 3, v1
v_lshlrev_b32 v22, 3, v22
v_lshl_add_u32 v18, v20, 6, v22
v_lshl_add_u32 v20, v20, 7, v22
v_lshl_add_u32 v21, v30, 2, v31
v_lshl_add_u32 v21, v21, 5, v22
v_bfe_u32 v22, v1, 4, 1
v_lshl_add_u32 v18, v22, 5, v18
v_add_u32 v18, s69, v18
v_and_b32 v31, 2, v31
v_xor_b32 v31, v31, v22
v_lshl_add_u32 v20, v31, 5, v20     ; nat0
s_lshl_b32 s9, s8, 1
s_add_u32 s63, s9, s78              ; nq
s_lshl_b32 s9, s63, 5
v_xor_b32 v23, s9, v20
v_lshl_add_u32 v23, v22, 13, v23
s_lshl_b32 s9, s78, 6
v_xor_b32 v24, s9, v20
s_cmp_eq_u32 s8, 0
s_cselect_b32 s10, 8192, 0
v_add_u32 v25, s10, v24
v_cndmask_b32 v16, v25, v23, vcc
v_add_u32 v16, {RB+16384}, v16
s_and_b32 s9, s6, 1
s_lshl_b32 s9, s9, 6
v_xor_b32 v25, s9, v20
v_add_u32 v25, 8192, v25
s_and_b32 s9, s5, s8
s_cmp_eq_u32 s9, 1
s_cselect_b64 s[80:81], -1, 0
v_cndmask_b32 v17, v24, v25, s[80:81]
v_add_u32 v17, {RB+32768}, v17
v_mov_b32 v20, v24
v_mul_u32_u24 v23, 192, v22
v_lshlrev_b32 v24, 2, v29
s_lshl_b32 s9, s63, 6
v_add3_u32 v23, v23, v24, s9
s_lshl_b32 s9, s78, 7
s_cmp_eq_u32 s8, 0
s_cselect_b32 s10, 256, 0
s_add_u32 s10, s10, s9
v_add_u32 v25, s10, v24
v_cndmask_b32 v23, v25, v23, vcc
s_add_u32 s9, s9, 512
s_and_b32 s10, s5, s8
s_cmp_eq_u32 s10, 1
s_cselect_b32 s9, 768, s9
v_add_u32 v24, s9, v24
s_lshl_b32 s66, s66, 1
s_add_u32 s66, s66, s78
s_lshl_b32 s67, s67, 1
s_add_u32 s67, s67, s78
s_lshl_b32 s68, s68, 1
s_and_b32 s9, s6, 1
s_add_u32 s68, s68, s9
s_cmp_eq_u32 s10, 1
s_cselect_b32 s67, s68, s67
s_lshl_b32 s9, s78, 1
s_cmp_eq_u32 s5, 0
s_cselect_b32 s9, s63, s9
s_lshl_b32 s10, s6, 2
s_add_u32 s65, s10, s9
s_lshl_b32 s9, s9, 9
s_add_u32 s9, s9, 14336
v_add_u32 v21, s9, v21
v_mov_b32 v22, 0x3f803f80
v_and_b32 v27, 15, v1
v_lshlrev_b32 v27, 2, v27
s_lshl_b32 s9, s4, 7
s_add_u32 s9, s9, {EFS}
s_lshl_b32 s10, s79, 7
s_add_u32 s10, s10, {EFC}
v_add_u32 v25, s9, v27
v_add_u32 v28, s10, v27
v_lshrrev_b32 v27, 4, v1
v_cmp_eq_u32 vcc, 1, v27
v_cndmask_b32 v25, v25, v28, vcc
s_lshl_b32 s9, s6, 2
s_add_u32 s9, s9, {EFS+32}
v_writelane_b32 v25, s9, 32
""")
fin(a, "b1", B1); fin(a, "wphi", WPHI); fin(a, "w2", W2); fin(a, "wo", WO); fin(a, "b2", B2); fin(a, "out", OUT)
st(grp="P")
a.wv("E")
st(grp="P")
for k, off in enumerate((0, 256, 1024, 1280)): a(f"ds_read_b64_tr_b16 {V(120+2*k,2)}, v18 offset:{off}", "EW")
a("v_mov_b32 v116, 0\nv_mov_b32 v117, 0\nv_mov_b32 v118, 0")
for q in range(4):
    a(f"v_dot2_f32_bf16 v116, v{112+q}, v22, v116\nv_dot2_f32_bf16 v117, v{112+q}, v{112+q}, v117")
a.wl("EW")
for q in range(8): a(f"v_dot2_f32_bf16 v118, v{120+q}, v22, v118")
for dpp in ("quad_perm:[1,0,3,2]", "quad_perm:[2,3,0,1]", "row_half_mirror", "row_mirror"):
    a(f"v_add_f32_dpp v116, v116, v116 {dpp} row_mask:0xf bank_mask:0xf\nv_add_f32_dpp v117, v117, v117 {dpp} row_mask:0xf bank_mask:0xf")
a(f"""
v_permlane16_swap_b32 v116, v117
v_add_f32 v116, v116, v117
v_mov_b32 v119, v118
v_mov_b32 v117, v116
v_permlane32_swap_b32 v118, v119
v_permlane32_swap_b32 v116, v117
v_add_f32 v118, v118, v119
v_add_f32 v116, v116, v117
v_mov_b32 v117, v116
v_permlane16_swap_b32 v116, v117
v_mul_f32 v116, 0x3b000000, v116
v_mul_f32 v117, 0x3b000000, v117
v_fma_f32 v117, -v116, v116, v117
v_max_f32 v117, 0, v117
v_add_f32 v117, 0x3727c5ac, v117
v_rsq_f32 v114, v117
v_sub_f32 v116, 0, v116
v_mul_f32 v117, v117, v114
v_cvt_pk_bf16_f32 v120, v116, v117
v_and_b32 v121, 0xffff0000, v120
v_lshlrev_b32 v122, 16, v120
v_sub_f32 v123, v116, v122
v_sub_f32 v124, v117, v121
v_cvt_pk_bf16_f32 v112, v122, v123
v_cvt_pk_bf16_f32 v113, v121, v124
s_lshl_b32 s10, s4, 7
s_lshl_b32 s11, s79, 3
s_add_u32 s10, s10, s11
s_add_u32 s10, s10, s3
s_lshl_b32 s10, s10, 4
s_add_u32 s10, s10, {STAT}
s_mul_i32 s11, s79, 14336
s_mul_i32 s71, s4, 896
s_add_u32 s11, s11, s71
s_lshl_b32 s71, s3, 7
s_add_u32 s11, s11, s71
s_add_u32 s11, s11, {CSP}
v_lshlrev_b32 v120, 2, v1
s_mov_b64 exec, 1
buffer_store_dwordx4 v[112:115], v19, {R(WS)}, s10 offen {SC}
s_cmp_lt_u32 s3, 7
s_cselect_b32 exec_lo, -1, 0
s_cbranch_scc0 {L('nocs')}
""")
with a.skippable():
    a(f"buffer_store_dword v118, v120, {R(WS)}, s11 offen {SC}")
a.label(L('nocs'))
a("s_mov_b64 exec, -1")
a(f"buffer_load_dword v31, v19, {R(DBG)}, 0 offen {SC}", "N0")
a("v_lshlrev_b32 v120, 1, v29\ns_lshl_b32 s9, s66, 6\ns_lshl_b32 s10, s67, 6")
a(f"buffer_load_ushort v27, v120, {R(B1)}, s9 offen", "S")
a(f"buffer_load_ushort v28, v120, {R(B1)}, s10 offen", "S")
st(); st(grp="P")

def side_flags(tg, tmp):
    a(f"s_cmp_eq_u32 s3, 0\ns_cbranch_scc0 {L('nofl'+tg)}")
    with a.skippable():
        a("s_mov_b32 s71, 0")
        a.label(L('nspin'+tg))
        a(f"""
        v_readfirstlane_b32 s9, v31
        s_add_u32 s71, s71, 1
        s_cmp_gt_u32 s71, {SPIN}
        s_cbranch_scc1 {L('nok'+tg)}
        s_cmp_lg_u32 s9, 0
        s_cbranch_scc1 {L('nok'+tg)}
        buffer_load_dword v31, v19, {R(DBG)}, 0 offen {SC}
        s_waitcnt vmcnt(0)
        s_branch {L('nspin'+tg)}
        """)
        a.label(L('nok'+tg))
        a(f"""
        s_lshl_b32 s10, s4, 7
        s_lshl_b32 s11, s79, 2
        s_add_u32 s10, s10, s11
        s_lshl_b32 s11, s79, 7
        s_lshl_b32 s71, s4, 2
        s_add_u32 s11, s11, s71
        s_add_u32 s11, s11, {EFC-EFS}
        v_mov_b32 v{tmp}, s10
        v_writelane_b32 v{tmp}, s11, 1
        s_mov_b32 s10, {EFS}
        s_mov_b64 exec, 3
        buffer_store_dword v31, v{tmp}, {R(WS)}, s10 offen {SC}
        s_mov_b64 exec, -1
        """)
    a.label(L('nofl'+tg))
def side_wphi_dma(tg):
    a(f"s_cmp_lt_u32 s3, 2\ns_cbranch_scc0 {L('nowp'+tg)}")
    with a.skippable():
        a(f"s_add_u32 m0, s70, 14336\ns_lshl_b32 s9, s6, 11\ns_add_u32 s9, s9, s70\nbuffer_load_dwordx4 v26, {R(WPHI)}, s9 offen lds")
    a.label(L('nowp'+tg))
def side_poll_issue(tg):
    a(f"s_cmp_eq_u32 s3, 0\ns_cbranch_scc0 {L('npi'+tg)}")
    with a.skippable():
        a(f"buffer_load_dword v18, v25, {R(WS)}, 0 offen {SC}")
    a.label(L('npi'+tg))
def side_poll_wait(tg, restore_vcc):
    a(f"s_cmp_eq_u32 s3, 0\ns_cbranch_scc0 {L('fok2'+tg)}")
    with a.skippable():
        a("s_mov_b32 s71, 0")
        a.label(L('fspin'+tg))
        a(f"""
        v_cmp_ne_u32 vcc, v18, v31
        s_cmp_eq_u64 vcc, 0
        s_cbranch_scc1 {L('fok'+tg)}
        s_add_u32 s71, s71, 1
        s_cmp_gt_u32 s71, {SPIN}
        s_cbranch_scc1 {L('fok'+tg)}
        s_sleep {SLP}
        buffer_load_dword v18, v25, {R(WS)}, 0 offen {SC}
        s_waitcnt vmcnt(0)
        s_branch {L('fspin'+tg)}
        """)
        a.label(L('fok'+tg))
        if restore_vcc: a("s_mov_b64 vcc, s[80:81]")
        a("ds_write_b32 v19, v31 offset:16380\ns_waitcnt lgkmcnt(0)")
    a.label(L('fok2'+tg))
def side_poll_check(tg, raw, tmp, ptag):
    a(f"ds_read_b32 v31, v19 offset:16380", ptag)
    a(f"""
    v_lshlrev_b32 v{tmp}, 4, v29
    s_lshl_b32 s9, s4, 11
    s_lshl_b32 s10, s62, 9
    s_add_u32 s9, s9, s10
    s_add_u32 s9, s9, {STAT}
    s_xor_b32 s10, s9, 512
    """)
    a(f"s_cmp_lt_u32 s3, 7\ns_cbranch_scc0 {L('nocsd'+tg)}")
    with a.skippable():
        a(f"s_mul_i32 s11, s79, 14336\ns_add_u32 s11, s11, s69\ns_add_u32 s11, s11, {CSP}\ns_mov_b32 m0, s69")
        a(f"buffer_load_dwordx4 v26, {R(WS)}, s11 offen {SC} lds")
        a(f"buffer_load_dwordx4 v26, {R(WS)}, s11 offen offset:1024 {SC} lds")
    a.label(L('nocsd'+tg))
    a(f"buffer_load_dwordx4 {V(raw)}, v{tmp}, {R(WS)}, s9 offen {SC}", "ST")
    a(f"buffer_load_dwordx4 {V(raw+4)}, v{tmp}, {R(WS)}, s10 offen {SC}", "ST")
def side_csred(tg, t16, tmp):
    a(f"s_cmp_lt_u32 s3, 4\ns_cbranch_scc0 {L('nored'+tg)}")
    with a.skippable():
        a(f"v_min_u32 v{tmp}, 223, v0\nv_lshlrev_b32 v{tmp}, 2, v{tmp}")
        for g in range(16): a(f"ds_read_b32 v{t16+g}, v{tmp} offset:{g*896}")
        a("s_waitcnt lgkmcnt(0)")
        for w in (8, 4, 2, 1):
            for g in range(w): a(f"v_add_f32 v{t16+g}, v{t16+g}, v{t16+g+w}")
        a(f"""
        v_cvt_pk_bf16_f32 v{t16+1}, v{t16}, v{t16}
        v_and_b32 v{t16+1}, 0xffff0000, v{t16+1}
        v_sub_f32 v{t16+2}, v{t16}, v{t16+1}
        v_cvt_pk_bf16_f32 v{t16}, v{t16+1}, v{t16+2}
        ds_write_b32 v{tmp}, v{t16}
        """)
    a.label(L('nored'+tg))
def side_bext(raw, BX, RR, tmp):
    for t in range(2):
        s0 = raw+4*t; B = BX+4*t; rr = RR+3*t
        a(f"""
        v_and_b32 v{tmp}, 0xffff, v{s0}
        v_lshl_or_b32 v{B}, v{tmp}, 16, v{tmp}
        v_lshrrev_b32 v{tmp}, 16, v{s0}
        v_lshl_or_b32 v{B+1}, v{tmp}, 16, v{tmp}
        v_mov_b32 v{B+2}, v{s0+1}
        v_mov_b32 v{B+3}, 0
        v_mov_b32 v{rr}, v{s0+2}
        v_mul_f32 v{rr+1}, {LOG2E}, v{s0+2}
        v_mul_f32 v{rr+2}, 0.5, v{s0+2}
        """)
MAP = env("MAP", 0)
if MAP == 0:
    P2MAP = f"""
    s_and_b32 s82, s2, 7
    s_lshl_b32 s82, s82, 2
    s_bfe_u32 s9, s2, 0x20003
    s_add_u32 s82, s82, s9
    s_lshr_b32 s62, s2, 5
    s_mul_i32 s76, s62, 7
    s_lshr_b32 s76, s76, 2
    s_mul_i32 s9, s9, 3
    """
else:
    P2MAP = f"""
    s_bfe_u32 s82, s2, 0x20001
    s_lshl_b32 s82, s82, 3
    s_lshr_b32 s76, s2, 5
    s_add_u32 s82, s82, s76
    s_and_b32 s62, s2, 1
    s_lshl_b32 s62, s62, 2
    s_bfe_u32 s9, s2, 0x20003
    s_add_u32 s62, s62, s9
    s_mul_i32 s76, s76, 7
    s_lshr_b32 s76, s76, 2
    s_mul_i32 s9, s9, 3
    """
P2MAP += f"""
    s_add_u32 s76, s76, s9
    s_lshl_b32 s62, s62, 7
    s_mul_i32 s60, s3, {14*16*1024}
    s_add_u32 s60, s60, s62
    s_add_u32 s83, s60, {14*16384}
    s_lshl_b32 s68, s3, 16
    s_add_u32 s68, s68, s62
"""
TP0 = env("TP0", -1); TPS = env("TPS", 2)
def side_touch(tg, p, r1, r2):
    if TP0 < 0 or p < TP0 or (p-TP0) % TPS or (p-TP0)//TPS >= 8: return
    w = (p-TP0)//TPS
    a(f"s_cmp_eq_u32 s3, {w}\ns_cbranch_scc0 {L(f'pf{tg}{w}')}")
    with a.skippable():
        a(f"""
        s_lshr_b32 s9, s2, 3
        s_lshl_b32 s9, s9, 3
        s_add_u32 s9, s9, s3
        s_and_b32 s71, s2, 1
        s_lshl_b32 s71, s71, 9
        s_mul_i32 s10, s9, {7*1024}
        s_add_u32 s10, s10, s71
        s_lshl_b32 s11, s9, 11
        s_add_u32 s11, s11, s71
        v_lshrrev_b32 v{r1}, 2, v1
        v_and_b32 v{r2}, 3, v1
        v_lshlrev_b32 v{r2}, 7, v{r2}
        v_lshl_add_u32 v{r1}, v{r1}, 10, v{r2}
        s_mov_b64 exec, 0xfffffff
        buffer_load_dword v{r2}, v{r1}, {R(W2)}, s10 offen
        s_mov_b64 exec, 0xff
        buffer_load_dword v{r1}, v{r1}, {R(WO)}, s11 offen
        s_mov_b64 exec, -1
        """)
    a.label(L(f'pf{tg}{w}'))
def side_p2(t3):
    a(f"""
    v_readfirstlane_b32 s75, v31
    v_lshrrev_b32 v{t3}, 3, v1
    v_and_b32 v{t3+1}, 7, v1
    v_lshrrev_b32 v{t3+2}, 2, v1
    v_and_b32 v{t3+2}, 4, v{t3+2}
    v_xor_b32 v{t3+1}, v{t3+1}, v{t3+2}
    v_lshlrev_b32 v{t3}, 10, v{t3}
    v_lshl_add_u32 v18, v{t3+1}, 4, v{t3}
    s_lshl_b32 s74, s4, 2
    s_add_u32 s74, s74, s62
    s_xor_b32 s64, s74, 1
    s_mul_i32 s74, s74, {AF_TG}
    s_mul_i32 s64, s64, {AF_TG}
    {P2MAP}
    s_cmp_ge_u32 s76, 14
    s_cselect_b32 s9, 14, 0
    s_sub_u32 s76, s76, s9
    s_lshl_b32 s61, s76, 14
    s_add_u32 s61, s61, s60
    """)
def p2_adv(x):
    x("s_add_u32 s61, s61, 16384\ns_cmp_eq_u32 s61, s83\ns_cselect_b32 s61, s60, s61")
W2PG = [7, 8, 9, 1, 2, 3, 4, 5, 6]
def p2_dma(x, u, tag, partner=False):
    pg = W2PG[u % 9]
    for half in range(2):
        x(f"s_add_u32 m0, s69, {pg*PG + half*1024}")
        if u < 14:
            if half == 0: x(f"s_add_u32 s71, s61, 8192\nbuffer_load_dwordx4 v18, {R(W2)}, s61 offen lds", tag)
            else: x(f"buffer_load_dwordx4 v18, {R(W2)}, s71 offen lds", tag)
        else:
            x(f"s_add_u32 s71, s68, {((u-14)*16+half*8)*1024}")
            x(f"buffer_load_dwordx4 v18, {R(WO)}, s71 offen lds", tag)
    if partner:
        for half in range(2):
            x(f"s_add_u32 m0, s69, {pg*PG + half*1024 + 8192}\ns_add_u32 s71, s61, {4*14*16384 + half*8192}")
            x(f"buffer_load_dwordx4 v18, {R(W2)}, s71 offen lds", tag)
    if u < 14: p2_adv(x)
def p2_dma_partner(x, u, tag):
    pg = W2PG[u % 9]
    for half in range(2):
        x(f"s_add_u32 m0, s69, {pg*PG + half*1024 + 8192}")
        if u < 14:
            x(f"s_add_u32 s71, s81, {4*14*16384 + half*8192}")
            x(f"buffer_load_dwordx4 v18, {R(W2)}, s71 offen lds", tag)
        else:
            x(f"s_add_u32 s71, s68, {4*65536 + ((u-14)*16+half*8)*1024}")
            x(f"buffer_load_dwordx4 v18, {R(WO)}, s71 offen lds", tag)
    if u < 14: x("s_add_u32 s81, s81, 16384\ns_cmp_eq_u32 s81, s83\ns_cselect_b32 s81, s60, s81")
def p2_dma2(x, u, tag):
    pg = W2PG[u % 9]
    for half in range(2):
        x(f"s_add_u32 m0, s69, {pg*PG + half*1024}")
        if u < 14:
            x(f"s_add_u32 s71, s81, {half*8192}")
            x(f"buffer_load_dwordx4 v18, {R(W2)}, s71 offen lds", tag)
        else:
            x(f"s_add_u32 s71, s68, {((u-14)*16+half*8)*1024}")
            x(f"buffer_load_dwordx4 v18, {R(WO)}, s71 offen lds", tag)
    if u < 14: x("s_add_u32 s81, s81, 16384\ns_cmp_eq_u32 s81, s83\ns_cselect_b32 s81, s60, s81")
def lds_wait(lab, off):
    a("s_mov_b32 s71, 0")
    a.label(L(lab))
    a(f"""
    ds_read_b32 v10, v11 offset:{off}
    s_waitcnt lgkmcnt(0)
    v_readfirstlane_b32 s9, v10
    s_add_u32 s71, s71, 1
    s_cmp_gt_u32 s71, {SPIN*8}
    s_cbranch_scc1 {L(lab+'x')}
    s_cmp_eq_u32 s9, s75
    s_cbranch_scc1 {L(lab+'x')}
    s_sleep 1
    s_branch {L(lab)}
    """)
    a.label(L(lab+'x'))
def softmax(x, P, Pp, Pm, c):
    E = 112
    x(f"""
    v_max3_f32 v2, v{P}, v{P+1}, v{P+2}
    v_max3_f32 v3, -v{P}, -v{P+1}, -v{P+2}
    v_max3_f32 v2, v2, v{P+3}, v{P+4}
    v_max3_f32 v3, v3, -v{P+3}, -v{P+4}
    v_max3_f32 v2, v2, v{P+5}, v{P+6}
    v_max3_f32 v3, v3, -v{P+5}, -v{P+6}
    v_max_f32 v2, v2, v{P+7}
    v_max_f32_e64 v3, v3, -v{P+7}
    v_permlane32_swap_b32 v2, v3
    v_max_f32 v2, v2, v3
    v_mul_f32_e64 v2, -v2, v{c}
    v_mov_b32 v3, v2
    v_permlane32_swap_b32 v2, v3
    """)
    for r in range(8): x(f"v_fma_f32 v{E+r}, -v{P+r}, v{c}, v3\nv_fma_f32 v{P+r}, v{P+r}, v{c}, v2")
    for r in range(8): x(f"v_exp_f32 v{E+r}, v{E+r}\nv_exp_f32 v{P+r}, v{P+r}")
    x(f"v_add_f32 v2, v{P}, v{P+1}\nv_add_f32 v3, v{E}, v{E+1}")
    for r in range(2, 8): x(f"v_add_f32 v2, v2, v{P+r}\nv_add_f32 v3, v3, v{E+r}")
    x("v_permlane32_swap_b32 v2, v3\nv_add_f32 v2, v2, v3\nv_rcp_f32 v2, v2\nv_mov_b32 v3, v2\nv_permlane32_swap_b32 v2, v3")
    for r in range(8): x(f"v_mul_f32 v{P+r}, v{P+r}, v2\nv_mul_f32 v{E+r}, v{E+r}, v3")
    for q in range(4): x(f"v_cvt_pk_bf16_f32 v{Pp+q}, v{P+2*q}, v{P+2*q+1}\nv_cvt_pk_bf16_f32 v{Pm+q}, v{E+2*q}, v{E+2*q+1}")
def ffn_epi(x, acc, s_tile, f, rh, so=9):
    a(f"s_lshl_b32 s{so}, s{s_tile}, 11\ns_add_u32 s{so}, s{so}, s{(74,64)[f]}")
    for r in range(16): x(f"v_add_f32_e64 v{acc+r}, v{acc+r}, |v{acc+r}|")
    for r in range(16): x(f"v_mul_f32 v{acc+r}, v{acc+r}, v{rh}")
    for r in range(16): x(f"v_mul_f32 v{acc+r}, v{acc+r}, v{acc+r}")
    for q in range(8): x(f"v_cvt_pk_bf16_f32 v{acc+q}, v{acc+2*q}, v{acc+2*q+1}")
    x(f"buffer_store_dwordx4 {V(acc)}, v26, {R(WS)}, s{so} offen {SC}", "H")
    x(f"buffer_store_dwordx4 {V(acc+4)}, v26, {R(WS)}, s{so} offen offset:1024 {SC}", "H")
def flag_store(soff):
    a(f"""
    v_mov_b32 v31, s75
    s_mov_b64 exec, 1
    buffer_store_dword v31, v19, {R(WS)}, {soff} offen {SC}
    s_mov_b64 exec, -1
    """)
WREG = 128; P2ACC = 64; WTMP = 48; TRA = 2
def p2_traddr(t=2, q=8):
    a(f"""
    v_lshrrev_b32 v{q}, 5, v1
    v_bfe_u32 v{q+1}, v1, 2, 2
    v_lshl_add_u32 v{q}, v{q}, 2, v{q+1}
    v_lshlrev_b32 v{q}, 7, v{q}
    v_and_b32 v{q+2}, 3, v1
    v_lshl_add_u32 v{q}, v{q+2}, 3, v{q}
    v_bfe_u32 v{q+2}, v1, 4, 1
    v_and_b32 v{q+1}, 2, v{q+1}
    v_or_b32 v{q+2}, v{q+2}, v{q+1}
    v_lshl_add_u32 v{t}, v{q+2}, 5, v{q}
    v_add_u32 v{t}, s69, v{t}
    v_xor_b32 v{t+1}, 64, v{t}
    v_add_u32 v{t+2}, 0x10000, v{t}
    v_add_u32 v{t+3}, 0x10000, v{t+1}
    v_add_u32 v{t+4}, 0x20000, v{t}
    v_add_u32 v{t+5}, 0x20000, v{t+1}
    """)
def p2_tr(x, dst, u, tag):
    pg = W2PG[u % 9]
    for b in range(2):
        for e in range(2):
            x(f"ds_read_b64_tr_b16 {V(dst+4*b+2*e,2)}, v{TRA+2*(pg>>2)+b} offset:{(pg&3)*PG+e*1024}", tag)
def hflag():
    a(f"""
    s_lshl_b32 s9, s4, 1
    s_add_u32 s9, s9, s7
    s_lshl_b32 s77, s9, 8
    s_lshl_b32 s10, s79, 2
    s_add_u32 s10, s10, s63
    s_lshl_b32 s10, s10, 2
    s_add_u32 s9, s77, s10
    s_add_u32 s9, s9, {HF}
    """)
    flag_store("s9")
def kvpoll(w, lab):
    a(f"s_cmp_eq_u32 s3, {w}\ns_cbranch_scc0 {L(lab)}")
    with a.skippable():
        a("s_mov_b32 s71, 0")
        a.label(L('pk'))
        a(f"""
        buffer_load_dwordx2 v[10:11], v8, {R(WS)}, s66 offen {SC}
        s_waitcnt vmcnt(0)
        v_cmp_ne_u32 vcc, s75, v10
        v_cmp_ne_u32 s[80:81], s75, v11
        s_or_b64 vcc, vcc, s[80:81]
        s_cmp_eq_u64 vcc, 0
        s_cbranch_scc1 {L('pk2')}
        s_add_u32 s71, s71, 1
        s_cmp_gt_u32 s71, {SPIN}
        s_cbranch_scc1 {L('pk2')}
        s_sleep {SLP}
        s_branch {L('pk')}
        """)
        a.label(L('pk2'))
        for q in range(9):
            a(f"s_mov_b32 m0, {q*1024}\ns_add_u32 s10, s72, {q*1024}\nbuffer_load_dwordx4 v26, {R(WS)}, s10 offen {SC} lds")
        a("s_waitcnt vmcnt(0)\nv_mov_b32 v10, s75\nds_write_b32 v19, v10 offset:12288")
    a.label(L(lab))
ACC = [32, 48, 64, 80]
T = 96; KP = 2*PG; XF = 128
a(f"s_cmp_eq_u32 s5, 0\ns_cbranch_scc0 {L('typeB')}")
a.qsave("br")
for p in range(4): dma(1, p)
for i in range(8): a(f"v_add_u32 v{112+i}, {2*SLOT}, v{8+i}")
a(f"v_add_u32 v17, {2*SLOT}, v16")
a("v_lshlrev_b32 v121, 2, v30\nv_sub_u32 v121, v29, v121\nv_mov_b32 v122, 0x3f80\nv_mov_b32 v123, 0x3f800000")
SEL, WPH, BX, RRA, RAW = 64, 72, 76, 84, 120
for k in range(8):
    sg = k >> 2; q = k & 3
    f0 = (2*q & 3) + 8*((2*q) >> 2) + 16*sg
    a(f"v_cmp_eq_u32 vcc, {f0}, v121\nv_cndmask_b32 v{SEL+k}, 0, v122, vcc\nv_cmp_eq_u32 vcc, {f0+1}, v121\nv_cndmask_b32 v{SEL+k}, v{SEL+k}, v123, vcc")
st(grp="P"); a.wv("C0"); st(grp="P"); a("s_barrier"); st(grp="P")
st(grp="A")
def rdA(p):
    i = p & 3; b = 96 + 8*(p & 1); c = p >> 2; sl = c % 3
    ab = 8 if sl < 2 else 112; so = SLOT if sl == 1 else 0
    a(f"ds_read_b128 {V(XF+4*p)}, v{ab+i} offset:{so}", f"P{p}")
    for e in range(2): a(f"ds_read_b64_tr_b16 {V(b+4+2*e,2)}, v{16 if sl < 2 else 17} offset:{so+i*2048+e*512}", f"P{p}")
    a(f"ds_read_b128 {V(b)}, v{ab+4+i} offset:{so}", f"P{p}")
rdA(0)
for p in range(32):
    c = p >> 2; i = p & 3
    a.wl(f"P{p}")
    if i == 3 and c < 7:
        a.wv(f"C{c+1}")
        if p == 23: side_poll_wait("A", False)
        a("s_barrier"); st(grp="A")
    if p+1 < 32: rdA(p+1)
    b = 96 + 8*(p & 1)
    a(f"{MF} {V(ACC[0],16)}, {V(b+4)}, {V(XF+4*p)}, {V(ACC[0],16) if p else 0}")
    if p < 2: dma(2, 2*p); dma(2, 2*p+1)
    elif p >= 3:
        cc = ((p-3) >> 2) + 3
        if cc <= 7: dma(cc, (p-3) & 3)
    a(f"{MF} {V(ACC[1],16)}, {V(b+4)}, {V(b)}, {V(ACC[1],16) if p else 0}")
    side_touch("A", p, 94, 95)
    if p == 0: side_wphi_dma("A")
    if p == 3: side_flags("A", 90)
    if p == 8:
        for e in range(2): a(f"ds_read_b64_tr_b16 {V(WPH+2*e,2)}, v21 offset:{e*256}", f"P{p+1}")
    if p == 17: side_poll_issue("A")
    if p == 23: side_poll_check("A", RAW, 92, "P24")
    if p == 24: side_p2(90)
    if AW == 0:
        if p in (24, 25, 26): p2_dma(a, p-24, "D1")
        if p == 28: p2_dma(a, 3, "D1")
    if AW == 2 and p in (27, 28):
        a(f"s_add_u32 m0, s70, {3*PG + (p-27)*8192}")
        a(f"buffer_load_dwordx4 v6, {R(W1)}, s73 offen lds", "I2")
        a(f"s_add_u32 s73, s73, {64*3584}")
st(); st(grp="B")
a.wv("ST"); a("s_barrier")
side_csred("A", 96, 92)
side_bext(RAW, BX, RRA, 92)
a("v_mov_b32 v95, v6")
a("s_waitcnt lgkmcnt(0)\ns_barrier")
st(grp="B")
a(f"""
ds_read_b32 v120, v23
ds_read_b32 v4, v24
v_cmp_gt_u32 vcc, 32, v1
v_lshl_or_b32 v28, v28, 16, v28
v_cndmask_b32 v6, 0, v28, vcc
v_cmp_eq_u32 s[80:81], 16, v29
v_cndmask_b32 v27, 0, v22, s[80:81]
v_mov_b32 v122, 0
v_mov_b32 v123, 0
v_mov_b32 v7, 0
s_waitcnt lgkmcnt(0)
v_cndmask_b32 v120, 0, v120, vcc
v_cndmask_b32 v4, 0, v4, vcc
v_mov_b32 v121, v120
v_mov_b32 v5, v4
{MF} {V(ACC[0],16)}, v[120:123], {V(BX)}, {V(ACC[0],16)}
{MF} {V(ACC[1],16)}, v[120:123], {V(BX+4)}, {V(ACC[1],16)}
""")
KVA = 8
a("v_mov_b32 v90, v18\nv_mov_b32 v91, v20")
E = a.sub(); D = a.sub()
for f in range(2):
    acc = ACC[f]; rr = RRA+3*f
    for q in range(4): E(f"v_cvt_pk_bf16_f32 v{120+q}, v{acc+2*q}, v{acc+2*q+1}")
    E(f"{MF} {V(T,16)}, {V(WPH)}, v[120:123], 0")
    for r in range(8, 16): E(f"v_mul_f32 v{acc+r}, v{acc+r}, v{rr}")
    for q in range(4): E(f"v_cvt_pk_bf16_f32 v{120+q}, v{acc+8+2*q}, v{acc+9+2*q}")
    E(f"{MF} {V(acc,16)}, v[120:123], {V(SEL)}, 0")
    softmax(E, T, 120, 124, rr+1)
    E(f"{MF} {V(T,16)}, v[120:123], {V(SEL)}, 0")
    E(f"{MF} {V(T,16)}, v[124:127], {V(SEL+4)}, {V(T,16)}")
    for q in range(8): E(f"v_cvt_pk_bf16_f32 v{112+q}, v{acc+2*q}, v{acc+2*q+1}\nv_or_b32 v{112+q}, v{112+q}, v27")
    for q in range(8): E(f"v_cvt_pk_bf16_f32 v{T+q}, v{T+2*q}, v{T+2*q+1}")
    E(f"{MF} {V(KVA,16)}, {V(T)}, v[112:115], {V(KVA,16) if f else 0}")
    E(f"{MF} {V(KVA,16)}, {V(T+4)}, v[116:119], {V(KVA,16)}")
for c in range(2 if AW == 2 else 0, 8):
    D(f"s_add_u32 m0, s70, {3*PG + c*8192}")
    D(f"buffer_load_dwordx4 v95, {R(W1)}, s73 offen lds", "I2")
    D(f"s_add_u32 s73, s73, {64*3584}")
if AW:
    D2s = a.sub()
    for u in range(4): p2_dma(D2s, u, "D1")
    for it in D2s.items:
        if hasattr(it, "text"):
            D(it.text.replace("v18", "v90"), it.tag)
nE = len(E.items)*env("EFR", 6)//10
E1 = a.sub(); E1.items = E.items[:nE]; E2 = a.sub(); E2.items = E.items[nE:]
a.merge(E1, D); a.extend(E2)
st(grp="B")
a(f"""
s_lshl_b32 s9, s63, 12
s_lshl_b32 s10, s7, 11
s_add_u32 s9, s9, s10
s_add_u32 s9, s9, {KP}
v_add_u32 v92, s9, v26
v_xor_b32 v93, 0x800, v92
v_mul_u32_u24 v94, 17, v30
v_add_u32 v94, v94, v29
v_lshlrev_b32 v94, 2, v94
s_mul_i32 s10, s63, 2176
s_mul_i32 s11, s7, {8*136}
s_add_u32 s10, s10, s11
s_add_u32 s10, s10, s72
v_cmp_gt_u32 s[80:81], 17, v29
s_cmp_eq_u32 s7, 0
s_cbranch_scc1 {L('kv0')}
""")
with a.skippable():
    for q in range(2): a(f"ds_write_b128 v92, {V(KVA+4*q)} offset:{q*1024}")
    for r in range(8): a(f"v_mov_b32 v{KVA+r}, v{KVA+8+r}")
    a(f"s_branch {L('kv1')}")
a.label(L('kv0'))
with a.skippable():
    for q in range(2): a(f"ds_write_b128 v92, {V(KVA+8+4*q)} offset:{q*1024}")
a.label(L('kv1'))
a.wv("I2")
a("s_waitcnt lgkmcnt(0)\ns_barrier")
for q in range(2): a(f"ds_read_b128 {V(T+4*q)}, v93 offset:{q*1024}")
a(f"v_mov_b32 v18, v90\nv_mov_b32 v19, 0\nv_add_u32 v20, {3*PG}, v91")
a("s_waitcnt lgkmcnt(0)")
for r in range(8): a(f"v_add_f32 v{KVA+r}, v{KVA+r}, v{T+r}")
a("s_mov_b64 exec, s[80:81]")
for r in range(8): a(f"buffer_atomic_add_f32 v{KVA+r}, v94, {R(WS)}, s10 offen offset:{r*136}", "AT")
a("s_mov_b64 exec, -1")
st(grp="B")
A2 = 32
def rd2(k):
    b = 48 + 4*(k % 4)
    for e in range(2): a(f"ds_read_b64_tr_b16 {V(b+2*e,2)}, v20 offset:{k*2048+e*512}", f"B{k}")
a(f"{MF} {V(A2,16)}, v[4:7], {V(BX)}, 0")
rd2(0); rd2(1); rd2(2)
K1 = env("K1", 0); K2 = env("K2", 17)
TRA = 96
if K1: p2_traddr(96, 104)
a(f"s_add_u32 s81, s61, {5*16384}\ns_sub_u32 s9, s81, {14*16384}\ns_cmp_ge_u32 s81, s83\ns_cselect_b32 s81, s9, s81")
for k in range(32):
    if k+3 < 32: rd2(k+3)
    a.wl(f"B{k}")
    a(f"{MF} {V(A2,16)}, {V(48+4*(k%4))}, {V(XF+4*k)}, {V(A2,16)}")
    if K1 and k == K1:
        for u in range(4): p2_tr(a, WREG+8*u, u, f"B{k+4}")
    if K1 and K1+4 <= k < K1+8: p2_dma2(a, 9+k-K1-4, "D2")
    if K1 and k == K2: a("s_barrier")
    if K1 and k in (K2+5, K2+7, K2+9): p2_dma(a, 4+(k-K2-5)//2, "D1")
    if k == env("KVK", 20):
        a.wv("AT")
        a(f"""
        s_lshl_b32 s9, s6, 9
        s_lshl_b32 s10, s4, 5
        s_add_u32 s9, s9, s10
        s_lshl_b32 s10, s3, 2
        s_add_u32 s9, s9, s10
        s_add_u32 s9, s9, {KVF}
        """)
        flag_store("s9")
        st(grp="B")
ffn_epi(a, A2, 67, 0, RRA+2)
st()
TRA = 2
p2_traddr()
if K1:
    a("s_barrier")
    for u in range(7, 9): p2_dma(a, u, "D1x")
    a.wv("H")
    hflag()
    st()
    for u in range(4, 7): p2_tr(a, WREG+8*u, u, "W1")
    a("s_barrier")
    a.wl("W1")
    for u in range(13, 16): p2_dma2(a, u, "D2")
    a.wv("D1x")
    for u in range(7, 9): p2_tr(a, WREG+8*u, u, "W1")
    a.wl("W1")
    for u in range(16, 18): p2_dma2(a, u, "D2")
else:
    for u in range(4): p2_tr(a, WREG+8*u, u, "W1")
    a("s_barrier")
    for u in range(4, 6): p2_dma(a, u, "D1")
    a.wv("H")
    hflag()
    st()
    a("s_barrier")
    for u in range(6, 9): p2_dma(a, u, "D1")
    a.wl("W1")
    for u in range(9, 13): p2_dma(a, u, "D2")
    a.wv("D1")
    for u in range(4, 9): p2_tr(a, WREG+8*u, u, "W1")
    a.wl("W1")
    for u in range(13, 18): p2_dma(a, u, "D2")
a(f"s_branch {L('tail')}")
a.label(L('typeB'))
a.qload("br")
for p in range(6): dma(1, p)
for i in range(10): a(f"v_add_u32 v{160+i}, {2*SLOT}, v{8+i}")
a("s_cmp_eq_u32 s8, 0\ns_cselect_b64 s[80:81], -1, 0\ns_mov_b64 vcc, s[80:81]")
st(5, grp="P"); a.wv("C0"); st(grp="P"); a("s_barrier"); st(grp="P")
st(1, grp="A")
def rdB(p):
    i = p & 3; b = 96 + 16*(p & 1); c = p >> 2; sl = c % 3
    ab = 8 if sl < 2 else 160; so = SLOT if sl == 1 else 0
    a(f"ds_read_b128 {V(b)}, v{ab+i} offset:{so}", f"P{p}")
    for e in range(2): a(f"ds_read_b64_tr_b16 {V(b+8+2*e,2)}, v{ab+8} offset:{so+i*2048+e*512}", f"P{p}")
    a(f"ds_read_b128 {V(b+4)}, v{ab+4+i} offset:{so}", f"P{p}")
    for e in range(2): a(f"ds_read_b64_tr_b16 {V(b+12+2*e,2)}, v{ab+9} offset:{so+i*2048+e*512}", f"P{p}")
rdB(0)
WPB, BXB, RRB, RAWB = 200, 208, 220, 232
for p in range(32):
    c = p >> 2; i = p & 3
    a.wl(f"P{p}")
    if i == 3 and c < 7:
        a.wv(f"C{c+1}")
        if p == 19: side_poll_wait("B", True)
        a("s_barrier"); st(grp="A")
    if p+1 < 32: rdB(p+1)
    b = 96 + 16*(p & 1)
    a(f"{MF} {V(ACC[0],16)}, {V(b+8)}, {V(b)}, {V(ACC[0],16) if p else 0}")
    a(f"{MF} {V(ACC[1],16)}, {V(b+8)}, {V(b+4)}, {V(ACC[1],16) if p else 0}")
    if p < 3: dma(2, 2*p); dma(2, 2*p+1)
    else:
        cc = ((p-3) >> 2) + 3; q = (p-3) & 3
        if cc <= 7:
            for piece in ((0,1),(2,3),(4,),(5,))[q]: dma(cc, piece)
    a(f"{MF} {V(ACC[2],16)}, {V(b+12)}, {V(b)}, {V(ACC[2],16) if p else 0}")
    a(f"s_cbranch_vccz {L(f'm4_{p}')}")
    with a.skippable():
        a(f"{MF} {V(ACC[3],16)}, {V(b+12)}, {V(b+4)}, {V(ACC[3],16) if p else 0}")
    a.label(L(f"m4_{p}"))
    side_touch("B", p, 250, 251)
    if p == 0: side_wphi_dma("B")
    if p == 3: side_flags("B", 240)
    if p == 8:
        for h in range(2):
            for e in range(2): a(f"ds_read_b64_tr_b16 {V(WPB+4*h+2*e,2)}, v21 offset:{h*512+e*256}", f"P{p+1}")
    if p == 13: side_poll_issue("B")
    if p == 19: side_poll_check("B", RAWB, 240, "P20")
    if p == 26: a.wv("ST")
    if p == 28: side_csred("B", 144, 240)
    if p == 29: side_bext(RAWB, BXB, RRB, 240)
    if p == 22: side_p2(240)
    if p in (23, 24, 25): p2_dma(a, p-23, "D1a")
    if p in (27, 29, 30): p2_dma(a, {27:3, 29:4, 30:5}[p], "D1b")
st(2)
a("s_waitcnt lgkmcnt(0)\ns_barrier")
a(f"""
ds_read_b32 v216, v23
ds_read_b32 v240, v24
v_cmp_gt_u32 vcc, 32, v1
v_lshl_or_b32 v27, v27, 16, v27
v_lshl_or_b32 v28, v28, 16, v28
s_and_b64 s[80:81], s[80:81], vcc
v_cndmask_b32 v218, 0, v27, s[80:81]
v_cndmask_b32 v242, 0, v28, vcc
v_mov_b32 v219, 0
v_mov_b32 v243, 0
s_waitcnt lgkmcnt(0)
v_cndmask_b32 v216, 0, v216, vcc
v_cndmask_b32 v240, 0, v240, vcc
v_mov_b32 v217, v216
v_mov_b32 v241, v240
{MF} {V(ACC[0],16)}, v[216:219], {V(BXB)}, {V(ACC[0],16)}
{MF} {V(ACC[1],16)}, v[216:219], {V(BXB+4)}, {V(ACC[1],16)}
{MF} {V(ACC[2],16)}, v[240:243], {V(BXB)}, {V(ACC[2],16)}
{MF} {V(ACC[3],16)}, v[240:243], {V(BXB+4)}, {V(ACC[3],16)}
""")
for u in range(6, 9): p2_dma(a, u, "D1c")
TRA = 12
p2_traddr(12)
def w2step(k):
    if k == 0:
        a.wv("D1a")
        for u in range(0, 3): p2_tr(a, WREG+8*u, u, "W1")
    elif k == 1:
        a.wl("W1")
        for u in range(9, 12): p2_dma(a, u, "D2")
        a.wv("D1b")
        for u in range(3, 6): p2_tr(a, WREG+8*u, u, "W1")
    elif k == 2:
        a.wl("W1")
        for u in range(12, 15): p2_dma(a, u, "D2")
        a.wv("D1c")
        for u in range(6, 9): p2_tr(a, WREG+8*u, u, "W1")
    elif k == 3:
        a.wl("W1")
        for u in range(15, 18): p2_dma(a, u, "D2")
a(f"s_cmp_eq_u32 s8, 0\ns_cbranch_scc0 {L('Bq')}")
a.qsave("bq")
ffn_epi(a, ACC[0], 66, 0, RRB+2)
ffn_epi(a, ACC[1], 66, 1, RRB+5)
ffn_epi(a, ACC[2], 67, 0, RRB+2)
ffn_epi(a, ACC[3], 67, 1, RRB+5)
st(3)
a.wv("D1c")
for u in range(9): p2_tr(a, WREG+8*u, u, "W1")
a.wv("H")
hflag()
a("s_mov_b32 s81, s61\ns_lshl_b32 s9, s3, 2\nv_mov_b32 v11, s9")
a.wl("W1")
for u in range(9, 18): p2_dma(a, u, "D2")
lds_wait("pw", 12304)
for u in range(9, 18): p2_dma_partner(a, u, "D2")
a("s_waitcnt vmcnt(0)\nv_mov_b32 v10, s75\nds_write_b32 v11, v10 offset:12320")
st(4)
a(f"s_branch {L('tailB')}")
a.label(L('Bq'))
a.qload("bq")
stor = {(0,0): (80, 84), (0,1): (88, 92), (1,0): (232, 236), (1,1): (240, 244)}
ffn_epi(a, ACC[2], 67, 0, RRB+2)
a(f"v_lshlrev_b32 v8, 3, v1\ns_lshl_b32 s66, s6, 9\ns_add_u32 s66, s66, {KVF}\ns_mul_i32 s11, s78, 4352")
for f in range(2):
    acc = ACC[f]
    for q in range(8): a(f"v_cvt_pk_bf16_f32 v{acc+q}, v{acc+2*q}, v{acc+2*q+1}")
    for h in range(2):
        a(f"{MF} {V(T,16)}, {V(WPB+4*h)}, {V(acc+4*h)}, 0")
        if 2*f+h == TRP:
            a.wv("H"); hflag()
            for u in range(9): p2_tr(a, WREG+8*u, u, "W1")
        if 2*f+h == TRP+1:
            a.wl("W1")
            a("s_lshl_b32 s9, s3, 2\nv_mov_b32 v9, s9\nv_mov_b32 v10, s75\nds_write_b32 v9, v10 offset:12288")
        softmax(a, T, stor[(f,h)][0], stor[(f,h)][1], RRB+1+3*f)
st(3)
a(f"""
v_min_u32 v9, 16, v29
v_mul_u32_u24 v10, 17, v30
v_add_u32 v9, v9, v10
v_lshlrev_b32 v9, 2, v9
v_add_u32 v9, s11, v9
""")
kvpoll(4, 'nopk')
a("s_mov_b32 s71, 0")
a.label(L('lf1'))
a(f"""
ds_read_b32 v10, v19 offset:12288
s_waitcnt lgkmcnt(0)
v_readfirstlane_b32 s9, v10
s_add_u32 s71, s71, 1
s_cmp_gt_u32 s71, {SPIN*8}
s_cbranch_scc1 {L('lf2')}
s_cmp_eq_u32 s9, s75
s_cbranch_scc1 {L('lf2')}
s_sleep 1
s_branch {L('lf1')}
""")
a.label(L('lf2'))
for h in range(2):
    for r in range(16): a(f"ds_read_b32 v{32+16*h+r}, v9 offset:{h*2176+r*136}", f"K{h}")
a(f"s_add_u32 s9, s65, 112\ns_lshl_b32 s9, s9, 10\ns_add_u32 s10, s9, s64\ns_add_u32 s9, s9, s74")
for h in range(2):
    kb = 32+16*h
    a.wl(f"K{h}")
    for q in range(8): a(f"v_cvt_pk_bf16_f32 v{kb+q}, v{kb+2*q}, v{kb+2*q+1}")
    for f in range(2):
        Tt = 96+16*f
        a(f"{MF} {V(Tt,16)}, {V(kb)}, {V(stor[(f,h)][0])}, 0")
        a(f"{MF} {V(Tt,16)}, {V(kb+4)}, {V(stor[(f,h)][1])}, {V(Tt,16)}")
    for f in range(2):
        Tt = 96+16*f; o = kb+8+4*f
        a(f"v_add_f32 v8, 0x358637bd, v{Tt+8}\nv_rcp_f32 v8, v8")
        for r in range(8): a(f"v_mul_f32 v{Tt+r}, v{Tt+r}, v8")
        for q in range(4): a(f"v_cvt_pk_bf16_f32 v{o+q}, v{Tt+2*q}, v{Tt+2*q+1}")
        a(f"buffer_store_dwordx4 {V(o)}, v26, {R(WS)}, {('s9','s10')[f]} offen offset:{h*1024} {SC}", "O")
a.wv("O")
a(f"s_lshl_b32 s9, s6, 3\ns_lshl_b32 s10, s78, 2\ns_add_u32 s9, s9, s10\ns_add_u32 s9, s9, s77\ns_add_u32 s9, s9, {OF}")
flag_store("s9")
st()
a("s_lshl_b32 s9, s3, 2\nv_mov_b32 v11, s9")
lds_wait("r2w", 12320-16)
a.label(L('tailB'))
for i in range(6): a(f"v_mov_b32 v{2+i}, v{12+i}")
TRA = 2
a.label(L('tail'))
a(f"""
s_mul_i32 s64, s82, {2*AF_TG}
s_mul_i32 s65, s3, {14*1024}
s_add_u32 s65, s65, s64
s_lshl_b32 s66, s3, 12
s_add_u32 s66, s66, s64
s_add_u32 s66, s66, {112*1024}
s_add_u32 s67, s66, {AF_TG}
s_lshl_b32 s9, s82, 8
s_add_u32 s72, s9, {HF}
s_add_u32 s73, s9, {OF}
v_lshlrev_b32 v0, 4, v1
v_lshlrev_b32 v8, 2, v1
""")
st(5)
a(f"s_cmp_eq_u32 s3, 0\ns_cbranch_scc0 {L('phok')}")
with a.skippable():
    a("s_mov_b32 s79, 0")
    a.label(L('ph'))
    a(f"""
    buffer_load_dword v10, v8, {R(WS)}, s72 offen {SC}
    s_waitcnt vmcnt(0)
    v_cmp_ne_u32 vcc, s75, v10
    s_cmp_eq_u64 vcc, 0
    s_cbranch_scc1 {L('phok')}
    s_add_u32 s79, s79, 1
    s_cmp_gt_u32 s79, {SPIN}
    s_cbranch_scc1 {L('phok')}
    s_sleep {SLP}
    s_branch {L('ph')}
    """)
if env("DEC", 0):
    a.label(L('phok2')) if False else None
a.label(L('phok'))
if env("DEC", 0):
    a(f"s_cmp_eq_u32 s3, 0\ns_cbranch_scc0 {L('hw0')}")
    with a.skippable():
        a("v_mov_b32 v10, s75\nds_write_b32 v19, v10 offset:12352")
    a.label(L('hw0'))
    a("v_mov_b32 v11, 0")
    lds_wait("hw", 12352)
else:
    a("s_barrier")
st(); st(1, grp="T")
abuf = [200+8*i for i in range(7)] + [16+8*i for i in range(4)]
NA = 11
a(f"""
s_mov_b32 s60, s65
s_add_u32 s83, s65, {14*1024}
s_lshl_b32 s9, s76, 10
s_add_u32 s65, s65, s9
""")
def aload(u):
    r = abuf[u % NA]
    if u < 14:
        a(f"s_add_u32 s71, s65, {AF_TG}")
        a(f"buffer_load_dwordx4 {V(r)}, v0, {R(WS)}, s65 offen {ASC}", f"A{u}")
        a(f"buffer_load_dwordx4 {V(r+4)}, v0, {R(WS)}, s71 offen {ASC}", f"A{u}")
        a("s_add_u32 s65, s65, 1024\ns_cmp_eq_u32 s65, s83\ns_cselect_b32 s65, s60, s65")
    else:
        for tb in range(2):
            a(f"buffer_load_dwordx4 {V(r+4*tb)}, v0, {R(WS)}, s{(66,67)[tb]} offen offset:{(u-14)*1024} {SC}", f"A{u}")
NW = env("NW", 11)
OCK = min(OCK, 14-NW) if NW < 11 else OCK
FOP = max(0, OCK - 2)
for u in range(NW):
    aload(u)
    if NW == 11 and u == OCK: a(f"buffer_load_dword v10, v8, {R(WS)}, s73 offen {SC}", f"A{OCK}")
def mfmas(u, w):
    r = abuf[u % NA]
    for tb in range(2):
        for nb in range(2):
            d = P2ACC + 16*(2*tb+nb)
            a(f"{MF} {V(d,16)}, {V(w+4*nb)}, {V(r+4*tb)}, {V(d,16) if u else 0}")
a(f"""
v_lshrrev_b32 v12, 3, v1
v_lshlrev_b32 v12, 10, v12
v_and_b32 v13, 7, v1
v_lshlrev_b32 v13, 4, v13
v_add_u32 v12, v12, v13
s_lshl_b32 s74, s82, 16
s_lshl_b32 s9, s3, 13
s_add_u32 s74, s74, s9
s_add_u32 s74, s74, s62
""")
for u in range(18):
    if u == 8: p2_tr(a, WTMP, 9, "T9")
    if 9 <= u < 17: p2_tr(a, WTMP + 8*((u-8)&1), u+1, f"T{u+1}")
    if u >= 9: a.wl(f"T{u}")
    a.wv(f"A{u}")
    if u in (0, 7, 14): st(grp="T")
    mfmas(u, WREG+8*u if u < 9 else WTMP+8*((u-9)&1))
    if NW == 11:
        if u < 3: aload(u+NA)
    else:
        if u+NW < 14: aload(u+NW)
        if u+NW == OCK+0: a(f"buffer_load_dword v10, v8, {R(WS)}, s73 offen {SC}", f"A{OCK}")
        if u > OCK and u+NW < 18: aload(u+NW)  if u+NW >= 14 else None
    if u == 3:
        a(f"buffer_load_dwordx4 v[128:131], v12, {R(X)}, s74 offen", "X")
        a(f"buffer_load_dwordx4 v[132:135], v13, {R(B2)}, s62 offen", "X")
    if u == OCK:
        a("s_mov_b32 s79, 0")
        a.label(L('po'))
        a(f"""
        v_cmp_ne_u32 vcc, s75, v10
        s_and_b32 s9, vcc_lo, 0xffff
        s_cmp_eq_u32 s9, 0
        s_cbranch_scc1 {L('pook')}
        s_add_u32 s79, s79, 1
        s_cmp_gt_u32 s79, {SPIN}
        s_cbranch_scc1 {L('pook')}
        """)
        with a.skippable():
            a(f"s_sleep 16\nbuffer_load_dword v10, v8, {R(WS)}, s73 offen {SC}\ns_waitcnt vmcnt(0)\ns_branch {L('po')}")
        a.label(L('pook'))
        if NW == 11:
            for uu in range(14, 18): aload(uu)
        else: aload(14)
st(); st(grp="T")
a(f"""
v_bfe_u32 v8, v1, 3, 2
v_lshlrev_b32 v8, 14, v8
v_and_b32 v9, 7, v1
v_lshl_add_u32 v8, v9, 8, v8
v_lshrrev_b32 v10, 5, v1
v_xor_b32 v10, v10, v9
v_lshl_add_u32 v8, v10, 4, v8
s_add_u32 s9, s69, {PG}
v_add_u32 v8, s9, v8
v_xor_b32 v9, 32, v8
v_xor_b32 v10, 64, v8
v_xor_b32 v11, 96, v8
v_add_u32 v2, 0x10000, v8
v_add_u32 v3, 0x10000, v9
v_add_u32 v4, 0x10000, v10
v_add_u32 v5, 0x10000, v11
""")
for tb in range(2):
    for nb in range(2):
        for qq in range(4):
            d = P2ACC + 16*(2*tb+nb) + 4*qq
            a(f"ds_write_b128 v{(8,2)[tb]+qq}, {V(d)} offset:{nb*128}")
a("""
v_lshrrev_b32 v6, 3, v1
v_and_b32 v7, 7, v1
v_lshlrev_b32 v7, 1, v7
v_xor_b32 v7, v7, v6
v_lshlrev_b32 v6, 8, v6
v_lshl_add_u32 v6, v7, 4, v6
s_lshl_b32 s9, s3, 14
s_add_u32 s9, s9, 16384
v_add_u32 v6, s9, v6
v_xor_b32 v7, 16, v6
s_waitcnt lgkmcnt(0)
""")
st(grp="T"); a("s_barrier"); st(grp="T")
RR = 160
for w in range(8):
    for e in range(2):
        a(f"ds_read_b128 {V(RR+8*w+4*e)}, v{6+e} offset:{w*2048}", f"R{w}")
a.wv("X")
for i in range(4):
    a(f"v_lshlrev_b32 v{24+2*i}, 16, v{128+i}\nv_and_b32 v{25+2*i}, 0xffff0000, v{128+i}")
    a(f"v_lshlrev_b32 v{32+2*i}, 16, v{132+i}\nv_and_b32 v{33+2*i}, 0xffff0000, v{132+i}")
for i in range(8): a(f"v_add_f32 v{24+i}, v{24+i}, v{32+i}")
for w in range(8):
    a.wl(f"R{w}")
    for i in range(8): a(f"v_add_f32 v{24+i}, v{24+i}, v{RR+8*w+i}")
for i in range(4): a(f"v_cvt_pk_bf16_f32 v{32+i}, v{24+2*i}, v{25+2*i}")
a(f"buffer_store_dwordx4 v[32:35], v12, {R(OUT)}, s74 offen {os.environ.get('OSC','')}")
st(grp="T")
if INSTR:
    a("s_waitcnt vmcnt(0)"); st()
    nst[0] = 9
    a(f"s_waitcnt lgkmcnt(0)\ns_lshl_b32 s9, s2, 3\ns_add_u32 s9, s9, s3\ns_lshl_b32 s9, s9, 6\ns_add_u32 s9, s9, {STAMPS}")
    a("v_mov_b32 v0, 0\ns_mov_b64 exec, 1")
    for i in range(nst[0]):
        a(f"v_mov_b32 v1, s{84+2*i}\nbuffer_store_dword v1, v0, {R(WS)}, s9 offen offset:{4*i}\ns_nop 1")
a.label(L('end')); a("s_endpgm")
desc = f""".section .rodata,"a"
.p2align 6
.amdhsa_kernel {NAME}
  .amdhsa_next_free_vgpr 256
  .amdhsa_next_free_sgpr 102
  .amdhsa_accum_offset 256
  .amdhsa_group_segment_fixed_size 0
  .amdhsa_kernarg_size 96
  .amdhsa_user_sgpr_count 2
  .amdhsa_user_sgpr_kernarg_segment_ptr 1
  .amdhsa_system_sgpr_workgroup_id_x 1
  .amdhsa_float_denorm_mode_32 3
.end_amdhsa_kernel
"""
if __name__ == "__main__":
    open(sys.argv[1], "w").write("; @launch grid=(256,1,1) block=(512,1,1) lds=163840\n" + a.finish() + desc)
    print("stamps:", nst[0], "STAMPS", STAMPS)
```

```python
import sys, os
sys.path.insert(0, "work")
from asmlib import Asm
EXP = os.environ.get("EXP", "").split(",")
INSTR = "instr" in sys.argv
STG = os.environ.get("STG", "main")
def env(n, d): return int(os.environ.get(n, str(d)))
NAME = "parallel_sum__linear_kernel_hedgehog__dense_activation_squared_relu__prompt_kernel"
SZ = dict(x=2048*512*2, wqkv=512*1536*2, wphi=32*16*16*2, wo=512*512*2, w1=512*1792*2, b1=1792*2, w2=1792*512*2, b2=512*2, out=2048*512*2, dbg=256)
KSLOT = dict(x=0, wqkv=1, wphi=2, wo=3, w1=5, b1=6, w2=7, b2=8, out=9, dbg=10, ws=11)
AF_TG = 144*1024
KVACC = 64*AF_TG; KV_J = 9216
KVF = KVACC + 8*KV_J
HF = KVF + 8*512
OF = HF + 32*256
EFS = OF + 32*256
EFC = EFS + 16*128
CSP = EFC + 16*128
STAT = CSP + 16*14336
STAMPS = STAT + 2048*16
WS_END = STAMPS + 256*8*64
SZ["ws"] = WS_END
LOG2E = "0x3fb8aa3b"
SLOT = 49152; PG = 16384; RB = PG
SPIN = 60000
FLA = env("FLA", 18); FLC = env("FLC", 23); KPW = env("KPW", 4); FLB = env("FLB", 14); OCK = env("OCK", 6 if env("NW", 11) == 11 else 14-env("NW", 11)); AW = env("AW", 0); TRP = env("TRP", 1); NE = env("NE", 4); NB = env("NB", 8)
SC = "sc0 sc1"
ASC = os.environ.get("ASC", "sc0 sc1")
SLP = env("SLP", 8)
X, WQ, W1, WS, DBG, WPHI, B1, I1, W2, WO, B2, OUT = 12, 16, 20, 24, 28, 32, 36, 40, 44, 48, 52, 56
def R(s): return f"s[{s}:{s+3}]"
def V(b, n=4): return f"v[{b}:{b+n-1}]"
MF = "v_mfma_f32_32x32x16_bf16"
a = Asm()
nst = [0]
def st(i=None, grp="main"):
    if not INSTR or grp != STG: return
    if i is not None: nst[0] = i
    a(f"s_memrealtime s[{84+2*nst[0]}:{85+2*nst[0]}]"); nst[0] += 1
def L(n): return f"L_{n}"
def fin(x, n, s): x(f"s_mov_b32 s{s+2}, {SZ[n]}\ns_mov_b32 s{s+3}, 0x20000")

a.raw('.amdgcn_target "amdgcn-amd-amdhsa--gfx950"\n.text')
a.raw(f".globl {NAME}\n.p2align 8\n.type {NAME},@function\n{NAME}:")
a(f"s_cmp_ge_u32 s2, 256\ns_cbranch_scc1 {L('end')}")
st(grp=STG)
names = (("x",X),("wqkv",WQ),("w1",W1),("ws",WS),("dbg",DBG),("wphi",WPHI),("b1",B1),("w2",W2),("wo",WO),("b2",B2),("out",OUT))
for n, s in names: a(f"s_load_dwordx2 s[{s}:{s+1}], s[0:1], {KSLOT[n]*8}")
a(f"""
v_and_b32 v1, 63, v0
v_lshrrev_b32 v2, 6, v0
v_readfirstlane_b32 s3, v2
s_bfe_u32 s4, s2, 0x30003
s_bfe_u32 s9, s2, 0x10002
s_lshl_b32 s9, s9, 3
s_add_u32 s4, s4, s9                ; m
s_lshr_b32 s5, s2, 7                ; type
s_and_b32 s6, s2, 3
s_lshl_b32 s6, s6, 1
s_bfe_u32 s10, s2, 0x10006
s_add_u32 s6, s6, s10               ; j
v_lshrrev_b32 v9, 3, v1
v_and_b32 v10, 7, v1
v_lshrrev_b32 v11, 4, v1
v_xor_b32 v12, v10, v11
v_lshlrev_b32 v13, 10, v9
v_lshl_add_u32 v2, v12, 4, v13
v_xor_b32 v3, 0x2040, v2
v_and_b32 v11, 1, v11
v_lshlrev_b32 v11, 6, v11
v_lshlrev_b32 v12, 4, v10
v_xor_b32 v12, v12, v11
v_mul_u32_u24 v13, 3072, v9
v_add_u32 v4, v13, v12
v_mul_u32_u24 v13, 3584, v9
v_add_u32 v6, v13, v12
v_xor_b32 v14, 32, v4
s_and_b32 s9, s2, 3
s_mul_i32 s9, s9, 5
s_add_u32 s9, s9, 8
s_mul_i32 s11, s10, 3
s_add_u32 s66, s9, s11              ; I1 block (B)
s_add_u32 s67, s66, 1
s_add_u32 s68, s9, 2                ; I3 block
s_lshl_b32 s61, s6, 7
s_add_u32 s62, s61, 2048
s_lshl_b32 s77, s66, 7
s_add_u32 s78, s61, 1024
s_movk_i32 s63, 3584
s_cmp_eq_u32 s5, 0
s_cselect_b64 vcc, -1, 0
s_cselect_b32 s61, s78, s61         ; I0 col
s_cselect_b32 s62, s62, s77         ; I1 col
s_cselect_b32 s63, 3072, s63
s_cselect_b32 s67, s6, s67          ; I2 block
v_cndmask_b32 v5, v6, v14, vcc
s_lshl_b32 s64, s67, 7              ; I2 col
s_lshl_b32 s65, s68, 7              ; I3 col
s_lshl_b32 s60, s4, 17
s_lshl_b32 s69, s3, 11
s_lshl_b32 s70, s3, 10
s_lshl_b32 s11, s3, 14
s_add_u32 s76, s60, s11
s_mul_i32 s11, s3, {8*3072}
s_add_u32 s11, s61, s11
v_add_u32 v4, s11, v4
s_lshl_b32 s11, s3, 3
s_mul_i32 s11, s11, s63
s_add_u32 s11, s62, s11
v_add_u32 v5, s11, v5
s_lshl_b32 s75, s63, 6
s_mul_i32 s11, s3, {8*3584}
s_add_u32 s73, s64, s11
s_add_u32 s74, s65, s11
v_add_u32 v7, s74, v6
v_add_u32 v6, s73, v6
s_mov_b32 s82, 0
s_mov_b32 s83, 0
s_mov_b32 s73, 0
s_lshl_b32 s79, s5, 3
s_add_u32 s79, s79, s6              ; slot
s_and_b32 s78, s3, 1                ; lo
s_lshr_b32 s77, s3, 1
v_lshlrev_b32 v26, 4, v1
s_waitcnt lgkmcnt(0)
""")
st(8, grp="P"); nst[0] = 1
fin(a, "x", X); fin(a, "wqkv", WQ); fin(a, "w1", W1)
a(f"""
s_cmp_eq_u32 s5, 0
s_cselect_b32 s{I1}, s{WQ}, s{W1}
s_cselect_b32 s{I1+1}, s{WQ+1}, s{W1+1}
s_cselect_b32 s{I1+2}, s{WQ+2}, s{W1+2}
s_mov_b32 s{I1+3}, 0x20000
""")
a(f"""
s_lshl_b32 s9, s79, 13
s_add_u32 s9, s9, s70
s_add_u32 s9, s9, s60
""")
a(f"buffer_load_dwordx4 v[112:115], v26, {R(X)}, s9 offen", "E")
a(f"""
v_lshrrev_b32 v9, 2, v1
v_and_b32 v10, 3, v1
v_lshlrev_b32 v10, 4, v10
s_cmp_eq_u32 s77, 0
s_cselect_b32 s9, s61, s62
s_cselect_b32 s11, 3072, s63
s_cmp_eq_u32 s77, 2
s_cselect_b32 s9, s64, s9
s_cmp_eq_u32 s77, 3
s_cselect_b32 s9, s65, s9
s_cselect_b32 s71, s10, s78
s_cmp_ge_u32 s77, 2
s_cselect_b32 s11, 3584, s11
s_lshl_b32 s71, s71, 6
s_add_u32 s9, s9, s71
s_lshl_b32 s71, s4, 5
s_mul_i32 s71, s71, s11
s_add_u32 s9, s9, s71               ; + 32m rows
v_mul_lo_u32 v9, v9, s11
v_add_u32 v9, v9, v10
s_lshl_b32 s11, s11, 4
s_add_u32 s71, s9, s11
s_mov_b32 m0, s69
s_cmp_eq_u32 s11, {3072*16}
s_cbranch_scc1 {L('e1')}
""")
with a.skippable():
    a(f"buffer_load_dwordx4 v9, {R(W1)}, s9 offen lds\ns_add_u32 m0, s69, 1024\ns_nop 0\nbuffer_load_dwordx4 v9, {R(W1)}, s71 offen lds\ns_branch {L('e2')}")
a.label(L('e1'))
with a.skippable():
    a(f"buffer_load_dwordx4 v9, {R(WQ)}, s9 offen lds\ns_add_u32 m0, s69, 1024\ns_nop 0\nbuffer_load_dwordx4 v9, {R(WQ)}, s71 offen lds")
a.label(L('e2'))
def dma(c, piece):
    t = f"C{c}"; sl = RB + (c % 3)*SLOT
    if piece < 2:
        a(f"s_add_u32 m0, s69, {sl+1024*piece-c*128}")
        a(f"buffer_load_dwordx4 v{2+piece}, {R(X)}, s76 offen offset:{c*128} lds", t)
    elif piece == 2:
        a(f"s_add_u32 m0, s70, {sl+16384}")
        a(f"buffer_load_dwordx4 v4, {R(WQ)}, s82 offen lds", t)
        a(f"s_add_u32 s82, s82, {64*3072}")
    elif piece == 3:
        a(f"s_add_u32 m0, s70, {sl+24576}")
        a(f"buffer_load_dwordx4 v5, {R(I1)}, s83 offen lds", t)
        a("s_add_u32 s83, s83, s75")
    elif piece == 4:
        a(f"s_add_u32 m0, s70, {sl+32768}")
        a(f"buffer_load_dwordx4 v6, {R(W1)}, s73 offen lds", t)
    else:
        a(f"s_add_u32 m0, s70, {sl+40960}")
        a(f"buffer_load_dwordx4 v7, {R(W1)}, s73 offen lds", t)
        a(f"s_add_u32 s73, s73, {64*3584}")
dma(0, 0); a.items.append(("retag", ("C0", "E")))
a(f"s_cmp_eq_u32 s5, 0\ns_cbranch_scc1 {L('c0b')}")
with a.skippable():
    dma(0, 4); dma(0, 5)
a.label(L('c0b'))
dma(0, 1); dma(0, 2); dma(0, 3)
st(grp="P")
if env("WU", 0):
    a(f"s_cmp_lt_u32 s3, 4\ns_cbranch_scc0 {L('wu1')}")
    with a.skippable():
        a(f"""
        v_lshrrev_b32 v254, 1, v1
        v_and_b32 v255, 1, v1
        v_lshlrev_b32 v255, 7, v255
        v_lshl_add_u32 v254, v254, 10, v255
        s_lshl_b32 s9, s3, 15
        s_add_u32 s9, s9, s60
        s_lshr_b32 s11, s2, 6
        s_lshl_b32 s11, s11, 8
        s_add_u32 s9, s9, s11
        buffer_load_dword v255, v254, {R(X)}, s9 offen
        s_branch {L('wu3')}
        """)
    a.label(L('wu1'))
    with a.skippable():
        a(f"""
        s_cmp_eq_u32 s3, 4
        s_cselect_b32 s9, s61, s62
        s_cselect_b32 s11, 3072, s63
        s_cmp_eq_u32 s3, 6
        s_cselect_b32 s9, s64, s9
        s_cmp_eq_u32 s3, 7
        s_cselect_b32 s9, s65, s9
        s_cmp_ge_u32 s3, 6
        s_cselect_b32 s11, 3584, s11
        s_and_b32 s71, s4, 7
        s_lshl_b32 s71, s71, 6
        s_mul_i32 s71, s71, s11
        s_add_u32 s9, s9, s71
        v_mul_lo_u32 v254, v1, s11
        s_cmp_eq_u32 s11, 3072
        s_cbranch_scc1 {L('wu2')}
        buffer_load_dword v255, v254, {R(W1)}, s9 offen
        s_branch {L('wu3')}
        """)
        a.label(L('wu2'))
        a(f"buffer_load_dword v255, v254, {R(WQ)}, s9 offen")
    a.label(L('wu3'))
    a.items.append(("qins", ("C0", 1)))
if env("ICP", 0):
    a(f"s_cmp_lt_u32 s3, 4\ns_cbranch_scc0 {L('noicp')}")
    with a.skippable():
        a(f"""
        s_getpc_b64 s[80:81]
        v_lshlrev_b32 v127, 7, v1
        s_lshl_b32 s9, s3, 13
        v_add_u32 v127, s9, v127
        v_min_u32 v127, {env("ICP", 0)}, v127
        global_load_dword v127, v127, s[80:81]
        """)
    a.label(L('noicp'))
fin(a, "ws", WS); fin(a, "dbg", DBG)
a("v_mov_b32 v19, 0")
a(f"s_or_b32 s9, s2, s3\ns_cmp_eq_u32 s9, 0\ns_cbranch_scc0 {L('nononce')}")
with a.skippable():
    a(f"""
    s_memrealtime s[80:81]
    s_waitcnt lgkmcnt(0)
    s_or_b32 s80, s80, 1
    v_mov_b32 v10, s80
    s_mov_b64 exec, 1
    buffer_store_dword v10, v19, {R(DBG)}, 0 offen {SC}
    s_mov_b64 exec, -1
    """)
a.label(L('nononce'))
a(f"""
s_bfe_u32 s7, s3, 0x10001           ; mh
s_lshr_b32 s8, s3, 2                ; hi
s_mul_i32 s72, s6, {KV_J}
s_add_u32 s72, s72, {KVACC}
s_cmp_eq_u32 s5, 1
s_cselect_b32 s9, s4, 1
s_cmp_eq_u32 s9, 0
s_cbranch_scc0 {L('nozero')}
""")
with a.skippable():
    a(f"""
    v_lshlrev_b32 v9, 4, v0
    v_mov_b32 v10, 0
    v_mov_b32 v11, 0
    v_mov_b32 v12, 0
    v_mov_b32 v13, 0
    buffer_store_dwordx4 v[10:13], v9, {R(WS)}, s72 offen {SC}
    s_add_u32 s9, s72, 8192
    s_cmp_eq_u32 s3, 0
    s_cbranch_scc0 {L('nozero')}
    buffer_store_dwordx4 v[10:13], v9, {R(WS)}, s9 offen {SC}
    """)
a.label(L('nozero'))
a(f"""
s_and_b32 s9, s78, s8
s_cmp_eq_u32 s5, 0
s_cselect_b32 s61, s8, s9           ; sel
v_and_b32 v29, 31, v1
v_lshrrev_b32 v30, 5, v1
v_bfe_u32 v31, v1, 1, 3
v_xor_b32 v31, v31, v30
v_lshlrev_b32 v20, 7, v29
v_lshl_add_u32 v8, v31, 4, v20
s_lshl_b32 s9, s7, 1
s_add_u32 s62, s9, s61
s_lshl_b32 s9, s62, 12
s_add_u32 s9, s9, {RB}
v_add_u32 v8, s9, v8
v_xor_b32 v9, 32, v8
v_xor_b32 v10, 64, v8
v_xor_b32 v11, 96, v8
v_xor_b32 v12, 0x1000, v8
v_xor_b32 v13, 0x1000, v9
v_xor_b32 v14, 0x1000, v10
v_xor_b32 v15, 0x1000, v11
v_bfe_u32 v31, v1, 2, 2
v_lshl_add_u32 v20, v30, 3, v31
v_and_b32 v22, 3, v1
v_lshlrev_b32 v22, 3, v22
v_lshl_add_u32 v18, v20, 6, v22
v_lshl_add_u32 v20, v20, 7, v22
v_lshl_add_u32 v21, v30, 2, v31
v_lshl_add_u32 v21, v21, 5, v22
v_bfe_u32 v22, v1, 4, 1
v_lshl_add_u32 v18, v22, 5, v18
v_add_u32 v18, s69, v18
v_and_b32 v31, 2, v31
v_xor_b32 v31, v31, v22
v_lshl_add_u32 v20, v31, 5, v20     ; nat0
s_lshl_b32 s9, s8, 1
s_add_u32 s63, s9, s78              ; nq
s_lshl_b32 s9, s63, 5
v_xor_b32 v23, s9, v20
v_lshl_add_u32 v23, v22, 13, v23
s_lshl_b32 s9, s78, 6
v_xor_b32 v24, s9, v20
s_cmp_eq_u32 s8, 0
s_cselect_b32 s10, 8192, 0
v_add_u32 v25, s10, v24
v_cndmask_b32 v16, v25, v23, vcc
v_add_u32 v16, {RB+16384}, v16
s_and_b32 s9, s6, 1
s_lshl_b32 s9, s9, 6
v_xor_b32 v25, s9, v20
v_add_u32 v25, 8192, v25
s_and_b32 s9, s5, s8
s_cmp_eq_u32 s9, 1
s_cselect_b64 s[80:81], -1, 0
v_cndmask_b32 v17, v24, v25, s[80:81]
v_add_u32 v17, {RB+32768}, v17
v_mov_b32 v20, v24
v_mul_u32_u24 v23, 192, v22
v_lshlrev_b32 v24, 2, v29
s_lshl_b32 s9, s63, 6
v_add3_u32 v23, v23, v24, s9
s_lshl_b32 s9, s78, 7
s_cmp_eq_u32 s8, 0
s_cselect_b32 s10, 256, 0
s_add_u32 s10, s10, s9
v_add_u32 v25, s10, v24
v_cndmask_b32 v23, v25, v23, vcc
s_add_u32 s9, s9, 512
s_and_b32 s10, s5, s8
s_cmp_eq_u32 s10, 1
s_cselect_b32 s9, 768, s9
v_add_u32 v24, s9, v24
s_lshl_b32 s66, s66, 1
s_add_u32 s66, s66, s78
s_lshl_b32 s67, s67, 1
s_add_u32 s67, s67, s78
s_lshl_b32 s68, s68, 1
s_and_b32 s9, s6, 1
s_add_u32 s68, s68, s9
s_cmp_eq_u32 s10, 1
s_cselect_b32 s67, s68, s67
s_lshl_b32 s9, s78, 1
s_cmp_eq_u32 s5, 0
s_cselect_b32 s9, s63, s9
s_lshl_b32 s10, s6, 2
s_add_u32 s65, s10, s9
s_lshl_b32 s9, s9, 9
s_add_u32 s9, s9, 14336
v_add_u32 v21, s9, v21
v_mov_b32 v22, 0x3f803f80
v_and_b32 v27, 15, v1
v_lshlrev_b32 v27, 2, v27
s_lshl_b32 s9, s4, 7
s_add_u32 s9, s9, {EFS}
s_lshl_b32 s10, s79, 7
s_add_u32 s10, s10, {EFC}
v_add_u32 v25, s9, v27
v_add_u32 v28, s10, v27
v_lshrrev_b32 v27, 4, v1
v_cmp_eq_u32 vcc, 1, v27
v_cndmask_b32 v25, v25, v28, vcc
s_lshl_b32 s9, s6, 2
s_add_u32 s9, s9, {EFS+32}
v_writelane_b32 v25, s9, 32
""")
fin(a, "b1", B1); fin(a, "wphi", WPHI); fin(a, "w2", W2); fin(a, "wo", WO); fin(a, "b2", B2); fin(a, "out", OUT)
st(grp="P")
a.wv("E")
st(grp="P")
for k, off in enumerate((0, 256, 1024, 1280)): a(f"ds_read_b64_tr_b16 {V(120+2*k,2)}, v18 offset:{off}", "EW")
a("v_mov_b32 v116, 0\nv_mov_b32 v117, 0\nv_mov_b32 v118, 0")
for q in range(4):
    a(f"v_dot2_f32_bf16 v116, v{112+q}, v22, v116\nv_dot2_f32_bf16 v117, v{112+q}, v{112+q}, v117")
a.wl("EW")
for q in range(8): a(f"v_dot2_f32_bf16 v118, v{120+q}, v22, v118")
for dpp in ("quad_perm:[1,0,3,2]", "quad_perm:[2,3,0,1]", "row_half_mirror", "row_mirror"):
    a(f"v_add_f32_dpp v116, v116, v116 {dpp} row_mask:0xf bank_mask:0xf\nv_add_f32_dpp v117, v117, v117 {dpp} row_mask:0xf bank_mask:0xf")
a(f"""
v_permlane16_swap_b32 v116, v117
v_add_f32 v116, v116, v117
v_mov_b32 v119, v118
v_mov_b32 v117, v116
v_permlane32_swap_b32 v118, v119
v_permlane32_swap_b32 v116, v117
v_add_f32 v118, v118, v119
v_add_f32 v116, v116, v117
v_mov_b32 v117, v116
v_permlane16_swap_b32 v116, v117
v_mul_f32 v116, 0x3b000000, v116
v_mul_f32 v117, 0x3b000000, v117
v_fma_f32 v117, -v116, v116, v117
v_max_f32 v117, 0, v117
v_add_f32 v117, 0x3727c5ac, v117
v_rsq_f32 v114, v117
v_sub_f32 v116, 0, v116
v_mul_f32 v117, v117, v114
v_cvt_pk_bf16_f32 v120, v116, v117
v_and_b32 v121, 0xffff0000, v120
v_lshlrev_b32 v122, 16, v120
v_sub_f32 v123, v116, v122
v_sub_f32 v124, v117, v121
v_cvt_pk_bf16_f32 v112, v122, v123
v_cvt_pk_bf16_f32 v113, v121, v124
s_lshl_b32 s10, s4, 7
s_lshl_b32 s11, s79, 3
s_add_u32 s10, s10, s11
s_add_u32 s10, s10, s3
s_lshl_b32 s10, s10, 4
s_add_u32 s10, s10, {STAT}
s_mul_i32 s11, s79, 14336
s_mul_i32 s71, s4, 896
s_add_u32 s11, s11, s71
s_lshl_b32 s71, s3, 7
s_add_u32 s11, s11, s71
s_add_u32 s11, s11, {CSP}
v_lshlrev_b32 v120, 2, v1
s_mov_b64 exec, 1
buffer_store_dwordx4 v[112:115], v19, {R(WS)}, s10 offen {SC}
s_cmp_lt_u32 s3, 7
s_cselect_b32 exec_lo, -1, 0
s_cbranch_scc0 {L('nocs')}
""")
with a.skippable():
    a(f"buffer_store_dword v118, v120, {R(WS)}, s11 offen {SC}")
a.label(L('nocs'))
a("s_mov_b64 exec, -1")
a(f"buffer_load_dword v31, v19, {R(DBG)}, 0 offen {SC}", "N0")
a("v_lshlrev_b32 v120, 1, v29\ns_lshl_b32 s9, s66, 6\ns_lshl_b32 s10, s67, 6")
a(f"buffer_load_ushort v27, v120, {R(B1)}, s9 offen", "S")
a(f"buffer_load_ushort v28, v120, {R(B1)}, s10 offen", "S")
st(); st(grp="P")

def side_flags(tg, tmp):
    a(f"s_cmp_eq_u32 s3, 0\ns_cbranch_scc0 {L('nofl'+tg)}")
    with a.skippable():
        a("s_mov_b32 s71, 0")
        a.label(L('nspin'+tg))
        a(f"""
        v_readfirstlane_b32 s9, v31
        s_add_u32 s71, s71, 1
        s_cmp_gt_u32 s71, {SPIN}
        s_cbranch_scc1 {L('nok'+tg)}
        s_cmp_lg_u32 s9, 0
        s_cbranch_scc1 {L('nok'+tg)}
        buffer_load_dword v31, v19, {R(DBG)}, 0 offen {SC}
        s_waitcnt vmcnt(0)
        s_branch {L('nspin'+tg)}
        """)
        a.label(L('nok'+tg))
        a(f"""
        s_lshl_b32 s10, s4, 7
        s_lshl_b32 s11, s79, 2
        s_add_u32 s10, s10, s11
        s_lshl_b32 s11, s79, 7
        s_lshl_b32 s71, s4, 2
        s_add_u32 s11, s11, s71
        s_add_u32 s11, s11, {EFC-EFS}
        v_mov_b32 v{tmp}, s10
        v_writelane_b32 v{tmp}, s11, 1
        s_mov_b32 s10, {EFS}
        s_mov_b64 exec, 3
        buffer_store_dword v31, v{tmp}, {R(WS)}, s10 offen {SC}
        s_mov_b64 exec, -1
        """)
    a.label(L('nofl'+tg))
def side_wphi_dma(tg):
    a(f"s_cmp_lt_u32 s3, 2\ns_cbranch_scc0 {L('nowp'+tg)}")
    with a.skippable():
        a(f"s_add_u32 m0, s70, 14336\ns_lshl_b32 s9, s6, 11\ns_add_u32 s9, s9, s70\nbuffer_load_dwordx4 v26, {R(WPHI)}, s9 offen lds")
    a.label(L('nowp'+tg))
def side_poll_issue(tg):
    a(f"s_cmp_eq_u32 s3, 0\ns_cbranch_scc0 {L('npi'+tg)}")
    with a.skippable():
        a(f"buffer_load_dword v18, v25, {R(WS)}, 0 offen {SC}")
    a.label(L('npi'+tg))
def side_poll_wait(tg, restore_vcc):
    a(f"s_cmp_eq_u32 s3, 0\ns_cbranch_scc0 {L('fok2'+tg)}")
    with a.skippable():
        a("s_mov_b32 s71, 0")
        a.label(L('fspin'+tg))
        a(f"""
        v_cmp_ne_u32 vcc, v18, v31
        s_cmp_eq_u64 vcc, 0
        s_cbranch_scc1 {L('fok'+tg)}
        s_add_u32 s71, s71, 1
        s_cmp_gt_u32 s71, {SPIN}
        s_cbranch_scc1 {L('fok'+tg)}
        s_sleep {SLP}
        buffer_load_dword v18, v25, {R(WS)}, 0 offen {SC}
        s_waitcnt vmcnt(0)
        s_branch {L('fspin'+tg)}
        """)
        a.label(L('fok'+tg))
        if restore_vcc: a("s_mov_b64 vcc, s[80:81]")
        a("ds_write_b32 v19, v31 offset:16380\ns_waitcnt lgkmcnt(0)")
    a.label(L('fok2'+tg))
def side_poll_check(tg, raw, tmp, ptag):
    a(f"ds_read_b32 v31, v19 offset:16380", ptag)
    a(f"""
    v_lshlrev_b32 v{tmp}, 4, v29
    s_lshl_b32 s9, s4, 11
    s_lshl_b32 s10, s62, 9
    s_add_u32 s9, s9, s10
    s_add_u32 s9, s9, {STAT}
    s_xor_b32 s10, s9, 512
    """)
    a(f"s_cmp_lt_u32 s3, 7\ns_cbranch_scc0 {L('nocsd'+tg)}")
    with a.skippable():
        a(f"s_mul_i32 s11, s79, 14336\ns_add_u32 s11, s11, s69\ns_add_u32 s11, s11, {CSP}\ns_mov_b32 m0, s69")
        a(f"buffer_load_dwordx4 v26, {R(WS)}, s11 offen {SC} lds")
        a(f"buffer_load_dwordx4 v26, {R(WS)}, s11 offen offset:1024 {SC} lds")
    a.label(L('nocsd'+tg))
    a(f"buffer_load_dwordx4 {V(raw)}, v{tmp}, {R(WS)}, s9 offen {SC}", "ST")
    a(f"buffer_load_dwordx4 {V(raw+4)}, v{tmp}, {R(WS)}, s10 offen {SC}", "ST")
def side_csred(tg, t16, tmp):
    a(f"s_cmp_lt_u32 s3, 4\ns_cbranch_scc0 {L('nored'+tg)}")
    with a.skippable():
        a(f"v_min_u32 v{tmp}, 223, v0\nv_lshlrev_b32 v{tmp}, 2, v{tmp}")
        for g in range(16): a(f"ds_read_b32 v{t16+g}, v{tmp} offset:{g*896}")
        a("s_waitcnt lgkmcnt(0)")
        for w in (8, 4, 2, 1):
            for g in range(w): a(f"v_add_f32 v{t16+g}, v{t16+g}, v{t16+g+w}")
        a(f"""
        v_cvt_pk_bf16_f32 v{t16+1}, v{t16}, v{t16}
        v_and_b32 v{t16+1}, 0xffff0000, v{t16+1}
        v_sub_f32 v{t16+2}, v{t16}, v{t16+1}
        v_cvt_pk_bf16_f32 v{t16}, v{t16+1}, v{t16+2}
        ds_write_b32 v{tmp}, v{t16}
        """)
    a.label(L('nored'+tg))
def side_bext(raw, BX, RR, tmp):
    for t in range(2):
        s0 = raw+4*t; B = BX+4*t; rr = RR+3*t
        a(f"""
        v_and_b32 v{tmp}, 0xffff, v{s0}
        v_lshl_or_b32 v{B}, v{tmp}, 16, v{tmp}
        v_lshrrev_b32 v{tmp}, 16, v{s0}
        v_lshl_or_b32 v{B+1}, v{tmp}, 16, v{tmp}
        v_mov_b32 v{B+2}, v{s0+1}
        v_mov_b32 v{B+3}, 0
        v_mov_b32 v{rr}, v{s0+2}
        v_mul_f32 v{rr+1}, {LOG2E}, v{s0+2}
        v_mul_f32 v{rr+2}, 0.5, v{s0+2}
        """)
MAP = env("MAP", 0)
if MAP == 0:
    P2MAP = f"""
    s_and_b32 s82, s2, 7
    s_lshl_b32 s82, s82, 2
    s_bfe_u32 s9, s2, 0x20003
    s_add_u32 s82, s82, s9
    s_lshr_b32 s62, s2, 5
    s_mul_i32 s76, s62, 7
    s_lshr_b32 s76, s76, 2
    s_mul_i32 s9, s9, 3
    """
else:
    P2MAP = f"""
    s_bfe_u32 s82, s2, 0x20001
    s_lshl_b32 s82, s82, 3
    s_lshr_b32 s76, s2, 5
    s_add_u32 s82, s82, s76
    s_and_b32 s62, s2, 1
    s_lshl_b32 s62, s62, 2
    s_bfe_u32 s9, s2, 0x20003
    s_add_u32 s62, s62, s9
    s_mul_i32 s76, s76, 7
    s_lshr_b32 s76, s76, 2
    s_mul_i32 s9, s9, 3
    """
P2MAP += f"""
    s_add_u32 s76, s76, s9
    s_lshl_b32 s62, s62, 7
    s_mul_i32 s60, s3, {14*16*1024}
    s_add_u32 s60, s60, s62
    s_add_u32 s83, s60, {14*16384}
    s_lshl_b32 s68, s3, 16
    s_add_u32 s68, s68, s62
"""
TP0 = env("TP0", -1); TPS = env("TPS", 2)
def side_touch(tg, p, r1, r2):
    if TP0 < 0 or p < TP0 or (p-TP0) % TPS or (p-TP0)//TPS >= 8: return
    w = (p-TP0)//TPS
    a(f"s_cmp_eq_u32 s3, {w}\ns_cbranch_scc0 {L(f'pf{tg}{w}')}")
    with a.skippable():
        a(f"""
        s_lshr_b32 s9, s2, 3
        s_lshl_b32 s9, s9, 3
        s_add_u32 s9, s9, s3
        s_and_b32 s71, s2, 1
        s_lshl_b32 s71, s71, 9
        s_mul_i32 s10, s9, {7*1024}
        s_add_u32 s10, s10, s71
        s_lshl_b32 s11, s9, 11
        s_add_u32 s11, s11, s71
        v_lshrrev_b32 v{r1}, 2, v1
        v_and_b32 v{r2}, 3, v1
        v_lshlrev_b32 v{r2}, 7, v{r2}
        v_lshl_add_u32 v{r1}, v{r1}, 10, v{r2}
        s_mov_b64 exec, 0xfffffff
        buffer_load_dword v{r2}, v{r1}, {R(W2)}, s10 offen
        s_mov_b64 exec, 0xff
        buffer_load_dword v{r1}, v{r1}, {R(WO)}, s11 offen
        s_mov_b64 exec, -1
        """)
    a.label(L(f'pf{tg}{w}'))
def side_p2(t3):
    a(f"""
    v_readfirstlane_b32 s75, v31
    v_lshrrev_b32 v{t3}, 3, v1
    v_and_b32 v{t3+1}, 7, v1
    v_lshrrev_b32 v{t3+2}, 2, v1
    v_and_b32 v{t3+2}, 4, v{t3+2}
    v_xor_b32 v{t3+1}, v{t3+1}, v{t3+2}
    v_lshlrev_b32 v{t3}, 10, v{t3}
    v_lshl_add_u32 v18, v{t3+1}, 4, v{t3}
    s_lshl_b32 s74, s4, 2
    s_add_u32 s74, s74, s62
    s_xor_b32 s64, s74, 1
    s_mul_i32 s74, s74, {AF_TG}
    s_mul_i32 s64, s64, {AF_TG}
    {P2MAP}
    s_cmp_ge_u32 s76, 14
    s_cselect_b32 s9, 14, 0
    s_sub_u32 s76, s76, s9
    s_lshl_b32 s61, s76, 14
    s_add_u32 s61, s61, s60
    """)
def p2_adv(x):
    x("s_add_u32 s61, s61, 16384\ns_cmp_eq_u32 s61, s83\ns_cselect_b32 s61, s60, s61")
W2PG = [7, 8, 9, 1, 2, 3, 4, 5, 6]
def p2_dma(x, u, tag, partner=False):
    pg = W2PG[u % 9]
    for half in range(2):
        x(f"s_add_u32 m0, s69, {pg*PG + half*1024}")
        if u < 14:
            if half == 0: x(f"s_add_u32 s71, s61, 8192\nbuffer_load_dwordx4 v18, {R(W2)}, s61 offen lds", tag)
            else: x(f"buffer_load_dwordx4 v18, {R(W2)}, s71 offen lds", tag)
        else:
            x(f"s_add_u32 s71, s68, {((u-14)*16+half*8)*1024}")
            x(f"buffer_load_dwordx4 v18, {R(WO)}, s71 offen lds", tag)
    if partner:
        for half in range(2):
            x(f"s_add_u32 m0, s69, {pg*PG + half*1024 + 8192}\ns_add_u32 s71, s61, {4*14*16384 + half*8192}")
            x(f"buffer_load_dwordx4 v18, {R(W2)}, s71 offen lds", tag)
    if u < 14: p2_adv(x)
def p2_dma_partner(x, u, tag):
    pg = W2PG[u % 9]
    for half in range(2):
        x(f"s_add_u32 m0, s69, {pg*PG + half*1024 + 8192}")
        if u < 14:
            x(f"s_add_u32 s71, s81, {4*14*16384 + half*8192}")
            x(f"buffer_load_dwordx4 v18, {R(W2)}, s71 offen lds", tag)
        else:
            x(f"s_add_u32 s71, s68, {4*65536 + ((u-14)*16+half*8)*1024}")
            x(f"buffer_load_dwordx4 v18, {R(WO)}, s71 offen lds", tag)
    if u < 14: x("s_add_u32 s81, s81, 16384\ns_cmp_eq_u32 s81, s83\ns_cselect_b32 s81, s60, s81")
def p2_dma2(x, u, tag):
    pg = W2PG[u % 9]
    for half in range(2):
        x(f"s_add_u32 m0, s69, {pg*PG + half*1024}")
        if u < 14:
            x(f"s_add_u32 s71, s81, {half*8192}")
            x(f"buffer_load_dwordx4 v18, {R(W2)}, s71 offen lds", tag)
        else:
            x(f"s_add_u32 s71, s68, {((u-14)*16+half*8)*1024}")
            x(f"buffer_load_dwordx4 v18, {R(WO)}, s71 offen lds", tag)
    if u < 14: x("s_add_u32 s81, s81, 16384\ns_cmp_eq_u32 s81, s83\ns_cselect_b32 s81, s60, s81")
def lds_wait(lab, off):
    a("s_mov_b32 s71, 0")
    a.label(L(lab))
    a(f"""
    ds_read_b32 v10, v11 offset:{off}
    s_waitcnt lgkmcnt(0)
    v_readfirstlane_b32 s9, v10
    s_add_u32 s71, s71, 1
    s_cmp_gt_u32 s71, {SPIN*8}
    s_cbranch_scc1 {L(lab+'x')}
    s_cmp_eq_u32 s9, s75
    s_cbranch_scc1 {L(lab+'x')}
    s_sleep 1
    s_branch {L(lab)}
    """)
    a.label(L(lab+'x'))
def softmax(x, P, Pp, Pm, c):
    E = 112
    x(f"""
    v_max3_f32 v2, v{P}, v{P+1}, v{P+2}
    v_max3_f32 v3, -v{P}, -v{P+1}, -v{P+2}
    v_max3_f32 v2, v2, v{P+3}, v{P+4}
    v_max3_f32 v3, v3, -v{P+3}, -v{P+4}
    v_max3_f32 v2, v2, v{P+5}, v{P+6}
    v_max3_f32 v3, v3, -v{P+5}, -v{P+6}
    v_max_f32 v2, v2, v{P+7}
    v_max_f32_e64 v3, v3, -v{P+7}
    v_permlane32_swap_b32 v2, v3
    v_max_f32 v2, v2, v3
    v_mul_f32_e64 v2, -v2, v{c}
    v_mov_b32 v3, v2
    v_permlane32_swap_b32 v2, v3
    """)
    for r in range(8): x(f"v_fma_f32 v{E+r}, -v{P+r}, v{c}, v3\nv_fma_f32 v{P+r}, v{P+r}, v{c}, v2")
    for r in range(8): x(f"v_exp_f32 v{E+r}, v{E+r}\nv_exp_f32 v{P+r}, v{P+r}")
    x(f"v_add_f32 v2, v{P}, v{P+1}\nv_add_f32 v3, v{E}, v{E+1}")
    for r in range(2, 8): x(f"v_add_f32 v2, v2, v{P+r}\nv_add_f32 v3, v3, v{E+r}")
    x("v_permlane32_swap_b32 v2, v3\nv_add_f32 v2, v2, v3\nv_rcp_f32 v2, v2\nv_mov_b32 v3, v2\nv_permlane32_swap_b32 v2, v3")
    for r in range(8): x(f"v_mul_f32 v{P+r}, v{P+r}, v2\nv_mul_f32 v{E+r}, v{E+r}, v3")
    for q in range(4): x(f"v_cvt_pk_bf16_f32 v{Pp+q}, v{P+2*q}, v{P+2*q+1}\nv_cvt_pk_bf16_f32 v{Pm+q}, v{E+2*q}, v{E+2*q+1}")
def ffn_epi(x, acc, s_tile, f, rh, so=9):
    a(f"s_lshl_b32 s{so}, s{s_tile}, 11\ns_add_u32 s{so}, s{so}, s{(74,64)[f]}")
    for r in range(16): x(f"v_add_f32_e64 v{acc+r}, v{acc+r}, |v{acc+r}|")
    for r in range(16): x(f"v_mul_f32 v{acc+r}, v{acc+r}, v{rh}")
    for r in range(16): x(f"v_mul_f32 v{acc+r}, v{acc+r}, v{acc+r}")
    for q in range(8): x(f"v_cvt_pk_bf16_f32 v{acc+q}, v{acc+2*q}, v{acc+2*q+1}")
    x(f"buffer_store_dwordx4 {V(acc)}, v26, {R(WS)}, s{so} offen {SC}", "H")
    x(f"buffer_store_dwordx4 {V(acc+4)}, v26, {R(WS)}, s{so} offen offset:1024 {SC}", "H")
def flag_store(soff):
    a(f"""
    v_mov_b32 v31, s75
    s_mov_b64 exec, 1
    buffer_store_dword v31, v19, {R(WS)}, {soff} offen {SC}
    s_mov_b64 exec, -1
    """)
WREG = 128; P2ACC = 64; WTMP = 48; TRA = 2
def p2_traddr(t=2, q=8):
    a(f"""
    v_lshrrev_b32 v{q}, 5, v1
    v_bfe_u32 v{q+1}, v1, 2, 2
    v_lshl_add_u32 v{q}, v{q}, 2, v{q+1}
    v_lshlrev_b32 v{q}, 7, v{q}
    v_and_b32 v{q+2}, 3, v1
    v_lshl_add_u32 v{q}, v{q+2}, 3, v{q}
    v_bfe_u32 v{q+2}, v1, 4, 1
    v_and_b32 v{q+1}, 2, v{q+1}
    v_or_b32 v{q+2}, v{q+2}, v{q+1}
    v_lshl_add_u32 v{t}, v{q+2}, 5, v{q}
    v_add_u32 v{t}, s69, v{t}
    v_xor_b32 v{t+1}, 64, v{t}
    v_add_u32 v{t+2}, 0x10000, v{t}
    v_add_u32 v{t+3}, 0x10000, v{t+1}
    v_add_u32 v{t+4}, 0x20000, v{t}
    v_add_u32 v{t+5}, 0x20000, v{t+1}
    """)
def p2_tr(x, dst, u, tag):
    pg = W2PG[u % 9]
    for b in range(2):
        for e in range(2):
            x(f"ds_read_b64_tr_b16 {V(dst+4*b+2*e,2)}, v{TRA+2*(pg>>2)+b} offset:{(pg&3)*PG+e*1024}", tag)
def hflag():
    a(f"""
    s_lshl_b32 s9, s4, 1
    s_add_u32 s9, s9, s7
    s_lshl_b32 s77, s9, 8
    s_lshl_b32 s10, s79, 2
    s_add_u32 s10, s10, s63
    s_lshl_b32 s10, s10, 2
    s_add_u32 s9, s77, s10
    s_add_u32 s9, s9, {HF}
    """)
    flag_store("s9")
def kvpoll(w, lab):
    a(f"s_cmp_eq_u32 s3, {w}\ns_cbranch_scc0 {L(lab)}")
    with a.skippable():
        a("s_mov_b32 s71, 0")
        a.label(L('pk'))
        a(f"""
        buffer_load_dwordx2 v[10:11], v8, {R(WS)}, s66 offen {SC}
        s_waitcnt vmcnt(0)
        v_cmp_ne_u32 vcc, s75, v10
        v_cmp_ne_u32 s[80:81], s75, v11
        s_or_b64 vcc, vcc, s[80:81]
        s_cmp_eq_u64 vcc, 0
        s_cbranch_scc1 {L('pk2')}
        s_add_u32 s71, s71, 1
        s_cmp_gt_u32 s71, {SPIN}
        s_cbranch_scc1 {L('pk2')}
        s_sleep {SLP}
        s_branch {L('pk')}
        """)
        a.label(L('pk2'))
        for q in range(9):
            a(f"s_mov_b32 m0, {q*1024}\ns_add_u32 s10, s72, {q*1024}\nbuffer_load_dwordx4 v26, {R(WS)}, s10 offen {SC} lds")
        a("s_waitcnt vmcnt(0)\nv_mov_b32 v10, s75\nds_write_b32 v19, v10 offset:12288")
    a.label(L(lab))
ACC = [32, 48, 64, 80]
T = 96; KP = 2*PG; XF = 128
a(f"s_cmp_eq_u32 s5, 0\ns_cbranch_scc0 {L('typeB')}")
a.qsave("br")
for p in range(4): dma(1, p)
for i in range(8): a(f"v_add_u32 v{112+i}, {2*SLOT}, v{8+i}")
a(f"v_add_u32 v17, {2*SLOT}, v16")
a("v_lshlrev_b32 v121, 2, v30\nv_sub_u32 v121, v29, v121\nv_mov_b32 v122, 0x3f80\nv_mov_b32 v123, 0x3f800000")
SEL, WPH, BX, RRA, RAW = 64, 72, 76, 84, 120
for k in range(8):
    sg = k >> 2; q = k & 3
    f0 = (2*q & 3) + 8*((2*q) >> 2) + 16*sg
    a(f"v_cmp_eq_u32 vcc, {f0}, v121\nv_cndmask_b32 v{SEL+k}, 0, v122, vcc\nv_cmp_eq_u32 vcc, {f0+1}, v121\nv_cndmask_b32 v{SEL+k}, v{SEL+k}, v123, vcc")
st(grp="P"); a.wv("C0"); st(grp="P"); a("s_barrier"); st(grp="P")
st(grp="A")
def rdA(p):
    i = p & 3; b = 96 + 8*(p & 1); c = p >> 2; sl = c % 3
    ab = 8 if sl < 2 else 112; so = SLOT if sl == 1 else 0
    a(f"ds_read_b128 {V(XF+4*p)}, v{ab+i} offset:{so}", f"P{p}")
    for e in range(2): a(f"ds_read_b64_tr_b16 {V(b+4+2*e,2)}, v{16 if sl < 2 else 17} offset:{so+i*2048+e*512}", f"P{p}")
    a(f"ds_read_b128 {V(b)}, v{ab+4+i} offset:{so}", f"P{p}")
rdA(0)
for p in range(32):
    c = p >> 2; i = p & 3
    a.wl(f"P{p}")
    if i == 3 and c < 7:
        a.wv(f"C{c+1}")
        if p == 23: side_poll_wait("A", False)
        a("s_barrier"); st(grp="A")
    if p+1 < 32: rdA(p+1)
    b = 96 + 8*(p & 1)
    a(f"{MF} {V(ACC[0],16)}, {V(b+4)}, {V(XF+4*p)}, {V(ACC[0],16) if p else 0}")
    if p < 2: dma(2, 2*p); dma(2, 2*p+1)
    elif p >= 3:
        cc = ((p-3) >> 2) + 3
        if cc <= 7: dma(cc, (p-3) & 3)
    a(f"{MF} {V(ACC[1],16)}, {V(b+4)}, {V(b)}, {V(ACC[1],16) if p else 0}")
    side_touch("A", p, 94, 95)
    if p == 0: side_wphi_dma("A")
    if p == 3: side_flags("A", 90)
    if p == 8:
        for e in range(2): a(f"ds_read_b64_tr_b16 {V(WPH+2*e,2)}, v21 offset:{e*256}", f"P{p+1}")
    if p == 17: side_poll_issue("A")
    if p == 23: side_poll_check("A", RAW, 92, "P24")
    if p == 24: side_p2(90)
    if AW == 0:
        if p in (24, 25, 26): p2_dma(a, p-24, "D1")
        if p == 28: p2_dma(a, 3, "D1")
    if AW == 2 and p in (27, 28):
        a(f"s_add_u32 m0, s70, {3*PG + (p-27)*8192}")
        a(f"buffer_load_dwordx4 v6, {R(W1)}, s73 offen lds", "I2")
        a(f"s_add_u32 s73, s73, {64*3584}")
st(); st(grp="B")
a.wv("ST"); a("s_barrier")
side_csred("A", 96, 92)
side_bext(RAW, BX, RRA, 92)
a("v_mov_b32 v95, v6")
a("s_waitcnt lgkmcnt(0)\ns_barrier")
st(grp="B")
a(f"""
ds_read_b32 v120, v23
ds_read_b32 v4, v24
v_cmp_gt_u32 vcc, 32, v1
v_lshl_or_b32 v28, v28, 16, v28
v_cndmask_b32 v6, 0, v28, vcc
v_cmp_eq_u32 s[80:81], 16, v29
v_cndmask_b32 v27, 0, v22, s[80:81]
v_mov_b32 v122, 0
v_mov_b32 v123, 0
v_mov_b32 v7, 0
s_waitcnt lgkmcnt(0)
v_cndmask_b32 v120, 0, v120, vcc
v_cndmask_b32 v4, 0, v4, vcc
v_mov_b32 v121, v120
v_mov_b32 v5, v4
{MF} {V(ACC[0],16)}, v[120:123], {V(BX)}, {V(ACC[0],16)}
{MF} {V(ACC[1],16)}, v[120:123], {V(BX+4)}, {V(ACC[1],16)}
""")
KVA = 8
a("v_mov_b32 v90, v18\nv_mov_b32 v91, v20")
E = a.sub(); D = a.sub()
for f in range(2):
    acc = ACC[f]; rr = RRA+3*f
    for q in range(4): E(f"v_cvt_pk_bf16_f32 v{120+q}, v{acc+2*q}, v{acc+2*q+1}")
    E(f"{MF} {V(T,16)}, {V(WPH)}, v[120:123], 0")
    for r in range(8, 16): E(f"v_mul_f32 v{acc+r}, v{acc+r}, v{rr}")
    for q in range(4): E(f"v_cvt_pk_bf16_f32 v{120+q}, v{acc+8+2*q}, v{acc+9+2*q}")
    E(f"{MF} {V(acc,16)}, v[120:123], {V(SEL)}, 0")
    softmax(E, T, 120, 124, rr+1)
    E(f"{MF} {V(T,16)}, v[120:123], {V(SEL)}, 0")
    E(f"{MF} {V(T,16)}, v[124:127], {V(SEL+4)}, {V(T,16)}")
    for q in range(8): E(f"v_cvt_pk_bf16_f32 v{112+q}, v{acc+2*q}, v{acc+2*q+1}\nv_or_b32 v{112+q}, v{112+q}, v27")
    for q in range(8): E(f"v_cvt_pk_bf16_f32 v{T+q}, v{T+2*q}, v{T+2*q+1}")
    E(f"{MF} {V(KVA,16)}, {V(T)}, v[112:115], {V(KVA,16) if f else 0}")
    E(f"{MF} {V(KVA,16)}, {V(T+4)}, v[116:119], {V(KVA,16)}")
for c in range(2 if AW == 2 else 0, 8):
    D(f"s_add_u32 m0, s70, {3*PG + c*8192}")
    D(f"buffer_load_dwordx4 v95, {R(W1)}, s73 offen lds", "I2")
    D(f"s_add_u32 s73, s73, {64*3584}")
if AW:
    D2s = a.sub()
    for u in range(4): p2_dma(D2s, u, "D1")
    for it in D2s.items:
        if hasattr(it, "text"):
            D(it.text.replace("v18", "v90"), it.tag)
nE = len(E.items)*env("EFR", 6)//10
E1 = a.sub(); E1.items = E.items[:nE]; E2 = a.sub(); E2.items = E.items[nE:]
a.merge(E1, D); a.extend(E2)
st(grp="B")
a(f"""
s_lshl_b32 s9, s63, 12
s_lshl_b32 s10, s7, 11
s_add_u32 s9, s9, s10
s_add_u32 s9, s9, {KP}
v_add_u32 v92, s9, v26
v_xor_b32 v93, 0x800, v92
v_mul_u32_u24 v94, 17, v30
v_add_u32 v94, v94, v29
v_lshlrev_b32 v94, 2, v94
s_mul_i32 s10, s63, 2176
s_mul_i32 s11, s7, {8*136}
s_add_u32 s10, s10, s11
s_add_u32 s10, s10, s72
v_cmp_gt_u32 s[80:81], 17, v29
s_cmp_eq_u32 s7, 0
s_cbranch_scc1 {L('kv0')}
""")
with a.skippable():
    for q in range(2): a(f"ds_write_b128 v92, {V(KVA+4*q)} offset:{q*1024}")
    for r in range(8): a(f"v_mov_b32 v{KVA+r}, v{KVA+8+r}")
    a(f"s_branch {L('kv1')}")
a.label(L('kv0'))
with a.skippable():
    for q in range(2): a(f"ds_write_b128 v92, {V(KVA+8+4*q)} offset:{q*1024}")
a.label(L('kv1'))
a.wv("I2")
a("s_waitcnt lgkmcnt(0)\ns_barrier")
for q in range(2): a(f"ds_read_b128 {V(T+4*q)}, v93 offset:{q*1024}")
a(f"v_mov_b32 v18, v90\nv_mov_b32 v19, 0\nv_add_u32 v20, {3*PG}, v91")
a("s_waitcnt lgkmcnt(0)")
for r in range(8): a(f"v_add_f32 v{KVA+r}, v{KVA+r}, v{T+r}")
a("s_mov_b64 exec, s[80:81]")
for r in range(8): a(f"buffer_atomic_add_f32 v{KVA+r}, v94, {R(WS)}, s10 offen offset:{r*136}", "AT")
a("s_mov_b64 exec, -1")
st(grp="B")
A2 = 32
def rd2(k):
    b = 48 + 4*(k % 4)
    for e in range(2): a(f"ds_read_b64_tr_b16 {V(b+2*e,2)}, v20 offset:{k*2048+e*512}", f"B{k}")
a(f"{MF} {V(A2,16)}, v[4:7], {V(BX)}, 0")
rd2(0); rd2(1); rd2(2)
K1 = env("K1", 0); K2 = env("K2", 17)
TRA = 96
if K1: p2_traddr(96, 104)
a(f"s_add_u32 s81, s61, {5*16384}\ns_sub_u32 s9, s81, {14*16384}\ns_cmp_ge_u32 s81, s83\ns_cselect_b32 s81, s9, s81")
for k in range(32):
    if k+3 < 32: rd2(k+3)
    a.wl(f"B{k}")
    a(f"{MF} {V(A2,16)}, {V(48+4*(k%4))}, {V(XF+4*k)}, {V(A2,16)}")
    if K1 and k == K1:
        for u in range(4): p2_tr(a, WREG+8*u, u, f"B{k+4}")
    if K1 and K1+4 <= k < K1+8: p2_dma2(a, 9+k-K1-4, "D2")
    if K1 and k == K2: a("s_barrier")
    if K1 and k in (K2+5, K2+7, K2+9): p2_dma(a, 4+(k-K2-5)//2, "D1")
    if k == env("KVK", 20):
        a.wv("AT")
        a(f"""
        s_lshl_b32 s9, s6, 9
        s_lshl_b32 s10, s4, 5
        s_add_u32 s9, s9, s10
        s_lshl_b32 s10, s3, 2
        s_add_u32 s9, s9, s10
        s_add_u32 s9, s9, {KVF}
        """)
        flag_store("s9")
        st(grp="B")
ffn_epi(a, A2, 67, 0, RRA+2)
st()
TRA = 2
p2_traddr()
if K1:
    a("s_barrier")
    for u in range(7, 9): p2_dma(a, u, "D1x")
    a.wv("H")
    hflag()
    st()
    for u in range(4, 7): p2_tr(a, WREG+8*u, u, "W1")
    a("s_barrier")
    a.wl("W1")
    for u in range(13, 16): p2_dma2(a, u, "D2")
    a.wv("D1x")
    for u in range(7, 9): p2_tr(a, WREG+8*u, u, "W1")
    a.wl("W1")
    for u in range(16, 18): p2_dma2(a, u, "D2")
else:
    for u in range(4): p2_tr(a, WREG+8*u, u, "W1")
    a("s_barrier")
    for u in range(4, 6): p2_dma(a, u, "D1")
    a.wv("H")
    hflag()
    st()
    a("s_barrier")
    for u in range(6, 9): p2_dma(a, u, "D1")
    a.wl("W1")
    for u in range(9, 13): p2_dma(a, u, "D2")
    a.wv("D1")
    for u in range(4, 9): p2_tr(a, WREG+8*u, u, "W1")
    a.wl("W1")
    for u in range(13, 18): p2_dma(a, u, "D2")
a(f"s_branch {L('tail')}")
a.label(L('typeB'))
a.qload("br")
for p in range(6): dma(1, p)
for i in range(10): a(f"v_add_u32 v{160+i}, {2*SLOT}, v{8+i}")
a("s_cmp_eq_u32 s8, 0\ns_cselect_b64 s[80:81], -1, 0\ns_mov_b64 vcc, s[80:81]")
st(5, grp="P"); a.wv("C0"); st(grp="P"); a("s_barrier"); st(grp="P")
st(1, grp="A")
def rdB(p):
    i = p & 3; b = 96 + 16*(p & 1); c = p >> 2; sl = c % 3
    ab = 8 if sl < 2 else 160; so = SLOT if sl == 1 else 0
    a(f"ds_read_b128 {V(b)}, v{ab+i} offset:{so}", f"P{p}")
    for e in range(2): a(f"ds_read_b64_tr_b16 {V(b+8+2*e,2)}, v{ab+8} offset:{so+i*2048+e*512}", f"P{p}")
    a(f"ds_read_b128 {V(b+4)}, v{ab+4+i} offset:{so}", f"P{p}")
    for e in range(2): a(f"ds_read_b64_tr_b16 {V(b+12+2*e,2)}, v{ab+9} offset:{so+i*2048+e*512}", f"P{p}")
rdB(0)
WPB, BXB, RRB, RAWB = 200, 208, 220, 232
for p in range(32):
    c = p >> 2; i = p & 3
    a.wl(f"P{p}")
    if i == 3 and c < 7:
        a.wv(f"C{c+1}")
        if p == 19: side_poll_wait("B", True)
        a("s_barrier"); st(grp="A")
    if p+1 < 32: rdB(p+1)
    b = 96 + 16*(p & 1)
    a(f"{MF} {V(ACC[0],16)}, {V(b+8)}, {V(b)}, {V(ACC[0],16) if p else 0}")
    a(f"{MF} {V(ACC[1],16)}, {V(b+8)}, {V(b+4)}, {V(ACC[1],16) if p else 0}")
    if p < 3: dma(2, 2*p); dma(2, 2*p+1)
    else:
        cc = ((p-3) >> 2) + 3; q = (p-3) & 3
        if cc <= 7:
            for piece in ((0,1),(2,3),(4,),(5,))[q]: dma(cc, piece)
    a(f"{MF} {V(ACC[2],16)}, {V(b+12)}, {V(b)}, {V(ACC[2],16) if p else 0}")
    a(f"s_cbranch_vccz {L(f'm4_{p}')}")
    with a.skippable():
        a(f"{MF} {V(ACC[3],16)}, {V(b+12)}, {V(b+4)}, {V(ACC[3],16) if p else 0}")
    a.label(L(f"m4_{p}"))
    side_touch("B", p, 250, 251)
    if p == 0: side_wphi_dma("B")
    if p == 3: side_flags("B", 240)
    if p == 8:
        for h in range(2):
            for e in range(2): a(f"ds_read_b64_tr_b16 {V(WPB+4*h+2*e,2)}, v21 offset:{h*512+e*256}", f"P{p+1}")
    if p == 13: side_poll_issue("B")
    if p == 19: side_poll_check("B", RAWB, 240, "P20")
    if p == 26: a.wv("ST")
    if p == 28: side_csred("B", 144, 240)
    if p == 29: side_bext(RAWB, BXB, RRB, 240)
    if p == 22: side_p2(240)
    if p in (23, 24, 25): p2_dma(a, p-23, "D1a")
    if p in (27, 29, 30): p2_dma(a, {27:3, 29:4, 30:5}[p], "D1b")
st(2)
a("s_waitcnt lgkmcnt(0)\ns_barrier")
a(f"""
ds_read_b32 v216, v23
ds_read_b32 v240, v24
v_cmp_gt_u32 vcc, 32, v1
v_lshl_or_b32 v27, v27, 16, v27
v_lshl_or_b32 v28, v28, 16, v28
s_and_b64 s[80:81], s[80:81], vcc
v_cndmask_b32 v218, 0, v27, s[80:81]
v_cndmask_b32 v242, 0, v28, vcc
v_mov_b32 v219, 0
v_mov_b32 v243, 0
s_waitcnt lgkmcnt(0)
v_cndmask_b32 v216, 0, v216, vcc
v_cndmask_b32 v240, 0, v240, vcc
v_mov_b32 v217, v216
v_mov_b32 v241, v240
{MF} {V(ACC[0],16)}, v[216:219], {V(BXB)}, {V(ACC[0],16)}
{MF} {V(ACC[1],16)}, v[216:219], {V(BXB+4)}, {V(ACC[1],16)}
{MF} {V(ACC[2],16)}, v[240:243], {V(BXB)}, {V(ACC[2],16)}
{MF} {V(ACC[3],16)}, v[240:243], {V(BXB+4)}, {V(ACC[3],16)}
""")
for u in range(6, 9): p2_dma(a, u, "D1c")
TRA = 12
p2_traddr(12)
def w2step(k):
    if k == 0:
        a.wv("D1a")
        for u in range(0, 3): p2_tr(a, WREG+8*u, u, "W1")
    elif k == 1:
        a.wl("W1")
        for u in range(9, 12): p2_dma(a, u, "D2")
        a.wv("D1b")
        for u in range(3, 6): p2_tr(a, WREG+8*u, u, "W1")
    elif k == 2:
        a.wl("W1")
        for u in range(12, 15): p2_dma(a, u, "D2")
        a.wv("D1c")
        for u in range(6, 9): p2_tr(a, WREG+8*u, u, "W1")
    elif k == 3:
        a.wl("W1")
        for u in range(15, 18): p2_dma(a, u, "D2")
a(f"s_cmp_eq_u32 s8, 0\ns_cbranch_scc0 {L('Bq')}")
a.qsave("bq")
ffn_epi(a, ACC[0], 66, 0, RRB+2)
ffn_epi(a, ACC[1], 66, 1, RRB+5)
ffn_epi(a, ACC[2], 67, 0, RRB+2)
ffn_epi(a, ACC[3], 67, 1, RRB+5)
st(3)
a.wv("D1c")
for u in range(9): p2_tr(a, WREG+8*u, u, "W1")
a.wv("H")
hflag()
a("s_mov_b32 s81, s61\ns_lshl_b32 s9, s3, 2\nv_mov_b32 v11, s9")
a.wl("W1")
for u in range(9, 18): p2_dma(a, u, "D2")
lds_wait("pw", 12304)
for u in range(9, 18): p2_dma_partner(a, u, "D2")
a("s_waitcnt vmcnt(0)\nv_mov_b32 v10, s75\nds_write_b32 v11, v10 offset:12320")
st(4)
a(f"s_branch {L('tailB')}")
a.label(L('Bq'))
a.qload("bq")
stor = {(0,0): (80, 84), (0,1): (88, 92), (1,0): (232, 236), (1,1): (240, 244)}
ffn_epi(a, ACC[2], 67, 0, RRB+2)
a(f"v_lshlrev_b32 v8, 3, v1\ns_lshl_b32 s66, s6, 9\ns_add_u32 s66, s66, {KVF}\ns_mul_i32 s11, s78, 4352")
for f in range(2):
    acc = ACC[f]
    for q in range(8): a(f"v_cvt_pk_bf16_f32 v{acc+q}, v{acc+2*q}, v{acc+2*q+1}")
    for h in range(2):
        a(f"{MF} {V(T,16)}, {V(WPB+4*h)}, {V(acc+4*h)}, 0")
        if 2*f+h == TRP:
            a.wv("H"); hflag()
            for u in range(9): p2_tr(a, WREG+8*u, u, "W1")
        if 2*f+h == TRP+1:
            a.wl("W1")
            a("s_lshl_b32 s9, s3, 2\nv_mov_b32 v9, s9\nv_mov_b32 v10, s75\nds_write_b32 v9, v10 offset:12288")
        softmax(a, T, stor[(f,h)][0], stor[(f,h)][1], RRB+1+3*f)
st(3)
a(f"""
v_min_u32 v9, 16, v29
v_mul_u32_u24 v10, 17, v30
v_add_u32 v9, v9, v10
v_lshlrev_b32 v9, 2, v9
v_add_u32 v9, s11, v9
""")
kvpoll(4, 'nopk')
a("s_mov_b32 s71, 0")
a.label(L('lf1'))
a(f"""
ds_read_b32 v10, v19 offset:12288
s_waitcnt lgkmcnt(0)
v_readfirstlane_b32 s9, v10
s_add_u32 s71, s71, 1
s_cmp_gt_u32 s71, {SPIN*8}
s_cbranch_scc1 {L('lf2')}
s_cmp_eq_u32 s9, s75
s_cbranch_scc1 {L('lf2')}
s_sleep 1
s_branch {L('lf1')}
""")
a.label(L('lf2'))
for h in range(2):
    for r in range(16): a(f"ds_read_b32 v{32+16*h+r}, v9 offset:{h*2176+r*136}", f"K{h}")
a(f"s_add_u32 s9, s65, 112\ns_lshl_b32 s9, s9, 10\ns_add_u32 s10, s9, s64\ns_add_u32 s9, s9, s74")
for h in range(2):
    kb = 32+16*h
    a.wl(f"K{h}")
    for q in range(8): a(f"v_cvt_pk_bf16_f32 v{kb+q}, v{kb+2*q}, v{kb+2*q+1}")
    for f in range(2):
        Tt = 96+16*f
        a(f"{MF} {V(Tt,16)}, {V(kb)}, {V(stor[(f,h)][0])}, 0")
        a(f"{MF} {V(Tt,16)}, {V(kb+4)}, {V(stor[(f,h)][1])}, {V(Tt,16)}")
    for f in range(2):
        Tt = 96+16*f; o = kb+8+4*f
        a(f"v_add_f32 v8, 0x358637bd, v{Tt+8}\nv_rcp_f32 v8, v8")
        for r in range(8): a(f"v_mul_f32 v{Tt+r}, v{Tt+r}, v8")
        for q in range(4): a(f"v_cvt_pk_bf16_f32 v{o+q}, v{Tt+2*q}, v{Tt+2*q+1}")
        a(f"buffer_store_dwordx4 {V(o)}, v26, {R(WS)}, {('s9','s10')[f]} offen offset:{h*1024} {SC}", "O")
a.wv("O")
a(f"s_lshl_b32 s9, s6, 3\ns_lshl_b32 s10, s78, 2\ns_add_u32 s9, s9, s10\ns_add_u32 s9, s9, s77\ns_add_u32 s9, s9, {OF}")
flag_store("s9")
st()
a("s_lshl_b32 s9, s3, 2\nv_mov_b32 v11, s9")
lds_wait("r2w", 12320-16)
a.label(L('tailB'))
for i in range(6): a(f"v_mov_b32 v{2+i}, v{12+i}")
TRA = 2
a.label(L('tail'))
a(f"""
s_mul_i32 s64, s82, {2*AF_TG}
s_mul_i32 s65, s3, {14*1024}
s_add_u32 s65, s65, s64
s_lshl_b32 s66, s3, 12
s_add_u32 s66, s66, s64
s_add_u32 s66, s66, {112*1024}
s_add_u32 s67, s66, {AF_TG}
s_lshl_b32 s9, s82, 8
s_add_u32 s72, s9, {HF}
s_add_u32 s73, s9, {OF}
v_lshlrev_b32 v0, 4, v1
v_lshlrev_b32 v8, 2, v1
""")
st(5)
a(f"s_cmp_eq_u32 s3, 0\ns_cbranch_scc0 {L('phok')}")
with a.skippable():
    a("s_mov_b32 s79, 0")
    a.label(L('ph'))
    a(f"""
    buffer_load_dword v10, v8, {R(WS)}, s72 offen {SC}
    s_waitcnt vmcnt(0)
    v_cmp_ne_u32 vcc, s75, v10
    s_cmp_eq_u64 vcc, 0
    s_cbranch_scc1 {L('phok')}
    s_add_u32 s79, s79, 1
    s_cmp_gt_u32 s79, {SPIN}
    s_cbranch_scc1 {L('phok')}
    s_sleep {SLP}
    s_branch {L('ph')}
    """)
if env("DEC", 0):
    a.label(L('phok2')) if False else None
a.label(L('phok'))
if env("DEC", 0):
    a(f"s_cmp_eq_u32 s3, 0\ns_cbranch_scc0 {L('hw0')}")
    with a.skippable():
        a("v_mov_b32 v10, s75\nds_write_b32 v19, v10 offset:12352")
    a.label(L('hw0'))
    a("v_mov_b32 v11, 0")
    lds_wait("hw", 12352)
else:
    a("s_barrier")
st(); st(1, grp="T")
abuf = [200+8*i for i in range(7)] + [16+8*i for i in range(4)]
NA = 11
a(f"""
s_mov_b32 s60, s65
s_add_u32 s83, s65, {14*1024}
s_lshl_b32 s9, s76, 10
s_add_u32 s65, s65, s9
""")
def aload(u):
    r = abuf[u % NA]
    if u < 14:
        a(f"s_add_u32 s71, s65, {AF_TG}")
        a(f"buffer_load_dwordx4 {V(r)}, v0, {R(WS)}, s65 offen {ASC}", f"A{u}")
        a(f"buffer_load_dwordx4 {V(r+4)}, v0, {R(WS)}, s71 offen {ASC}", f"A{u}")
        a("s_add_u32 s65, s65, 1024\ns_cmp_eq_u32 s65, s83\ns_cselect_b32 s65, s60, s65")
    else:
        for tb in range(2):
            a(f"buffer_load_dwordx4 {V(r+4*tb)}, v0, {R(WS)}, s{(66,67)[tb]} offen offset:{(u-14)*1024} {SC}", f"A{u}")
NW = env("NW", 11)
OCK = min(OCK, 14-NW) if NW < 11 else OCK
FOP = max(0, OCK - 2)
for u in range(NW):
    aload(u)
    if NW == 11 and u == OCK: a(f"buffer_load_dword v10, v8, {R(WS)}, s73 offen {SC}", f"A{OCK}")
def mfmas(u, w):
    r = abuf[u % NA]
    for tb in range(2):
        for nb in range(2):
            d = P2ACC + 16*(2*tb+nb)
            a(f"{MF} {V(d,16)}, {V(w+4*nb)}, {V(r+4*tb)}, {V(d,16) if u else 0}")
a(f"""
v_lshrrev_b32 v12, 3, v1
v_lshlrev_b32 v12, 10, v12
v_and_b32 v13, 7, v1
v_lshlrev_b32 v13, 4, v13
v_add_u32 v12, v12, v13
s_lshl_b32 s74, s82, 16
s_lshl_b32 s9, s3, 13
s_add_u32 s74, s74, s9
s_add_u32 s74, s74, s62
""")
for u in range(18):
    if u == 8: p2_tr(a, WTMP, 9, "T9")
    if 9 <= u < 17: p2_tr(a, WTMP + 8*((u-8)&1), u+1, f"T{u+1}")
    if u >= 9: a.wl(f"T{u}")
    a.wv(f"A{u}")
    if u in (0, 7, 14): st(grp="T")
    mfmas(u, WREG+8*u if u < 9 else WTMP+8*((u-9)&1))
    if NW == 11:
        if u < 3: aload(u+NA)
    else:
        if u+NW < 14: aload(u+NW)
        if u+NW == OCK+0: a(f"buffer_load_dword v10, v8, {R(WS)}, s73 offen {SC}", f"A{OCK}")
        if u > OCK and u+NW < 18: aload(u+NW)  if u+NW >= 14 else None
    if u == 3:
        a(f"buffer_load_dwordx4 v[128:131], v12, {R(X)}, s74 offen", "X")
        a(f"buffer_load_dwordx4 v[132:135], v13, {R(B2)}, s62 offen", "X")
    if u == OCK:
        a("s_mov_b32 s79, 0")
        a.label(L('po'))
        a(f"""
        v_cmp_ne_u32 vcc, s75, v10
        s_and_b32 s9, vcc_lo, 0xffff
        s_cmp_eq_u32 s9, 0
        s_cbranch_scc1 {L('pook')}
        s_add_u32 s79, s79, 1
        s_cmp_gt_u32 s79, {SPIN}
        s_cbranch_scc1 {L('pook')}
        """)
        with a.skippable():
            a(f"s_sleep 16\nbuffer_load_dword v10, v8, {R(WS)}, s73 offen {SC}\ns_waitcnt vmcnt(0)\ns_branch {L('po')}")
        a.label(L('pook'))
        if NW == 11:
            for uu in range(14, 18): aload(uu)
        else: aload(14)
st(); st(grp="T")
a(f"""
v_bfe_u32 v8, v1, 3, 2
v_lshlrev_b32 v8, 14, v8
v_and_b32 v9, 7, v1
v_lshl_add_u32 v8, v9, 8, v8
v_lshrrev_b32 v10, 5, v1
v_xor_b32 v10, v10, v9
v_lshl_add_u32 v8, v10, 4, v8
s_add_u32 s9, s69, {PG}
v_add_u32 v8, s9, v8
v_xor_b32 v9, 32, v8
v_xor_b32 v10, 64, v8
v_xor_b32 v11, 96, v8
v_add_u32 v2, 0x10000, v8
v_add_u32 v3, 0x10000, v9
v_add_u32 v4, 0x10000, v10
v_add_u32 v5, 0x10000, v11
""")
for tb in range(2):
    for nb in range(2):
        for qq in range(4):
            d = P2ACC + 16*(2*tb+nb) + 4*qq
            a(f"ds_write_b128 v{(8,2)[tb]+qq}, {V(d)} offset:{nb*128}")
a("""
v_lshrrev_b32 v6, 3, v1
v_and_b32 v7, 7, v1
v_lshlrev_b32 v7, 1, v7
v_xor_b32 v7, v7, v6
v_lshlrev_b32 v6, 8, v6
v_lshl_add_u32 v6, v7, 4, v6
s_lshl_b32 s9, s3, 14
s_add_u32 s9, s9, 16384
v_add_u32 v6, s9, v6
v_xor_b32 v7, 16, v6
s_waitcnt lgkmcnt(0)
""")
st(grp="T"); a("s_barrier"); st(grp="T")
RR = 160
for w in range(8):
    for e in range(2):
        a(f"ds_read_b128 {V(RR+8*w+4*e)}, v{6+e} offset:{w*2048}", f"R{w}")
a.wv("X")
for i in range(4):
    a(f"v_lshlrev_b32 v{24+2*i}, 16, v{128+i}\nv_and_b32 v{25+2*i}, 0xffff0000, v{128+i}")
    a(f"v_lshlrev_b32 v{32+2*i}, 16, v{132+i}\nv_and_b32 v{33+2*i}, 0xffff0000, v{132+i}")
for i in range(8): a(f"v_add_f32 v{24+i}, v{24+i}, v{32+i}")
for w in range(8):
    a.wl(f"R{w}")
    for i in range(8): a(f"v_add_f32 v{24+i}, v{24+i}, v{RR+8*w+i}")
for i in range(4): a(f"v_cvt_pk_bf16_f32 v{32+i}, v{24+2*i}, v{25+2*i}")
a(f"buffer_store_dwordx4 v[32:35], v12, {R(OUT)}, s74 offen {os.environ.get('OSC','')}")
st(grp="T")
a(f"s_or_b32 s9, s2, s3\ns_cmp_eq_u32 s9, 0\ns_cbranch_scc0 {L('noclr')}")
with a.skippable():
    a(f"v_mov_b32 v8, 0\ns_mov_b64 exec, 1\nbuffer_store_dword v8, v8, {R(DBG)}, 0 offen {SC}\ns_mov_b64 exec, -1")
a.label(L('noclr'))
if INSTR:
    a("s_waitcnt vmcnt(0)"); st()
    nst[0] = 9
    a(f"s_waitcnt lgkmcnt(0)\ns_lshl_b32 s9, s2, 3\ns_add_u32 s9, s9, s3\ns_lshl_b32 s9, s9, 6\ns_add_u32 s9, s9, {STAMPS}")
    a("v_mov_b32 v0, 0\ns_mov_b64 exec, 1")
    for i in range(nst[0]):
        a(f"v_mov_b32 v1, s{84+2*i}\nbuffer_store_dword v1, v0, {R(WS)}, s9 offen offset:{4*i}\ns_nop 1")
a.label(L('end')); a("s_endpgm")
desc = f""".section .rodata,"a"
.p2align 6
.amdhsa_kernel {NAME}
  .amdhsa_next_free_vgpr 256
  .amdhsa_next_free_sgpr 102
  .amdhsa_accum_offset 256
  .amdhsa_group_segment_fixed_size 0
  .amdhsa_kernarg_size 96
  .amdhsa_user_sgpr_count 2
  .amdhsa_user_sgpr_kernarg_segment_ptr 1
  .amdhsa_system_sgpr_workgroup_id_x 1
  .amdhsa_float_denorm_mode_32 3
.end_amdhsa_kernel
"""
if __name__ == "__main__":
    open(sys.argv[1], "w").write("; @launch grid=(256,1,1) block=(512,1,1) lds=163840\n" + a.finish() + desc)
    print("stamps:", nst[0], "STAMPS", STAMPS)
```

```python
import sys, os
sys.path.insert(0, "work")
from asmlib import Asm
EXP = os.environ.get("EXP", "").split(",")
INSTR = "instr" in sys.argv
STG = os.environ.get("STG", "main")
def env(n, d): return int(os.environ.get(n, str(d)))
NAME = "parallel_sum__linear_kernel_hedgehog__dense_activation_squared_relu__prompt_kernel"
SZ = dict(x=2048*512*2, wqkv=512*1536*2, wphi=32*16*16*2, wo=512*512*2, w1=512*1792*2, b1=1792*2, w2=1792*512*2, b2=512*2, out=2048*512*2, dbg=256)
KSLOT = dict(x=0, wqkv=1, wphi=2, wo=3, w1=5, b1=6, w2=7, b2=8, out=9, dbg=10, ws=11)
AF_TG = 144*1024
KVACC = 64*AF_TG; KV_J = 9216
KVF = KVACC + 8*KV_J
HF = KVF + 8*512
OF = HF + 32*256
EFS = OF + 32*256
EFC = EFS + 16*128
CSP = EFC + 16*128
STAT = CSP + 16*14336
STAMPS = STAT + 2048*16
WS_END = STAMPS + 256*8*64
SZ["ws"] = WS_END
LOG2E = "0x3fb8aa3b"
SLOT = 49152; PG = 16384; RB = PG
SPIN = 60000
FLA = env("FLA", 18); FLC = env("FLC", 23); KPW = env("KPW", 4); FLB = env("FLB", 14); OCK = env("OCK", 6 if env("NW", 11) == 11 else 14-env("NW", 11)); AW = env("AW", 0); TRP = env("TRP", 1); NE = env("NE", 4); NB = env("NB", 8)
SC = "sc0 sc1"
ASC = os.environ.get("ASC", "sc0 sc1")
SLP = env("SLP", 8)
X, WQ, W1, WS, DBG, WPHI, B1, I1, W2, WO, B2, OUT = 12, 16, 20, 24, 28, 32, 36, 40, 44, 48, 52, 56
def R(s): return f"s[{s}:{s+3}]"
def V(b, n=4): return f"v[{b}:{b+n-1}]"
MF = "v_mfma_f32_32x32x16_bf16"
a = Asm()
nst = [0]
def st(i=None, grp="main"):
    if not INSTR or grp != STG: return
    if i is not None: nst[0] = i
    a(f"s_memrealtime s[{84+2*nst[0]}:{85+2*nst[0]}]"); nst[0] += 1
def L(n): return f"L_{n}"
def fin(x, n, s): x(f"s_mov_b32 s{s+2}, {SZ[n]}\ns_mov_b32 s{s+3}, 0x20000")

a.raw('.amdgcn_target "amdgcn-amd-amdhsa--gfx950"\n.text')
a.raw(f".globl {NAME}\n.p2align 8\n.type {NAME},@function\n{NAME}:")
a(f"s_cmp_ge_u32 s2, 256\ns_cbranch_scc1 {L('end')}")
st(grp=STG)
names = (("x",X),("wqkv",WQ),("w1",W1),("ws",WS),("dbg",DBG),("wphi",WPHI),("b1",B1),("w2",W2),("wo",WO),("b2",B2),("out",OUT))
for n, s in names: a(f"s_load_dwordx2 s[{s}:{s+1}], s[0:1], {KSLOT[n]*8}")
a(f"""
v_and_b32 v1, 63, v0
v_lshrrev_b32 v2, 6, v0
v_readfirstlane_b32 s3, v2
s_bfe_u32 s4, s2, 0x30003
s_bfe_u32 s9, s2, 0x10002
s_lshl_b32 s9, s9, 3
s_add_u32 s4, s4, s9                ; m
s_lshr_b32 s5, s2, 7                ; type
s_and_b32 s6, s2, 3
s_lshl_b32 s6, s6, 1
s_bfe_u32 s10, s2, 0x10006
s_add_u32 s6, s6, s10               ; j
v_lshrrev_b32 v9, 3, v1
v_and_b32 v10, 7, v1
v_lshrrev_b32 v11, 4, v1
v_xor_b32 v12, v10, v11
v_lshlrev_b32 v13, 10, v9
v_lshl_add_u32 v2, v12, 4, v13
v_xor_b32 v3, 0x2040, v2
v_and_b32 v11, 1, v11
v_lshlrev_b32 v11, 6, v11
v_lshlrev_b32 v12, 4, v10
v_xor_b32 v12, v12, v11
v_mul_u32_u24 v13, 3072, v9
v_add_u32 v4, v13, v12
v_mul_u32_u24 v13, 3584, v9
v_add_u32 v6, v13, v12
v_xor_b32 v14, 32, v4
s_and_b32 s9, s2, 3
s_mul_i32 s9, s9, 5
s_add_u32 s9, s9, 8
s_mul_i32 s11, s10, 3
s_add_u32 s66, s9, s11              ; I1 block (B)
s_add_u32 s67, s66, 1
s_add_u32 s68, s9, 2                ; I3 block
s_lshl_b32 s61, s6, 7
s_add_u32 s62, s61, 2048
s_lshl_b32 s77, s66, 7
s_add_u32 s78, s61, 1024
s_movk_i32 s63, 3584
s_cmp_eq_u32 s5, 0
s_cselect_b64 vcc, -1, 0
s_cselect_b32 s61, s78, s61         ; I0 col
s_cselect_b32 s62, s62, s77         ; I1 col
s_cselect_b32 s63, 3072, s63
s_cselect_b32 s67, s6, s67          ; I2 block
v_cndmask_b32 v5, v6, v14, vcc
s_lshl_b32 s64, s67, 7              ; I2 col
s_lshl_b32 s65, s68, 7              ; I3 col
s_lshl_b32 s60, s4, 17
s_lshl_b32 s69, s3, 11
s_lshl_b32 s70, s3, 10
s_lshl_b32 s11, s3, 14
s_add_u32 s76, s60, s11
s_mul_i32 s11, s3, {8*3072}
s_add_u32 s11, s61, s11
v_add_u32 v4, s11, v4
s_lshl_b32 s11, s3, 3
s_mul_i32 s11, s11, s63
s_add_u32 s11, s62, s11
v_add_u32 v5, s11, v5
s_lshl_b32 s75, s63, 6
s_mul_i32 s11, s3, {8*3584}
s_add_u32 s73, s64, s11
s_add_u32 s74, s65, s11
v_add_u32 v7, s74, v6
v_add_u32 v6, s73, v6
s_mov_b32 s82, 0
s_mov_b32 s83, 0
s_mov_b32 s73, 0
s_lshl_b32 s79, s5, 3
s_add_u32 s79, s79, s6              ; slot
s_and_b32 s78, s3, 1                ; lo
s_lshr_b32 s77, s3, 1
v_lshlrev_b32 v26, 4, v1
s_waitcnt lgkmcnt(0)
""")
st(8, grp="P"); nst[0] = 1
fin(a, "x", X); fin(a, "wqkv", WQ); fin(a, "w1", W1)
a(f"""
s_cmp_eq_u32 s5, 0
s_cselect_b32 s{I1}, s{WQ}, s{W1}
s_cselect_b32 s{I1+1}, s{WQ+1}, s{W1+1}
s_cselect_b32 s{I1+2}, s{WQ+2}, s{W1+2}
s_mov_b32 s{I1+3}, 0x20000
""")
a(f"""
s_lshl_b32 s9, s79, 13
s_add_u32 s9, s9, s70
s_add_u32 s9, s9, s60
""")
a(f"buffer_load_dwordx4 v[112:115], v26, {R(X)}, s9 offen", "E")
a(f"""
v_lshrrev_b32 v9, 2, v1
v_and_b32 v10, 3, v1
v_lshlrev_b32 v10, 4, v10
s_cmp_eq_u32 s77, 0
s_cselect_b32 s9, s61, s62
s_cselect_b32 s11, 3072, s63
s_cmp_eq_u32 s77, 2
s_cselect_b32 s9, s64, s9
s_cmp_eq_u32 s77, 3
s_cselect_b32 s9, s65, s9
s_cselect_b32 s71, s10, s78
s_cmp_ge_u32 s77, 2
s_cselect_b32 s11, 3584, s11
s_lshl_b32 s71, s71, 6
s_add_u32 s9, s9, s71
s_lshl_b32 s71, s4, 5
s_mul_i32 s71, s71, s11
s_add_u32 s9, s9, s71               ; + 32m rows
v_mul_lo_u32 v9, v9, s11
v_add_u32 v9, v9, v10
s_lshl_b32 s11, s11, 4
s_add_u32 s71, s9, s11
s_mov_b32 m0, s69
s_cmp_eq_u32 s11, {3072*16}
s_cbranch_scc1 {L('e1')}
""")
with a.skippable():
    a(f"buffer_load_dwordx4 v9, {R(W1)}, s9 offen lds\ns_add_u32 m0, s69, 1024\ns_nop 0\nbuffer_load_dwordx4 v9, {R(W1)}, s71 offen lds\ns_branch {L('e2')}")
a.label(L('e1'))
with a.skippable():
    a(f"buffer_load_dwordx4 v9, {R(WQ)}, s9 offen lds\ns_add_u32 m0, s69, 1024\ns_nop 0\nbuffer_load_dwordx4 v9, {R(WQ)}, s71 offen lds")
a.label(L('e2'))
def dma(c, piece):
    t = f"C{c}"; sl = RB + (c % 3)*SLOT
    if piece < 2:
        a(f"s_add_u32 m0, s69, {sl+1024*piece-c*128}")
        a(f"buffer_load_dwordx4 v{2+piece}, {R(X)}, s76 offen offset:{c*128} lds", t)
    elif piece == 2:
        a(f"s_add_u32 m0, s70, {sl+16384}")
        a(f"buffer_load_dwordx4 v4, {R(WQ)}, s82 offen lds", t)
        a(f"s_add_u32 s82, s82, {64*3072}")
    elif piece == 3:
        a(f"s_add_u32 m0, s70, {sl+24576}")
        a(f"buffer_load_dwordx4 v5, {R(I1)}, s83 offen lds", t)
        a("s_add_u32 s83, s83, s75")
    elif piece == 4:
        a(f"s_add_u32 m0, s70, {sl+32768}")
        a(f"buffer_load_dwordx4 v6, {R(W1)}, s73 offen lds", t)
    else:
        a(f"s_add_u32 m0, s70, {sl+40960}")
        a(f"buffer_load_dwordx4 v7, {R(W1)}, s73 offen lds", t)
        a(f"s_add_u32 s73, s73, {64*3584}")
dma(0, 0); a.items.append(("retag", ("C0", "E")))
a(f"s_cmp_eq_u32 s5, 0\ns_cbranch_scc1 {L('c0b')}")
with a.skippable():
    dma(0, 4); dma(0, 5)
a.label(L('c0b'))
dma(0, 1); dma(0, 2); dma(0, 3)
st(grp="P")
if env("WU", 0):
    a(f"s_cmp_lt_u32 s3, 4\ns_cbranch_scc0 {L('wu1')}")
    with a.skippable():
        a(f"""
        v_lshrrev_b32 v254, 1, v1
        v_and_b32 v255, 1, v1
        v_lshlrev_b32 v255, 7, v255
        v_lshl_add_u32 v254, v254, 10, v255
        s_lshl_b32 s9, s3, 15
        s_add_u32 s9, s9, s60
        s_lshr_b32 s11, s2, 6
        s_lshl_b32 s11, s11, 8
        s_add_u32 s9, s9, s11
        buffer_load_dword v255, v254, {R(X)}, s9 offen
        s_branch {L('wu3')}
        """)
    a.label(L('wu1'))
    with a.skippable():
        a(f"""
        s_cmp_eq_u32 s3, 4
        s_cselect_b32 s9, s61, s62
        s_cselect_b32 s11, 3072, s63
        s_cmp_eq_u32 s3, 6
        s_cselect_b32 s9, s64, s9
        s_cmp_eq_u32 s3, 7
        s_cselect_b32 s9, s65, s9
        s_cmp_ge_u32 s3, 6
        s_cselect_b32 s11, 3584, s11
        s_and_b32 s71, s4, 7
        s_lshl_b32 s71, s71, 6
        s_mul_i32 s71, s71, s11
        s_add_u32 s9, s9, s71
        v_mul_lo_u32 v254, v1, s11
        s_cmp_eq_u32 s11, 3072
        s_cbranch_scc1 {L('wu2')}
        buffer_load_dword v255, v254, {R(W1)}, s9 offen
        s_branch {L('wu3')}
        """)
        a.label(L('wu2'))
        a(f"buffer_load_dword v255, v254, {R(WQ)}, s9 offen")
    a.label(L('wu3'))
    a.items.append(("qins", ("C0", 1)))
if env("ICP", 0):
    a(f"s_cmp_lt_u32 s3, 4\ns_cbranch_scc0 {L('noicp')}")
    with a.skippable():
        a(f"""
        s_getpc_b64 s[80:81]
        v_lshlrev_b32 v127, 7, v1
        s_lshl_b32 s9, s3, 13
        v_add_u32 v127, s9, v127
        v_min_u32 v127, {env("ICP", 0)}, v127
        global_load_dword v127, v127, s[80:81]
        """)
    a.label(L('noicp'))
fin(a, "ws", WS); fin(a, "dbg", DBG)
a("v_mov_b32 v19, 0")
a(f"s_or_b32 s9, s2, s3\ns_cmp_eq_u32 s9, 0\ns_cbranch_scc0 {L('nononce')}")
with a.skippable():
    a(f"""
    s_memrealtime s[80:81]
    s_waitcnt lgkmcnt(0)
    s_or_b32 s80, s80, 1
    v_mov_b32 v10, s80
    s_mov_b64 exec, 1
    buffer_store_dword v10, v19, {R(DBG)}, 0 offen {SC}
    s_mov_b64 exec, -1
    """)
a.label(L('nononce'))
a(f"""
s_bfe_u32 s7, s3, 0x10001           ; mh
s_lshr_b32 s8, s3, 2                ; hi
s_mul_i32 s72, s6, {KV_J}
s_add_u32 s72, s72, {KVACC}
s_cmp_eq_u32 s5, 1
s_cselect_b32 s9, s4, 1
s_cmp_eq_u32 s9, 0
s_cbranch_scc0 {L('nozero')}
""")
with a.skippable():
    a(f"""
    v_lshlrev_b32 v9, 4, v0
    v_mov_b32 v10, 0
    v_mov_b32 v11, 0
    v_mov_b32 v12, 0
    v_mov_b32 v13, 0
    buffer_store_dwordx4 v[10:13], v9, {R(WS)}, s72 offen {SC}
    s_add_u32 s9, s72, 8192
    s_cmp_eq_u32 s3, 0
    s_cbranch_scc0 {L('nozero')}
    buffer_store_dwordx4 v[10:13], v9, {R(WS)}, s9 offen {SC}
    """)
a.label(L('nozero'))
a(f"""
s_and_b32 s9, s78, s8
s_cmp_eq_u32 s5, 0
s_cselect_b32 s61, s8, s9           ; sel
v_and_b32 v29, 31, v1
v_lshrrev_b32 v30, 5, v1
v_bfe_u32 v31, v1, 1, 3
v_xor_b32 v31, v31, v30
v_lshlrev_b32 v20, 7, v29
v_lshl_add_u32 v8, v31, 4, v20
s_lshl_b32 s9, s7, 1
s_add_u32 s62, s9, s61
s_lshl_b32 s9, s62, 12
s_add_u32 s9, s9, {RB}
v_add_u32 v8, s9, v8
v_xor_b32 v9, 32, v8
v_xor_b32 v10, 64, v8
v_xor_b32 v11, 96, v8
v_xor_b32 v12, 0x1000, v8
v_xor_b32 v13, 0x1000, v9
v_xor_b32 v14, 0x1000, v10
v_xor_b32 v15, 0x1000, v11
v_bfe_u32 v31, v1, 2, 2
v_lshl_add_u32 v20, v30, 3, v31
v_and_b32 v22, 3, v1
v_lshlrev_b32 v22, 3, v22
v_lshl_add_u32 v18, v20, 6, v22
v_lshl_add_u32 v20, v20, 7, v22
v_lshl_add_u32 v21, v30, 2, v31
v_lshl_add_u32 v21, v21, 5, v22
v_bfe_u32 v22, v1, 4, 1
v_lshl_add_u32 v18, v22, 5, v18
v_add_u32 v18, s69, v18
v_and_b32 v31, 2, v31
v_xor_b32 v31, v31, v22
v_lshl_add_u32 v20, v31, 5, v20     ; nat0
s_lshl_b32 s9, s8, 1
s_add_u32 s63, s9, s78              ; nq
s_lshl_b32 s9, s63, 5
v_xor_b32 v23, s9, v20
v_lshl_add_u32 v23, v22, 13, v23
s_lshl_b32 s9, s78, 6
v_xor_b32 v24, s9, v20
s_cmp_eq_u32 s8, 0
s_cselect_b32 s10, 8192, 0
v_add_u32 v25, s10, v24
v_cndmask_b32 v16, v25, v23, vcc
v_add_u32 v16, {RB+16384}, v16
s_and_b32 s9, s6, 1
s_lshl_b32 s9, s9, 6
v_xor_b32 v25, s9, v20
v_add_u32 v25, 8192, v25
s_and_b32 s9, s5, s8
s_cmp_eq_u32 s9, 1
s_cselect_b64 s[80:81], -1, 0
v_cndmask_b32 v17, v24, v25, s[80:81]
v_add_u32 v17, {RB+32768}, v17
v_mov_b32 v20, v24
v_mul_u32_u24 v23, 192, v22
v_lshlrev_b32 v24, 2, v29
s_lshl_b32 s9, s63, 6
v_add3_u32 v23, v23, v24, s9
s_lshl_b32 s9, s78, 7
s_cmp_eq_u32 s8, 0
s_cselect_b32 s10, 256, 0
s_add_u32 s10, s10, s9
v_add_u32 v25, s10, v24
v_cndmask_b32 v23, v25, v23, vcc
s_add_u32 s9, s9, 512
s_and_b32 s10, s5, s8
s_cmp_eq_u32 s10, 1
s_cselect_b32 s9, 768, s9
v_add_u32 v24, s9, v24
s_lshl_b32 s66, s66, 1
s_add_u32 s66, s66, s78
s_lshl_b32 s67, s67, 1
s_add_u32 s67, s67, s78
s_lshl_b32 s68, s68, 1
s_and_b32 s9, s6, 1
s_add_u32 s68, s68, s9
s_cmp_eq_u32 s10, 1
s_cselect_b32 s67, s68, s67
s_lshl_b32 s9, s78, 1
s_cmp_eq_u32 s5, 0
s_cselect_b32 s9, s63, s9
s_lshl_b32 s10, s6, 2
s_add_u32 s65, s10, s9
s_lshl_b32 s9, s9, 9
s_add_u32 s9, s9, 14336
v_add_u32 v21, s9, v21
v_mov_b32 v22, 0x3f803f80
v_and_b32 v27, 15, v1
v_lshlrev_b32 v27, 2, v27
s_lshl_b32 s9, s4, 7
s_add_u32 s9, s9, {EFS}
s_lshl_b32 s10, s79, 7
s_add_u32 s10, s10, {EFC}
v_add_u32 v25, s9, v27
v_add_u32 v28, s10, v27
v_lshrrev_b32 v27, 4, v1
v_cmp_eq_u32 vcc, 1, v27
v_cndmask_b32 v25, v25, v28, vcc
s_lshl_b32 s9, s6, 2
s_add_u32 s9, s9, {EFS+32}
v_writelane_b32 v25, s9, 32
""")
fin(a, "b1", B1); fin(a, "wphi", WPHI); fin(a, "w2", W2); fin(a, "wo", WO); fin(a, "b2", B2); fin(a, "out", OUT)
st(grp="P")
a.wv("E")
st(grp="P")
for k, off in enumerate((0, 256, 1024, 1280)): a(f"ds_read_b64_tr_b16 {V(120+2*k,2)}, v18 offset:{off}", "EW")
a("v_mov_b32 v116, 0\nv_mov_b32 v117, 0\nv_mov_b32 v118, 0")
for q in range(4):
    a(f"v_dot2_f32_bf16 v116, v{112+q}, v22, v116\nv_dot2_f32_bf16 v117, v{112+q}, v{112+q}, v117")
a.wl("EW")
for q in range(8): a(f"v_dot2_f32_bf16 v118, v{120+q}, v22, v118")
for dpp in ("quad_perm:[1,0,3,2]", "quad_perm:[2,3,0,1]", "row_half_mirror", "row_mirror"):
    a(f"v_add_f32_dpp v116, v116, v116 {dpp} row_mask:0xf bank_mask:0xf\nv_add_f32_dpp v117, v117, v117 {dpp} row_mask:0xf bank_mask:0xf")
a(f"""
v_permlane16_swap_b32 v116, v117
v_add_f32 v116, v116, v117
v_mov_b32 v119, v118
v_mov_b32 v117, v116
v_permlane32_swap_b32 v118, v119
v_permlane32_swap_b32 v116, v117
v_add_f32 v118, v118, v119
v_add_f32 v116, v116, v117
v_mov_b32 v117, v116
v_permlane16_swap_b32 v116, v117
v_mul_f32 v116, 0x3b000000, v116
v_mul_f32 v117, 0x3b000000, v117
v_fma_f32 v117, -v116, v116, v117
v_max_f32 v117, 0, v117
v_add_f32 v117, 0x3727c5ac, v117
v_rsq_f32 v114, v117
v_sub_f32 v116, 0, v116
v_mul_f32 v117, v117, v114
v_cvt_pk_bf16_f32 v120, v116, v117
v_and_b32 v121, 0xffff0000, v120
v_lshlrev_b32 v122, 16, v120
v_sub_f32 v123, v116, v122
v_sub_f32 v124, v117, v121
v_cvt_pk_bf16_f32 v112, v122, v123
v_cvt_pk_bf16_f32 v113, v121, v124
s_lshl_b32 s10, s4, 7
s_lshl_b32 s11, s79, 3
s_add_u32 s10, s10, s11
s_add_u32 s10, s10, s3
s_lshl_b32 s10, s10, 4
s_add_u32 s10, s10, {STAT}
s_mul_i32 s11, s79, 14336
s_mul_i32 s71, s4, 896
s_add_u32 s11, s11, s71
s_lshl_b32 s71, s3, 7
s_add_u32 s11, s11, s71
s_add_u32 s11, s11, {CSP}
v_lshlrev_b32 v120, 2, v1
s_mov_b64 exec, 1
buffer_store_dwordx4 v[112:115], v19, {R(WS)}, s10 offen {SC}
s_cmp_lt_u32 s3, 7
s_cselect_b32 exec_lo, -1, 0
s_cbranch_scc0 {L('nocs')}
""")
with a.skippable():
    a(f"buffer_store_dword v118, v120, {R(WS)}, s11 offen {SC}")
a.label(L('nocs'))
a("s_mov_b64 exec, -1")
a(f"buffer_load_dword v31, v19, {R(DBG)}, 0 offen {SC}", "N0")
a("v_lshlrev_b32 v120, 1, v29\ns_lshl_b32 s9, s66, 6\ns_lshl_b32 s10, s67, 6")
a(f"buffer_load_ushort v27, v120, {R(B1)}, s9 offen", "S")
a(f"buffer_load_ushort v28, v120, {R(B1)}, s10 offen", "S")
st(); st(grp="P")

def side_flags(tg, tmp):
    a(f"s_cmp_eq_u32 s3, 0\ns_cbranch_scc0 {L('nofl'+tg)}")
    with a.skippable():
        a("s_mov_b32 s71, 0")
        a.label(L('nspin'+tg))
        a(f"""
        v_readfirstlane_b32 s9, v31
        s_add_u32 s71, s71, 1
        s_cmp_gt_u32 s71, {SPIN}
        s_cbranch_scc1 {L('nok'+tg)}
        s_cmp_lg_u32 s9, 0
        s_cbranch_scc1 {L('nok'+tg)}
        buffer_load_dword v31, v19, {R(DBG)}, 0 offen {SC}
        s_waitcnt vmcnt(0)
        s_branch {L('nspin'+tg)}
        """)
        a.label(L('nok'+tg))
        a(f"""
        s_lshl_b32 s10, s4, 7
        s_lshl_b32 s11, s79, 2
        s_add_u32 s10, s10, s11
        s_lshl_b32 s11, s79, 7
        s_lshl_b32 s71, s4, 2
        s_add_u32 s11, s11, s71
        s_add_u32 s11, s11, {EFC-EFS}
        v_mov_b32 v{tmp}, s10
        v_writelane_b32 v{tmp}, s11, 1
        s_mov_b32 s10, {EFS}
        s_mov_b64 exec, 3
        buffer_store_dword v31, v{tmp}, {R(WS)}, s10 offen {SC}
        s_mov_b64 exec, -1
        """)
    a.label(L('nofl'+tg))
def side_wphi_dma(tg):
    a(f"s_cmp_lt_u32 s3, 2\ns_cbranch_scc0 {L('nowp'+tg)}")
    with a.skippable():
        a(f"s_add_u32 m0, s70, 14336\ns_lshl_b32 s9, s6, 11\ns_add_u32 s9, s9, s70\nbuffer_load_dwordx4 v26, {R(WPHI)}, s9 offen lds")
    a.label(L('nowp'+tg))
def side_poll_issue(tg):
    a(f"s_cmp_eq_u32 s3, 0\ns_cbranch_scc0 {L('npi'+tg)}")
    with a.skippable():
        a(f"buffer_load_dword v18, v25, {R(WS)}, 0 offen {SC}")
    a.label(L('npi'+tg))
def side_poll_wait(tg, restore_vcc):
    a(f"s_cmp_eq_u32 s3, 0\ns_cbranch_scc0 {L('fok2'+tg)}")
    with a.skippable():
        a("s_mov_b32 s71, 0")
        a.label(L('fspin'+tg))
        a(f"""
        v_cmp_ne_u32 vcc, v18, v31
        s_cmp_eq_u64 vcc, 0
        s_cbranch_scc1 {L('fok'+tg)}
        s_add_u32 s71, s71, 1
        s_cmp_gt_u32 s71, {SPIN}
        s_cbranch_scc1 {L('fok'+tg)}
        s_sleep {SLP}
        buffer_load_dword v18, v25, {R(WS)}, 0 offen {SC}
        s_waitcnt vmcnt(0)
        s_branch {L('fspin'+tg)}
        """)
        a.label(L('fok'+tg))
        if restore_vcc: a("s_mov_b64 vcc, s[80:81]")
        a("ds_write_b32 v19, v31 offset:16380\ns_waitcnt lgkmcnt(0)")
    a.label(L('fok2'+tg))
def side_poll_check(tg, raw, tmp, ptag):
    a(f"ds_read_b32 v31, v19 offset:16380", ptag)
    a(f"""
    v_lshlrev_b32 v{tmp}, 4, v29
    s_lshl_b32 s9, s4, 11
    s_lshl_b32 s10, s62, 9
    s_add_u32 s9, s9, s10
    s_add_u32 s9, s9, {STAT}
    s_xor_b32 s10, s9, 512
    """)
    a(f"s_cmp_lt_u32 s3, 7\ns_cbranch_scc0 {L('nocsd'+tg)}")
    with a.skippable():
        a(f"s_mul_i32 s11, s79, 14336\ns_add_u32 s11, s11, s69\ns_add_u32 s11, s11, {CSP}\ns_mov_b32 m0, s69")
        a(f"buffer_load_dwordx4 v26, {R(WS)}, s11 offen {SC} lds")
        a(f"buffer_load_dwordx4 v26, {R(WS)}, s11 offen offset:1024 {SC} lds")
    a.label(L('nocsd'+tg))
    a(f"buffer_load_dwordx4 {V(raw)}, v{tmp}, {R(WS)}, s9 offen {SC}", "ST")
    a(f"buffer_load_dwordx4 {V(raw+4)}, v{tmp}, {R(WS)}, s10 offen {SC}", "ST")
def side_csred(tg, t16, tmp):
    a(f"s_cmp_lt_u32 s3, 4\ns_cbranch_scc0 {L('nored'+tg)}")
    with a.skippable():
        a(f"v_min_u32 v{tmp}, 223, v0\nv_lshlrev_b32 v{tmp}, 2, v{tmp}")
        for g in range(16): a(f"ds_read_b32 v{t16+g}, v{tmp} offset:{g*896}")
        a("s_waitcnt lgkmcnt(0)")
        for w in (8, 4, 2, 1):
            for g in range(w): a(f"v_add_f32 v{t16+g}, v{t16+g}, v{t16+g+w}")
        a(f"""
        v_cvt_pk_bf16_f32 v{t16+1}, v{t16}, v{t16}
        v_and_b32 v{t16+1}, 0xffff0000, v{t16+1}
        v_sub_f32 v{t16+2}, v{t16}, v{t16+1}
        v_cvt_pk_bf16_f32 v{t16}, v{t16+1}, v{t16+2}
        ds_write_b32 v{tmp}, v{t16}
        """)
    a.label(L('nored'+tg))
def side_bext(raw, BX, RR, tmp):
    for t in range(2):
        s0 = raw+4*t; B = BX+4*t; rr = RR+3*t
        a(f"""
        v_and_b32 v{tmp}, 0xffff, v{s0}
        v_lshl_or_b32 v{B}, v{tmp}, 16, v{tmp}
        v_lshrrev_b32 v{tmp}, 16, v{s0}
        v_lshl_or_b32 v{B+1}, v{tmp}, 16, v{tmp}
        v_mov_b32 v{B+2}, v{s0+1}
        v_mov_b32 v{B+3}, 0
        v_mov_b32 v{rr}, v{s0+2}
        v_mul_f32 v{rr+1}, {LOG2E}, v{s0+2}
        v_mul_f32 v{rr+2}, 0.5, v{s0+2}
        """)
MAP = env("MAP", 0)
if MAP == 0:
    P2MAP = f"""
    s_and_b32 s82, s2, 7
    s_lshl_b32 s82, s82, 2
    s_bfe_u32 s9, s2, 0x20003
    s_add_u32 s82, s82, s9
    s_lshr_b32 s62, s2, 5
    s_mul_i32 s76, s62, 7
    s_lshr_b32 s76, s76, 2
    s_mul_i32 s9, s9, 3
    """
else:
    P2MAP = f"""
    s_bfe_u32 s82, s2, 0x20001
    s_lshl_b32 s82, s82, 3
    s_lshr_b32 s76, s2, 5
    s_add_u32 s82, s82, s76
    s_and_b32 s62, s2, 1
    s_lshl_b32 s62, s62, 2
    s_bfe_u32 s9, s2, 0x20003
    s_add_u32 s62, s62, s9
    s_mul_i32 s76, s76, 7
    s_lshr_b32 s76, s76, 2
    s_mul_i32 s9, s9, 3
    """
P2MAP += f"""
    s_add_u32 s76, s76, s9
    s_lshl_b32 s62, s62, 7
    s_mul_i32 s60, s3, {14*16*1024}
    s_add_u32 s60, s60, s62
    s_add_u32 s83, s60, {14*16384}
    s_lshl_b32 s68, s3, 16
    s_add_u32 s68, s68, s62
"""
TP0 = env("TP0", -1); TPS = env("TPS", 2)
def side_touch(tg, p, r1, r2):
    if TP0 < 0 or p < TP0 or (p-TP0) % TPS or (p-TP0)//TPS >= 8: return
    w = (p-TP0)//TPS
    a(f"s_cmp_eq_u32 s3, {w}\ns_cbranch_scc0 {L(f'pf{tg}{w}')}")
    with a.skippable():
        a(f"""
        s_lshr_b32 s9, s2, 3
        s_lshl_b32 s9, s9, 3
        s_add_u32 s9, s9, s3
        s_and_b32 s71, s2, 1
        s_lshl_b32 s71, s71, 9
        s_mul_i32 s10, s9, {7*1024}
        s_add_u32 s10, s10, s71
        s_lshl_b32 s11, s9, 11
        s_add_u32 s11, s11, s71
        v_lshrrev_b32 v{r1}, 2, v1
        v_and_b32 v{r2}, 3, v1
        v_lshlrev_b32 v{r2}, 7, v{r2}
        v_lshl_add_u32 v{r1}, v{r1}, 10, v{r2}
        s_mov_b64 exec, 0xfffffff
        buffer_load_dword v{r2}, v{r1}, {R(W2)}, s10 offen
        s_mov_b64 exec, 0xff
        buffer_load_dword v{r1}, v{r1}, {R(WO)}, s11 offen
        s_mov_b64 exec, -1
        """)
    a.label(L(f'pf{tg}{w}'))
def side_p2(t3):
    a(f"""
    v_readfirstlane_b32 s75, v31
    v_lshrrev_b32 v{t3}, 3, v1
    v_and_b32 v{t3+1}, 7, v1
    v_lshrrev_b32 v{t3+2}, 2, v1
    v_and_b32 v{t3+2}, 4, v{t3+2}
    v_xor_b32 v{t3+1}, v{t3+1}, v{t3+2}
    v_lshlrev_b32 v{t3}, 10, v{t3}
    v_lshl_add_u32 v18, v{t3+1}, 4, v{t3}
    s_lshl_b32 s74, s4, 2
    s_add_u32 s74, s74, s62
    s_xor_b32 s64, s74, 1
    s_mul_i32 s74, s74, {AF_TG}
    s_mul_i32 s64, s64, {AF_TG}
    {P2MAP}
    s_cmp_ge_u32 s76, 14
    s_cselect_b32 s9, 14, 0
    s_sub_u32 s76, s76, s9
    s_lshl_b32 s61, s76, 14
    s_add_u32 s61, s61, s60
    """)
def p2_adv(x):
    x("s_add_u32 s61, s61, 16384\ns_cmp_eq_u32 s61, s83\ns_cselect_b32 s61, s60, s61")
W2PG = [7, 8, 9, 1, 2, 3, 4, 5, 6]
def p2_dma(x, u, tag, partner=False):
    pg = W2PG[u % 9]
    for half in range(2):
        x(f"s_add_u32 m0, s69, {pg*PG + half*1024}")
        if u < 14:
            if half == 0: x(f"s_add_u32 s71, s61, 8192\nbuffer_load_dwordx4 v18, {R(W2)}, s61 offen lds", tag)
            else: x(f"buffer_load_dwordx4 v18, {R(W2)}, s71 offen lds", tag)
        else:
            x(f"s_add_u32 s71, s68, {((u-14)*16+half*8)*1024}")
            x(f"buffer_load_dwordx4 v18, {R(WO)}, s71 offen lds", tag)
    if partner:
        for half in range(2):
            x(f"s_add_u32 m0, s69, {pg*PG + half*1024 + 8192}\ns_add_u32 s71, s61, {4*14*16384 + half*8192}")
            x(f"buffer_load_dwordx4 v18, {R(W2)}, s71 offen lds", tag)
    if u < 14: p2_adv(x)
def p2_dma_partner(x, u, tag):
    pg = W2PG[u % 9]
    for half in range(2):
        x(f"s_add_u32 m0, s69, {pg*PG + half*1024 + 8192}")
        if u < 14:
            x(f"s_add_u32 s71, s81, {4*14*16384 + half*8192}")
            x(f"buffer_load_dwordx4 v18, {R(W2)}, s71 offen lds", tag)
        else:
            x(f"s_add_u32 s71, s68, {4*65536 + ((u-14)*16+half*8)*1024}")
            x(f"buffer_load_dwordx4 v18, {R(WO)}, s71 offen lds", tag)
    if u < 14: x("s_add_u32 s81, s81, 16384\ns_cmp_eq_u32 s81, s83\ns_cselect_b32 s81, s60, s81")
def p2_dma2(x, u, tag):
    pg = W2PG[u % 9]
    for half in range(2):
        x(f"s_add_u32 m0, s69, {pg*PG + half*1024}")
        if u < 14:
            x(f"s_add_u32 s71, s81, {half*8192}")
            x(f"buffer_load_dwordx4 v18, {R(W2)}, s71 offen lds", tag)
        else:
            x(f"s_add_u32 s71, s68, {((u-14)*16+half*8)*1024}")
            x(f"buffer_load_dwordx4 v18, {R(WO)}, s71 offen lds", tag)
    if u < 14: x("s_add_u32 s81, s81, 16384\ns_cmp_eq_u32 s81, s83\ns_cselect_b32 s81, s60, s81")
def lds_wait(lab, off):
    a("s_mov_b32 s71, 0")
    a.label(L(lab))
    a(f"""
    ds_read_b32 v10, v11 offset:{off}
    s_waitcnt lgkmcnt(0)
    v_readfirstlane_b32 s9, v10
    s_add_u32 s71, s71, 1
    s_cmp_gt_u32 s71, {SPIN*8}
    s_cbranch_scc1 {L(lab+'x')}
    s_cmp_eq_u32 s9, s75
    s_cbranch_scc1 {L(lab+'x')}
    s_sleep 1
    s_branch {L(lab)}
    """)
    a.label(L(lab+'x'))
def softmax(x, P, Pp, Pm, c):
    E = 112
    x(f"""
    v_max3_f32 v2, v{P}, v{P+1}, v{P+2}
    v_max3_f32 v3, -v{P}, -v{P+1}, -v{P+2}
    v_max3_f32 v2, v2, v{P+3}, v{P+4}
    v_max3_f32 v3, v3, -v{P+3}, -v{P+4}
    v_max3_f32 v2, v2, v{P+5}, v{P+6}
    v_max3_f32 v3, v3, -v{P+5}, -v{P+6}
    v_max_f32 v2, v2, v{P+7}
    v_max_f32_e64 v3, v3, -v{P+7}
    v_permlane32_swap_b32 v2, v3
    v_max_f32 v2, v2, v3
    v_mul_f32_e64 v2, -v2, v{c}
    v_mov_b32 v3, v2
    v_permlane32_swap_b32 v2, v3
    """)
    for r in range(8): x(f"v_fma_f32 v{E+r}, -v{P+r}, v{c}, v3\nv_fma_f32 v{P+r}, v{P+r}, v{c}, v2")
    for r in range(8): x(f"v_exp_f32 v{E+r}, v{E+r}\nv_exp_f32 v{P+r}, v{P+r}")
    x(f"v_add_f32 v2, v{P}, v{P+1}\nv_add_f32 v3, v{E}, v{E+1}")
    for r in range(2, 8): x(f"v_add_f32 v2, v2, v{P+r}\nv_add_f32 v3, v3, v{E+r}")
    x("v_permlane32_swap_b32 v2, v3\nv_add_f32 v2, v2, v3\nv_rcp_f32 v2, v2\nv_mov_b32 v3, v2\nv_permlane32_swap_b32 v2, v3")
    for r in range(8): x(f"v_mul_f32 v{P+r}, v{P+r}, v2\nv_mul_f32 v{E+r}, v{E+r}, v3")
    for q in range(4): x(f"v_cvt_pk_bf16_f32 v{Pp+q}, v{P+2*q}, v{P+2*q+1}\nv_cvt_pk_bf16_f32 v{Pm+q}, v{E+2*q}, v{E+2*q+1}")
def ffn_epi(x, acc, s_tile, f, rh, so=9):
    a(f"s_lshl_b32 s{so}, s{s_tile}, 11\ns_add_u32 s{so}, s{so}, s{(74,64)[f]}")
    for r in range(16): x(f"v_add_f32_e64 v{acc+r}, v{acc+r}, |v{acc+r}|")
    for r in range(16): x(f"v_mul_f32 v{acc+r}, v{acc+r}, v{rh}")
    for r in range(16): x(f"v_mul_f32 v{acc+r}, v{acc+r}, v{acc+r}")
    for q in range(8): x(f"v_cvt_pk_bf16_f32 v{acc+q}, v{acc+2*q}, v{acc+2*q+1}")
    x(f"buffer_store_dwordx4 {V(acc)}, v26, {R(WS)}, s{so} offen {SC}", "H")
    x(f"buffer_store_dwordx4 {V(acc+4)}, v26, {R(WS)}, s{so} offen offset:1024 {SC}", "H")
def flag_store(soff):
    a(f"""
    v_mov_b32 v31, s75
    s_mov_b64 exec, 1
    buffer_store_dword v31, v19, {R(WS)}, {soff} offen {SC}
    s_mov_b64 exec, -1
    """)
WREG = 128; P2ACC = 64; WTMP = 48; TRA = 2
def p2_traddr(t=2, q=8):
    a(f"""
    v_lshrrev_b32 v{q}, 5, v1
    v_bfe_u32 v{q+1}, v1, 2, 2
    v_lshl_add_u32 v{q}, v{q}, 2, v{q+1}
    v_lshlrev_b32 v{q}, 7, v{q}
    v_and_b32 v{q+2}, 3, v1
    v_lshl_add_u32 v{q}, v{q+2}, 3, v{q}
    v_bfe_u32 v{q+2}, v1, 4, 1
    v_and_b32 v{q+1}, 2, v{q+1}
    v_or_b32 v{q+2}, v{q+2}, v{q+1}
    v_lshl_add_u32 v{t}, v{q+2}, 5, v{q}
    v_add_u32 v{t}, s69, v{t}
    v_xor_b32 v{t+1}, 64, v{t}
    v_add_u32 v{t+2}, 0x10000, v{t}
    v_add_u32 v{t+3}, 0x10000, v{t+1}
    v_add_u32 v{t+4}, 0x20000, v{t}
    v_add_u32 v{t+5}, 0x20000, v{t+1}
    """)
def p2_tr(x, dst, u, tag):
    pg = W2PG[u % 9]
    for b in range(2):
        for e in range(2):
            x(f"ds_read_b64_tr_b16 {V(dst+4*b+2*e,2)}, v{TRA+2*(pg>>2)+b} offset:{(pg&3)*PG+e*1024}", tag)
def hflag():
    a(f"""
    s_lshl_b32 s9, s4, 1
    s_add_u32 s9, s9, s7
    s_lshl_b32 s77, s9, 8
    s_lshl_b32 s10, s79, 2
    s_add_u32 s10, s10, s63
    s_lshl_b32 s10, s10, 2
    s_add_u32 s9, s77, s10
    s_add_u32 s9, s9, {HF}
    """)
    flag_store("s9")
def kvpoll(w, lab):
    a(f"s_cmp_eq_u32 s3, {w}\ns_cbranch_scc0 {L(lab)}")
    with a.skippable():
        a("s_mov_b32 s71, 0")
        a.label(L('pk'))
        a(f"""
        buffer_load_dwordx2 v[10:11], v8, {R(WS)}, s66 offen {SC}
        s_waitcnt vmcnt(0)
        v_cmp_ne_u32 vcc, s75, v10
        v_cmp_ne_u32 s[80:81], s75, v11
        s_or_b64 vcc, vcc, s[80:81]
        s_cmp_eq_u64 vcc, 0
        s_cbranch_scc1 {L('pk2')}
        s_add_u32 s71, s71, 1
        s_cmp_gt_u32 s71, {SPIN}
        s_cbranch_scc1 {L('pk2')}
        s_sleep {SLP}
        s_branch {L('pk')}
        """)
        a.label(L('pk2'))
        for q in range(9):
            a(f"s_mov_b32 m0, {q*1024}\ns_add_u32 s10, s72, {q*1024}\nbuffer_load_dwordx4 v26, {R(WS)}, s10 offen {SC} lds")
        a("s_waitcnt vmcnt(0)\nv_mov_b32 v10, s75\nds_write_b32 v19, v10 offset:12288")
    a.label(L(lab))
ACC = [32, 48, 64, 80]
T = 96; KP = 2*PG; XF = 128
a(f"s_cmp_eq_u32 s5, 0\ns_cbranch_scc0 {L('typeB')}")
a.qsave("br")
for p in range(4): dma(1, p)
for i in range(8): a(f"v_add_u32 v{112+i}, {2*SLOT}, v{8+i}")
a(f"v_add_u32 v17, {2*SLOT}, v16")
a("v_lshlrev_b32 v121, 2, v30\nv_sub_u32 v121, v29, v121\nv_mov_b32 v122, 0x3f80\nv_mov_b32 v123, 0x3f800000")
SEL, WPH, BX, RRA, RAW = 64, 72, 76, 84, 120
for k in range(8):
    sg = k >> 2; q = k & 3
    f0 = (2*q & 3) + 8*((2*q) >> 2) + 16*sg
    a(f"v_cmp_eq_u32 vcc, {f0}, v121\nv_cndmask_b32 v{SEL+k}, 0, v122, vcc\nv_cmp_eq_u32 vcc, {f0+1}, v121\nv_cndmask_b32 v{SEL+k}, v{SEL+k}, v123, vcc")
st(grp="P"); a.wv("C0"); st(grp="P"); a("s_barrier"); st(grp="P")
st(grp="A")
def rdA(p):
    i = p & 3; b = 96 + 8*(p & 1); c = p >> 2; sl = c % 3
    ab = 8 if sl < 2 else 112; so = SLOT if sl == 1 else 0
    a(f"ds_read_b128 {V(XF+4*p)}, v{ab+i} offset:{so}", f"P{p}")
    for e in range(2): a(f"ds_read_b64_tr_b16 {V(b+4+2*e,2)}, v{16 if sl < 2 else 17} offset:{so+i*2048+e*512}", f"P{p}")
    a(f"ds_read_b128 {V(b)}, v{ab+4+i} offset:{so}", f"P{p}")
rdA(0)
for p in range(32):
    c = p >> 2; i = p & 3
    a.wl(f"P{p}")
    if i == 3 and c < 7:
        a.wv(f"C{c+1}")
        if p == 23: side_poll_wait("A", False)
        a("s_barrier"); st(grp="A")
    if p+1 < 32: rdA(p+1)
    b = 96 + 8*(p & 1)
    a(f"{MF} {V(ACC[0],16)}, {V(b+4)}, {V(XF+4*p)}, {V(ACC[0],16) if p else 0}")
    if p < 2: dma(2, 2*p); dma(2, 2*p+1)
    elif p >= 3:
        cc = ((p-3) >> 2) + 3
        if cc <= 7: dma(cc, (p-3) & 3)
    a(f"{MF} {V(ACC[1],16)}, {V(b+4)}, {V(b)}, {V(ACC[1],16) if p else 0}")
    side_touch("A", p, 94, 95)
    if p == 0: side_wphi_dma("A")
    if p == 3: side_flags("A", 90)
    if p == 8:
        for e in range(2): a(f"ds_read_b64_tr_b16 {V(WPH+2*e,2)}, v21 offset:{e*256}", f"P{p+1}")
    if p == 17: side_poll_issue("A")
    if p == 23: side_poll_check("A", RAW, 92, "P24")
    if p == 24: side_p2(90)
    if AW == 0:
        if p in (24, 25, 26): p2_dma(a, p-24, "D1")
        if p == 28: p2_dma(a, 3, "D1")
    if AW == 2 and p in (27, 28):
        a(f"s_add_u32 m0, s70, {3*PG + (p-27)*8192}")
        a(f"buffer_load_dwordx4 v6, {R(W1)}, s73 offen lds", "I2")
        a(f"s_add_u32 s73, s73, {64*3584}")
st(); st(grp="B")
a.wv("ST"); a("s_barrier")
side_csred("A", 96, 92)
side_bext(RAW, BX, RRA, 92)
a("v_mov_b32 v95, v6")
a("s_waitcnt lgkmcnt(0)\ns_barrier")
st(grp="B")
a(f"""
ds_read_b32 v120, v23
ds_read_b32 v4, v24
v_cmp_gt_u32 vcc, 32, v1
v_lshl_or_b32 v28, v28, 16, v28
v_cndmask_b32 v6, 0, v28, vcc
v_cmp_eq_u32 s[80:81], 16, v29
v_cndmask_b32 v27, 0, v22, s[80:81]
v_mov_b32 v122, 0
v_mov_b32 v123, 0
v_mov_b32 v7, 0
s_waitcnt lgkmcnt(0)
v_cndmask_b32 v120, 0, v120, vcc
v_cndmask_b32 v4, 0, v4, vcc
v_mov_b32 v121, v120
v_mov_b32 v5, v4
{MF} {V(ACC[0],16)}, v[120:123], {V(BX)}, {V(ACC[0],16)}
{MF} {V(ACC[1],16)}, v[120:123], {V(BX+4)}, {V(ACC[1],16)}
""")
KVA = 8
a("v_mov_b32 v90, v18\nv_mov_b32 v91, v20")
E = a.sub(); D = a.sub()
for f in range(2):
    acc = ACC[f]; rr = RRA+3*f
    for q in range(4): E(f"v_cvt_pk_bf16_f32 v{120+q}, v{acc+2*q}, v{acc+2*q+1}")
    E(f"{MF} {V(T,16)}, {V(WPH)}, v[120:123], 0")
    for r in range(8, 16): E(f"v_mul_f32 v{acc+r}, v{acc+r}, v{rr}")
    for q in range(4): E(f"v_cvt_pk_bf16_f32 v{120+q}, v{acc+8+2*q}, v{acc+9+2*q}")
    E(f"{MF} {V(acc,16)}, v[120:123], {V(SEL)}, 0")
    softmax(E, T, 120, 124, rr+1)
    E(f"{MF} {V(T,16)}, v[120:123], {V(SEL)}, 0")
    E(f"{MF} {V(T,16)}, v[124:127], {V(SEL+4)}, {V(T,16)}")
    for q in range(8): E(f"v_cvt_pk_bf16_f32 v{112+q}, v{acc+2*q}, v{acc+2*q+1}\nv_or_b32 v{112+q}, v{112+q}, v27")
    for q in range(8): E(f"v_cvt_pk_bf16_f32 v{T+q}, v{T+2*q}, v{T+2*q+1}")
    E(f"{MF} {V(KVA,16)}, {V(T)}, v[112:115], {V(KVA,16) if f else 0}")
    E(f"{MF} {V(KVA,16)}, {V(T+4)}, v[116:119], {V(KVA,16)}")
for c in range(2 if AW == 2 else 0, 8):
    D(f"s_add_u32 m0, s70, {3*PG + c*8192}")
    D(f"buffer_load_dwordx4 v95, {R(W1)}, s73 offen lds", "I2")
    D(f"s_add_u32 s73, s73, {64*3584}")
if AW:
    D2s = a.sub()
    for u in range(4): p2_dma(D2s, u, "D1")
    for it in D2s.items:
        if hasattr(it, "text"):
            D(it.text.replace("v18", "v90"), it.tag)
nE = len(E.items)*env("EFR", 6)//10
E1 = a.sub(); E1.items = E.items[:nE]; E2 = a.sub(); E2.items = E.items[nE:]
a.merge(E1, D); a.extend(E2)
st(grp="B")
a(f"""
s_lshl_b32 s9, s63, 12
s_lshl_b32 s10, s7, 11
s_add_u32 s9, s9, s10
s_add_u32 s9, s9, {KP}
v_add_u32 v92, s9, v26
v_xor_b32 v93, 0x800, v92
v_mul_u32_u24 v94, 17, v30
v_add_u32 v94, v94, v29
v_lshlrev_b32 v94, 2, v94
s_mul_i32 s10, s63, 2176
s_mul_i32 s11, s7, {8*136}
s_add_u32 s10, s10, s11
s_add_u32 s10, s10, s72
v_cmp_gt_u32 s[80:81], 17, v29
s_cmp_eq_u32 s7, 0
s_cbranch_scc1 {L('kv0')}
""")
with a.skippable():
    for q in range(2): a(f"ds_write_b128 v92, {V(KVA+4*q)} offset:{q*1024}")
    for r in range(8): a(f"v_mov_b32 v{KVA+r}, v{KVA+8+r}")
    a(f"s_branch {L('kv1')}")
a.label(L('kv0'))
with a.skippable():
    for q in range(2): a(f"ds_write_b128 v92, {V(KVA+8+4*q)} offset:{q*1024}")
a.label(L('kv1'))
a.wv("I2")
a("s_waitcnt lgkmcnt(0)\ns_barrier")
for q in range(2): a(f"ds_read_b128 {V(T+4*q)}, v93 offset:{q*1024}")
a(f"v_mov_b32 v18, v90\nv_mov_b32 v19, 0\nv_add_u32 v20, {3*PG}, v91")
a("s_waitcnt lgkmcnt(0)")
for r in range(8): a(f"v_add_f32 v{KVA+r}, v{KVA+r}, v{T+r}")
a("s_mov_b64 exec, s[80:81]")
for r in range(8): a(f"buffer_atomic_add_f32 v{KVA+r}, v94, {R(WS)}, s10 offen offset:{r*136}", "AT")
a("s_mov_b64 exec, -1")
st(grp="B")
A2 = 32
def rd2(k):
    b = 48 + 4*(k % 4)
    for e in range(2): a(f"ds_read_b64_tr_b16 {V(b+2*e,2)}, v20 offset:{k*2048+e*512}", f"B{k}")
a(f"{MF} {V(A2,16)}, v[4:7], {V(BX)}, 0")
rd2(0); rd2(1); rd2(2)
K1 = env("K1", 0); K2 = env("K2", 17)
TRA = 96
if K1: p2_traddr(96, 104)
a(f"s_add_u32 s81, s61, {5*16384}\ns_sub_u32 s9, s81, {14*16384}\ns_cmp_ge_u32 s81, s83\ns_cselect_b32 s81, s9, s81")
for k in range(32):
    if k+3 < 32: rd2(k+3)
    a.wl(f"B{k}")
    a(f"{MF} {V(A2,16)}, {V(48+4*(k%4))}, {V(XF+4*k)}, {V(A2,16)}")
    if K1 and k == K1:
        for u in range(4): p2_tr(a, WREG+8*u, u, f"B{k+4}")
    if K1 and K1+4 <= k < K1+8: p2_dma2(a, 9+k-K1-4, "D2")
    if K1 and k == K2: a("s_barrier")
    if K1 and k in (K2+5, K2+7, K2+9): p2_dma(a, 4+(k-K2-5)//2, "D1")
    if k == env("KVK", 20):
        a.wv("AT")
        a(f"""
        s_lshl_b32 s9, s6, 9
        s_lshl_b32 s10, s4, 5
        s_add_u32 s9, s9, s10
        s_lshl_b32 s10, s3, 2
        s_add_u32 s9, s9, s10
        s_add_u32 s9, s9, {KVF}
        """)
        flag_store("s9")
        st(grp="B")
ffn_epi(a, A2, 67, 0, RRA+2)
st()
TRA = 2
p2_traddr()
if K1:
    a("s_barrier")
    for u in range(7, 9): p2_dma(a, u, "D1x")
    a.wv("H")
    hflag()
    st()
    for u in range(4, 7): p2_tr(a, WREG+8*u, u, "W1")
    a("s_barrier")
    a.wl("W1")
    for u in range(13, 16): p2_dma2(a, u, "D2")
    a.wv("D1x")
    for u in range(7, 9): p2_tr(a, WREG+8*u, u, "W1")
    a.wl("W1")
    for u in range(16, 18): p2_dma2(a, u, "D2")
else:
    AT2 = env("AT2", 0)
    for u in range(4): p2_tr(a, WREG+8*u, u, "W1")
    if AT2 == 2:
        a.wl("W1")
        for u in range(9, 13): p2_dma2(a, u, "D2")
    a("s_barrier")
    for u in range(4, 6): p2_dma(a, u, "D1")
    a.wv("H")
    hflag()
    st()
    if AT2 == 0: a("s_barrier")
    for u in range(6, 9): p2_dma(a, u, "D1")
    a.wl("W1")
    if AT2 != 2:
        for u in range(9, 13): p2_dma2(a, u, "D2")
    a.wv("D1")
    for u in range(4, 9): p2_tr(a, WREG+8*u, u, "W1")
    a.wl("W1")
    for u in range(13, 18): p2_dma2(a, u, "D2")
a(f"s_branch {L('tail')}")
a.label(L('typeB'))
a.qload("br")
for p in range(6): dma(1, p)
for i in range(10): a(f"v_add_u32 v{160+i}, {2*SLOT}, v{8+i}")
a("s_cmp_eq_u32 s8, 0\ns_cselect_b64 s[80:81], -1, 0\ns_mov_b64 vcc, s[80:81]")
st(5, grp="P"); a.wv("C0"); st(grp="P"); a("s_barrier"); st(grp="P")
st(1, grp="A")
def rdB(p):
    i = p & 3; b = 96 + 16*(p & 1); c = p >> 2; sl = c % 3
    ab = 8 if sl < 2 else 160; so = SLOT if sl == 1 else 0
    a(f"ds_read_b128 {V(b)}, v{ab+i} offset:{so}", f"P{p}")
    for e in range(2): a(f"ds_read_b64_tr_b16 {V(b+8+2*e,2)}, v{ab+8} offset:{so+i*2048+e*512}", f"P{p}")
    a(f"ds_read_b128 {V(b+4)}, v{ab+4+i} offset:{so}", f"P{p}")
    for e in range(2): a(f"ds_read_b64_tr_b16 {V(b+12+2*e,2)}, v{ab+9} offset:{so+i*2048+e*512}", f"P{p}")
rdB(0)
WPB, BXB, RRB, RAWB = 200, 208, 220, 232
for p in range(32):
    c = p >> 2; i = p & 3
    a.wl(f"P{p}")
    if i == 3 and c < 7:
        a.wv(f"C{c+1}")
        if p == 19: side_poll_wait("B", True)
        a("s_barrier"); st(grp="A")
    if p+1 < 32: rdB(p+1)
    b = 96 + 16*(p & 1)
    a(f"{MF} {V(ACC[0],16)}, {V(b+8)}, {V(b)}, {V(ACC[0],16) if p else 0}")
    a(f"{MF} {V(ACC[1],16)}, {V(b+8)}, {V(b+4)}, {V(ACC[1],16) if p else 0}")
    if p < 3: dma(2, 2*p); dma(2, 2*p+1)
    else:
        cc = ((p-3) >> 2) + 3; q = (p-3) & 3
        if cc <= 7:
            for piece in ((0,1),(2,3),(4,),(5,))[q]: dma(cc, piece)
    a(f"{MF} {V(ACC[2],16)}, {V(b+12)}, {V(b)}, {V(ACC[2],16) if p else 0}")
    a(f"s_cbranch_vccz {L(f'm4_{p}')}")
    with a.skippable():
        a(f"{MF} {V(ACC[3],16)}, {V(b+12)}, {V(b+4)}, {V(ACC[3],16) if p else 0}")
    a.label(L(f"m4_{p}"))
    side_touch("B", p, 250, 251)
    if p == 0: side_wphi_dma("B")
    if p == 3: side_flags("B", 240)
    if p == 8:
        for h in range(2):
            for e in range(2): a(f"ds_read_b64_tr_b16 {V(WPB+4*h+2*e,2)}, v21 offset:{h*512+e*256}", f"P{p+1}")
    if p == 13: side_poll_issue("B")
    if p == 19: side_poll_check("B", RAWB, 240, "P20")
    if p == 26: a.wv("ST")
    if p == 28: side_csred("B", 144, 240)
    if p == 29: side_bext(RAWB, BXB, RRB, 240)
    if p == 22: side_p2(240)
    if p in (23, 24, 25): p2_dma(a, p-23, "D1a")
    if p in (27, 29, 30): p2_dma(a, {27:3, 29:4, 30:5}[p], "D1b")
st(2)
a("s_waitcnt lgkmcnt(0)\ns_barrier")
a(f"""
ds_read_b32 v216, v23
ds_read_b32 v240, v24
v_cmp_gt_u32 vcc, 32, v1
v_lshl_or_b32 v27, v27, 16, v27
v_lshl_or_b32 v28, v28, 16, v28
s_and_b64 s[80:81], s[80:81], vcc
v_cndmask_b32 v218, 0, v27, s[80:81]
v_cndmask_b32 v242, 0, v28, vcc
v_mov_b32 v219, 0
v_mov_b32 v243, 0
s_waitcnt lgkmcnt(0)
v_cndmask_b32 v216, 0, v216, vcc
v_cndmask_b32 v240, 0, v240, vcc
v_mov_b32 v217, v216
v_mov_b32 v241, v240
{MF} {V(ACC[0],16)}, v[216:219], {V(BXB)}, {V(ACC[0],16)}
{MF} {V(ACC[1],16)}, v[216:219], {V(BXB+4)}, {V(ACC[1],16)}
{MF} {V(ACC[2],16)}, v[240:243], {V(BXB)}, {V(ACC[2],16)}
{MF} {V(ACC[3],16)}, v[240:243], {V(BXB+4)}, {V(ACC[3],16)}
""")
for u in range(6, 9): p2_dma(a, u, "D1c")
TRA = 12
p2_traddr(12)
def w2step(k):
    if k == 0:
        a.wv("D1a")
        for u in range(0, 3): p2_tr(a, WREG+8*u, u, "W1")
    elif k == 1:
        a.wl("W1")
        for u in range(9, 12): p2_dma(a, u, "D2")
        a.wv("D1b")
        for u in range(3, 6): p2_tr(a, WREG+8*u, u, "W1")
    elif k == 2:
        a.wl("W1")
        for u in range(12, 15): p2_dma(a, u, "D2")
        a.wv("D1c")
        for u in range(6, 9): p2_tr(a, WREG+8*u, u, "W1")
    elif k == 3:
        a.wl("W1")
        for u in range(15, 18): p2_dma(a, u, "D2")
a(f"s_cmp_eq_u32 s8, 0\ns_cbranch_scc0 {L('Bq')}")
a.qsave("bq")
ffn_epi(a, ACC[0], 66, 0, RRB+2)
ffn_epi(a, ACC[1], 66, 1, RRB+5)
ffn_epi(a, ACC[2], 67, 0, RRB+2)
ffn_epi(a, ACC[3], 67, 1, RRB+5)
st(3)
a.wv("D1c")
for u in range(9): p2_tr(a, WREG+8*u, u, "W1")
a.wv("H")
hflag()
a("s_mov_b32 s81, s61\ns_lshl_b32 s9, s3, 2\nv_mov_b32 v11, s9")
a.wl("W1")
for u in range(9, 18): p2_dma(a, u, "D2")
lds_wait("pw", 12304)
for u in range(9, 18): p2_dma_partner(a, u, "D2")
a("s_waitcnt vmcnt(0)\nv_mov_b32 v10, s75\nds_write_b32 v11, v10 offset:12320")
st(4)
a(f"s_branch {L('tailB')}")
a.label(L('Bq'))
a.qload("bq")
stor = {(0,0): (80, 84), (0,1): (88, 92), (1,0): (232, 236), (1,1): (240, 244)}
ffn_epi(a, ACC[2], 67, 0, RRB+2)
a(f"v_lshlrev_b32 v8, 3, v1\ns_lshl_b32 s66, s6, 9\ns_add_u32 s66, s66, {KVF}\ns_mul_i32 s11, s78, 4352")
for f in range(2):
    acc = ACC[f]
    for q in range(8): a(f"v_cvt_pk_bf16_f32 v{acc+q}, v{acc+2*q}, v{acc+2*q+1}")
    for h in range(2):
        a(f"{MF} {V(T,16)}, {V(WPB+4*h)}, {V(acc+4*h)}, 0")
        if 2*f+h == TRP:
            a.wv("H"); hflag()
            for u in range(9): p2_tr(a, WREG+8*u, u, "W1")
        if 2*f+h == TRP+1:
            a.wl("W1")
            a("s_lshl_b32 s9, s3, 2\nv_mov_b32 v9, s9\nv_mov_b32 v10, s75\nds_write_b32 v9, v10 offset:12288")
        softmax(a, T, stor[(f,h)][0], stor[(f,h)][1], RRB+1+3*f)
st(3)
a(f"""
v_min_u32 v9, 16, v29
v_mul_u32_u24 v10, 17, v30
v_add_u32 v9, v9, v10
v_lshlrev_b32 v9, 2, v9
v_add_u32 v9, s11, v9
""")
kvpoll(4, 'nopk')
a("s_mov_b32 s71, 0")
a.label(L('lf1'))
a(f"""
ds_read_b32 v10, v19 offset:12288
s_waitcnt lgkmcnt(0)
v_readfirstlane_b32 s9, v10
s_add_u32 s71, s71, 1
s_cmp_gt_u32 s71, {SPIN*8}
s_cbranch_scc1 {L('lf2')}
s_cmp_eq_u32 s9, s75
s_cbranch_scc1 {L('lf2')}
s_sleep 1
s_branch {L('lf1')}
""")
a.label(L('lf2'))
for h in range(2):
    for r in range(16): a(f"ds_read_b32 v{32+16*h+r}, v9 offset:{h*2176+r*136}", f"K{h}")
a(f"s_add_u32 s9, s65, 112\ns_lshl_b32 s9, s9, 10\ns_add_u32 s10, s9, s64\ns_add_u32 s9, s9, s74")
for h in range(2):
    kb = 32+16*h
    a.wl(f"K{h}")
    for q in range(8): a(f"v_cvt_pk_bf16_f32 v{kb+q}, v{kb+2*q}, v{kb+2*q+1}")
    for f in range(2):
        Tt = 96+16*f
        a(f"{MF} {V(Tt,16)}, {V(kb)}, {V(stor[(f,h)][0])}, 0")
        a(f"{MF} {V(Tt,16)}, {V(kb+4)}, {V(stor[(f,h)][1])}, {V(Tt,16)}")
    for f in range(2):
        Tt = 96+16*f; o = kb+8+4*f
        a(f"v_add_f32 v8, 0x358637bd, v{Tt+8}\nv_rcp_f32 v8, v8")
        for r in range(8): a(f"v_mul_f32 v{Tt+r}, v{Tt+r}, v8")
        for q in range(4): a(f"v_cvt_pk_bf16_f32 v{o+q}, v{Tt+2*q}, v{Tt+2*q+1}")
        a(f"buffer_store_dwordx4 {V(o)}, v26, {R(WS)}, {('s9','s10')[f]} offen offset:{h*1024} {SC}", "O")
a.wv("O")
a(f"s_lshl_b32 s9, s6, 3\ns_lshl_b32 s10, s78, 2\ns_add_u32 s9, s9, s10\ns_add_u32 s9, s9, s77\ns_add_u32 s9, s9, {OF}")
flag_store("s9")
st()
a("s_lshl_b32 s9, s3, 2\nv_mov_b32 v11, s9")
lds_wait("r2w", 12320-16)
a.label(L('tailB'))
for i in range(6): a(f"v_mov_b32 v{2+i}, v{12+i}")
TRA = 2
a.label(L('tail'))
a(f"""
s_mul_i32 s64, s82, {2*AF_TG}
s_mul_i32 s65, s3, {14*1024}
s_add_u32 s65, s65, s64
s_lshl_b32 s66, s3, 12
s_add_u32 s66, s66, s64
s_add_u32 s66, s66, {112*1024}
s_add_u32 s67, s66, {AF_TG}
s_lshl_b32 s9, s82, 8
s_add_u32 s72, s9, {HF}
s_add_u32 s73, s9, {OF}
v_lshlrev_b32 v0, 4, v1
v_lshlrev_b32 v8, 2, v1
""")
st(5)
a(f"s_cmp_eq_u32 s3, 0\ns_cbranch_scc0 {L('phok')}")
with a.skippable():
    a("s_mov_b32 s79, 0")
    a.label(L('ph'))
    a(f"""
    buffer_load_dword v10, v8, {R(WS)}, s72 offen {SC}
    s_waitcnt vmcnt(0)
    v_cmp_ne_u32 vcc, s75, v10
    s_cmp_eq_u64 vcc, 0
    s_cbranch_scc1 {L('phok')}
    s_add_u32 s79, s79, 1
    s_cmp_gt_u32 s79, {SPIN}
    s_cbranch_scc1 {L('phok')}
    s_sleep {SLP}
    s_branch {L('ph')}
    """)
if env("DEC", 0):
    a.label(L('phok2')) if False else None
a.label(L('phok'))
if env("DEC", 0):
    a(f"s_cmp_eq_u32 s3, 0\ns_cbranch_scc0 {L('hw0')}")
    with a.skippable():
        a("v_mov_b32 v10, s75\nds_write_b32 v19, v10 offset:12352")
    a.label(L('hw0'))
    a("v_mov_b32 v11, 0")
    lds_wait("hw", 12352)
else:
    a("s_barrier")
st(); st(1, grp="T")
abuf = [200+8*i for i in range(7)] + [16+8*i for i in range(4)]
NA = 11
a(f"""
s_mov_b32 s60, s65
s_add_u32 s83, s65, {14*1024}
s_lshl_b32 s9, s76, 10
s_add_u32 s65, s65, s9
""")
def aload(u):
    r = abuf[u % NA]
    if u < 14:
        a(f"s_add_u32 s71, s65, {AF_TG}")
        a(f"buffer_load_dwordx4 {V(r)}, v0, {R(WS)}, s65 offen {ASC}", f"A{u}")
        a(f"buffer_load_dwordx4 {V(r+4)}, v0, {R(WS)}, s71 offen {ASC}", f"A{u}")
        a("s_add_u32 s65, s65, 1024\ns_cmp_eq_u32 s65, s83\ns_cselect_b32 s65, s60, s65")
    else:
        for tb in range(2):
            a(f"buffer_load_dwordx4 {V(r+4*tb)}, v0, {R(WS)}, s{(66,67)[tb]} offen offset:{(u-14)*1024} {SC}", f"A{u}")
NW = env("NW", 11)
OCK = min(OCK, 14-NW) if NW < 11 else OCK
FOP = max(0, OCK - 2)
for u in range(NW):
    aload(u)
    if NW == 11 and u == OCK: a(f"buffer_load_dword v10, v8, {R(WS)}, s73 offen {SC}", f"A{OCK}")
def mfmas(u, w):
    r = abuf[u % NA]
    for tb in range(2):
        for nb in range(2):
            d = P2ACC + 16*(2*tb+nb)
            a(f"{MF} {V(d,16)}, {V(w+4*nb)}, {V(r+4*tb)}, {V(d,16) if u else 0}")
a(f"""
v_lshrrev_b32 v12, 3, v1
v_lshlrev_b32 v12, 10, v12
v_and_b32 v13, 7, v1
v_lshlrev_b32 v13, 4, v13
v_add_u32 v12, v12, v13
s_lshl_b32 s74, s82, 16
s_lshl_b32 s9, s3, 13
s_add_u32 s74, s74, s9
s_add_u32 s74, s74, s62
""")
for u in range(18):
    if u == 8: p2_tr(a, WTMP, 9, "T9")
    if 9 <= u < 17: p2_tr(a, WTMP + 8*((u-8)&1), u+1, f"T{u+1}")
    if u >= 9: a.wl(f"T{u}")
    a.wv(f"A{u}")
    if u in (0, 7, 14): st(grp="T")
    mfmas(u, WREG+8*u if u < 9 else WTMP+8*((u-9)&1))
    if NW == 11:
        if u < 3: aload(u+NA)
    else:
        if u+NW < 14: aload(u+NW)
        if u+NW == OCK+0: a(f"buffer_load_dword v10, v8, {R(WS)}, s73 offen {SC}", f"A{OCK}")
        if u > OCK and u+NW < 18: aload(u+NW)  if u+NW >= 14 else None
    if u == 3:
        a(f"buffer_load_dwordx4 v[128:131], v12, {R(X)}, s74 offen", "X")
        a(f"buffer_load_dwordx4 v[132:135], v13, {R(B2)}, s62 offen", "X")
    if u == OCK:
        a("s_mov_b32 s79, 0")
        a.label(L('po'))
        a(f"""
        v_cmp_ne_u32 vcc, s75, v10
        s_and_b32 s9, vcc_lo, 0xffff
        s_cmp_eq_u32 s9, 0
        s_cbranch_scc1 {L('pook')}
        s_add_u32 s79, s79, 1
        s_cmp_gt_u32 s79, {SPIN}
        s_cbranch_scc1 {L('pook')}
        """)
        with a.skippable():
            a(f"s_sleep 16\nbuffer_load_dword v10, v8, {R(WS)}, s73 offen {SC}\ns_waitcnt vmcnt(0)\ns_branch {L('po')}")
        a.label(L('pook'))
        if NW == 11:
            for uu in range(14, 18): aload(uu)
        else: aload(14)
st(); st(grp="T")
a(f"""
v_bfe_u32 v8, v1, 3, 2
v_lshlrev_b32 v8, 14, v8
v_and_b32 v9, 7, v1
v_lshl_add_u32 v8, v9, 8, v8
v_lshrrev_b32 v10, 5, v1
v_xor_b32 v10, v10, v9
v_lshl_add_u32 v8, v10, 4, v8
s_add_u32 s9, s69, {PG}
v_add_u32 v8, s9, v8
v_xor_b32 v9, 32, v8
v_xor_b32 v10, 64, v8
v_xor_b32 v11, 96, v8
v_add_u32 v2, 0x10000, v8
v_add_u32 v3, 0x10000, v9
v_add_u32 v4, 0x10000, v10
v_add_u32 v5, 0x10000, v11
""")
for tb in range(2):
    for nb in range(2):
        for qq in range(4):
            d = P2ACC + 16*(2*tb+nb) + 4*qq
            a(f"ds_write_b128 v{(8,2)[tb]+qq}, {V(d)} offset:{nb*128}")
a("""
v_lshrrev_b32 v6, 3, v1
v_and_b32 v7, 7, v1
v_lshlrev_b32 v7, 1, v7
v_xor_b32 v7, v7, v6
v_lshlrev_b32 v6, 8, v6
v_lshl_add_u32 v6, v7, 4, v6
s_lshl_b32 s9, s3, 14
s_add_u32 s9, s9, 16384
v_add_u32 v6, s9, v6
v_xor_b32 v7, 16, v6
s_waitcnt lgkmcnt(0)
""")
st(grp="T"); a("s_barrier"); st(grp="T")
RR = 160
for w in range(8):
    for e in range(2):
        a(f"ds_read_b128 {V(RR+8*w+4*e)}, v{6+e} offset:{w*2048}", f"R{w}")
a.wv("X")
for i in range(4):
    a(f"v_lshlrev_b32 v{24+2*i}, 16, v{128+i}\nv_and_b32 v{25+2*i}, 0xffff0000, v{128+i}")
    a(f"v_lshlrev_b32 v{32+2*i}, 16, v{132+i}\nv_and_b32 v{33+2*i}, 0xffff0000, v{132+i}")
for i in range(8): a(f"v_add_f32 v{24+i}, v{24+i}, v{32+i}")
for w in range(8):
    a.wl(f"R{w}")
    for i in range(8): a(f"v_add_f32 v{24+i}, v{24+i}, v{RR+8*w+i}")
for i in range(4): a(f"v_cvt_pk_bf16_f32 v{32+i}, v{24+2*i}, v{25+2*i}")
a(f"buffer_store_dwordx4 v[32:35], v12, {R(OUT)}, s74 offen {os.environ.get('OSC','')}")
st(grp="T")
a(f"s_or_b32 s9, s2, s3\ns_cmp_eq_u32 s9, 0\ns_cbranch_scc0 {L('noclr')}")
with a.skippable():
    a(f"v_mov_b32 v8, 0\ns_mov_b64 exec, 1\nbuffer_store_dword v8, v8, {R(DBG)}, 0 offen {SC}\ns_mov_b64 exec, -1")
a.label(L('noclr'))
if INSTR:
    a("s_waitcnt vmcnt(0)"); st()
    nst[0] = 9
    a(f"s_waitcnt lgkmcnt(0)\ns_lshl_b32 s9, s2, 3\ns_add_u32 s9, s9, s3\ns_lshl_b32 s9, s9, 6\ns_add_u32 s9, s9, {STAMPS}")
    a("v_mov_b32 v0, 0\ns_mov_b64 exec, 1")
    for i in range(nst[0]):
        a(f"v_mov_b32 v1, s{84+2*i}\nbuffer_store_dword v1, v0, {R(WS)}, s9 offen offset:{4*i}\ns_nop 1")
a.label(L('end')); a("s_endpgm")
desc = f""".section .rodata,"a"
.p2align 6
.amdhsa_kernel {NAME}
  .amdhsa_next_free_vgpr 256
  .amdhsa_next_free_sgpr 102
  .amdhsa_accum_offset 256
  .amdhsa_group_segment_fixed_size 0
  .amdhsa_kernarg_size 96
  .amdhsa_user_sgpr_count 2
  .amdhsa_user_sgpr_kernarg_segment_ptr 1
  .amdhsa_system_sgpr_workgroup_id_x 1
  .amdhsa_float_denorm_mode_32 3
.end_amdhsa_kernel
"""
if __name__ == "__main__":
    open(sys.argv[1], "w").write("; @launch grid=(256,1,1) block=(512,1,1) lds=163840\n" + a.finish() + desc)
    print("stamps:", nst[0], "STAMPS", STAMPS)
```

```python
import sys, os
sys.path.insert(0, "work")
from asmlib import Asm
EXP = os.environ.get("EXP", "").split(",")
INSTR = "instr" in sys.argv
STG = os.environ.get("STG", "main")
def env(n, d): return int(os.environ.get(n, str(d)))
NAME = "parallel_sum__linear_kernel_hedgehog__dense_activation_squared_relu__prompt_kernel"
SZ = dict(x=2048*512*2, wqkv=512*1536*2, wphi=32*16*16*2, wo=512*512*2, w1=512*1792*2, b1=1792*2, w2=1792*512*2, b2=512*2, out=2048*512*2, dbg=256)
KSLOT = dict(x=0, wqkv=1, wphi=2, wo=3, w1=5, b1=6, w2=7, b2=8, out=9, dbg=10, ws=11)
AF_TG = 144*1024
KVACC = 64*AF_TG; KV_J = 9216
KVF = KVACC + 8*KV_J
HF = KVF + 8*512
OF = HF + 32*256
EFS = OF + 32*256
EFC = EFS + 16*128
CSP = EFC + 16*128
STAT = CSP + 16*14336
STAMPS = STAT + 2048*16
WS_END = STAMPS + 256*8*64
SZ["ws"] = WS_END
LOG2E = "0x3fb8aa3b"
SLOT = 49152; PG = 16384; RB = PG
SPIN = 60000
FLA = env("FLA", 18); FLC = env("FLC", 23); KPW = env("KPW", 4); FLB = env("FLB", 14); OCK = env("OCK", 6 if env("NW", 11) == 11 else 14-env("NW", 11)); AW = env("AW", 0); TRP = env("TRP", 1); NE = env("NE", 4); NB = env("NB", 8)
SC = "sc0 sc1"
ASC = os.environ.get("ASC", "sc0 sc1")
SLP = env("SLP", 8)
X, WQ, W1, WS, DBG, WPHI, B1, I1, W2, WO, B2, OUT = 12, 16, 20, 24, 28, 32, 36, 40, 44, 48, 52, 56
def R(s): return f"s[{s}:{s+3}]"
def V(b, n=4): return f"v[{b}:{b+n-1}]"
MF = "v_mfma_f32_32x32x16_bf16"
a = Asm()
nst = [0]
def st(i=None, grp="main"):
    if not INSTR or grp != STG: return
    if i is not None: nst[0] = i
    a(f"s_memrealtime s[{84+2*nst[0]}:{85+2*nst[0]}]"); nst[0] += 1
def L(n): return f"L_{n}"
def fin(x, n, s): x(f"s_mov_b32 s{s+2}, {SZ[n]}\ns_mov_b32 s{s+3}, 0x20000")

a.raw('.amdgcn_target "amdgcn-amd-amdhsa--gfx950"\n.text')
a.raw(f".globl {NAME}\n.p2align 8\n.type {NAME},@function\n{NAME}:")
a(f"s_cmp_ge_u32 s2, 256\ns_cbranch_scc1 {L('end')}")
st(grp=STG)
names = (("x",X),("wqkv",WQ),("w1",W1),("ws",WS),("dbg",DBG),("wphi",WPHI),("b1",B1),("w2",W2),("wo",WO),("b2",B2),("out",OUT))
for n, s in names: a(f"s_load_dwordx2 s[{s}:{s+1}], s[0:1], {KSLOT[n]*8}")
a(f"""
v_and_b32 v1, 63, v0
v_lshrrev_b32 v2, 6, v0
v_readfirstlane_b32 s3, v2
s_bfe_u32 s4, s2, 0x30003
s_bfe_u32 s9, s2, 0x10002
s_lshl_b32 s9, s9, 3
s_add_u32 s4, s4, s9                ; m
s_lshr_b32 s5, s2, 7                ; type
s_and_b32 s6, s2, 3
s_lshl_b32 s6, s6, 1
s_bfe_u32 s10, s2, 0x10006
s_add_u32 s6, s6, s10               ; j
v_lshrrev_b32 v9, 3, v1
v_and_b32 v10, 7, v1
v_lshrrev_b32 v11, 4, v1
v_xor_b32 v12, v10, v11
v_lshlrev_b32 v13, 10, v9
v_lshl_add_u32 v2, v12, 4, v13
v_xor_b32 v3, 0x2040, v2
v_and_b32 v11, 1, v11
v_lshlrev_b32 v11, 6, v11
v_lshlrev_b32 v12, 4, v10
v_xor_b32 v12, v12, v11
v_mul_u32_u24 v13, 3072, v9
v_add_u32 v4, v13, v12
v_mul_u32_u24 v13, 3584, v9
v_add_u32 v6, v13, v12
v_xor_b32 v14, 32, v4
s_and_b32 s9, s2, 3
s_mul_i32 s9, s9, 5
s_add_u32 s9, s9, 8
s_mul_i32 s11, s10, 3
s_add_u32 s66, s9, s11              ; I1 block (B)
s_add_u32 s67, s66, 1
s_add_u32 s68, s9, 2                ; I3 block
s_lshl_b32 s61, s6, 7
s_add_u32 s62, s61, 2048
s_lshl_b32 s77, s66, 7
s_add_u32 s78, s61, 1024
s_movk_i32 s63, 3584
s_cmp_eq_u32 s5, 0
s_cselect_b64 vcc, -1, 0
s_cselect_b32 s61, s78, s61         ; I0 col
s_cselect_b32 s62, s62, s77         ; I1 col
s_cselect_b32 s63, 3072, s63
s_cselect_b32 s67, s6, s67          ; I2 block
v_cndmask_b32 v5, v6, v14, vcc
s_lshl_b32 s64, s67, 7              ; I2 col
s_lshl_b32 s65, s68, 7              ; I3 col
s_lshl_b32 s60, s4, 17
s_lshl_b32 s69, s3, 11
s_lshl_b32 s70, s3, 10
s_lshl_b32 s11, s3, 14
s_add_u32 s76, s60, s11
s_mul_i32 s11, s3, {8*3072}
s_add_u32 s11, s61, s11
v_add_u32 v4, s11, v4
s_lshl_b32 s11, s3, 3
s_mul_i32 s11, s11, s63
s_add_u32 s11, s62, s11
v_add_u32 v5, s11, v5
s_lshl_b32 s75, s63, 6
s_mul_i32 s11, s3, {8*3584}
s_add_u32 s73, s64, s11
s_add_u32 s74, s65, s11
v_add_u32 v7, s74, v6
v_add_u32 v6, s73, v6
s_mov_b32 s82, 0
s_mov_b32 s83, 0
s_mov_b32 s73, 0
s_lshl_b32 s79, s5, 3
s_add_u32 s79, s79, s6              ; slot
s_and_b32 s78, s3, 1                ; lo
s_lshr_b32 s77, s3, 1
v_lshlrev_b32 v26, 4, v1
s_waitcnt lgkmcnt(0)
""")
st(8, grp="P"); nst[0] = 1
fin(a, "x", X); fin(a, "wqkv", WQ); fin(a, "w1", W1)
a(f"""
s_cmp_eq_u32 s5, 0
s_cselect_b32 s{I1}, s{WQ}, s{W1}
s_cselect_b32 s{I1+1}, s{WQ+1}, s{W1+1}
s_cselect_b32 s{I1+2}, s{WQ+2}, s{W1+2}
s_mov_b32 s{I1+3}, 0x20000
""")
a(f"""
s_lshl_b32 s9, s79, 13
s_add_u32 s9, s9, s70
s_add_u32 s9, s9, s60
""")
a(f"buffer_load_dwordx4 v[112:115], v26, {R(X)}, s9 offen", "E")
a(f"""
v_lshrrev_b32 v9, 2, v1
v_and_b32 v10, 3, v1
v_lshlrev_b32 v10, 4, v10
s_cmp_eq_u32 s77, 0
s_cselect_b32 s9, s61, s62
s_cselect_b32 s11, 3072, s63
s_cmp_eq_u32 s77, 2
s_cselect_b32 s9, s64, s9
s_cmp_eq_u32 s77, 3
s_cselect_b32 s9, s65, s9
s_cselect_b32 s71, s10, s78
s_cmp_ge_u32 s77, 2
s_cselect_b32 s11, 3584, s11
s_lshl_b32 s71, s71, 6
s_add_u32 s9, s9, s71
s_lshl_b32 s71, s4, 5
s_mul_i32 s71, s71, s11
s_add_u32 s9, s9, s71               ; + 32m rows
v_mul_lo_u32 v9, v9, s11
v_add_u32 v9, v9, v10
s_lshl_b32 s11, s11, 4
s_add_u32 s71, s9, s11
s_mov_b32 m0, s69
s_cmp_eq_u32 s11, {3072*16}
s_cbranch_scc1 {L('e1')}
""")
with a.skippable():
    a(f"buffer_load_dwordx4 v9, {R(W1)}, s9 offen lds\ns_add_u32 m0, s69, 1024\ns_nop 0\nbuffer_load_dwordx4 v9, {R(W1)}, s71 offen lds\ns_branch {L('e2')}")
a.label(L('e1'))
with a.skippable():
    a(f"buffer_load_dwordx4 v9, {R(WQ)}, s9 offen lds\ns_add_u32 m0, s69, 1024\ns_nop 0\nbuffer_load_dwordx4 v9, {R(WQ)}, s71 offen lds")
a.label(L('e2'))
def dma(c, piece):
    t = f"C{c}"; sl = RB + (c % 3)*SLOT
    if piece < 2:
        a(f"s_add_u32 m0, s69, {sl+1024*piece-c*128}")
        a(f"buffer_load_dwordx4 v{2+piece}, {R(X)}, s76 offen offset:{c*128} lds", t)
    elif piece == 2:
        a(f"s_add_u32 m0, s70, {sl+16384}")
        a(f"buffer_load_dwordx4 v4, {R(WQ)}, s82 offen lds", t)
        a(f"s_add_u32 s82, s82, {64*3072}")
    elif piece == 3:
        a(f"s_add_u32 m0, s70, {sl+24576}")
        a(f"buffer_load_dwordx4 v5, {R(I1)}, s83 offen lds", t)
        a("s_add_u32 s83, s83, s75")
    elif piece == 4:
        a(f"s_add_u32 m0, s70, {sl+32768}")
        a(f"buffer_load_dwordx4 v6, {R(W1)}, s73 offen lds", t)
    else:
        a(f"s_add_u32 m0, s70, {sl+40960}")
        a(f"buffer_load_dwordx4 v7, {R(W1)}, s73 offen lds", t)
        a(f"s_add_u32 s73, s73, {64*3584}")
dma(0, 0); a.items.append(("retag", ("C0", "E")))
a(f"s_cmp_eq_u32 s5, 0\ns_cbranch_scc1 {L('c0b')}")
with a.skippable():
    dma(0, 4); dma(0, 5)
a.label(L('c0b'))
dma(0, 1); dma(0, 2); dma(0, 3)
st(grp="P")
if env("WU", 0):
    a(f"s_cmp_lt_u32 s3, 4\ns_cbranch_scc0 {L('wu1')}")
    with a.skippable():
        a(f"""
        v_lshrrev_b32 v254, 1, v1
        v_and_b32 v255, 1, v1
        v_lshlrev_b32 v255, 7, v255
        v_lshl_add_u32 v254, v254, 10, v255
        s_lshl_b32 s9, s3, 15
        s_add_u32 s9, s9, s60
        s_lshr_b32 s11, s2, 6
        s_lshl_b32 s11, s11, 8
        s_add_u32 s9, s9, s11
        buffer_load_dword v255, v254, {R(X)}, s9 offen
        s_branch {L('wu3')}
        """)
    a.label(L('wu1'))
    with a.skippable():
        a(f"""
        s_cmp_eq_u32 s3, 4
        s_cselect_b32 s9, s61, s62
        s_cselect_b32 s11, 3072, s63
        s_cmp_eq_u32 s3, 6
        s_cselect_b32 s9, s64, s9
        s_cmp_eq_u32 s3, 7
        s_cselect_b32 s9, s65, s9
        s_cmp_ge_u32 s3, 6
        s_cselect_b32 s11, 3584, s11
        s_and_b32 s71, s4, 7
        s_lshl_b32 s71, s71, 6
        s_mul_i32 s71, s71, s11
        s_add_u32 s9, s9, s71
        v_mul_lo_u32 v254, v1, s11
        s_cmp_eq_u32 s11, 3072
        s_cbranch_scc1 {L('wu2')}
        buffer_load_dword v255, v254, {R(W1)}, s9 offen
        s_branch {L('wu3')}
        """)
        a.label(L('wu2'))
        a(f"buffer_load_dword v255, v254, {R(WQ)}, s9 offen")
    a.label(L('wu3'))
    a.items.append(("qins", ("C0", 1)))
if env("ICP", 0):
    a(f"s_cmp_lt_u32 s3, 4\ns_cbranch_scc0 {L('noicp')}")
    with a.skippable():
        a(f"""
        s_getpc_b64 s[80:81]
        v_lshlrev_b32 v127, 7, v1
        s_lshl_b32 s9, s3, 13
        v_add_u32 v127, s9, v127
        v_min_u32 v127, {env("ICP", 0)}, v127
        global_load_dword v127, v127, s[80:81]
        """)
    a.label(L('noicp'))
fin(a, "ws", WS); fin(a, "dbg", DBG)
a("v_mov_b32 v19, 0")
a(f"s_or_b32 s9, s2, s3\ns_cmp_eq_u32 s9, 0\ns_cbranch_scc0 {L('nononce')}")
with a.skippable():
    a(f"""
    s_memrealtime s[80:81]
    s_waitcnt lgkmcnt(0)
    s_or_b32 s80, s80, 1
    v_mov_b32 v10, s80
    s_mov_b64 exec, 1
    buffer_store_dword v10, v19, {R(DBG)}, 0 offen {SC}
    s_mov_b64 exec, -1
    """)
a.label(L('nononce'))
a(f"""
s_bfe_u32 s7, s3, 0x10001           ; mh
s_lshr_b32 s8, s3, 2                ; hi
s_mul_i32 s72, s6, {KV_J}
s_add_u32 s72, s72, {KVACC}
s_cmp_eq_u32 s5, 1
s_cselect_b32 s9, s4, 1
s_cmp_eq_u32 s9, 0
s_cbranch_scc0 {L('nozero')}
""")
with a.skippable():
    a(f"""
    v_lshlrev_b32 v9, 4, v0
    v_mov_b32 v10, 0
    v_mov_b32 v11, 0
    v_mov_b32 v12, 0
    v_mov_b32 v13, 0
    buffer_store_dwordx4 v[10:13], v9, {R(WS)}, s72 offen {SC}
    s_add_u32 s9, s72, 8192
    s_cmp_eq_u32 s3, 0
    s_cbranch_scc0 {L('nozero')}
    buffer_store_dwordx4 v[10:13], v9, {R(WS)}, s9 offen {SC}
    """)
a.label(L('nozero'))
a(f"""
s_and_b32 s9, s78, s8
s_cmp_eq_u32 s5, 0
s_cselect_b32 s61, s8, s9           ; sel
v_and_b32 v29, 31, v1
v_lshrrev_b32 v30, 5, v1
v_bfe_u32 v31, v1, 1, 3
v_xor_b32 v31, v31, v30
v_lshlrev_b32 v20, 7, v29
v_lshl_add_u32 v8, v31, 4, v20
s_lshl_b32 s9, s7, 1
s_add_u32 s62, s9, s61
s_lshl_b32 s9, s62, 12
s_add_u32 s9, s9, {RB}
v_add_u32 v8, s9, v8
v_xor_b32 v9, 32, v8
v_xor_b32 v10, 64, v8
v_xor_b32 v11, 96, v8
v_xor_b32 v12, 0x1000, v8
v_xor_b32 v13, 0x1000, v9
v_xor_b32 v14, 0x1000, v10
v_xor_b32 v15, 0x1000, v11
v_bfe_u32 v31, v1, 2, 2
v_lshl_add_u32 v20, v30, 3, v31
v_and_b32 v22, 3, v1
v_lshlrev_b32 v22, 3, v22
v_lshl_add_u32 v18, v20, 6, v22
v_lshl_add_u32 v20, v20, 7, v22
v_lshl_add_u32 v21, v30, 2, v31
v_lshl_add_u32 v21, v21, 5, v22
v_bfe_u32 v22, v1, 4, 1
v_lshl_add_u32 v18, v22, 5, v18
v_add_u32 v18, s69, v18
v_and_b32 v31, 2, v31
v_xor_b32 v31, v31, v22
v_lshl_add_u32 v20, v31, 5, v20     ; nat0
s_lshl_b32 s9, s8, 1
s_add_u32 s63, s9, s78              ; nq
s_lshl_b32 s9, s63, 5
v_xor_b32 v23, s9, v20
v_lshl_add_u32 v23, v22, 13, v23
s_lshl_b32 s9, s78, 6
v_xor_b32 v24, s9, v20
s_cmp_eq_u32 s8, 0
s_cselect_b32 s10, 8192, 0
v_add_u32 v25, s10, v24
v_cndmask_b32 v16, v25, v23, vcc
v_add_u32 v16, {RB+16384}, v16
s_and_b32 s9, s6, 1
s_lshl_b32 s9, s9, 6
v_xor_b32 v25, s9, v20
v_add_u32 v25, 8192, v25
s_and_b32 s9, s5, s8
s_cmp_eq_u32 s9, 1
s_cselect_b64 s[80:81], -1, 0
v_cndmask_b32 v17, v24, v25, s[80:81]
v_add_u32 v17, {RB+32768}, v17
v_mov_b32 v20, v24
v_mul_u32_u24 v23, 192, v22
v_lshlrev_b32 v24, 2, v29
s_lshl_b32 s9, s63, 6
v_add3_u32 v23, v23, v24, s9
s_lshl_b32 s9, s78, 7
s_cmp_eq_u32 s8, 0
s_cselect_b32 s10, 256, 0
s_add_u32 s10, s10, s9
v_add_u32 v25, s10, v24
v_cndmask_b32 v23, v25, v23, vcc
s_add_u32 s9, s9, 512
s_and_b32 s10, s5, s8
s_cmp_eq_u32 s10, 1
s_cselect_b32 s9, 768, s9
v_add_u32 v24, s9, v24
s_lshl_b32 s66, s66, 1
s_add_u32 s66, s66, s78
s_lshl_b32 s67, s67, 1
s_add_u32 s67, s67, s78
s_lshl_b32 s68, s68, 1
s_and_b32 s9, s6, 1
s_add_u32 s68, s68, s9
s_cmp_eq_u32 s10, 1
s_cselect_b32 s67, s68, s67
s_lshl_b32 s9, s78, 1
s_cmp_eq_u32 s5, 0
s_cselect_b32 s9, s63, s9
s_lshl_b32 s10, s6, 2
s_add_u32 s65, s10, s9
s_lshl_b32 s9, s9, 9
s_add_u32 s9, s9, 14336
v_add_u32 v21, s9, v21
v_mov_b32 v22, 0x3f803f80
v_and_b32 v27, 15, v1
v_lshlrev_b32 v27, 2, v27
s_lshl_b32 s9, s4, 7
s_add_u32 s9, s9, {EFS}
s_lshl_b32 s10, s79, 7
s_add_u32 s10, s10, {EFC}
v_add_u32 v25, s9, v27
v_add_u32 v28, s10, v27
v_lshrrev_b32 v27, 4, v1
v_cmp_eq_u32 vcc, 1, v27
v_cndmask_b32 v25, v25, v28, vcc
s_lshl_b32 s9, s6, 2
s_add_u32 s9, s9, {EFS+32}
v_writelane_b32 v25, s9, 32
""")
fin(a, "b1", B1); fin(a, "wphi", WPHI); fin(a, "w2", W2); fin(a, "wo", WO); fin(a, "b2", B2); fin(a, "out", OUT)
st(grp="P")
a.wv("E")
st(grp="P")
for k, off in enumerate((0, 256, 1024, 1280)): a(f"ds_read_b64_tr_b16 {V(120+2*k,2)}, v18 offset:{off}", "EW")
a("v_mov_b32 v116, 0\nv_mov_b32 v117, 0\nv_mov_b32 v118, 0")
for q in range(4):
    a(f"v_dot2_f32_bf16 v116, v{112+q}, v22, v116\nv_dot2_f32_bf16 v117, v{112+q}, v{112+q}, v117")
a.wl("EW")
for q in range(8): a(f"v_dot2_f32_bf16 v118, v{120+q}, v22, v118")
for dpp in ("quad_perm:[1,0,3,2]", "quad_perm:[2,3,0,1]", "row_half_mirror", "row_mirror"):
    a(f"v_add_f32_dpp v116, v116, v116 {dpp} row_mask:0xf bank_mask:0xf\nv_add_f32_dpp v117, v117, v117 {dpp} row_mask:0xf bank_mask:0xf")
a(f"""
v_permlane16_swap_b32 v116, v117
v_add_f32 v116, v116, v117
v_mov_b32 v119, v118
v_mov_b32 v117, v116
v_permlane32_swap_b32 v118, v119
v_permlane32_swap_b32 v116, v117
v_add_f32 v118, v118, v119
v_add_f32 v116, v116, v117
v_mov_b32 v117, v116
v_permlane16_swap_b32 v116, v117
v_mul_f32 v116, 0x3b000000, v116
v_mul_f32 v117, 0x3b000000, v117
v_fma_f32 v117, -v116, v116, v117
v_max_f32 v117, 0, v117
v_add_f32 v117, 0x3727c5ac, v117
v_rsq_f32 v114, v117
v_sub_f32 v116, 0, v116
v_mul_f32 v117, v117, v114
v_cvt_pk_bf16_f32 v120, v116, v117
v_and_b32 v121, 0xffff0000, v120
v_lshlrev_b32 v122, 16, v120
v_sub_f32 v123, v116, v122
v_sub_f32 v124, v117, v121
v_cvt_pk_bf16_f32 v112, v122, v123
v_cvt_pk_bf16_f32 v113, v121, v124
s_lshl_b32 s10, s4, 7
s_lshl_b32 s11, s79, 3
s_add_u32 s10, s10, s11
s_add_u32 s10, s10, s3
s_lshl_b32 s10, s10, 4
s_add_u32 s10, s10, {STAT}
s_mul_i32 s11, s79, 14336
s_mul_i32 s71, s4, 896
s_add_u32 s11, s11, s71
s_lshl_b32 s71, s3, 7
s_add_u32 s11, s11, s71
s_add_u32 s11, s11, {CSP}
v_lshlrev_b32 v120, 2, v1
s_mov_b64 exec, 1
buffer_store_dwordx4 v[112:115], v19, {R(WS)}, s10 offen {SC}
s_cmp_lt_u32 s3, 7
s_cselect_b32 exec_lo, -1, 0
s_cbranch_scc0 {L('nocs')}
""")
with a.skippable():
    a(f"buffer_store_dword v118, v120, {R(WS)}, s11 offen {SC}")
a.label(L('nocs'))
a("s_mov_b64 exec, -1")
a(f"buffer_load_dword v31, v19, {R(DBG)}, 0 offen {SC}", "N0")
a("v_lshlrev_b32 v120, 1, v29\ns_lshl_b32 s9, s66, 6\ns_lshl_b32 s10, s67, 6")
a(f"buffer_load_ushort v27, v120, {R(B1)}, s9 offen", "S")
a(f"buffer_load_ushort v28, v120, {R(B1)}, s10 offen", "S")
st(); st(grp="P")

def side_flags(tg, tmp):
    a(f"s_cmp_eq_u32 s3, 0\ns_cbranch_scc0 {L('nofl'+tg)}")
    with a.skippable():
        a("s_mov_b32 s71, 0")
        a.label(L('nspin'+tg))
        a(f"""
        v_readfirstlane_b32 s9, v31
        s_add_u32 s71, s71, 1
        s_cmp_gt_u32 s71, {SPIN}
        s_cbranch_scc1 {L('nok'+tg)}
        s_cmp_lg_u32 s9, 0
        s_cbranch_scc1 {L('nok'+tg)}
        buffer_load_dword v31, v19, {R(DBG)}, 0 offen {SC}
        s_waitcnt vmcnt(0)
        s_branch {L('nspin'+tg)}
        """)
        a.label(L('nok'+tg))
        a(f"""
        s_lshl_b32 s10, s4, 7
        s_lshl_b32 s11, s79, 2
        s_add_u32 s10, s10, s11
        s_lshl_b32 s11, s79, 7
        s_lshl_b32 s71, s4, 2
        s_add_u32 s11, s11, s71
        s_add_u32 s11, s11, {EFC-EFS}
        v_mov_b32 v{tmp}, s10
        v_writelane_b32 v{tmp}, s11, 1
        s_mov_b32 s10, {EFS}
        s_mov_b64 exec, 3
        buffer_store_dword v31, v{tmp}, {R(WS)}, s10 offen {SC}
        s_mov_b64 exec, -1
        """)
    a.label(L('nofl'+tg))
def side_wphi_dma(tg):
    a(f"s_cmp_lt_u32 s3, 2\ns_cbranch_scc0 {L('nowp'+tg)}")
    with a.skippable():
        a(f"s_add_u32 m0, s70, 14336\ns_lshl_b32 s9, s6, 11\ns_add_u32 s9, s9, s70\nbuffer_load_dwordx4 v26, {R(WPHI)}, s9 offen lds")
    a.label(L('nowp'+tg))
def side_poll_issue(tg):
    a(f"s_cmp_eq_u32 s3, 0\ns_cbranch_scc0 {L('npi'+tg)}")
    with a.skippable():
        a(f"buffer_load_dword v18, v25, {R(WS)}, 0 offen {SC}")
    a.label(L('npi'+tg))
def side_poll_wait(tg, restore_vcc):
    a(f"s_cmp_eq_u32 s3, 0\ns_cbranch_scc0 {L('fok2'+tg)}")
    with a.skippable():
        a("s_mov_b32 s71, 0")
        a.label(L('fspin'+tg))
        a(f"""
        v_cmp_ne_u32 vcc, v18, v31
        s_cmp_eq_u64 vcc, 0
        s_cbranch_scc1 {L('fok'+tg)}
        s_add_u32 s71, s71, 1
        s_cmp_gt_u32 s71, {SPIN}
        s_cbranch_scc1 {L('fok'+tg)}
        s_sleep {SLP}
        buffer_load_dword v18, v25, {R(WS)}, 0 offen {SC}
        s_waitcnt vmcnt(0)
        s_branch {L('fspin'+tg)}
        """)
        a.label(L('fok'+tg))
        if restore_vcc: a("s_mov_b64 vcc, s[80:81]")
        a("ds_write_b32 v19, v31 offset:16380\ns_waitcnt lgkmcnt(0)")
    a.label(L('fok2'+tg))
def side_poll_check(tg, raw, tmp, ptag):
    a(f"ds_read_b32 v31, v19 offset:16380", ptag)
    a(f"""
    v_lshlrev_b32 v{tmp}, 4, v29
    s_lshl_b32 s9, s4, 11
    s_lshl_b32 s10, s62, 9
    s_add_u32 s9, s9, s10
    s_add_u32 s9, s9, {STAT}
    s_xor_b32 s10, s9, 512
    """)
    a(f"s_cmp_lt_u32 s3, 7\ns_cbranch_scc0 {L('nocsd'+tg)}")
    with a.skippable():
        a(f"s_mul_i32 s11, s79, 14336\ns_add_u32 s11, s11, s69\ns_add_u32 s11, s11, {CSP}\ns_mov_b32 m0, s69")
        a(f"buffer_load_dwordx4 v26, {R(WS)}, s11 offen {SC} lds")
        a(f"buffer_load_dwordx4 v26, {R(WS)}, s11 offen offset:1024 {SC} lds")
    a.label(L('nocsd'+tg))
    a(f"buffer_load_dwordx4 {V(raw)}, v{tmp}, {R(WS)}, s9 offen {SC}", "ST")
    a(f"buffer_load_dwordx4 {V(raw+4)}, v{tmp}, {R(WS)}, s10 offen {SC}", "ST")
def side_csred(tg, t16, tmp):
    a(f"s_cmp_lt_u32 s3, 4\ns_cbranch_scc0 {L('nored'+tg)}")
    with a.skippable():
        a(f"v_min_u32 v{tmp}, 223, v0\nv_lshlrev_b32 v{tmp}, 2, v{tmp}")
        for g in range(16): a(f"ds_read_b32 v{t16+g}, v{tmp} offset:{g*896}")
        a("s_waitcnt lgkmcnt(0)")
        for w in (8, 4, 2, 1):
            for g in range(w): a(f"v_add_f32 v{t16+g}, v{t16+g}, v{t16+g+w}")
        a(f"""
        v_cvt_pk_bf16_f32 v{t16+1}, v{t16}, v{t16}
        v_and_b32 v{t16+1}, 0xffff0000, v{t16+1}
        v_sub_f32 v{t16+2}, v{t16}, v{t16+1}
        v_cvt_pk_bf16_f32 v{t16}, v{t16+1}, v{t16+2}
        ds_write_b32 v{tmp}, v{t16}
        """)
    a.label(L('nored'+tg))
def side_bext(raw, BX, RR, tmp):
    for t in range(2):
        s0 = raw+4*t; B = BX+4*t; rr = RR+3*t
        a(f"""
        v_and_b32 v{tmp}, 0xffff, v{s0}
        v_lshl_or_b32 v{B}, v{tmp}, 16, v{tmp}
        v_lshrrev_b32 v{tmp}, 16, v{s0}
        v_lshl_or_b32 v{B+1}, v{tmp}, 16, v{tmp}
        v_mov_b32 v{B+2}, v{s0+1}
        v_mov_b32 v{B+3}, 0
        v_mov_b32 v{rr}, v{s0+2}
        v_mul_f32 v{rr+1}, {LOG2E}, v{s0+2}
        v_mul_f32 v{rr+2}, 0.5, v{s0+2}
        """)
MAP = env("MAP", 0)
if MAP == 0:
    P2MAP = f"""
    s_and_b32 s82, s2, 7
    s_lshl_b32 s82, s82, 2
    s_bfe_u32 s9, s2, 0x20003
    s_add_u32 s82, s82, s9
    s_lshr_b32 s62, s2, 5
    s_mul_i32 s76, s62, 7
    s_lshr_b32 s76, s76, 2
    s_mul_i32 s9, s9, 3
    """
else:
    P2MAP = f"""
    s_bfe_u32 s82, s2, 0x20001
    s_lshl_b32 s82, s82, 3
    s_lshr_b32 s76, s2, 5
    s_add_u32 s82, s82, s76
    s_and_b32 s62, s2, 1
    s_lshl_b32 s62, s62, 2
    s_bfe_u32 s9, s2, 0x20003
    s_add_u32 s62, s62, s9
    s_mul_i32 s76, s76, 7
    s_lshr_b32 s76, s76, 2
    s_mul_i32 s9, s9, 3
    """
P2MAP += f"""
    s_add_u32 s76, s76, s9
    s_lshl_b32 s62, s62, 7
    s_mul_i32 s60, s3, {14*16*1024}
    s_add_u32 s60, s60, s62
    s_add_u32 s83, s60, {14*16384}
    s_lshl_b32 s68, s3, 16
    s_add_u32 s68, s68, s62
"""
TP0 = env("TP0", -1); TPS = env("TPS", 2)
def side_touch(tg, p, r1, r2):
    if TP0 < 0 or p < TP0 or (p-TP0) % TPS or (p-TP0)//TPS >= 8: return
    w = (p-TP0)//TPS
    a(f"s_cmp_eq_u32 s3, {w}\ns_cbranch_scc0 {L(f'pf{tg}{w}')}")
    with a.skippable():
        a(f"""
        s_lshr_b32 s9, s2, 3
        s_lshl_b32 s9, s9, 3
        s_add_u32 s9, s9, s3
        s_and_b32 s71, s2, 1
        s_lshl_b32 s71, s71, 9
        s_mul_i32 s10, s9, {7*1024}
        s_add_u32 s10, s10, s71
        s_lshl_b32 s11, s9, 11
        s_add_u32 s11, s11, s71
        v_lshrrev_b32 v{r1}, 2, v1
        v_and_b32 v{r2}, 3, v1
        v_lshlrev_b32 v{r2}, 7, v{r2}
        v_lshl_add_u32 v{r1}, v{r1}, 10, v{r2}
        s_mov_b64 exec, 0xfffffff
        buffer_load_dword v{r2}, v{r1}, {R(W2)}, s10 offen
        s_mov_b64 exec, 0xff
        buffer_load_dword v{r1}, v{r1}, {R(WO)}, s11 offen
        s_mov_b64 exec, -1
        """)
    a.label(L(f'pf{tg}{w}'))
def side_p2(t3):
    a(f"""
    v_readfirstlane_b32 s75, v31
    v_lshrrev_b32 v{t3}, 3, v1
    v_and_b32 v{t3+1}, 7, v1
    v_lshrrev_b32 v{t3+2}, 2, v1
    v_and_b32 v{t3+2}, 4, v{t3+2}
    v_xor_b32 v{t3+1}, v{t3+1}, v{t3+2}
    v_lshlrev_b32 v{t3}, 10, v{t3}
    v_lshl_add_u32 v18, v{t3+1}, 4, v{t3}
    s_lshl_b32 s74, s4, 2
    s_add_u32 s74, s74, s62
    s_xor_b32 s64, s74, 1
    s_mul_i32 s74, s74, {AF_TG}
    s_mul_i32 s64, s64, {AF_TG}
    {P2MAP}
    s_cmp_ge_u32 s76, 14
    s_cselect_b32 s9, 14, 0
    s_sub_u32 s76, s76, s9
    s_lshl_b32 s61, s76, 14
    s_add_u32 s61, s61, s60
    """)
def p2_adv(x):
    x("s_add_u32 s61, s61, 16384\ns_cmp_eq_u32 s61, s83\ns_cselect_b32 s61, s60, s61")
W2PG = [7, 8, 9, 1, 2, 3, 4, 5, 6]
def p2_dma(x, u, tag, partner=False):
    pg = W2PG[u % 9]
    for half in range(2):
        x(f"s_add_u32 m0, s69, {pg*PG + half*1024}")
        if u < 14:
            if half == 0: x(f"s_add_u32 s71, s61, 8192\nbuffer_load_dwordx4 v18, {R(W2)}, s61 offen lds", tag)
            else: x(f"buffer_load_dwordx4 v18, {R(W2)}, s71 offen lds", tag)
        else:
            x(f"s_add_u32 s71, s68, {((u-14)*16+half*8)*1024}")
            x(f"buffer_load_dwordx4 v18, {R(WO)}, s71 offen lds", tag)
    if partner:
        for half in range(2):
            x(f"s_add_u32 m0, s69, {pg*PG + half*1024 + 8192}\ns_add_u32 s71, s61, {4*14*16384 + half*8192}")
            x(f"buffer_load_dwordx4 v18, {R(W2)}, s71 offen lds", tag)
    if u < 14: p2_adv(x)
def p2_dma_partner(x, u, tag):
    pg = W2PG[u % 9]
    for half in range(2):
        x(f"s_add_u32 m0, s69, {pg*PG + half*1024 + 8192}")
        if u < 14:
            x(f"s_add_u32 s71, s81, {4*14*16384 + half*8192}")
            x(f"buffer_load_dwordx4 v18, {R(W2)}, s71 offen lds", tag)
        else:
            x(f"s_add_u32 s71, s68, {4*65536 + ((u-14)*16+half*8)*1024}")
            x(f"buffer_load_dwordx4 v18, {R(WO)}, s71 offen lds", tag)
    if u < 14: x("s_add_u32 s81, s81, 16384\ns_cmp_eq_u32 s81, s83\ns_cselect_b32 s81, s60, s81")
def p2_dma2(x, u, tag):
    pg = W2PG[u % 9]
    for half in range(2):
        x(f"s_add_u32 m0, s69, {pg*PG + half*1024}")
        if u < 14:
            x(f"s_add_u32 s71, s81, {half*8192}")
            x(f"buffer_load_dwordx4 v18, {R(W2)}, s71 offen lds", tag)
        else:
            x(f"s_add_u32 s71, s68, {((u-14)*16+half*8)*1024}")
            x(f"buffer_load_dwordx4 v18, {R(WO)}, s71 offen lds", tag)
    if u < 14: x("s_add_u32 s81, s81, 16384\ns_cmp_eq_u32 s81, s83\ns_cselect_b32 s81, s60, s81")
def lds_wait(lab, off):
    a("s_mov_b32 s71, 0")
    a.label(L(lab))
    a(f"""
    ds_read_b32 v10, v11 offset:{off}
    s_waitcnt lgkmcnt(0)
    v_readfirstlane_b32 s9, v10
    s_add_u32 s71, s71, 1
    s_cmp_gt_u32 s71, {SPIN*8}
    s_cbranch_scc1 {L(lab+'x')}
    s_cmp_eq_u32 s9, s75
    s_cbranch_scc1 {L(lab+'x')}
    s_sleep 1
    s_branch {L(lab)}
    """)
    a.label(L(lab+'x'))
def softmax(x, P, Pp, Pm, c):
    E = 112
    x(f"""
    v_max3_f32 v2, v{P}, v{P+1}, v{P+2}
    v_max3_f32 v3, -v{P}, -v{P+1}, -v{P+2}
    v_max3_f32 v2, v2, v{P+3}, v{P+4}
    v_max3_f32 v3, v3, -v{P+3}, -v{P+4}
    v_max3_f32 v2, v2, v{P+5}, v{P+6}
    v_max3_f32 v3, v3, -v{P+5}, -v{P+6}
    v_max_f32 v2, v2, v{P+7}
    v_max_f32_e64 v3, v3, -v{P+7}
    v_permlane32_swap_b32 v2, v3
    v_max_f32 v2, v2, v3
    v_mul_f32_e64 v2, -v2, v{c}
    v_mov_b32 v3, v2
    v_permlane32_swap_b32 v2, v3
    """)
    for r in range(8): x(f"v_fma_f32 v{E+r}, -v{P+r}, v{c}, v3\nv_fma_f32 v{P+r}, v{P+r}, v{c}, v2")
    for r in range(8): x(f"v_exp_f32 v{E+r}, v{E+r}\nv_exp_f32 v{P+r}, v{P+r}")
    x(f"v_add_f32 v2, v{P}, v{P+1}\nv_add_f32 v3, v{E}, v{E+1}")
    for r in range(2, 8): x(f"v_add_f32 v2, v2, v{P+r}\nv_add_f32 v3, v3, v{E+r}")
    x("v_permlane32_swap_b32 v2, v3\nv_add_f32 v2, v2, v3\nv_rcp_f32 v2, v2\nv_mov_b32 v3, v2\nv_permlane32_swap_b32 v2, v3")
    for r in range(8): x(f"v_mul_f32 v{P+r}, v{P+r}, v2\nv_mul_f32 v{E+r}, v{E+r}, v3")
    for q in range(4): x(f"v_cvt_pk_bf16_f32 v{Pp+q}, v{P+2*q}, v{P+2*q+1}\nv_cvt_pk_bf16_f32 v{Pm+q}, v{E+2*q}, v{E+2*q+1}")
def ffn_epi(x, acc, s_tile, f, rh, so=9):
    a(f"s_lshl_b32 s{so}, s{s_tile}, 11\ns_add_u32 s{so}, s{so}, s{(74,64)[f]}")
    for r in range(16): x(f"v_add_f32_e64 v{acc+r}, v{acc+r}, |v{acc+r}|")
    for r in range(16): x(f"v_mul_f32 v{acc+r}, v{acc+r}, v{rh}")
    for r in range(16): x(f"v_mul_f32 v{acc+r}, v{acc+r}, v{acc+r}")
    for q in range(8): x(f"v_cvt_pk_bf16_f32 v{acc+q}, v{acc+2*q}, v{acc+2*q+1}")
    x(f"buffer_store_dwordx4 {V(acc)}, v26, {R(WS)}, s{so} offen {SC}", "H")
    x(f"buffer_store_dwordx4 {V(acc+4)}, v26, {R(WS)}, s{so} offen offset:1024 {SC}", "H")
def flag_store(soff):
    a(f"""
    v_mov_b32 v31, s75
    s_mov_b64 exec, 1
    buffer_store_dword v31, v19, {R(WS)}, {soff} offen {SC}
    s_mov_b64 exec, -1
    """)
WREG = 128; P2ACC = 64; WTMP = 48; TRA = 2
def p2_traddr(t=2, q=8):
    a(f"""
    v_lshrrev_b32 v{q}, 5, v1
    v_bfe_u32 v{q+1}, v1, 2, 2
    v_lshl_add_u32 v{q}, v{q}, 2, v{q+1}
    v_lshlrev_b32 v{q}, 7, v{q}
    v_and_b32 v{q+2}, 3, v1
    v_lshl_add_u32 v{q}, v{q+2}, 3, v{q}
    v_bfe_u32 v{q+2}, v1, 4, 1
    v_and_b32 v{q+1}, 2, v{q+1}
    v_or_b32 v{q+2}, v{q+2}, v{q+1}
    v_lshl_add_u32 v{t}, v{q+2}, 5, v{q}
    v_add_u32 v{t}, s69, v{t}
    v_xor_b32 v{t+1}, 64, v{t}
    v_add_u32 v{t+2}, 0x10000, v{t}
    v_add_u32 v{t+3}, 0x10000, v{t+1}
    v_add_u32 v{t+4}, 0x20000, v{t}
    v_add_u32 v{t+5}, 0x20000, v{t+1}
    """)
def p2_tr(x, dst, u, tag):
    pg = W2PG[u % 9]
    for b in range(2):
        for e in range(2):
            x(f"ds_read_b64_tr_b16 {V(dst+4*b+2*e,2)}, v{TRA+2*(pg>>2)+b} offset:{(pg&3)*PG+e*1024}", tag)
def hflag():
    a(f"""
    s_lshl_b32 s9, s4, 1
    s_add_u32 s9, s9, s7
    s_lshl_b32 s77, s9, 8
    s_lshl_b32 s10, s79, 2
    s_add_u32 s10, s10, s63
    s_lshl_b32 s10, s10, 2
    s_add_u32 s9, s77, s10
    s_add_u32 s9, s9, {HF}
    """)
    flag_store("s9")
def kvpoll(w, lab):
    a(f"s_cmp_eq_u32 s3, {w}\ns_cbranch_scc0 {L(lab)}")
    with a.skippable():
        a("s_mov_b32 s71, 0")
        a.label(L('pk'))
        a(f"""
        buffer_load_dwordx2 v[10:11], v8, {R(WS)}, s66 offen {SC}
        s_waitcnt vmcnt(0)
        v_cmp_ne_u32 vcc, s75, v10
        v_cmp_ne_u32 s[80:81], s75, v11
        s_or_b64 vcc, vcc, s[80:81]
        s_cmp_eq_u64 vcc, 0
        s_cbranch_scc1 {L('pk2')}
        s_add_u32 s71, s71, 1
        s_cmp_gt_u32 s71, {SPIN}
        s_cbranch_scc1 {L('pk2')}
        s_sleep {SLP}
        s_branch {L('pk')}
        """)
        a.label(L('pk2'))
        for q in range(9):
            a(f"s_mov_b32 m0, {q*1024}\ns_add_u32 s10, s72, {q*1024}\nbuffer_load_dwordx4 v26, {R(WS)}, s10 offen {SC} lds")
        a("s_waitcnt vmcnt(0)\nv_mov_b32 v10, s75\nds_write_b32 v19, v10 offset:12288")
    a.label(L(lab))
ACC = [32, 48, 64, 80]
T = 96; KP = 2*PG; XF = 128
a(f"s_cmp_eq_u32 s5, 0\ns_cbranch_scc0 {L('typeB')}")
a.qsave("br")
for p in range(4): dma(1, p)
for i in range(8): a(f"v_add_u32 v{112+i}, {2*SLOT}, v{8+i}")
a(f"v_add_u32 v17, {2*SLOT}, v16")
a("v_lshlrev_b32 v121, 2, v30\nv_sub_u32 v121, v29, v121\nv_mov_b32 v122, 0x3f80\nv_mov_b32 v123, 0x3f800000")
SEL, WPH, BX, RRA, RAW = 64, 72, 76, 84, 120
for k in range(8):
    sg = k >> 2; q = k & 3
    f0 = (2*q & 3) + 8*((2*q) >> 2) + 16*sg
    a(f"v_cmp_eq_u32 vcc, {f0}, v121\nv_cndmask_b32 v{SEL+k}, 0, v122, vcc\nv_cmp_eq_u32 vcc, {f0+1}, v121\nv_cndmask_b32 v{SEL+k}, v{SEL+k}, v123, vcc")
st(grp="P"); a.wv("C0"); st(grp="P"); a("s_barrier"); st(grp="P")
st(grp="A")
def rdA(p):
    i = p & 3; b = 96 + 8*(p & 1); c = p >> 2; sl = c % 3
    ab = 8 if sl < 2 else 112; so = SLOT if sl == 1 else 0
    a(f"ds_read_b128 {V(XF+4*p)}, v{ab+i} offset:{so}", f"P{p}")
    for e in range(2): a(f"ds_read_b64_tr_b16 {V(b+4+2*e,2)}, v{16 if sl < 2 else 17} offset:{so+i*2048+e*512}", f"P{p}")
    a(f"ds_read_b128 {V(b)}, v{ab+4+i} offset:{so}", f"P{p}")
rdA(0)
for p in range(32):
    c = p >> 2; i = p & 3
    a.wl(f"P{p}")
    if i == 3 and c < 7:
        a.wv(f"C{c+1}")
        if p == 23: side_poll_wait("A", False)
        a("s_barrier"); st(grp="A")
    if p+1 < 32: rdA(p+1)
    b = 96 + 8*(p & 1)
    a(f"{MF} {V(ACC[0],16)}, {V(b+4)}, {V(XF+4*p)}, {V(ACC[0],16) if p else 0}")
    if p < 2: dma(2, 2*p); dma(2, 2*p+1)
    elif p >= 3:
        cc = ((p-3) >> 2) + 3
        if cc <= 7: dma(cc, (p-3) & 3)
    a(f"{MF} {V(ACC[1],16)}, {V(b+4)}, {V(b)}, {V(ACC[1],16) if p else 0}")
    side_touch("A", p, 94, 95)
    if p == 0: side_wphi_dma("A")
    if p == 3: side_flags("A", 90)
    if p == 8:
        for e in range(2): a(f"ds_read_b64_tr_b16 {V(WPH+2*e,2)}, v21 offset:{e*256}", f"P{p+1}")
    if p == 17: side_poll_issue("A")
    if p == 23: side_poll_check("A", RAW, 92, "P24")
    if p == 24: side_p2(90)
    if AW == 0:
        if p in (24, 25, 26): p2_dma(a, p-24, "D1")
        if p == 28: p2_dma(a, 3, "D1")
    if AW == 2 and p in (27, 28):
        a(f"s_add_u32 m0, s70, {3*PG + (p-27)*8192}")
        a(f"buffer_load_dwordx4 v6, {R(W1)}, s73 offen lds", "I2")
        a(f"s_add_u32 s73, s73, {64*3584}")
st(); st(grp="B")
a.wv("ST"); a("s_barrier")
side_csred("A", 96, 92)
side_bext(RAW, BX, RRA, 92)
a("v_mov_b32 v95, v6")
a("s_waitcnt lgkmcnt(0)\ns_barrier")
st(grp="B")
a(f"""
ds_read_b32 v120, v23
ds_read_b32 v4, v24
v_cmp_gt_u32 vcc, 32, v1
v_lshl_or_b32 v28, v28, 16, v28
v_cndmask_b32 v6, 0, v28, vcc
v_cmp_eq_u32 s[80:81], 16, v29
v_cndmask_b32 v27, 0, v22, s[80:81]
v_mov_b32 v122, 0
v_mov_b32 v123, 0
v_mov_b32 v7, 0
s_waitcnt lgkmcnt(0)
v_cndmask_b32 v120, 0, v120, vcc
v_cndmask_b32 v4, 0, v4, vcc
v_mov_b32 v121, v120
v_mov_b32 v5, v4
{MF} {V(ACC[0],16)}, v[120:123], {V(BX)}, {V(ACC[0],16)}
{MF} {V(ACC[1],16)}, v[120:123], {V(BX+4)}, {V(ACC[1],16)}
""")
KVA = 8
a("v_mov_b32 v90, v18\nv_mov_b32 v91, v20")
E = a.sub(); D = a.sub()
for f in range(2):
    acc = ACC[f]; rr = RRA+3*f
    for q in range(4): E(f"v_cvt_pk_bf16_f32 v{120+q}, v{acc+2*q}, v{acc+2*q+1}")
    E(f"{MF} {V(T,16)}, {V(WPH)}, v[120:123], 0")
    for r in range(8, 16): E(f"v_mul_f32 v{acc+r}, v{acc+r}, v{rr}")
    for q in range(4): E(f"v_cvt_pk_bf16_f32 v{120+q}, v{acc+8+2*q}, v{acc+9+2*q}")
    E(f"{MF} {V(acc,16)}, v[120:123], {V(SEL)}, 0")
    softmax(E, T, 120, 124, rr+1)
    E(f"{MF} {V(T,16)}, v[120:123], {V(SEL)}, 0")
    E(f"{MF} {V(T,16)}, v[124:127], {V(SEL+4)}, {V(T,16)}")
    for q in range(8): E(f"v_cvt_pk_bf16_f32 v{112+q}, v{acc+2*q}, v{acc+2*q+1}\nv_or_b32 v{112+q}, v{112+q}, v27")
    for q in range(8): E(f"v_cvt_pk_bf16_f32 v{T+q}, v{T+2*q}, v{T+2*q+1}")
    E(f"{MF} {V(KVA,16)}, {V(T)}, v[112:115], {V(KVA,16) if f else 0}")
    E(f"{MF} {V(KVA,16)}, {V(T+4)}, v[116:119], {V(KVA,16)}")
for c in range(2 if AW == 2 else 0, 8):
    D(f"s_add_u32 m0, s70, {3*PG + c*8192}")
    D(f"buffer_load_dwordx4 v95, {R(W1)}, s73 offen lds", "I2")
    D(f"s_add_u32 s73, s73, {64*3584}")
if AW:
    D2s = a.sub()
    for u in range(4): p2_dma(D2s, u, "D1")
    for it in D2s.items:
        if hasattr(it, "text"):
            D(it.text.replace("v18", "v90"), it.tag)
nE = len(E.items)*env("EFR", 6)//10
E1 = a.sub(); E1.items = E.items[:nE]; E2 = a.sub(); E2.items = E.items[nE:]
a.merge(E1, D); a.extend(E2)
st(grp="B")
a(f"""
s_lshl_b32 s9, s63, 12
s_lshl_b32 s10, s7, 11
s_add_u32 s9, s9, s10
s_add_u32 s9, s9, {KP}
v_add_u32 v92, s9, v26
v_xor_b32 v93, 0x800, v92
v_mul_u32_u24 v94, 17, v30
v_add_u32 v94, v94, v29
v_lshlrev_b32 v94, 2, v94
s_mul_i32 s10, s63, 2176
s_mul_i32 s11, s7, {8*136}
s_add_u32 s10, s10, s11
s_add_u32 s10, s10, s72
v_cmp_gt_u32 s[80:81], 17, v29
s_cmp_eq_u32 s7, 0
s_cbranch_scc1 {L('kv0')}
""")
with a.skippable():
    for q in range(2): a(f"ds_write_b128 v92, {V(KVA+4*q)} offset:{q*1024}")
    for r in range(8): a(f"v_mov_b32 v{KVA+r}, v{KVA+8+r}")
    a(f"s_branch {L('kv1')}")
a.label(L('kv0'))
with a.skippable():
    for q in range(2): a(f"ds_write_b128 v92, {V(KVA+8+4*q)} offset:{q*1024}")
a.label(L('kv1'))
if not env("SEP", 0): a.wv("I2")
a("s_waitcnt lgkmcnt(0)\ns_barrier")
for q in range(2): a(f"ds_read_b128 {V(T+4*q)}, v93 offset:{q*1024}")
a(f"v_mov_b32 v18, v90\nv_mov_b32 v19, 0\nv_add_u32 v20, {3*PG}, v91")
a("s_waitcnt lgkmcnt(0)")
for r in range(8): a(f"v_add_f32 v{KVA+r}, v{KVA+r}, v{T+r}")
a("s_mov_b64 exec, s[80:81]")
for r in range(8): a(f"buffer_atomic_add_f32 v{KVA+r}, v94, {R(WS)}, s10 offen offset:{r*136}", "AT")
a("s_mov_b64 exec, -1")
st(grp="B")
if env("SEP", 0): a.wv("I2"); a("s_barrier")
A2 = 32
def rd2(k):
    b = 48 + 4*(k % 4)
    for e in range(2): a(f"ds_read_b64_tr_b16 {V(b+2*e,2)}, v20 offset:{k*2048+e*512}", f"B{k}")
a(f"{MF} {V(A2,16)}, v[4:7], {V(BX)}, 0")
rd2(0); rd2(1); rd2(2)
K1 = env("K1", 0); K2 = env("K2", 17)
TRA = 96
if K1: p2_traddr(96, 104)
a(f"s_add_u32 s81, s61, {5*16384}\ns_sub_u32 s9, s81, {14*16384}\ns_cmp_ge_u32 s81, s83\ns_cselect_b32 s81, s9, s81")
for k in range(32):
    if k+3 < 32: rd2(k+3)
    a.wl(f"B{k}")
    a(f"{MF} {V(A2,16)}, {V(48+4*(k%4))}, {V(XF+4*k)}, {V(A2,16)}")
    if K1 and k == K1:
        for u in range(4): p2_tr(a, WREG+8*u, u, f"B{k+4}")
    if K1 and K1+4 <= k < K1+8: p2_dma2(a, 9+k-K1-4, "D2")
    if K1 and k == K2: a("s_barrier")
    if K1 and k in (K2+5, K2+7, K2+9): p2_dma(a, 4+(k-K2-5)//2, "D1")
    if k == env("KVK", 20):
        a.wv("AT")
        a(f"""
        s_lshl_b32 s9, s6, 9
        s_lshl_b32 s10, s4, 5
        s_add_u32 s9, s9, s10
        s_lshl_b32 s10, s3, 2
        s_add_u32 s9, s9, s10
        s_add_u32 s9, s9, {KVF}
        """)
        flag_store("s9")
        st(grp="B")
ffn_epi(a, A2, 67, 0, RRA+2)
st()
TRA = 2
p2_traddr()
if K1:
    a("s_barrier")
    for u in range(7, 9): p2_dma(a, u, "D1x")
    a.wv("H")
    hflag()
    st()
    for u in range(4, 7): p2_tr(a, WREG+8*u, u, "W1")
    a("s_barrier")
    a.wl("W1")
    for u in range(13, 16): p2_dma2(a, u, "D2")
    a.wv("D1x")
    for u in range(7, 9): p2_tr(a, WREG+8*u, u, "W1")
    a.wl("W1")
    for u in range(16, 18): p2_dma2(a, u, "D2")
else:
    AT2 = env("AT2", 0)
    for u in range(4): p2_tr(a, WREG+8*u, u, "W1")
    if AT2 == 2:
        a.wl("W1")
        for u in range(9, 13): p2_dma2(a, u, "D2")
    a("s_barrier")
    for u in range(4, 6): p2_dma(a, u, "D1")
    a.wv("H")
    hflag()
    st()
    if AT2 == 0: a("s_barrier")
    for u in range(6, 9): p2_dma(a, u, "D1")
    a.wl("W1")
    if AT2 != 2:
        for u in range(9, 13): p2_dma2(a, u, "D2")
    a.wv("D1")
    for u in range(4, 9): p2_tr(a, WREG+8*u, u, "W1")
    a.wl("W1")
    for u in range(13, 18): p2_dma2(a, u, "D2")
a(f"s_branch {L('tail')}")
a.label(L('typeB'))
a.qload("br")
for p in range(6): dma(1, p)
for i in range(10): a(f"v_add_u32 v{160+i}, {2*SLOT}, v{8+i}")
a("s_cmp_eq_u32 s8, 0\ns_cselect_b64 s[80:81], -1, 0\ns_mov_b64 vcc, s[80:81]")
st(5, grp="P"); a.wv("C0"); st(grp="P"); a("s_barrier"); st(grp="P")
st(1, grp="A")
def rdB(p):
    i = p & 3; b = 96 + 16*(p & 1); c = p >> 2; sl = c % 3
    ab = 8 if sl < 2 else 160; so = SLOT if sl == 1 else 0
    a(f"ds_read_b128 {V(b)}, v{ab+i} offset:{so}", f"P{p}")
    for e in range(2): a(f"ds_read_b64_tr_b16 {V(b+8+2*e,2)}, v{ab+8} offset:{so+i*2048+e*512}", f"P{p}")
    a(f"ds_read_b128 {V(b+4)}, v{ab+4+i} offset:{so}", f"P{p}")
    for e in range(2): a(f"ds_read_b64_tr_b16 {V(b+12+2*e,2)}, v{ab+9} offset:{so+i*2048+e*512}", f"P{p}")
rdB(0)
WPB, BXB, RRB, RAWB = 200, 208, 220, 232
for p in range(32):
    c = p >> 2; i = p & 3
    a.wl(f"P{p}")
    if i == 3 and c < 7:
        a.wv(f"C{c+1}")
        if p == 19: side_poll_wait("B", True)
        a("s_barrier"); st(grp="A")
    if p+1 < 32: rdB(p+1)
    b = 96 + 16*(p & 1)
    a(f"{MF} {V(ACC[0],16)}, {V(b+8)}, {V(b)}, {V(ACC[0],16) if p else 0}")
    a(f"{MF} {V(ACC[1],16)}, {V(b+8)}, {V(b+4)}, {V(ACC[1],16) if p else 0}")
    if p < 3: dma(2, 2*p); dma(2, 2*p+1)
    else:
        cc = ((p-3) >> 2) + 3; q = (p-3) & 3
        if cc <= 7:
            for piece in ((0,1),(2,3),(4,),(5,))[q]: dma(cc, piece)
    a(f"{MF} {V(ACC[2],16)}, {V(b+12)}, {V(b)}, {V(ACC[2],16) if p else 0}")
    a(f"s_cbranch_vccz {L(f'm4_{p}')}")
    with a.skippable():
        a(f"{MF} {V(ACC[3],16)}, {V(b+12)}, {V(b+4)}, {V(ACC[3],16) if p else 0}")
    a.label(L(f"m4_{p}"))
    side_touch("B", p, 250, 251)
    if p == 0: side_wphi_dma("B")
    if p == 3: side_flags("B", 240)
    if p == 8:
        for h in range(2):
            for e in range(2): a(f"ds_read_b64_tr_b16 {V(WPB+4*h+2*e,2)}, v21 offset:{h*512+e*256}", f"P{p+1}")
    if p == 13: side_poll_issue("B")
    if p == 19: side_poll_check("B", RAWB, 240, "P20")
    if p == 26: a.wv("ST")
    if p == 28: side_csred("B", 144, 240)
    if p == 29: side_bext(RAWB, BXB, RRB, 240)
    if p == 22: side_p2(240)
    if p in (23, 24, 25): p2_dma(a, p-23, "D1a")
    if p in (27, 29, 30): p2_dma(a, {27:3, 29:4, 30:5}[p], "D1b")
st(2)
a("s_waitcnt lgkmcnt(0)\ns_barrier")
a(f"""
ds_read_b32 v216, v23
ds_read_b32 v240, v24
v_cmp_gt_u32 vcc, 32, v1
v_lshl_or_b32 v27, v27, 16, v27
v_lshl_or_b32 v28, v28, 16, v28
s_and_b64 s[80:81], s[80:81], vcc
v_cndmask_b32 v218, 0, v27, s[80:81]
v_cndmask_b32 v242, 0, v28, vcc
v_mov_b32 v219, 0
v_mov_b32 v243, 0
s_waitcnt lgkmcnt(0)
v_cndmask_b32 v216, 0, v216, vcc
v_cndmask_b32 v240, 0, v240, vcc
v_mov_b32 v217, v216
v_mov_b32 v241, v240
{MF} {V(ACC[0],16)}, v[216:219], {V(BXB)}, {V(ACC[0],16)}
{MF} {V(ACC[1],16)}, v[216:219], {V(BXB+4)}, {V(ACC[1],16)}
{MF} {V(ACC[2],16)}, v[240:243], {V(BXB)}, {V(ACC[2],16)}
{MF} {V(ACC[3],16)}, v[240:243], {V(BXB+4)}, {V(ACC[3],16)}
""")
for u in range(6, 9): p2_dma(a, u, "D1c")
TRA = 12
p2_traddr(12)
def w2step(k):
    if k == 0:
        a.wv("D1a")
        for u in range(0, 3): p2_tr(a, WREG+8*u, u, "W1")
    elif k == 1:
        a.wl("W1")
        for u in range(9, 12): p2_dma(a, u, "D2")
        a.wv("D1b")
        for u in range(3, 6): p2_tr(a, WREG+8*u, u, "W1")
    elif k == 2:
        a.wl("W1")
        for u in range(12, 15): p2_dma(a, u, "D2")
        a.wv("D1c")
        for u in range(6, 9): p2_tr(a, WREG+8*u, u, "W1")
    elif k == 3:
        a.wl("W1")
        for u in range(15, 18): p2_dma(a, u, "D2")
a(f"s_cmp_eq_u32 s8, 0\ns_cbranch_scc0 {L('Bq')}")
a.qsave("bq")
ffn_epi(a, ACC[0], 66, 0, RRB+2)
ffn_epi(a, ACC[1], 66, 1, RRB+5)
ffn_epi(a, ACC[2], 67, 0, RRB+2)
ffn_epi(a, ACC[3], 67, 1, RRB+5)
st(3)
a.wv("D1c")
for u in range(9): p2_tr(a, WREG+8*u, u, "W1")
a.wv("H")
hflag()
a("s_mov_b32 s81, s61\ns_lshl_b32 s9, s3, 2\nv_mov_b32 v11, s9")
a.wl("W1")
for u in range(9, 18): p2_dma(a, u, "D2")
lds_wait("pw", 12304)
for u in range(9, 18): p2_dma_partner(a, u, "D2")
a("s_waitcnt vmcnt(0)\nv_mov_b32 v10, s75\nds_write_b32 v11, v10 offset:12320")
st(4)
a(f"s_branch {L('tailB')}")
a.label(L('Bq'))
a.qload("bq")
stor = {(0,0): (80, 84), (0,1): (88, 92), (1,0): (232, 236), (1,1): (240, 244)}
a(f"s_add_u32 s9, s65, 112\ns_lshl_b32 s9, s9, 10\ns_add_u32 s10, s9, s64\ns_add_u32 s9, s9, s74")
a("v_mov_b32 v4, -1\nv_mov_b32 v5, -1\nv_mov_b32 v6, -1\nv_mov_b32 v7, -1")
for f in range(2):
    for h in range(2): a(f"buffer_store_dwordx4 v[4:7], v26, {R(WS)}, {('s9','s10')[f]} offen offset:{h*1024} {SC}")
ffn_epi(a, ACC[2], 67, 0, RRB+2)
a(f"v_lshlrev_b32 v8, 3, v1\ns_lshl_b32 s66, s6, 9\ns_add_u32 s66, s66, {KVF}\ns_mul_i32 s11, s78, 4352")
for f in range(2):
    acc = ACC[f]
    for q in range(8): a(f"v_cvt_pk_bf16_f32 v{acc+q}, v{acc+2*q}, v{acc+2*q+1}")
    for h in range(2):
        a(f"{MF} {V(T,16)}, {V(WPB+4*h)}, {V(acc+4*h)}, 0")
        if 2*f+h == TRP:
            a.wv("H"); hflag()
            for u in range(9): p2_tr(a, WREG+8*u, u, "W1")
        if 2*f+h == TRP+1:
            a.wl("W1")
            a("s_lshl_b32 s9, s3, 2\nv_mov_b32 v9, s9\nv_mov_b32 v10, s75\nds_write_b32 v9, v10 offset:12288")
        softmax(a, T, stor[(f,h)][0], stor[(f,h)][1], RRB+1+3*f)
st(3)
a(f"""
v_min_u32 v9, 16, v29
v_mul_u32_u24 v10, 17, v30
v_add_u32 v9, v9, v10
v_lshlrev_b32 v9, 2, v9
v_add_u32 v9, s11, v9
""")
kvpoll(4, 'nopk')
a("s_mov_b32 s71, 0")
a.label(L('lf1'))
a(f"""
ds_read_b32 v10, v19 offset:12288
s_waitcnt lgkmcnt(0)
v_readfirstlane_b32 s9, v10
s_add_u32 s71, s71, 1
s_cmp_gt_u32 s71, {SPIN*8}
s_cbranch_scc1 {L('lf2')}
s_cmp_eq_u32 s9, s75
s_cbranch_scc1 {L('lf2')}
s_sleep 1
s_branch {L('lf1')}
""")
a.label(L('lf2'))
for h in range(2):
    for r in range(16): a(f"ds_read_b32 v{32+16*h+r}, v9 offset:{h*2176+r*136}", f"K{h}")
a(f"s_add_u32 s9, s65, 112\ns_lshl_b32 s9, s9, 10\ns_add_u32 s10, s9, s64\ns_add_u32 s9, s9, s74")
for h in range(2):
    kb = 32+16*h
    a.wl(f"K{h}")
    for q in range(8): a(f"v_cvt_pk_bf16_f32 v{kb+q}, v{kb+2*q}, v{kb+2*q+1}")
    for f in range(2):
        Tt = 96+16*f
        a(f"{MF} {V(Tt,16)}, {V(kb)}, {V(stor[(f,h)][0])}, 0")
        a(f"{MF} {V(Tt,16)}, {V(kb+4)}, {V(stor[(f,h)][1])}, {V(Tt,16)}")
    for f in range(2):
        Tt = 96+16*f; o = kb+8+4*f
        a(f"v_add_f32 v8, 0x358637bd, v{Tt+8}\nv_rcp_f32 v8, v8")
        for r in range(8): a(f"v_mul_f32 v{Tt+r}, v{Tt+r}, v8")
        for q in range(4): a(f"v_cvt_pk_bf16_f32 v{o+q}, v{Tt+2*q}, v{Tt+2*q+1}")
        a(f"buffer_store_dwordx4 {V(o)}, v26, {R(WS)}, {('s9','s10')[f]} offen offset:{h*1024} {SC}", "O")
st()
a("s_lshl_b32 s9, s3, 2\nv_mov_b32 v11, s9")
lds_wait("r2w", 12320-16)
a.label(L('tailB'))
for i in range(6): a(f"v_mov_b32 v{2+i}, v{12+i}")
TRA = 2
a.label(L('tail'))
a(f"""
s_mul_i32 s64, s82, {2*AF_TG}
s_mul_i32 s65, s3, {14*1024}
s_add_u32 s65, s65, s64
s_lshl_b32 s66, s3, 12
s_add_u32 s66, s66, s64
s_add_u32 s66, s66, {112*1024}
s_add_u32 s67, s66, {AF_TG}
s_lshl_b32 s9, s82, 8
s_add_u32 s72, s9, {HF}
s_add_u32 s73, s9, {OF}
v_lshlrev_b32 v0, 4, v1
v_lshlrev_b32 v8, 2, v1
""")
st(5)
a(f"s_cmp_eq_u32 s3, 0\ns_cbranch_scc0 {L('phok')}")
with a.skippable():
    a("s_mov_b32 s79, 0")
    a.label(L('ph'))
    a(f"""
    buffer_load_dword v10, v8, {R(WS)}, s72 offen {SC}
    s_waitcnt vmcnt(0)
    v_cmp_ne_u32 vcc, s75, v10
    s_cmp_eq_u64 vcc, 0
    s_cbranch_scc1 {L('phok')}
    s_add_u32 s79, s79, 1
    s_cmp_gt_u32 s79, {SPIN}
    s_cbranch_scc1 {L('phok')}
    s_sleep {SLP}
    s_branch {L('ph')}
    """)
if env("DEC", 0):
    a.label(L('phok2')) if False else None
a.label(L('phok'))
if env("DEC", 0):
    a(f"s_cmp_eq_u32 s3, 0\ns_cbranch_scc0 {L('hw0')}")
    with a.skippable():
        a("v_mov_b32 v10, s75\nds_write_b32 v19, v10 offset:12352")
    a.label(L('hw0'))
    a("v_mov_b32 v11, 0")
    lds_wait("hw", 12352)
else:
    a("s_barrier")
st(); st(1, grp="T")
abuf = [200+8*i for i in range(7)] + [16+8*i for i in range(4)]
NA = 11
a(f"""
s_mov_b32 s60, s65
s_add_u32 s83, s65, {14*1024}
s_lshl_b32 s9, s76, 10
s_add_u32 s65, s65, s9
""")
def aload(u):
    r = abuf[u % NA]
    if u < 14:
        a(f"s_add_u32 s71, s65, {AF_TG}")
        a(f"buffer_load_dwordx4 {V(r)}, v0, {R(WS)}, s65 offen {ASC}", f"A{u}")
        a(f"buffer_load_dwordx4 {V(r+4)}, v0, {R(WS)}, s71 offen {ASC}", f"A{u}")
        a("s_add_u32 s65, s65, 1024\ns_cmp_eq_u32 s65, s83\ns_cselect_b32 s65, s60, s65")
    else:
        for tb in range(2):
            a(f"buffer_load_dwordx4 {V(r+4*tb)}, v0, {R(WS)}, s{(66,67)[tb]} offen offset:{(u-14)*1024} {SC}", f"A{u}")
NW = env("NW", 11)
OCK = min(OCK, 14-NW) if NW < 11 else OCK
FOP = max(0, OCK - 2)
for u in range(NW):
    aload(u)
def mfmas(u, w):
    r = abuf[u % NA]
    for tb in range(2):
        for nb in range(2):
            d = P2ACC + 16*(2*tb+nb)
            a(f"{MF} {V(d,16)}, {V(w+4*nb)}, {V(r+4*tb)}, {V(d,16) if u else 0}")
a(f"""
v_lshrrev_b32 v12, 3, v1
v_lshlrev_b32 v12, 10, v12
v_and_b32 v13, 7, v1
v_lshlrev_b32 v13, 4, v13
v_add_u32 v12, v12, v13
s_lshl_b32 s74, s82, 16
s_lshl_b32 s9, s3, 13
s_add_u32 s74, s74, s9
s_add_u32 s74, s74, s62
""")
for u in range(18):
    if u == 8: p2_tr(a, WTMP, 9, "T9")
    if 9 <= u < 17: p2_tr(a, WTMP + 8*((u-8)&1), u+1, f"T{u+1}")
    if u >= 9: a.wl(f"T{u}")
    a.wv(f"A{u}")
    if u in (0, 7, 14): st(grp="T")
    if u >= 14:
        r = abuf[u % NA]
        a("s_mov_b32 s79, 0")
        a.label(L(f'oc{u}'))
        a(f"""
        v_cmp_eq_u32 vcc, -1, v{r}
        v_cmp_eq_u32 s[80:81], -1, v{r+4}
        s_or_b64 vcc, vcc, s[80:81]
        s_cmp_eq_u64 vcc, 0
        s_cbranch_scc1 {L(f'ok{u}')}
        s_add_u32 s79, s79, 1
        s_cmp_gt_u32 s79, {SPIN}
        s_cbranch_scc1 {L(f'ok{u}')}
        """)
        with a.skippable():
            a("s_sleep 8")
            for tb in range(2):
                a(f"buffer_load_dwordx4 {V(r+4*tb)}, v0, {R(WS)}, s{(66,67)[tb]} offen offset:{(u-14)*1024} {SC}")
            a(f"s_waitcnt vmcnt(0)\ns_branch {L(f'oc{u}')}")
        a.label(L(f'ok{u}'))
    mfmas(u, WREG+8*u if u < 9 else WTMP+8*((u-9)&1))
    if NW == 11:
        if u < 3: aload(u+NA)
    else:
        if u+NW < 14: aload(u+NW)
        if u+NW == OCK+0: a(f"buffer_load_dword v10, v8, {R(WS)}, s73 offen {SC}", f"A{OCK}")
        if u > OCK and u+NW < 18: aload(u+NW)  if u+NW >= 14 else None
    if u == 3:
        a(f"buffer_load_dwordx4 v[128:131], v12, {R(X)}, s74 offen", "X")
        a(f"buffer_load_dwordx4 v[132:135], v13, {R(B2)}, s62 offen", "X")
    if u == OCK:
        for uu in range(14, 18): aload(uu)
    if u == 15 and env("CLR", 1) == 1:
        a(f"s_or_b32 s9, s2, s3\ns_cmp_eq_u32 s9, 0\ns_cbranch_scc0 {L('noclr1')}")
        with a.skippable():
            a(f"v_mov_b32 v8, 0\ns_mov_b64 exec, 1\nbuffer_store_dword v8, v8, {R(DBG)}, 0 offen {SC}\ns_mov_b64 exec, -1")
        a.label(L('noclr1'))
st(); st(grp="T")
a(f"""
v_bfe_u32 v8, v1, 3, 2
v_lshlrev_b32 v8, 14, v8
v_and_b32 v9, 7, v1
v_lshl_add_u32 v8, v9, 8, v8
v_lshrrev_b32 v10, 5, v1
v_xor_b32 v10, v10, v9
v_lshl_add_u32 v8, v10, 4, v8
s_add_u32 s9, s69, {PG}
v_add_u32 v8, s9, v8
v_xor_b32 v9, 32, v8
v_xor_b32 v10, 64, v8
v_xor_b32 v11, 96, v8
v_add_u32 v2, 0x10000, v8
v_add_u32 v3, 0x10000, v9
v_add_u32 v4, 0x10000, v10
v_add_u32 v5, 0x10000, v11
""")
for tb in range(2):
    for nb in range(2):
        for qq in range(4):
            d = P2ACC + 16*(2*tb+nb) + 4*qq
            a(f"ds_write_b128 v{(8,2)[tb]+qq}, {V(d)} offset:{nb*128}")
a("""
v_lshrrev_b32 v6, 3, v1
v_and_b32 v7, 7, v1
v_lshlrev_b32 v7, 1, v7
v_xor_b32 v7, v7, v6
v_lshlrev_b32 v6, 8, v6
v_lshl_add_u32 v6, v7, 4, v6
s_lshl_b32 s9, s3, 14
s_add_u32 s9, s9, 16384
v_add_u32 v6, s9, v6
v_xor_b32 v7, 16, v6
s_waitcnt lgkmcnt(0)
""")
st(grp="T"); a("s_barrier"); st(grp="T")
RR = 160
for w in range(8):
    for e in range(2):
        a(f"ds_read_b128 {V(RR+8*w+4*e)}, v{6+e} offset:{w*2048}", f"R{w}")
a.wv("X")
for i in range(4):
    a(f"v_lshlrev_b32 v{24+2*i}, 16, v{128+i}\nv_and_b32 v{25+2*i}, 0xffff0000, v{128+i}")
    a(f"v_lshlrev_b32 v{32+2*i}, 16, v{132+i}\nv_and_b32 v{33+2*i}, 0xffff0000, v{132+i}")
for i in range(8): a(f"v_add_f32 v{24+i}, v{24+i}, v{32+i}")
for w in range(8):
    a.wl(f"R{w}")
    for i in range(8): a(f"v_add_f32 v{24+i}, v{24+i}, v{RR+8*w+i}")
for i in range(4): a(f"v_cvt_pk_bf16_f32 v{32+i}, v{24+2*i}, v{25+2*i}")
a(f"buffer_store_dwordx4 v[32:35], v12, {R(OUT)}, s74 offen {os.environ.get('OSC','')}")
st(grp="T")
if INSTR:
    a("s_waitcnt vmcnt(0)"); st()
    nst[0] = 9
    a(f"s_waitcnt lgkmcnt(0)\ns_lshl_b32 s9, s2, 3\ns_add_u32 s9, s9, s3\ns_lshl_b32 s9, s9, 6\ns_add_u32 s9, s9, {STAMPS}")
    a("v_mov_b32 v0, 0\ns_mov_b64 exec, 1")
    for i in range(nst[0]):
        a(f"v_mov_b32 v1, s{84+2*i}\nbuffer_store_dword v1, v0, {R(WS)}, s9 offen offset:{4*i}\ns_nop 1")
a.label(L('end')); a("s_endpgm")
desc = f""".section .rodata,"a"
.p2align 6
.amdhsa_kernel {NAME}
  .amdhsa_next_free_vgpr 256
  .amdhsa_next_free_sgpr 102
  .amdhsa_accum_offset 256
  .amdhsa_group_segment_fixed_size 0
  .amdhsa_kernarg_size 96
  .amdhsa_user_sgpr_count 2
  .amdhsa_user_sgpr_kernarg_segment_ptr 1
  .amdhsa_system_sgpr_workgroup_id_x 1
  .amdhsa_float_denorm_mode_32 3
.end_amdhsa_kernel
"""
if __name__ == "__main__":
    open(sys.argv[1], "w").write("; @launch grid=(256,1,1) block=(512,1,1) lds=163840\n" + a.finish() + desc)
    print("stamps:", nst[0], "STAMPS", STAMPS)
```

```python
import sys, os
sys.path.insert(0, "work")
from asmlib import Asm
EXP = os.environ.get("EXP", "").split(",")
INSTR = "instr" in sys.argv
STG = os.environ.get("STG", "main")
def env(n, d): return int(os.environ.get(n, str(d)))
NAME = "parallel_sum__linear_kernel_hedgehog__dense_activation_squared_relu__prompt_kernel"
SZ = dict(x=2048*512*2, wqkv=512*1536*2, wphi=32*16*16*2, wo=512*512*2, w1=512*1792*2, b1=1792*2, w2=1792*512*2, b2=512*2, out=2048*512*2, dbg=256)
KSLOT = dict(x=0, wqkv=1, wphi=2, wo=3, w1=5, b1=6, w2=7, b2=8, out=9, dbg=10, ws=11)
AF_TG = 144*1024
KVACC = 64*AF_TG; KV_J = 9216
KVF = KVACC + 8*KV_J
HF = KVF + 8*512
OF = HF + 32*256
EFS = OF + 32*256
EFC = EFS + 16*128
CSP = EFC + 16*128
STAT = CSP + 16*14336
STAMPS = STAT + 2048*16
WS_END = STAMPS + 256*8*64
SZ["ws"] = WS_END
LOG2E = "0x3fb8aa3b"
SLOT = 49152; PG = 16384; RB = PG
SPIN = 60000
FLA = env("FLA", 18); FLC = env("FLC", 23); KPW = env("KPW", 4); FLB = env("FLB", 14); OCK = env("OCK", 6 if env("NW", 11) == 11 else 14-env("NW", 11)); AW = env("AW", 0); TRP = env("TRP", 1); NE = env("NE", 4); NB = env("NB", 8)
SC = "sc1"
ASC = os.environ.get("ASC", "sc1")
SLP = env("SLP", 8)
X, WQ, W1, WS, DBG, WPHI, B1, I1, W2, WO, B2, OUT = 12, 16, 20, 24, 28, 32, 36, 40, 44, 48, 52, 56
def R(s): return f"s[{s}:{s+3}]"
def V(b, n=4): return f"v[{b}:{b+n-1}]"
MF = "v_mfma_f32_32x32x16_bf16"
a = Asm()
nst = [0]
def st(i=None, grp="main"):
    if not INSTR or grp != STG: return
    if i is not None: nst[0] = i
    a(f"s_memrealtime s[{84+2*nst[0]}:{85+2*nst[0]}]"); nst[0] += 1
def L(n): return f"L_{n}"
def fin(x, n, s): x(f"s_mov_b32 s{s+2}, {SZ[n]}\ns_mov_b32 s{s+3}, 0x20000")

a.raw('.amdgcn_target "amdgcn-amd-amdhsa--gfx950"\n.text')
a.raw(f".globl {NAME}\n.p2align 8\n.type {NAME},@function\n{NAME}:")
a(f"s_cmp_ge_u32 s2, 256\ns_cbranch_scc1 {L('end')}")
st(grp=STG)
names = (("x",X),("wqkv",WQ),("w1",W1),("ws",WS),("dbg",DBG),("wphi",WPHI),("b1",B1),("w2",W2),("wo",WO),("b2",B2),("out",OUT))
for n, s in names: a(f"s_load_dwordx2 s[{s}:{s+1}], s[0:1], {KSLOT[n]*8}")
a(f"""
v_and_b32 v1, 63, v0
v_lshrrev_b32 v2, 6, v0
v_readfirstlane_b32 s3, v2
s_bfe_u32 s4, s2, 0x30003
s_bfe_u32 s9, s2, 0x10002
s_lshl_b32 s9, s9, 3
s_add_u32 s4, s4, s9                ; m
s_lshr_b32 s5, s2, 7                ; type
s_and_b32 s6, s2, 3
s_lshl_b32 s6, s6, 1
s_bfe_u32 s10, s2, 0x10006
s_add_u32 s6, s6, s10               ; j
v_lshrrev_b32 v9, 3, v1
v_and_b32 v10, 7, v1
v_lshrrev_b32 v11, 4, v1
v_xor_b32 v12, v10, v11
v_lshlrev_b32 v13, 10, v9
v_lshl_add_u32 v2, v12, 4, v13
v_xor_b32 v3, 0x2040, v2
v_and_b32 v11, 1, v11
v_lshlrev_b32 v11, 6, v11
v_lshlrev_b32 v12, 4, v10
v_xor_b32 v12, v12, v11
v_mul_u32_u24 v13, 3072, v9
v_add_u32 v4, v13, v12
v_mul_u32_u24 v13, 3584, v9
v_add_u32 v6, v13, v12
v_xor_b32 v14, 32, v4
s_and_b32 s9, s2, 3
s_mul_i32 s9, s9, 5
s_add_u32 s9, s9, 8
s_mul_i32 s11, s10, 3
s_add_u32 s66, s9, s11              ; I1 block (B)
s_add_u32 s67, s66, 1
s_add_u32 s68, s9, 2                ; I3 block
s_lshl_b32 s61, s6, 7
s_add_u32 s62, s61, 2048
s_lshl_b32 s77, s66, 7
s_add_u32 s78, s61, 1024
s_movk_i32 s63, 3584
s_cmp_eq_u32 s5, 0
s_cselect_b64 vcc, -1, 0
s_cselect_b32 s61, s78, s61         ; I0 col
s_cselect_b32 s62, s62, s77         ; I1 col
s_cselect_b32 s63, 3072, s63
s_cselect_b32 s67, s6, s67          ; I2 block
v_cndmask_b32 v5, v6, v14, vcc
s_lshl_b32 s64, s67, 7              ; I2 col
s_lshl_b32 s65, s68, 7              ; I3 col
s_lshl_b32 s60, s4, 17
s_lshl_b32 s69, s3, 11
s_lshl_b32 s70, s3, 10
s_lshl_b32 s11, s3, 14
s_add_u32 s76, s60, s11
s_mul_i32 s11, s3, {8*3072}
s_add_u32 s11, s61, s11
v_add_u32 v4, s11, v4
s_lshl_b32 s11, s3, 3
s_mul_i32 s11, s11, s63
s_add_u32 s11, s62, s11
v_add_u32 v5, s11, v5
s_lshl_b32 s75, s63, 6
s_mul_i32 s11, s3, {8*3584}
s_add_u32 s73, s64, s11
s_add_u32 s74, s65, s11
v_add_u32 v7, s74, v6
v_add_u32 v6, s73, v6
s_mov_b32 s82, 0
s_mov_b32 s83, 0
s_mov_b32 s73, 0
s_lshl_b32 s79, s5, 3
s_add_u32 s79, s79, s6              ; slot
s_and_b32 s78, s3, 1                ; lo
s_lshr_b32 s77, s3, 1
v_lshlrev_b32 v26, 4, v1
s_waitcnt lgkmcnt(0)
""")
st(8, grp="P"); nst[0] = 1
fin(a, "x", X); fin(a, "wqkv", WQ); fin(a, "w1", W1)
a(f"""
s_cmp_eq_u32 s5, 0
s_cselect_b32 s{I1}, s{WQ}, s{W1}
s_cselect_b32 s{I1+1}, s{WQ+1}, s{W1+1}
s_cselect_b32 s{I1+2}, s{WQ+2}, s{W1+2}
s_mov_b32 s{I1+3}, 0x20000
""")
a(f"""
s_lshl_b32 s9, s79, 13
s_add_u32 s9, s9, s70
s_add_u32 s9, s9, s60
""")
a(f"buffer_load_dwordx4 v[112:115], v26, {R(X)}, s9 offen", "E")
a(f"""
v_lshrrev_b32 v9, 2, v1
v_and_b32 v10, 3, v1
v_lshlrev_b32 v10, 4, v10
s_cmp_eq_u32 s77, 0
s_cselect_b32 s9, s61, s62
s_cselect_b32 s11, 3072, s63
s_cmp_eq_u32 s77, 2
s_cselect_b32 s9, s64, s9
s_cmp_eq_u32 s77, 3
s_cselect_b32 s9, s65, s9
s_cselect_b32 s71, s10, s78
s_cmp_ge_u32 s77, 2
s_cselect_b32 s11, 3584, s11
s_lshl_b32 s71, s71, 6
s_add_u32 s9, s9, s71
s_lshl_b32 s71, s4, 5
s_mul_i32 s71, s71, s11
s_add_u32 s9, s9, s71               ; + 32m rows
v_mul_lo_u32 v9, v9, s11
v_add_u32 v9, v9, v10
s_lshl_b32 s11, s11, 4
s_add_u32 s71, s9, s11
s_mov_b32 m0, s69
s_cmp_eq_u32 s11, {3072*16}
s_cbranch_scc1 {L('e1')}
""")
with a.skippable():
    a(f"buffer_load_dwordx4 v9, {R(W1)}, s9 offen lds\ns_add_u32 m0, s69, 1024\ns_nop 0\nbuffer_load_dwordx4 v9, {R(W1)}, s71 offen lds\ns_branch {L('e2')}")
a.label(L('e1'))
with a.skippable():
    a(f"buffer_load_dwordx4 v9, {R(WQ)}, s9 offen lds\ns_add_u32 m0, s69, 1024\ns_nop 0\nbuffer_load_dwordx4 v9, {R(WQ)}, s71 offen lds")
a.label(L('e2'))
def dma(c, piece):
    t = f"C{c}"; sl = RB + (c % 3)*SLOT
    if piece < 2:
        a(f"s_add_u32 m0, s69, {sl+1024*piece-c*128}")
        a(f"buffer_load_dwordx4 v{2+piece}, {R(X)}, s76 offen offset:{c*128} lds", t)
    elif piece == 2:
        a(f"s_add_u32 m0, s70, {sl+16384}")
        a(f"buffer_load_dwordx4 v4, {R(WQ)}, s82 offen lds", t)
        a(f"s_add_u32 s82, s82, {64*3072}")
    elif piece == 3:
        a(f"s_add_u32 m0, s70, {sl+24576}")
        a(f"buffer_load_dwordx4 v5, {R(I1)}, s83 offen lds", t)
        a("s_add_u32 s83, s83, s75")
    elif piece == 4:
        a(f"s_add_u32 m0, s70, {sl+32768}")
        a(f"buffer_load_dwordx4 v6, {R(W1)}, s73 offen lds", t)
    else:
        a(f"s_add_u32 m0, s70, {sl+40960}")
        a(f"buffer_load_dwordx4 v7, {R(W1)}, s73 offen lds", t)
        a(f"s_add_u32 s73, s73, {64*3584}")
dma(0, 0); a.items.append(("retag", ("C0", "E")))
a(f"s_cmp_eq_u32 s5, 0\ns_cbranch_scc1 {L('c0b')}")
with a.skippable():
    dma(0, 4); dma(0, 5)
a.label(L('c0b'))
dma(0, 1); dma(0, 2); dma(0, 3)
st(grp="P")
if env("WU", 0):
    a(f"s_cmp_lt_u32 s3, 4\ns_cbranch_scc0 {L('wu1')}")
    with a.skippable():
        a(f"""
        v_lshrrev_b32 v254, 1, v1
        v_and_b32 v255, 1, v1
        v_lshlrev_b32 v255, 7, v255
        v_lshl_add_u32 v254, v254, 10, v255
        s_lshl_b32 s9, s3, 15
        s_add_u32 s9, s9, s60
        s_lshr_b32 s11, s2, 6
        s_lshl_b32 s11, s11, 8
        s_add_u32 s9, s9, s11
        buffer_load_dword v255, v254, {R(X)}, s9 offen
        s_branch {L('wu3')}
        """)
    a.label(L('wu1'))
    with a.skippable():
        a(f"""
        s_cmp_eq_u32 s3, 4
        s_cselect_b32 s9, s61, s62
        s_cselect_b32 s11, 3072, s63
        s_cmp_eq_u32 s3, 6
        s_cselect_b32 s9, s64, s9
        s_cmp_eq_u32 s3, 7
        s_cselect_b32 s9, s65, s9
        s_cmp_ge_u32 s3, 6
        s_cselect_b32 s11, 3584, s11
        s_and_b32 s71, s4, 7
        s_lshl_b32 s71, s71, 6
        s_mul_i32 s71, s71, s11
        s_add_u32 s9, s9, s71
        v_mul_lo_u32 v254, v1, s11
        s_cmp_eq_u32 s11, 3072
        s_cbranch_scc1 {L('wu2')}
        buffer_load_dword v255, v254, {R(W1)}, s9 offen
        s_branch {L('wu3')}
        """)
        a.label(L('wu2'))
        a(f"buffer_load_dword v255, v254, {R(WQ)}, s9 offen")
    a.label(L('wu3'))
    a.items.append(("qins", ("C0", 1)))
if env("ICP", 0):
    a(f"s_cmp_lt_u32 s3, 4\ns_cbranch_scc0 {L('noicp')}")
    with a.skippable():
        a(f"""
        s_getpc_b64 s[80:81]
        v_lshlrev_b32 v127, 7, v1
        s_lshl_b32 s9, s3, 13
        v_add_u32 v127, s9, v127
        v_min_u32 v127, {env("ICP", 0)}, v127
        global_load_dword v127, v127, s[80:81]
        """)
    a.label(L('noicp'))
fin(a, "ws", WS); fin(a, "dbg", DBG)
a("v_mov_b32 v19, 0")
a(f"s_or_b32 s9, s2, s3\ns_cmp_eq_u32 s9, 0\ns_cbranch_scc0 {L('nononce')}")
with a.skippable():
    a(f"""
    s_memrealtime s[80:81]
    s_waitcnt lgkmcnt(0)
    s_or_b32 s80, s80, 1
    v_mov_b32 v10, s80
    s_mov_b64 exec, 1
    buffer_store_dword v10, v19, {R(DBG)}, 0 offen {SC}
    s_mov_b64 exec, -1
    """)
a.label(L('nononce'))
a(f"""
s_bfe_u32 s7, s3, 0x10001           ; mh
s_lshr_b32 s8, s3, 2                ; hi
s_mul_i32 s72, s6, {KV_J}
s_add_u32 s72, s72, {KVACC}
s_cmp_eq_u32 s5, 1
s_cselect_b32 s9, s4, 1
s_cmp_eq_u32 s9, 0
s_cbranch_scc0 {L('nozero')}
""")
with a.skippable():
    a(f"""
    v_lshlrev_b32 v9, 4, v0
    v_mov_b32 v10, 0
    v_mov_b32 v11, 0
    v_mov_b32 v12, 0
    v_mov_b32 v13, 0
    buffer_store_dwordx4 v[10:13], v9, {R(WS)}, s72 offen {SC}
    s_add_u32 s9, s72, 8192
    s_cmp_eq_u32 s3, 0
    s_cbranch_scc0 {L('nozero')}
    buffer_store_dwordx4 v[10:13], v9, {R(WS)}, s9 offen {SC}
    """)
a.label(L('nozero'))
a(f"""
s_and_b32 s9, s78, s8
s_cmp_eq_u32 s5, 0
s_cselect_b32 s61, s8, s9           ; sel
v_and_b32 v29, 31, v1
v_lshrrev_b32 v30, 5, v1
v_bfe_u32 v31, v1, 1, 3
v_xor_b32 v31, v31, v30
v_lshlrev_b32 v20, 7, v29
v_lshl_add_u32 v8, v31, 4, v20
s_lshl_b32 s9, s7, 1
s_add_u32 s62, s9, s61
s_lshl_b32 s9, s62, 12
s_add_u32 s9, s9, {RB}
v_add_u32 v8, s9, v8
v_xor_b32 v9, 32, v8
v_xor_b32 v10, 64, v8
v_xor_b32 v11, 96, v8
v_xor_b32 v12, 0x1000, v8
v_xor_b32 v13, 0x1000, v9
v_xor_b32 v14, 0x1000, v10
v_xor_b32 v15, 0x1000, v11
v_bfe_u32 v31, v1, 2, 2
v_lshl_add_u32 v20, v30, 3, v31
v_and_b32 v22, 3, v1
v_lshlrev_b32 v22, 3, v22
v_lshl_add_u32 v18, v20, 6, v22
v_lshl_add_u32 v20, v20, 7, v22
v_lshl_add_u32 v21, v30, 2, v31
v_lshl_add_u32 v21, v21, 5, v22
v_bfe_u32 v22, v1, 4, 1
v_lshl_add_u32 v18, v22, 5, v18
v_add_u32 v18, s69, v18
v_and_b32 v31, 2, v31
v_xor_b32 v31, v31, v22
v_lshl_add_u32 v20, v31, 5, v20     ; nat0
s_lshl_b32 s9, s8, 1
s_add_u32 s63, s9, s78              ; nq
s_lshl_b32 s9, s63, 5
v_xor_b32 v23, s9, v20
v_lshl_add_u32 v23, v22, 13, v23
s_lshl_b32 s9, s78, 6
v_xor_b32 v24, s9, v20
s_cmp_eq_u32 s8, 0
s_cselect_b32 s10, 8192, 0
v_add_u32 v25, s10, v24
v_cndmask_b32 v16, v25, v23, vcc
v_add_u32 v16, {RB+16384}, v16
s_and_b32 s9, s6, 1
s_lshl_b32 s9, s9, 6
v_xor_b32 v25, s9, v20
v_add_u32 v25, 8192, v25
s_and_b32 s9, s5, s8
s_cmp_eq_u32 s9, 1
s_cselect_b64 s[80:81], -1, 0
v_cndmask_b32 v17, v24, v25, s[80:81]
v_add_u32 v17, {RB+32768}, v17
v_mov_b32 v20, v24
v_mul_u32_u24 v23, 192, v22
v_lshlrev_b32 v24, 2, v29
s_lshl_b32 s9, s63, 6
v_add3_u32 v23, v23, v24, s9
s_lshl_b32 s9, s78, 7
s_cmp_eq_u32 s8, 0
s_cselect_b32 s10, 256, 0
s_add_u32 s10, s10, s9
v_add_u32 v25, s10, v24
v_cndmask_b32 v23, v25, v23, vcc
s_add_u32 s9, s9, 512
s_and_b32 s10, s5, s8
s_cmp_eq_u32 s10, 1
s_cselect_b32 s9, 768, s9
v_add_u32 v24, s9, v24
s_lshl_b32 s66, s66, 1
s_add_u32 s66, s66, s78
s_lshl_b32 s67, s67, 1
s_add_u32 s67, s67, s78
s_lshl_b32 s68, s68, 1
s_and_b32 s9, s6, 1
s_add_u32 s68, s68, s9
s_cmp_eq_u32 s10, 1
s_cselect_b32 s67, s68, s67
s_lshl_b32 s9, s78, 1
s_cmp_eq_u32 s5, 0
s_cselect_b32 s9, s63, s9
s_lshl_b32 s10, s6, 2
s_add_u32 s65, s10, s9
s_lshl_b32 s9, s9, 9
s_add_u32 s9, s9, 14336
v_add_u32 v21, s9, v21
v_mov_b32 v22, 0x3f803f80
v_and_b32 v27, 15, v1
v_lshlrev_b32 v27, 2, v27
s_lshl_b32 s9, s4, 7
s_add_u32 s9, s9, {EFS}
s_lshl_b32 s10, s79, 7
s_add_u32 s10, s10, {EFC}
v_add_u32 v25, s9, v27
v_add_u32 v28, s10, v27
v_lshrrev_b32 v27, 4, v1
v_cmp_eq_u32 vcc, 1, v27
v_cndmask_b32 v25, v25, v28, vcc
s_lshl_b32 s9, s6, 2
s_add_u32 s9, s9, {EFS+32}
v_writelane_b32 v25, s9, 32
""")
fin(a, "b1", B1); fin(a, "wphi", WPHI); fin(a, "w2", W2); fin(a, "wo", WO); fin(a, "b2", B2); fin(a, "out", OUT)
st(grp="P")
a.wv("E")
st(grp="P")
for k, off in enumerate((0, 256, 1024, 1280)): a(f"ds_read_b64_tr_b16 {V(120+2*k,2)}, v18 offset:{off}", "EW")
a("v_mov_b32 v116, 0\nv_mov_b32 v117, 0\nv_mov_b32 v118, 0")
for q in range(4):
    a(f"v_dot2_f32_bf16 v116, v{112+q}, v22, v116\nv_dot2_f32_bf16 v117, v{112+q}, v{112+q}, v117")
a.wl("EW")
for q in range(8): a(f"v_dot2_f32_bf16 v118, v{120+q}, v22, v118")
for dpp in ("quad_perm:[1,0,3,2]", "quad_perm:[2,3,0,1]", "row_half_mirror", "row_mirror"):
    a(f"v_add_f32_dpp v116, v116, v116 {dpp} row_mask:0xf bank_mask:0xf\nv_add_f32_dpp v117, v117, v117 {dpp} row_mask:0xf bank_mask:0xf")
a(f"""
v_permlane16_swap_b32 v116, v117
v_add_f32 v116, v116, v117
v_mov_b32 v119, v118
v_mov_b32 v117, v116
v_permlane32_swap_b32 v118, v119
v_permlane32_swap_b32 v116, v117
v_add_f32 v118, v118, v119
v_add_f32 v116, v116, v117
v_mov_b32 v117, v116
v_permlane16_swap_b32 v116, v117
v_mul_f32 v116, 0x3b000000, v116
v_mul_f32 v117, 0x3b000000, v117
v_fma_f32 v117, -v116, v116, v117
v_max_f32 v117, 0, v117
v_add_f32 v117, 0x3727c5ac, v117
v_rsq_f32 v114, v117
v_sub_f32 v116, 0, v116
v_mul_f32 v117, v117, v114
v_cvt_pk_bf16_f32 v120, v116, v117
v_and_b32 v121, 0xffff0000, v120
v_lshlrev_b32 v122, 16, v120
v_sub_f32 v123, v116, v122
v_sub_f32 v124, v117, v121
v_cvt_pk_bf16_f32 v112, v122, v123
v_cvt_pk_bf16_f32 v113, v121, v124
s_lshl_b32 s10, s4, 7
s_lshl_b32 s11, s79, 3
s_add_u32 s10, s10, s11
s_add_u32 s10, s10, s3
s_lshl_b32 s10, s10, 4
s_add_u32 s10, s10, {STAT}
s_mul_i32 s11, s79, 14336
s_mul_i32 s71, s4, 896
s_add_u32 s11, s11, s71
s_lshl_b32 s71, s3, 7
s_add_u32 s11, s11, s71
s_add_u32 s11, s11, {CSP}
v_lshlrev_b32 v120, 2, v1
s_mov_b64 exec, 1
buffer_store_dwordx4 v[112:115], v19, {R(WS)}, s10 offen {SC}
s_cmp_lt_u32 s3, 7
s_cselect_b32 exec_lo, -1, 0
s_cbranch_scc0 {L('nocs')}
""")
with a.skippable():
    a(f"buffer_store_dword v118, v120, {R(WS)}, s11 offen {SC}")
a.label(L('nocs'))
a("s_mov_b64 exec, -1")
a(f"buffer_load_dword v31, v19, {R(DBG)}, 0 offen {SC}", "N0")
a("v_lshlrev_b32 v120, 1, v29\ns_lshl_b32 s9, s66, 6\ns_lshl_b32 s10, s67, 6")
a(f"buffer_load_ushort v27, v120, {R(B1)}, s9 offen", "S")
a(f"buffer_load_ushort v28, v120, {R(B1)}, s10 offen", "S")
st(); st(grp="P")

def side_flags(tg, tmp):
    a(f"s_cmp_eq_u32 s3, 0\ns_cbranch_scc0 {L('nofl'+tg)}")
    with a.skippable():
        a("s_mov_b32 s71, 0")
        a.label(L('nspin'+tg))
        a(f"""
        v_readfirstlane_b32 s9, v31
        s_add_u32 s71, s71, 1
        s_cmp_gt_u32 s71, {SPIN}
        s_cbranch_scc1 {L('nok'+tg)}
        s_cmp_lg_u32 s9, 0
        s_cbranch_scc1 {L('nok'+tg)}
        buffer_load_dword v31, v19, {R(DBG)}, 0 offen {SC}
        s_waitcnt vmcnt(0)
        s_branch {L('nspin'+tg)}
        """)
        a.label(L('nok'+tg))
        a(f"""
        s_lshl_b32 s10, s4, 7
        s_lshl_b32 s11, s79, 2
        s_add_u32 s10, s10, s11
        s_lshl_b32 s11, s79, 7
        s_lshl_b32 s71, s4, 2
        s_add_u32 s11, s11, s71
        s_add_u32 s11, s11, {EFC-EFS}
        v_mov_b32 v{tmp}, s10
        v_writelane_b32 v{tmp}, s11, 1
        s_mov_b32 s10, {EFS}
        s_mov_b64 exec, 3
        buffer_store_dword v31, v{tmp}, {R(WS)}, s10 offen {SC}
        s_mov_b64 exec, -1
        """)
    a.label(L('nofl'+tg))
def side_wphi_dma(tg):
    a(f"s_cmp_lt_u32 s3, 2\ns_cbranch_scc0 {L('nowp'+tg)}")
    with a.skippable():
        a(f"s_add_u32 m0, s70, 14336\ns_lshl_b32 s9, s6, 11\ns_add_u32 s9, s9, s70\nbuffer_load_dwordx4 v26, {R(WPHI)}, s9 offen lds")
    a.label(L('nowp'+tg))
def side_poll_issue(tg):
    a(f"s_cmp_eq_u32 s3, 0\ns_cbranch_scc0 {L('npi'+tg)}")
    with a.skippable():
        a(f"buffer_load_dword v18, v25, {R(WS)}, 0 offen {SC}")
    a.label(L('npi'+tg))
def side_poll_wait(tg, restore_vcc):
    a(f"s_cmp_eq_u32 s3, 0\ns_cbranch_scc0 {L('fok2'+tg)}")
    with a.skippable():
        a("s_mov_b32 s71, 0")
        a.label(L('fspin'+tg))
        a(f"""
        v_cmp_ne_u32 vcc, v18, v31
        s_cmp_eq_u64 vcc, 0
        s_cbranch_scc1 {L('fok'+tg)}
        s_add_u32 s71, s71, 1
        s_cmp_gt_u32 s71, {SPIN}
        s_cbranch_scc1 {L('fok'+tg)}
        s_sleep {SLP}
        buffer_load_dword v18, v25, {R(WS)}, 0 offen {SC}
        s_waitcnt vmcnt(0)
        s_branch {L('fspin'+tg)}
        """)
        a.label(L('fok'+tg))
        if restore_vcc: a("s_mov_b64 vcc, s[80:81]")
        a("ds_write_b32 v19, v31 offset:16380\ns_waitcnt lgkmcnt(0)")
    a.label(L('fok2'+tg))
def side_poll_check(tg, raw, tmp, ptag):
    a(f"ds_read_b32 v31, v19 offset:16380", ptag)
    a(f"""
    v_lshlrev_b32 v{tmp}, 4, v29
    s_lshl_b32 s9, s4, 11
    s_lshl_b32 s10, s62, 9
    s_add_u32 s9, s9, s10
    s_add_u32 s9, s9, {STAT}
    s_xor_b32 s10, s9, 512
    """)
    a(f"s_cmp_lt_u32 s3, 7\ns_cbranch_scc0 {L('nocsd'+tg)}")
    with a.skippable():
        a(f"s_mul_i32 s11, s79, 14336\ns_add_u32 s11, s11, s69\ns_add_u32 s11, s11, {CSP}\ns_mov_b32 m0, s69")
        a(f"buffer_load_dwordx4 v26, {R(WS)}, s11 offen {SC} lds")
        a(f"buffer_load_dwordx4 v26, {R(WS)}, s11 offen offset:1024 {SC} lds")
    a.label(L('nocsd'+tg))
    a(f"buffer_load_dwordx4 {V(raw)}, v{tmp}, {R(WS)}, s9 offen {SC}", "ST")
    a(f"buffer_load_dwordx4 {V(raw+4)}, v{tmp}, {R(WS)}, s10 offen {SC}", "ST")
def side_csred(tg, t16, tmp):
    a(f"s_cmp_lt_u32 s3, 4\ns_cbranch_scc0 {L('nored'+tg)}")
    with a.skippable():
        a(f"v_min_u32 v{tmp}, 223, v0\nv_lshlrev_b32 v{tmp}, 2, v{tmp}")
        for g in range(16): a(f"ds_read_b32 v{t16+g}, v{tmp} offset:{g*896}")
        a("s_waitcnt lgkmcnt(0)")
        for w in (8, 4, 2, 1):
            for g in range(w): a(f"v_add_f32 v{t16+g}, v{t16+g}, v{t16+g+w}")
        a(f"""
        v_cvt_pk_bf16_f32 v{t16+1}, v{t16}, v{t16}
        v_and_b32 v{t16+1}, 0xffff0000, v{t16+1}
        v_sub_f32 v{t16+2}, v{t16}, v{t16+1}
        v_cvt_pk_bf16_f32 v{t16}, v{t16+1}, v{t16+2}
        ds_write_b32 v{tmp}, v{t16}
        """)
    a.label(L('nored'+tg))
def side_bext(raw, BX, RR, tmp):
    for t in range(2):
        s0 = raw+4*t; B = BX+4*t; rr = RR+3*t
        a(f"""
        v_and_b32 v{tmp}, 0xffff, v{s0}
        v_lshl_or_b32 v{B}, v{tmp}, 16, v{tmp}
        v_lshrrev_b32 v{tmp}, 16, v{s0}
        v_lshl_or_b32 v{B+1}, v{tmp}, 16, v{tmp}
        v_mov_b32 v{B+2}, v{s0+1}
        v_mov_b32 v{B+3}, 0
        v_mov_b32 v{rr}, v{s0+2}
        v_mul_f32 v{rr+1}, {LOG2E}, v{s0+2}
        v_mul_f32 v{rr+2}, 0.5, v{s0+2}
        """)
MAP = env("MAP", 0)
if MAP == 0:
    P2MAP = f"""
    s_and_b32 s82, s2, 7
    s_lshl_b32 s82, s82, 2
    s_bfe_u32 s9, s2, 0x20003
    s_add_u32 s82, s82, s9
    s_lshr_b32 s62, s2, 5
    s_mul_i32 s76, s62, 7
    s_lshr_b32 s76, s76, 2
    s_mul_i32 s9, s9, 3
    """
elif MAP == 2:
    P2MAP = f"""
    s_and_b32 s82, s2, 7
    s_lshl_b32 s82, s82, 2
    s_lshr_b32 s9, s2, 6
    s_add_u32 s82, s82, s9
    s_bfe_u32 s62, s2, 0x30003
    s_mul_i32 s76, s62, 7
    s_lshr_b32 s76, s76, 2
    s_mul_i32 s9, s9, {env("RM", 3)}
    """ + ("s_cmp_ge_u32 s9, 14\n    s_cselect_b32 s10, 14, 0\n    s_sub_u32 s9, s9, s10\n" if env("RM", 3) > 4 else "")
else:
    P2MAP = f"""
    s_bfe_u32 s82, s2, 0x20001
    s_lshl_b32 s82, s82, 3
    s_lshr_b32 s76, s2, 5
    s_add_u32 s82, s82, s76
    s_and_b32 s62, s2, 1
    s_lshl_b32 s62, s62, 2
    s_bfe_u32 s9, s2, 0x20003
    s_add_u32 s62, s62, s9
    s_mul_i32 s76, s76, 7
    s_lshr_b32 s76, s76, 2
    s_mul_i32 s9, s9, 3
    """
P2MAP += f"""
    s_add_u32 s76, s76, s9
    s_lshl_b32 s62, s62, 7
    s_mul_i32 s60, s3, {14*16*1024}
    s_add_u32 s60, s60, s62
    s_add_u32 s83, s60, {14*16384}
    s_lshl_b32 s68, s3, 16
    s_add_u32 s68, s68, s62
"""
TP0 = env("TP0", -1); TPS = env("TPS", 2)
def side_touch(tg, p, r1, r2):
    if TP0 < 0 or p < TP0 or (p-TP0) % TPS or (p-TP0)//TPS >= 8: return
    w = (p-TP0)//TPS
    a(f"s_cmp_eq_u32 s3, {w}\ns_cbranch_scc0 {L(f'pf{tg}{w}')}")
    with a.skippable():
        a(f"""
        s_lshr_b32 s9, s2, 3
        s_lshl_b32 s9, s9, 3
        s_add_u32 s9, s9, s3
        s_and_b32 s71, s2, 1
        s_lshl_b32 s71, s71, 9
        s_mul_i32 s10, s9, {7*1024}
        s_add_u32 s10, s10, s71
        s_lshl_b32 s11, s9, 11
        s_add_u32 s11, s11, s71
        v_lshrrev_b32 v{r1}, 2, v1
        v_and_b32 v{r2}, 3, v1
        v_lshlrev_b32 v{r2}, 7, v{r2}
        v_lshl_add_u32 v{r1}, v{r1}, 10, v{r2}
        s_mov_b64 exec, 0xfffffff
        buffer_load_dword v{r2}, v{r1}, {R(W2)}, s10 offen
        s_mov_b64 exec, 0xff
        buffer_load_dword v{r1}, v{r1}, {R(WO)}, s11 offen
        s_mov_b64 exec, -1
        """)
    a.label(L(f'pf{tg}{w}'))
def side_slow(tg, p, r1):
    if p != env("TQ", -1): return
    a(f"s_cmp_lt_u32 s3, 6\ns_cbranch_scc1 {L('sl3'+tg)}")
    with a.skippable():
        a(f"""
        s_lshr_b32 s9, s2, 3
        v_lshlrev_b32 v{r1}, 10, v1
        s_cmp_eq_u32 s3, 6
        s_cbranch_scc1 {L('sl1'+tg)}
        s_lshr_b32 s10, s{W2}, 7
        s_sub_u32 s10, 3, s10
        s_and_b32 s10, s10, 7
        s_lshl_b32 s10, s10, 7
        s_mul_i32 s9, s9, {56*1024}
        s_add_u32 s9, s9, s10
        s_mov_b32 exec_hi, 0xffffff
        buffer_load_dword v{r1}, v{r1}, {R(W2)}, s9 offen
        s_branch {L('sl2'+tg)}
        """)
        a.label(L('sl1'+tg))
        a(f"""
        s_lshr_b32 s10, s{WO}, 7
        s_sub_u32 s10, 3, s10
        s_and_b32 s10, s10, 7
        s_lshl_b32 s10, s10, 7
        s_lshl_b32 s9, s9, 14
        s_add_u32 s9, s9, s10
        s_mov_b64 exec, 0xffff
        buffer_load_dword v{r1}, v{r1}, {R(WO)}, s9 offen
        """)
        a.label(L('sl2'+tg))
        a("s_mov_b64 exec, -1")
    a.label(L('sl3'+tg))
def side_p2(t3):
    a(f"""
    v_readfirstlane_b32 s75, v31
    v_lshrrev_b32 v{t3}, 3, v1
    v_and_b32 v{t3+1}, 7, v1
    v_lshrrev_b32 v{t3+2}, 2, v1
    v_and_b32 v{t3+2}, 4, v{t3+2}
    v_xor_b32 v{t3+1}, v{t3+1}, v{t3+2}
    v_lshlrev_b32 v{t3}, 10, v{t3}
    v_lshl_add_u32 v18, v{t3+1}, 4, v{t3}
    s_lshl_b32 s74, s4, 2
    s_add_u32 s74, s74, s62
    s_xor_b32 s64, s74, 1
    s_mul_i32 s74, s74, {AF_TG}
    s_mul_i32 s64, s64, {AF_TG}
    {P2MAP}
    s_cmp_ge_u32 s76, 14
    s_cselect_b32 s9, 14, 0
    s_sub_u32 s76, s76, s9
    s_lshl_b32 s61, s76, 14
    s_add_u32 s61, s61, s60
    """)
def p2_adv(x):
    x("s_add_u32 s61, s61, 16384\ns_cmp_eq_u32 s61, s83\ns_cselect_b32 s61, s60, s61")
W2PG = [7, 8, 9, 1, 2, 3, 4, 5, 6]
def p2_dma(x, u, tag, partner=False):
    pg = W2PG[u % 9]
    for half in range(2):
        x(f"s_add_u32 m0, s69, {pg*PG + half*1024}")
        if u < 14:
            if half == 0: x(f"s_add_u32 s71, s61, 8192\nbuffer_load_dwordx4 v18, {R(W2)}, s61 offen lds", tag)
            else: x(f"buffer_load_dwordx4 v18, {R(W2)}, s71 offen lds", tag)
        else:
            x(f"s_add_u32 s71, s68, {((u-14)*16+half*8)*1024}")
            x(f"buffer_load_dwordx4 v18, {R(WO)}, s71 offen lds", tag)
    if partner:
        for half in range(2):
            x(f"s_add_u32 m0, s69, {pg*PG + half*1024 + 8192}\ns_add_u32 s71, s61, {4*14*16384 + half*8192}")
            x(f"buffer_load_dwordx4 v18, {R(W2)}, s71 offen lds", tag)
    if u < 14: p2_adv(x)
def p2_dma_partner(x, u, tag):
    pg = W2PG[u % 9]
    for half in range(2):
        x(f"s_add_u32 m0, s69, {pg*PG + half*1024 + 8192}")
        if u < 14:
            x(f"s_add_u32 s71, s81, {4*14*16384 + half*8192}")
            x(f"buffer_load_dwordx4 v18, {R(W2)}, s71 offen lds", tag)
        else:
            x(f"s_add_u32 s71, s68, {4*65536 + ((u-14)*16+half*8)*1024}")
            x(f"buffer_load_dwordx4 v18, {R(WO)}, s71 offen lds", tag)
    if u < 14: x("s_add_u32 s81, s81, 16384\ns_cmp_eq_u32 s81, s83\ns_cselect_b32 s81, s60, s81")
def p2_dma2(x, u, tag):
    pg = W2PG[u % 9]
    for half in range(2):
        x(f"s_add_u32 m0, s69, {pg*PG + half*1024}")
        if u < 14:
            x(f"s_add_u32 s71, s81, {half*8192}")
            x(f"buffer_load_dwordx4 v18, {R(W2)}, s71 offen lds", tag)
        else:
            x(f"s_add_u32 s71, s68, {((u-14)*16+half*8)*1024}")
            x(f"buffer_load_dwordx4 v18, {R(WO)}, s71 offen lds", tag)
    if u < 14: x("s_add_u32 s81, s81, 16384\ns_cmp_eq_u32 s81, s83\ns_cselect_b32 s81, s60, s81")
def lds_wait(lab, off):
    a("s_mov_b32 s71, 0")
    a.label(L(lab))
    a(f"""
    ds_read_b32 v10, v11 offset:{off}
    s_waitcnt lgkmcnt(0)
    v_readfirstlane_b32 s9, v10
    s_add_u32 s71, s71, 1
    s_cmp_gt_u32 s71, {SPIN*8}
    s_cbranch_scc1 {L(lab+'x')}
    s_cmp_eq_u32 s9, s75
    s_cbranch_scc1 {L(lab+'x')}
    s_sleep 1
    s_branch {L(lab)}
    """)
    a.label(L(lab+'x'))
def poison(r):
    a(f"s_add_u32 s9, s65, 112\ns_lshl_b32 s9, s9, 10\ns_add_u32 s10, s9, s64\ns_add_u32 s9, s9, s74")
    a(f"v_mov_b32 v{r}, -1\nv_mov_b32 v{r+1}, -1\nv_mov_b32 v{r+2}, -1\nv_mov_b32 v{r+3}, -1")
    for f in range(2):
        for h in range(2): a(f"buffer_store_dwordx4 {V(r)}, v26, {R(WS)}, {('s9','s10')[f]} offen offset:{h*1024} {SC}")
def softmax(x, P, Pp, Pm, c):
    E = 112
    x(f"""
    v_max3_f32 v2, v{P}, v{P+1}, v{P+2}
    v_max3_f32 v3, -v{P}, -v{P+1}, -v{P+2}
    v_max3_f32 v2, v2, v{P+3}, v{P+4}
    v_max3_f32 v3, v3, -v{P+3}, -v{P+4}
    v_max3_f32 v2, v2, v{P+5}, v{P+6}
    v_max3_f32 v3, v3, -v{P+5}, -v{P+6}
    v_max_f32 v2, v2, v{P+7}
    v_max_f32_e64 v3, v3, -v{P+7}
    v_permlane32_swap_b32 v2, v3
    v_max_f32 v2, v2, v3
    v_mul_f32_e64 v2, -v2, v{c}
    v_mov_b32 v3, v2
    v_permlane32_swap_b32 v2, v3
    """)
    for r in range(8): x(f"v_fma_f32 v{E+r}, -v{P+r}, v{c}, v3\nv_fma_f32 v{P+r}, v{P+r}, v{c}, v2")
    for r in range(8): x(f"v_exp_f32 v{E+r}, v{E+r}\nv_exp_f32 v{P+r}, v{P+r}")
    x(f"v_add_f32 v2, v{P}, v{P+1}\nv_add_f32 v3, v{E}, v{E+1}")
    for r in range(2, 8): x(f"v_add_f32 v2, v2, v{P+r}\nv_add_f32 v3, v3, v{E+r}")
    x("v_permlane32_swap_b32 v2, v3\nv_add_f32 v2, v2, v3\nv_rcp_f32 v2, v2\nv_mov_b32 v3, v2\nv_permlane32_swap_b32 v2, v3")
    for r in range(8): x(f"v_mul_f32 v{P+r}, v{P+r}, v2\nv_mul_f32 v{E+r}, v{E+r}, v3")
    for q in range(4): x(f"v_cvt_pk_bf16_f32 v{Pp+q}, v{P+2*q}, v{P+2*q+1}\nv_cvt_pk_bf16_f32 v{Pm+q}, v{E+2*q}, v{E+2*q+1}")
def ffn_epi(x, acc, s_tile, f, rh, so=9):
    a(f"s_lshl_b32 s{so}, s{s_tile}, 11\ns_add_u32 s{so}, s{so}, s{(74,64)[f]}")
    for r in range(16): x(f"v_add_f32_e64 v{acc+r}, v{acc+r}, |v{acc+r}|")
    for r in range(16): x(f"v_mul_f32 v{acc+r}, v{acc+r}, v{rh}")
    for r in range(16): x(f"v_mul_f32 v{acc+r}, v{acc+r}, v{acc+r}")
    for q in range(8): x(f"v_cvt_pk_bf16_f32 v{acc+q}, v{acc+2*q}, v{acc+2*q+1}")
    x(f"buffer_store_dwordx4 {V(acc)}, v26, {R(WS)}, s{so} offen {SC}", "H")
    x(f"buffer_store_dwordx4 {V(acc+4)}, v26, {R(WS)}, s{so} offen offset:1024 {SC}", "H")
def flag_store(soff):
    a(f"""
    v_mov_b32 v31, s75
    s_mov_b64 exec, 1
    buffer_store_dword v31, v19, {R(WS)}, {soff} offen {SC}
    s_mov_b64 exec, -1
    """)
WREG = 128; P2ACC = 64; WTMP = 48; TRA = 2
def p2_traddr(t=2, q=8):
    a(f"""
    v_lshrrev_b32 v{q}, 5, v1
    v_bfe_u32 v{q+1}, v1, 2, 2
    v_lshl_add_u32 v{q}, v{q}, 2, v{q+1}
    v_lshlrev_b32 v{q}, 7, v{q}
    v_and_b32 v{q+2}, 3, v1
    v_lshl_add_u32 v{q}, v{q+2}, 3, v{q}
    v_bfe_u32 v{q+2}, v1, 4, 1
    v_and_b32 v{q+1}, 2, v{q+1}
    v_or_b32 v{q+2}, v{q+2}, v{q+1}
    v_lshl_add_u32 v{t}, v{q+2}, 5, v{q}
    v_add_u32 v{t}, s69, v{t}
    v_xor_b32 v{t+1}, 64, v{t}
    v_add_u32 v{t+2}, 0x10000, v{t}
    v_add_u32 v{t+3}, 0x10000, v{t+1}
    v_add_u32 v{t+4}, 0x20000, v{t}
    v_add_u32 v{t+5}, 0x20000, v{t+1}
    """)
def p2_tr(x, dst, u, tag):
    pg = W2PG[u % 9]
    for b in range(2):
        for e in range(2):
            x(f"ds_read_b64_tr_b16 {V(dst+4*b+2*e,2)}, v{TRA+2*(pg>>2)+b} offset:{(pg&3)*PG+e*1024}", tag)
def hflag():
    a(f"""
    s_lshl_b32 s9, s4, 1
    s_add_u32 s9, s9, s7
    s_lshl_b32 s77, s9, 8
    s_lshl_b32 s10, s79, 2
    s_add_u32 s10, s10, s63
    s_lshl_b32 s10, s10, 2
    s_add_u32 s9, s77, s10
    s_add_u32 s9, s9, {HF}
    """)
    flag_store("s9")
def kvpoll(w, lab):
    a(f"s_cmp_eq_u32 s3, {w}\ns_cbranch_scc0 {L(lab)}")
    with a.skippable():
        a("s_mov_b32 s71, 0")
        a.label(L('pk'))
        a(f"""
        buffer_load_dwordx2 v[10:11], v8, {R(WS)}, s66 offen {SC}
        s_waitcnt vmcnt(0)
        v_cmp_ne_u32 vcc, s75, v10
        v_cmp_ne_u32 s[80:81], s75, v11
        s_or_b64 vcc, vcc, s[80:81]
        s_cmp_eq_u64 vcc, 0
        s_cbranch_scc1 {L('pk2')}
        s_add_u32 s71, s71, 1
        s_cmp_gt_u32 s71, {SPIN}
        s_cbranch_scc1 {L('pk2')}
        s_sleep {SLP}
        s_branch {L('pk')}
        """)
        a.label(L('pk2'))
        for q in range(9):
            a(f"s_mov_b32 m0, {q*1024}\ns_add_u32 s10, s72, {q*1024}\nbuffer_load_dwordx4 v26, {R(WS)}, s10 offen {SC} lds")
        a("s_waitcnt vmcnt(0)\nv_mov_b32 v10, s75\nds_write_b32 v19, v10 offset:12288")
    a.label(L(lab))
ACC = [32, 48, 64, 80]
T = 96; KP = 2*PG; XF = 128
a(f"s_cmp_eq_u32 s5, 0\ns_cbranch_scc0 {L('typeB')}")
a.qsave("br")
for p in range(4): dma(1, p)
for i in range(8): a(f"v_add_u32 v{112+i}, {2*SLOT}, v{8+i}")
a(f"v_add_u32 v17, {2*SLOT}, v16")
a("v_lshlrev_b32 v121, 2, v30\nv_sub_u32 v121, v29, v121\nv_mov_b32 v122, 0x3f80\nv_mov_b32 v123, 0x3f800000")
SEL, WPH, BX, RRA, RAW = 64, 72, 76, 84, 120
for k in range(8):
    sg = k >> 2; q = k & 3
    f0 = (2*q & 3) + 8*((2*q) >> 2) + 16*sg
    a(f"v_cmp_eq_u32 vcc, {f0}, v121\nv_cndmask_b32 v{SEL+k}, 0, v122, vcc\nv_cmp_eq_u32 vcc, {f0+1}, v121\nv_cndmask_b32 v{SEL+k}, v{SEL+k}, v123, vcc")
st(grp="P"); a.wv("C0"); st(grp="P"); a("s_barrier"); st(grp="P")
st(grp="A")
def rdA(p):
    i = p & 3; b = 96 + 8*(p & 1); c = p >> 2; sl = c % 3
    ab = 8 if sl < 2 else 112; so = SLOT if sl == 1 else 0
    a(f"ds_read_b128 {V(XF+4*p)}, v{ab+i} offset:{so}", f"P{p}")
    for e in range(2): a(f"ds_read_b64_tr_b16 {V(b+4+2*e,2)}, v{16 if sl < 2 else 17} offset:{so+i*2048+e*512}", f"P{p}")
    a(f"ds_read_b128 {V(b)}, v{ab+4+i} offset:{so}", f"P{p}")
rdA(0)
for p in range(32):
    c = p >> 2; i = p & 3
    a.wl(f"P{p}")
    if i == 3 and c < 7:
        if c in (2,3): st(grp="W")
        a.wv(f"C{c+1}")
        if c in (2,3): st(grp="W")
        if p == 23: st(grp="W"); side_poll_wait("A", False)
        a("s_barrier"); st(grp="A")
        if c in (2,3,5): st(grp="W")
    if p+1 < 32: rdA(p+1)
    b = 96 + 8*(p & 1)
    a(f"{MF} {V(ACC[0],16)}, {V(b+4)}, {V(XF+4*p)}, {V(ACC[0],16) if p else 0}")
    if p < 2: dma(2, 2*p); dma(2, 2*p+1)
    elif p >= 3:
        cc = ((p-3) >> 2) + 3
        if cc <= 7: dma(cc, (p-3) & 3)
    a(f"{MF} {V(ACC[1],16)}, {V(b+4)}, {V(b)}, {V(ACC[1],16) if p else 0}")
    side_slow("A", p, 94)
    if p == 0: side_wphi_dma("A")
    if p == 3: side_flags("A", 90)
    if p == 8:
        for e in range(2): a(f"ds_read_b64_tr_b16 {V(WPH+2*e,2)}, v21 offset:{e*256}", f"P{p+1}")
    if p == 17: side_poll_issue("A")
    if p == 23: side_poll_check("A", RAW, 92, "P24")
    if p == 24: side_p2(90)
    if AW == 0:
        if p in (24, 25, 26): p2_dma(a, p-24, "D1")
        if p == 28: p2_dma(a, 3, "D1")
    if AW == 2 and p in (27, 28):
        a(f"s_add_u32 m0, s70, {3*PG + (p-27)*8192}")
        a(f"buffer_load_dwordx4 v6, {R(W1)}, s73 offen lds", "I2")
        a(f"s_add_u32 s73, s73, {64*3584}")
st(); st(grp="B")
a.wv("ST"); a("s_barrier")
side_csred("A", 96, 92)
side_bext(RAW, BX, RRA, 92)
a("v_mov_b32 v95, v6")
a("s_waitcnt lgkmcnt(0)\ns_barrier")
st(grp="B")
a(f"""
ds_read_b32 v120, v23
ds_read_b32 v4, v24
v_cmp_gt_u32 vcc, 32, v1
v_lshl_or_b32 v28, v28, 16, v28
v_cndmask_b32 v6, 0, v28, vcc
v_cmp_eq_u32 s[80:81], 16, v29
v_cndmask_b32 v27, 0, v22, s[80:81]
v_mov_b32 v122, 0
v_mov_b32 v123, 0
v_mov_b32 v7, 0
s_waitcnt lgkmcnt(0)
v_cndmask_b32 v120, 0, v120, vcc
v_cndmask_b32 v4, 0, v4, vcc
v_mov_b32 v121, v120
v_mov_b32 v5, v4
{MF} {V(ACC[0],16)}, v[120:123], {V(BX)}, {V(ACC[0],16)}
{MF} {V(ACC[1],16)}, v[120:123], {V(BX+4)}, {V(ACC[1],16)}
""")
KVA = 8
a("v_mov_b32 v90, v18\nv_mov_b32 v91, v20")
E = a.sub(); D = a.sub()
for f in range(2):
    acc = ACC[f]; rr = RRA+3*f
    for q in range(4): E(f"v_cvt_pk_bf16_f32 v{120+q}, v{acc+2*q}, v{acc+2*q+1}")
    E(f"{MF} {V(T,16)}, {V(WPH)}, v[120:123], 0")
    for r in range(8, 16): E(f"v_mul_f32 v{acc+r}, v{acc+r}, v{rr}")
    for q in range(4): E(f"v_cvt_pk_bf16_f32 v{120+q}, v{acc+8+2*q}, v{acc+9+2*q}")
    E(f"{MF} {V(acc,16)}, v[120:123], {V(SEL)}, 0")
    softmax(E, T, 120, 124, rr+1)
    E(f"{MF} {V(T,16)}, v[120:123], {V(SEL)}, 0")
    E(f"{MF} {V(T,16)}, v[124:127], {V(SEL+4)}, {V(T,16)}")
    for q in range(8): E(f"v_cvt_pk_bf16_f32 v{112+q}, v{acc+2*q}, v{acc+2*q+1}\nv_or_b32 v{112+q}, v{112+q}, v27")
    for q in range(8): E(f"v_cvt_pk_bf16_f32 v{T+q}, v{T+2*q}, v{T+2*q+1}")
    E(f"{MF} {V(KVA,16)}, {V(T)}, v[112:115], {V(KVA,16) if f else 0}")
    E(f"{MF} {V(KVA,16)}, {V(T+4)}, v[116:119], {V(KVA,16)}")
for c in range(2 if AW == 2 else 0, 8):
    D(f"s_add_u32 m0, s70, {3*PG + c*8192}")
    D(f"buffer_load_dwordx4 v95, {R(W1)}, s73 offen lds", "I2")
    D(f"s_add_u32 s73, s73, {64*3584}")
if AW:
    D2s = a.sub()
    for u in range(4): p2_dma(D2s, u, "D1")
    for it in D2s.items:
        if hasattr(it, "text"):
            D(it.text.replace("v18", "v90"), it.tag)
nE = len(E.items)*env("EFR", 6)//10
E1 = a.sub(); E1.items = E.items[:nE]; E2 = a.sub(); E2.items = E.items[nE:]
a.merge(E1, D); a.extend(E2)
st(grp="B")
a(f"""
s_lshl_b32 s9, s63, 12
s_lshl_b32 s10, s7, 11
s_add_u32 s9, s9, s10
s_add_u32 s9, s9, {KP}
v_add_u32 v92, s9, v26
v_xor_b32 v93, 0x800, v92
v_mul_u32_u24 v94, 17, v30
v_add_u32 v94, v94, v29
v_lshlrev_b32 v94, 2, v94
s_mul_i32 s10, s63, 2176
s_mul_i32 s11, s7, {8*136}
s_add_u32 s10, s10, s11
s_add_u32 s10, s10, s72
v_cmp_gt_u32 s[80:81], 17, v29
s_cmp_eq_u32 s7, 0
s_cbranch_scc1 {L('kv0')}
""")
with a.skippable():
    for q in range(2): a(f"ds_write_b128 v92, {V(KVA+4*q)} offset:{q*1024}")
    for r in range(8): a(f"v_mov_b32 v{KVA+r}, v{KVA+8+r}")
    a(f"s_branch {L('kv1')}")
a.label(L('kv0'))
with a.skippable():
    for q in range(2): a(f"ds_write_b128 v92, {V(KVA+8+4*q)} offset:{q*1024}")
a.label(L('kv1'))
if not env("SEP", 0): a.wv("I2")
a("s_waitcnt lgkmcnt(0)\ns_barrier")
for q in range(2): a(f"ds_read_b128 {V(T+4*q)}, v93 offset:{q*1024}")
a(f"v_mov_b32 v18, v90\nv_mov_b32 v19, 0\nv_add_u32 v20, {3*PG}, v91")
a("s_waitcnt lgkmcnt(0)")
for r in range(8): a(f"v_add_f32 v{KVA+r}, v{KVA+r}, v{T+r}")
a("s_mov_b64 exec, s[80:81]")
for r in range(8): a(f"buffer_atomic_add_f32 v{KVA+r}, v94, {R(WS)}, s10 offen offset:{r*136}", "AT")
a("s_mov_b64 exec, -1")
st(grp="B")
if env("SEP", 0): a.wv("I2"); a("s_barrier")
A2 = 32
def rd2(k):
    b = 48 + 4*(k % 4)
    for e in range(2): a(f"ds_read_b64_tr_b16 {V(b+2*e,2)}, v20 offset:{k*2048+e*512}", f"B{k}")
a(f"{MF} {V(A2,16)}, v[4:7], {V(BX)}, 0")
rd2(0); rd2(1); rd2(2)
K1 = env("K1", 0); K2 = env("K2", 17)
TRA = 96
if K1: p2_traddr(96, 104)
a(f"s_add_u32 s81, s61, {5*16384}\ns_sub_u32 s9, s81, {14*16384}\ns_cmp_ge_u32 s81, s83\ns_cselect_b32 s81, s9, s81")
for k in range(32):
    if k+3 < 32: rd2(k+3)
    a.wl(f"B{k}")
    a(f"{MF} {V(A2,16)}, {V(48+4*(k%4))}, {V(XF+4*k)}, {V(A2,16)}")
    if K1 and k == K1:
        for u in range(4): p2_tr(a, WREG+8*u, u, f"B{k+4}")
    if K1 and K1+4 <= k < K1+8: p2_dma2(a, 9+k-K1-4, "D2")
    if K1 and k == K2: a("s_barrier")
    if K1 and k in (K2+5, K2+7, K2+9): p2_dma(a, 4+(k-K2-5)//2, "D1")
    if k == env("KVK", 20):
        a.wv("AT")
        a(f"""
        s_lshl_b32 s9, s6, 9
        s_lshl_b32 s10, s4, 5
        s_add_u32 s9, s9, s10
        s_lshl_b32 s10, s3, 2
        s_add_u32 s9, s9, s10
        s_add_u32 s9, s9, {KVF}
        """)
        flag_store("s9")
        st(grp="B")
ffn_epi(a, A2, 67, 0, RRA+2)
st()
TRA = 2
p2_traddr()
if K1:
    a("s_barrier")
    for u in range(7, 9): p2_dma(a, u, "D1x")
    a.wv("H")
    hflag()
    st()
    for u in range(4, 7): p2_tr(a, WREG+8*u, u, "W1")
    a("s_barrier")
    a.wl("W1")
    for u in range(13, 16): p2_dma2(a, u, "D2")
    a.wv("D1x")
    for u in range(7, 9): p2_tr(a, WREG+8*u, u, "W1")
    a.wl("W1")
    for u in range(16, 18): p2_dma2(a, u, "D2")
else:
    AT2 = env("AT2", 0)
    for u in range(4): p2_tr(a, WREG+8*u, u, "W1")
    if AT2 == 2:
        a.wl("W1")
        for u in range(9, 13): p2_dma2(a, u, "D2")
    a("s_barrier")
    for u in range(4, 6): p2_dma(a, u, "D1")
    a.wv("H")
    hflag()
    st()
    if AT2 == 0: a("s_barrier")
    for u in range(6, 9): p2_dma(a, u, "D1")
    a.wl("W1")
    if AT2 != 2:
        for u in range(9, 13): p2_dma2(a, u, "D2")
    a.wv("D1")
    for u in range(4, 9): p2_tr(a, WREG+8*u, u, "W1")
    a.wl("W1")
    for u in range(13, 18): p2_dma2(a, u, "D2")
a(f"s_branch {L('tail')}")
a.label(L('typeB'))
a.qload("br")
for p in range(6): dma(1, p)
for i in range(10): a(f"v_add_u32 v{160+i}, {2*SLOT}, v{8+i}")
a("s_cmp_eq_u32 s8, 0\ns_cselect_b64 s[80:81], -1, 0\ns_mov_b64 vcc, s[80:81]")
st(5, grp="P"); a.wv("C0"); st(grp="P"); a("s_barrier"); st(grp="P")
st(1, grp="A")
def rdB(p):
    i = p & 3; b = 96 + 16*(p & 1); c = p >> 2; sl = c % 3
    ab = 8 if sl < 2 else 160; so = SLOT if sl == 1 else 0
    a(f"ds_read_b128 {V(b)}, v{ab+i} offset:{so}", f"P{p}")
    for e in range(2): a(f"ds_read_b64_tr_b16 {V(b+8+2*e,2)}, v{ab+8} offset:{so+i*2048+e*512}", f"P{p}")
    a(f"ds_read_b128 {V(b+4)}, v{ab+4+i} offset:{so}", f"P{p}")
    for e in range(2): a(f"ds_read_b64_tr_b16 {V(b+12+2*e,2)}, v{ab+9} offset:{so+i*2048+e*512}", f"P{p}")
rdB(0)
WPB, BXB, RRB, RAWB = 200, 208, 220, 232
for p in range(32):
    c = p >> 2; i = p & 3
    a.wl(f"P{p}")
    b = 96 + 16*(p & 1)
    BO = env("BO", 0) if (i == 3 and c < 7) else 0
    M01 = [f"{MF} {V(ACC[0],16)}, {V(b+8)}, {V(b)}, {V(ACC[0],16) if p else 0}", f"{MF} {V(ACC[1],16)}, {V(b+8)}, {V(b+4)}, {V(ACC[1],16) if p else 0}"]
    for m in M01[:BO]: a(m)
    if i == 3 and c < 7:
        a.wv(f"C{c+1}")
        if p == 19: side_poll_wait("B", True)
        a("s_barrier"); st(grp="A")
    if p+1 < 32: rdB(p+1)
    for m in M01[BO:]: a(m)
    if p < 3: dma(2, 2*p); dma(2, 2*p+1)
    else:
        cc = ((p-3) >> 2) + 3; q = (p-3) & 3
        if cc <= 7:
            for piece in ((0,1),(2,3),(4,),(5,))[q]: dma(cc, piece)
    a(f"{MF} {V(ACC[2],16)}, {V(b+12)}, {V(b)}, {V(ACC[2],16) if p else 0}")
    a(f"s_cbranch_vccz {L(f'm4_{p}')}")
    with a.skippable():
        a(f"{MF} {V(ACC[3],16)}, {V(b+12)}, {V(b+4)}, {V(ACC[3],16) if p else 0}")
    a.label(L(f"m4_{p}"))
    side_slow("B", p, 250)
    if p == 0: side_wphi_dma("B")
    if p == 3: side_flags("B", 240)
    if p == 8:
        for h in range(2):
            for e in range(2): a(f"ds_read_b64_tr_b16 {V(WPB+4*h+2*e,2)}, v21 offset:{h*512+e*256}", f"P{p+1}")
    if p == 13: side_poll_issue("B")
    if p == 19: side_poll_check("B", RAWB, 240, "P20")
    if p == 26: a.wv("ST")
    if p == 28: side_csred("B", 144, 240)
    if p == 29: side_bext(RAWB, BXB, RRB, 240)
    if p == 22:
        side_p2(240)
        if env("PZ", 0):
            a(f"s_cbranch_vccnz {L('nopz')}")
            with a.skippable(): poison(244)
            a.label(L('nopz'))
    if p in (23, 24, 25): p2_dma(a, p-23, "D1a")
    if p in (27, 29, 30): p2_dma(a, {27:3, 29:4, 30:5}[p], "D1b")
st(2)
a("s_waitcnt lgkmcnt(0)\ns_barrier")
a(f"""
ds_read_b32 v216, v23
ds_read_b32 v240, v24
v_cmp_gt_u32 vcc, 32, v1
v_lshl_or_b32 v27, v27, 16, v27
v_lshl_or_b32 v28, v28, 16, v28
s_and_b64 s[80:81], s[80:81], vcc
v_cndmask_b32 v218, 0, v27, s[80:81]
v_cndmask_b32 v242, 0, v28, vcc
v_mov_b32 v219, 0
v_mov_b32 v243, 0
s_waitcnt lgkmcnt(0)
v_cndmask_b32 v216, 0, v216, vcc
v_cndmask_b32 v240, 0, v240, vcc
v_mov_b32 v217, v216
v_mov_b32 v241, v240
{MF} {V(ACC[0],16)}, v[216:219], {V(BXB)}, {V(ACC[0],16)}
{MF} {V(ACC[1],16)}, v[216:219], {V(BXB+4)}, {V(ACC[1],16)}
{MF} {V(ACC[2],16)}, v[240:243], {V(BXB)}, {V(ACC[2],16)}
{MF} {V(ACC[3],16)}, v[240:243], {V(BXB+4)}, {V(ACC[3],16)}
""")
for u in range(6, 9): p2_dma(a, u, "D1c")
TRA = 12
p2_traddr(12)
def w2step(k):
    if k == 0:
        a.wv("D1a")
        for u in range(0, 3): p2_tr(a, WREG+8*u, u, "W1")
    elif k == 1:
        a.wl("W1")
        for u in range(9, 12): p2_dma(a, u, "D2")
        a.wv("D1b")
        for u in range(3, 6): p2_tr(a, WREG+8*u, u, "W1")
    elif k == 2:
        a.wl("W1")
        for u in range(12, 15): p2_dma(a, u, "D2")
        a.wv("D1c")
        for u in range(6, 9): p2_tr(a, WREG+8*u, u, "W1")
    elif k == 3:
        a.wl("W1")
        for u in range(15, 18): p2_dma(a, u, "D2")
a(f"s_cmp_eq_u32 s8, 0\ns_cbranch_scc0 {L('Bq')}")
a.qsave("bq")
ffn_epi(a, ACC[0], 66, 0, RRB+2)
ffn_epi(a, ACC[1], 66, 1, RRB+5)
ffn_epi(a, ACC[2], 67, 0, RRB+2)
ffn_epi(a, ACC[3], 67, 1, RRB+5)
st(3)
a.wv("D1c")
for u in range(9): p2_tr(a, WREG+8*u, u, "W1")
a.wv("H")
hflag()
a("s_mov_b32 s81, s61\ns_lshl_b32 s9, s3, 2\nv_mov_b32 v11, s9")
a.wl("W1")
for u in range(9, 18): p2_dma(a, u, "D2")
lds_wait("pw", 12304)
for u in range(9, 18): p2_dma_partner(a, u, "D2")
a("s_waitcnt vmcnt(0)\nv_mov_b32 v10, s75\nds_write_b32 v11, v10 offset:12320")
st(4)
a(f"s_branch {L('tailB')}")
a.label(L('Bq'))
a.qload("bq")
stor = {(0,0): (80, 84), (0,1): (88, 92), (1,0): (232, 236), (1,1): (240, 244)}
if not env("PZ", 0): poison(4)
ffn_epi(a, ACC[2], 67, 0, RRB+2)
a(f"v_lshlrev_b32 v8, 3, v1\ns_lshl_b32 s66, s6, 9\ns_add_u32 s66, s66, {KVF}\ns_mul_i32 s11, s78, 4352")
for f in range(2):
    acc = ACC[f]
    for q in range(8): a(f"v_cvt_pk_bf16_f32 v{acc+q}, v{acc+2*q}, v{acc+2*q+1}")
    for h in range(2):
        a(f"{MF} {V(T,16)}, {V(WPB+4*h)}, {V(acc+4*h)}, 0")
        if 2*f+h == TRP:
            a.wv("H"); hflag()
            for u in range(9): p2_tr(a, WREG+8*u, u, "W1")
        if 2*f+h == TRP+1:
            a.wl("W1")
            a("s_lshl_b32 s9, s3, 2\nv_mov_b32 v9, s9\nv_mov_b32 v10, s75\nds_write_b32 v9, v10 offset:12288")
        softmax(a, T, stor[(f,h)][0], stor[(f,h)][1], RRB+1+3*f)
st(3)
a(f"""
v_min_u32 v9, 16, v29
v_mul_u32_u24 v10, 17, v30
v_add_u32 v9, v9, v10
v_lshlrev_b32 v9, 2, v9
v_add_u32 v9, s11, v9
""")
kvpoll(4, 'nopk')
a("s_mov_b32 s71, 0")
a.label(L('lf1'))
a(f"""
ds_read_b32 v10, v19 offset:12288
s_waitcnt lgkmcnt(0)
v_readfirstlane_b32 s9, v10
s_add_u32 s71, s71, 1
s_cmp_gt_u32 s71, {SPIN*8}
s_cbranch_scc1 {L('lf2')}
s_cmp_eq_u32 s9, s75
s_cbranch_scc1 {L('lf2')}
s_sleep 1
s_branch {L('lf1')}
""")
a.label(L('lf2'))
for h in range(2):
    for r in range(16): a(f"ds_read_b32 v{32+16*h+r}, v9 offset:{h*2176+r*136}", f"K{h}")
a(f"s_add_u32 s9, s65, 112\ns_lshl_b32 s9, s9, 10\ns_add_u32 s10, s9, s64\ns_add_u32 s9, s9, s74")
for h in range(2):
    kb = 32+16*h
    a.wl(f"K{h}")
    for q in range(8): a(f"v_cvt_pk_bf16_f32 v{kb+q}, v{kb+2*q}, v{kb+2*q+1}")
    for f in range(2):
        Tt = 96+16*f
        a(f"{MF} {V(Tt,16)}, {V(kb)}, {V(stor[(f,h)][0])}, 0")
        a(f"{MF} {V(Tt,16)}, {V(kb+4)}, {V(stor[(f,h)][1])}, {V(Tt,16)}")
    for f in range(2):
        Tt = 96+16*f; o = kb+8+4*f
        a(f"v_add_f32 v8, 0x358637bd, v{Tt+8}\nv_rcp_f32 v8, v8")
        for r in range(8): a(f"v_mul_f32 v{Tt+r}, v{Tt+r}, v8")
        for q in range(4): a(f"v_cvt_pk_bf16_f32 v{o+q}, v{Tt+2*q}, v{Tt+2*q+1}")
        a(f"buffer_store_dwordx4 {V(o)}, v26, {R(WS)}, {('s9','s10')[f]} offen offset:{h*1024} {SC}", "O")
st()
a("s_lshl_b32 s9, s3, 2\nv_mov_b32 v11, s9")
lds_wait("r2w", 12320-16)
a.label(L('tailB'))
for i in range(6): a(f"v_mov_b32 v{2+i}, v{12+i}")
TRA = 2
a.label(L('tail'))
a(f"""
s_mul_i32 s64, s82, {2*AF_TG}
s_mul_i32 s65, s3, {14*1024}
s_add_u32 s65, s65, s64
s_lshl_b32 s66, s3, 12
s_add_u32 s66, s66, s64
s_add_u32 s66, s66, {112*1024}
s_add_u32 s67, s66, {AF_TG}
s_lshl_b32 s9, s82, 8
s_add_u32 s72, s9, {HF}
s_add_u32 s73, s9, {OF}
v_lshlrev_b32 v0, 4, v1
v_lshlrev_b32 v8, 2, v1
""")
st(5)
a(f"s_cmp_eq_u32 s3, 0\ns_cbranch_scc0 {L('phok')}")
with a.skippable():
    a("s_mov_b32 s79, 0")
    a.label(L('ph'))
    a(f"""
    buffer_load_dword v10, v8, {R(WS)}, s72 offen {SC}
    s_waitcnt vmcnt(0)
    v_cmp_ne_u32 vcc, s75, v10
    s_cmp_eq_u64 vcc, 0
    s_cbranch_scc1 {L('phok')}
    s_add_u32 s79, s79, 1
    s_cmp_gt_u32 s79, {SPIN}
    s_cbranch_scc1 {L('phok')}
    s_sleep {SLP}
    s_branch {L('ph')}
    """)
if env("DEC", 0):
    a.label(L('phok2')) if False else None
a.label(L('phok'))
if env("DEC", 0):
    a(f"s_cmp_eq_u32 s3, 0\ns_cbranch_scc0 {L('hw0')}")
    with a.skippable():
        a("v_mov_b32 v10, s75\nds_write_b32 v19, v10 offset:12352")
    a.label(L('hw0'))
    a("v_mov_b32 v11, 0")
    lds_wait("hw", 12352)
else:
    a("s_barrier")
st(); st(1, grp="T")
abuf = [200+8*i for i in range(7)] + [16+8*i for i in range(4)]
NA = 11
a(f"""
s_mov_b32 s60, s65
s_add_u32 s83, s65, {14*1024}
s_lshl_b32 s9, s76, 10
s_add_u32 s65, s65, s9
""")
def aload(u):
    r = abuf[u % NA]
    if u < 14:
        a(f"s_add_u32 s71, s65, {AF_TG}")
        a(f"buffer_load_dwordx4 {V(r)}, v0, {R(WS)}, s65 offen {ASC}", f"A{u}")
        a(f"buffer_load_dwordx4 {V(r+4)}, v0, {R(WS)}, s71 offen {ASC}", f"A{u}")
        a("s_add_u32 s65, s65, 1024\ns_cmp_eq_u32 s65, s83\ns_cselect_b32 s65, s60, s65")
    else:
        for tb in range(2):
            a(f"buffer_load_dwordx4 {V(r+4*tb)}, v0, {R(WS)}, s{(66,67)[tb]} offen offset:{(u-14)*1024} {SC}", f"A{u}")
NW = env("NW", 11)
OCK = min(OCK, 14-NW) if NW < 11 else OCK
FOP = max(0, OCK - 2)
for u in range(NW):
    aload(u)
def mfmas(u, w):
    r = abuf[u % NA]
    for tb in range(2):
        for nb in range(2):
            d = P2ACC + 16*(2*tb+nb)
            a(f"{MF} {V(d,16)}, {V(w+4*nb)}, {V(r+4*tb)}, {V(d,16) if u else 0}")
a(f"""
v_lshrrev_b32 v12, 3, v1
v_lshlrev_b32 v12, 10, v12
v_and_b32 v13, 7, v1
v_lshlrev_b32 v13, 4, v13
v_add_u32 v12, v12, v13
s_lshl_b32 s74, s82, 16
s_lshl_b32 s9, s3, 13
s_add_u32 s74, s74, s9
s_add_u32 s74, s74, s62
""")
for u in range(18):
    if u == 8: p2_tr(a, WTMP, 9, "T9")
    if 9 <= u < 17: p2_tr(a, WTMP + 8*((u-8)&1), u+1, f"T{u+1}")
    if u >= 9: a.wl(f"T{u}")
    a.wv(f"A{u}")
    if u in (0, 7, 14): st(grp="T")
    if u >= 14:
        r = abuf[u % NA]
        a("s_mov_b32 s79, 0")
        a.label(L(f'oc{u}'))
        a(f"""
        v_cmp_eq_u32 vcc, -1, v{r}
        v_cmp_eq_u32 s[80:81], -1, v{r+4}
        s_or_b64 vcc, vcc, s[80:81]
        s_cmp_eq_u64 vcc, 0
        s_cbranch_scc1 {L(f'ok{u}')}
        s_add_u32 s79, s79, 1
        s_cmp_gt_u32 s79, {SPIN}
        s_cbranch_scc1 {L(f'ok{u}')}
        """)
        with a.skippable():
            a("s_sleep 8")
            for tb in range(2):
                a(f"buffer_load_dwordx4 {V(r+4*tb)}, v0, {R(WS)}, s{(66,67)[tb]} offen offset:{(u-14)*1024} {SC}")
            a(f"s_waitcnt vmcnt(0)\ns_branch {L(f'oc{u}')}")
        a.label(L(f'ok{u}'))
    mfmas(u, WREG+8*u if u < 9 else WTMP+8*((u-9)&1))
    if NW == 11:
        if u < 3: aload(u+NA)
    else:
        if u+NW < 14: aload(u+NW)
        if u+NW == OCK+0: a(f"buffer_load_dword v10, v8, {R(WS)}, s73 offen {SC}", f"A{OCK}")
        if u > OCK and u+NW < 18: aload(u+NW)  if u+NW >= 14 else None
    if u == 3:
        a(f"buffer_load_dwordx4 v[128:131], v12, {R(X)}, s74 offen", "X")
        a(f"buffer_load_dwordx4 v[132:135], v13, {R(B2)}, s62 offen", "X")
    if u == OCK:
        for uu in range(14, 18): aload(uu)
    if u == 15 and env("CLR", 1) == 1:
        a(f"s_or_b32 s9, s2, s3\ns_cmp_eq_u32 s9, 0\ns_cbranch_scc0 {L('noclr1')}")
        with a.skippable():
            a(f"v_mov_b32 v8, 0\ns_mov_b64 exec, 1\nbuffer_store_dword v8, v8, {R(DBG)}, 0 offen {SC}\ns_mov_b64 exec, -1")
        a.label(L('noclr1'))
st(); st(grp="T")
a(f"""
v_bfe_u32 v8, v1, 3, 2
v_lshlrev_b32 v8, 14, v8
v_and_b32 v9, 7, v1
v_lshl_add_u32 v8, v9, 8, v8
v_lshrrev_b32 v10, 5, v1
v_xor_b32 v10, v10, v9
v_lshl_add_u32 v8, v10, 4, v8
s_add_u32 s9, s69, {PG}
v_add_u32 v8, s9, v8
v_xor_b32 v9, 32, v8
v_xor_b32 v10, 64, v8
v_xor_b32 v11, 96, v8
v_add_u32 v2, 0x10000, v8
v_add_u32 v3, 0x10000, v9
v_add_u32 v4, 0x10000, v10
v_add_u32 v5, 0x10000, v11
""")
for tb in range(2):
    for nb in range(2):
        for qq in range(4):
            d = P2ACC + 16*(2*tb+nb) + 4*qq
            a(f"ds_write_b128 v{(8,2)[tb]+qq}, {V(d)} offset:{nb*128}")
a("""
v_lshrrev_b32 v6, 3, v1
v_and_b32 v7, 7, v1
v_lshlrev_b32 v7, 1, v7
v_xor_b32 v7, v7, v6
v_lshlrev_b32 v6, 8, v6
v_lshl_add_u32 v6, v7, 4, v6
s_lshl_b32 s9, s3, 14
s_add_u32 s9, s9, 16384
v_add_u32 v6, s9, v6
v_xor_b32 v7, 16, v6
s_waitcnt lgkmcnt(0)
""")
st(grp="T"); a("s_barrier"); st(grp="T")
RR = 160
for w in range(8):
    for e in range(2):
        a(f"ds_read_b128 {V(RR+8*w+4*e)}, v{6+e} offset:{w*2048}", f"R{w}")
a.wv("X")
for i in range(4):
    a(f"v_lshlrev_b32 v{24+2*i}, 16, v{128+i}\nv_and_b32 v{25+2*i}, 0xffff0000, v{128+i}")
    a(f"v_lshlrev_b32 v{32+2*i}, 16, v{132+i}\nv_and_b32 v{33+2*i}, 0xffff0000, v{132+i}")
for i in range(8): a(f"v_add_f32 v{24+i}, v{24+i}, v{32+i}")
for w in range(8):
    a.wl(f"R{w}")
    for i in range(8): a(f"v_add_f32 v{24+i}, v{24+i}, v{RR+8*w+i}")
for i in range(4): a(f"v_cvt_pk_bf16_f32 v{32+i}, v{24+2*i}, v{25+2*i}")
a(f"buffer_store_dwordx4 v[32:35], v12, {R(OUT)}, s74 offen {os.environ.get('OSC','')}")
st(grp="T")
if INSTR:
    a("s_waitcnt vmcnt(0)"); st()
    nst[0] = 9
    a(f"s_waitcnt lgkmcnt(0)\ns_lshl_b32 s9, s2, 3\ns_add_u32 s9, s9, s3\ns_lshl_b32 s9, s9, 6\ns_add_u32 s9, s9, {STAMPS}")
    a("v_mov_b32 v0, 0\ns_mov_b64 exec, 1")
    for i in range(nst[0]):
        a(f"v_mov_b32 v1, s{84+2*i}\nbuffer_store_dword v1, v0, {R(WS)}, s9 offen offset:{4*i}\ns_nop 1")
a.label(L('end')); a("s_endpgm")
desc = f""".section .rodata,"a"
.p2align 6
.amdhsa_kernel {NAME}
  .amdhsa_next_free_vgpr 256
  .amdhsa_next_free_sgpr 102
  .amdhsa_accum_offset 256
  .amdhsa_group_segment_fixed_size 0
  .amdhsa_kernarg_size 96
  .amdhsa_user_sgpr_count 2
  .amdhsa_user_sgpr_kernarg_segment_ptr 1
  .amdhsa_system_sgpr_workgroup_id_x 1
  .amdhsa_float_denorm_mode_32 3
.end_amdhsa_kernel
"""
if __name__ == "__main__":
    open(sys.argv[1], "w").write("; @launch grid=(256,1,1) block=(512,1,1) lds=163840\n" + a.finish() + desc)
    print("stamps:", nst[0], "STAMPS", STAMPS)
```

```python
import sys, os
sys.path.insert(0, "work")
from asmlib import Asm
EXP = os.environ.get("EXP", "").split(",")
INSTR = "instr" in sys.argv
STG = os.environ.get("STG", "main")
def env(n, d): return int(os.environ.get(n, str(d)))
NAME = "parallel_sum__linear_kernel_hedgehog__dense_activation_squared_relu__prompt_kernel"
SZ = dict(x=2048*512*2, wqkv=512*1536*2, wphi=32*16*16*2, wo=512*512*2, w1=512*1792*2, b1=1792*2, w2=1792*512*2, b2=512*2, out=2048*512*2, dbg=256)
KSLOT = dict(x=0, wqkv=1, wphi=2, wo=3, w1=5, b1=6, w2=7, b2=8, out=9, dbg=10, ws=11)
AF_TG = 144*1024
KVACC = 64*AF_TG; KV_J = 9216
KVF = KVACC + 8*KV_J
HF = KVF + 8*512
OF = HF + 32*256
EFS = OF + 32*256
EFC = EFS + 16*128
CSP = EFC + 16*128
STAT = CSP + 16*14336
STAMPS = STAT + 2048*16
WS_END = STAMPS + 256*8*64
SZ["ws"] = WS_END
LOG2E = "0x3fb8aa3b"
SLOT = 49152; PG = 16384; RB = PG
SPIN = 60000
FLA = env("FLA", 18); FLC = env("FLC", 23); KPW = env("KPW", 4); FLB = env("FLB", 14); OCK = env("OCK", 6 if env("NW", 11) == 11 else 14-env("NW", 11)); AW = env("AW", 0); TRP = env("TRP", 1); NE = env("NE", 4); NB = env("NB", 8)
SC = "sc1"
ASC = os.environ.get("ASC", "sc1")
SLP = env("SLP", 8)
X, WQ, W1, WS, DBG, WPHI, B1, I1, W2, WO, B2, OUT = 12, 16, 20, 24, 28, 32, 36, 40, 44, 48, 52, 56
def R(s): return f"s[{s}:{s+3}]"
def V(b, n=4): return f"v[{b}:{b+n-1}]"
MF = "v_mfma_f32_32x32x16_bf16"
a = Asm()
nst = [0]
def st(i=None, grp="main"):
    if not INSTR or grp != STG: return
    if i is not None: nst[0] = i
    a(f"s_memrealtime s[{84+2*nst[0]}:{85+2*nst[0]}]"); nst[0] += 1
def L(n): return f"L_{n}"
def fin(x, n, s): x(f"s_mov_b32 s{s+2}, {SZ[n]}\ns_mov_b32 s{s+3}, 0x20000")

a.raw('.amdgcn_target "amdgcn-amd-amdhsa--gfx950"\n.text')
a.raw(f".globl {NAME}\n.p2align 8\n.type {NAME},@function\n{NAME}:")
a(f"s_cmp_ge_u32 s2, 256\ns_cbranch_scc1 {L('end')}")
st(grp=STG)
names = (("x",X),("wqkv",WQ),("w1",W1),("ws",WS),("dbg",DBG),("wphi",WPHI),("b1",B1),("w2",W2),("wo",WO),("b2",B2),("out",OUT))
for n, s in names: a(f"s_load_dwordx2 s[{s}:{s+1}], s[0:1], {KSLOT[n]*8}")
a(f"""
v_and_b32 v1, 63, v0
v_lshrrev_b32 v2, 6, v0
v_readfirstlane_b32 s3, v2
s_bfe_u32 s4, s2, 0x30003
s_bfe_u32 s9, s2, 0x10002
s_lshl_b32 s9, s9, 3
s_add_u32 s4, s4, s9                ; m
s_lshr_b32 s5, s2, 7                ; type
s_and_b32 s6, s2, 3
s_lshl_b32 s6, s6, 1
s_bfe_u32 s10, s2, 0x10006
s_add_u32 s6, s6, s10               ; j
v_lshrrev_b32 v9, 3, v1
v_and_b32 v10, 7, v1
v_lshrrev_b32 v11, 4, v1
v_xor_b32 v12, v10, v11
v_lshlrev_b32 v13, 10, v9
v_lshl_add_u32 v2, v12, 4, v13
v_xor_b32 v3, 0x2040, v2
v_and_b32 v11, 1, v11
v_lshlrev_b32 v11, 6, v11
v_lshlrev_b32 v12, 4, v10
v_xor_b32 v12, v12, v11
v_mul_u32_u24 v13, 3072, v9
v_add_u32 v4, v13, v12
v_mul_u32_u24 v13, 3584, v9
v_add_u32 v6, v13, v12
v_xor_b32 v14, 32, v4
s_and_b32 s9, s2, 3
s_mul_i32 s9, s9, 5
s_add_u32 s9, s9, 8
s_mul_i32 s11, s10, 3
s_add_u32 s66, s9, s11              ; I1 block (B)
s_add_u32 s67, s66, 1
s_add_u32 s68, s9, 2                ; I3 block
s_lshl_b32 s61, s6, 7
s_add_u32 s62, s61, 2048
s_lshl_b32 s77, s66, 7
s_add_u32 s78, s61, 1024
s_movk_i32 s63, 3584
s_cmp_eq_u32 s5, 0
s_cselect_b64 vcc, -1, 0
s_cselect_b32 s61, s78, s61         ; I0 col
s_cselect_b32 s62, s62, s77         ; I1 col
s_cselect_b32 s63, 3072, s63
s_cselect_b32 s67, s6, s67          ; I2 block
v_cndmask_b32 v5, v6, v14, vcc
s_lshl_b32 s64, s67, 7              ; I2 col
s_lshl_b32 s65, s68, 7              ; I3 col
s_lshl_b32 s60, s4, 17
s_lshl_b32 s69, s3, 11
s_lshl_b32 s70, s3, 10
s_lshl_b32 s11, s3, 14
s_add_u32 s76, s60, s11
s_mul_i32 s11, s3, {8*3072}
s_add_u32 s11, s61, s11
v_add_u32 v4, s11, v4
s_lshl_b32 s11, s3, 3
s_mul_i32 s11, s11, s63
s_add_u32 s11, s62, s11
v_add_u32 v5, s11, v5
s_lshl_b32 s75, s63, 6
s_mul_i32 s11, s3, {8*3584}
s_add_u32 s73, s64, s11
s_add_u32 s74, s65, s11
v_add_u32 v7, s74, v6
v_add_u32 v6, s73, v6
s_mov_b32 s82, 0
s_mov_b32 s83, 0
s_mov_b32 s73, 0
s_lshl_b32 s79, s5, 3
s_add_u32 s79, s79, s6              ; slot
s_and_b32 s78, s3, 1                ; lo
s_lshr_b32 s77, s3, 1
v_lshlrev_b32 v26, 4, v1
s_waitcnt lgkmcnt(0)
""")
st(8, grp="P"); nst[0] = 1
fin(a, "x", X); fin(a, "wqkv", WQ); fin(a, "w1", W1)
a(f"""
s_cmp_eq_u32 s5, 0
s_cselect_b32 s{I1}, s{WQ}, s{W1}
s_cselect_b32 s{I1+1}, s{WQ+1}, s{W1+1}
s_cselect_b32 s{I1+2}, s{WQ+2}, s{W1+2}
s_mov_b32 s{I1+3}, 0x20000
""")
a(f"""
s_lshl_b32 s9, s79, 13
s_add_u32 s9, s9, s70
s_add_u32 s9, s9, s60
""")
a(f"buffer_load_dwordx4 v[112:115], v26, {R(X)}, s9 offen", "E")
a(f"""
v_lshrrev_b32 v9, 2, v1
v_and_b32 v10, 3, v1
v_lshlrev_b32 v10, 4, v10
s_cmp_eq_u32 s77, 0
s_cselect_b32 s9, s61, s62
s_cselect_b32 s11, 3072, s63
s_cmp_eq_u32 s77, 2
s_cselect_b32 s9, s64, s9
s_cmp_eq_u32 s77, 3
s_cselect_b32 s9, s65, s9
s_cselect_b32 s71, s10, s78
s_cmp_ge_u32 s77, 2
s_cselect_b32 s11, 3584, s11
s_lshl_b32 s71, s71, 6
s_add_u32 s9, s9, s71
s_lshl_b32 s71, s4, 5
s_mul_i32 s71, s71, s11
s_add_u32 s9, s9, s71               ; + 32m rows
v_mul_lo_u32 v9, v9, s11
v_add_u32 v9, v9, v10
s_lshl_b32 s11, s11, 4
s_add_u32 s71, s9, s11
s_mov_b32 m0, s69
s_cmp_eq_u32 s11, {3072*16}
s_cbranch_scc1 {L('e1')}
""")
with a.skippable():
    a(f"buffer_load_dwordx4 v9, {R(W1)}, s9 offen lds\ns_add_u32 m0, s69, 1024\ns_nop 0\nbuffer_load_dwordx4 v9, {R(W1)}, s71 offen lds\ns_branch {L('e2')}")
a.label(L('e1'))
with a.skippable():
    a(f"buffer_load_dwordx4 v9, {R(WQ)}, s9 offen lds\ns_add_u32 m0, s69, 1024\ns_nop 0\nbuffer_load_dwordx4 v9, {R(WQ)}, s71 offen lds")
a.label(L('e2'))
def dma(c, piece):
    t = f"C{c}"; sl = RB + (c % 3)*SLOT
    if piece < 2:
        a(f"s_add_u32 m0, s69, {sl+1024*piece-c*128}")
        a(f"buffer_load_dwordx4 v{2+piece}, {R(X)}, s76 offen offset:{c*128} lds", t)
    elif piece == 2:
        a(f"s_add_u32 m0, s70, {sl+16384}")
        a(f"buffer_load_dwordx4 v4, {R(WQ)}, s82 offen lds", t)
        a(f"s_add_u32 s82, s82, {64*3072}")
    elif piece == 3:
        a(f"s_add_u32 m0, s70, {sl+24576}")
        a(f"buffer_load_dwordx4 v5, {R(I1)}, s83 offen lds", t)
        a("s_add_u32 s83, s83, s75")
    elif piece == 4:
        a(f"s_add_u32 m0, s70, {sl+32768}")
        a(f"buffer_load_dwordx4 v6, {R(W1)}, s73 offen lds", t)
    else:
        a(f"s_add_u32 m0, s70, {sl+40960}")
        a(f"buffer_load_dwordx4 v7, {R(W1)}, s73 offen lds", t)
        a(f"s_add_u32 s73, s73, {64*3584}")
dma(0, 0); a.items.append(("retag", ("C0", "E")))
a(f"s_cmp_eq_u32 s5, 0\ns_cbranch_scc1 {L('c0b')}")
with a.skippable():
    dma(0, 4); dma(0, 5)
a.label(L('c0b'))
dma(0, 1); dma(0, 2); dma(0, 3)
st(grp="P")
if env("XT", 0):
    a(f"s_cmp_eq_u32 s3, 5\ns_cbranch_scc0 {L('xt')}")
    with a.skippable():
        a(f"""
        v_lshlrev_b32 v255, 10, v1
        s_lshr_b32 s9, s2, 6
        s_lshl_b32 s9, s9, 15
        s_add_u32 s9, s9, s60
        s_lshr_b32 s11, s{X}, 7
        s_sub_u32 s11, 3, s11
        s_and_b32 s11, s11, 7
        s_lshl_b32 s11, s11, 7
        s_add_u32 s9, s9, s11
        s_mov_b64 exec, 0xffffffff
        buffer_load_dword v255, v255, {R(X)}, s9 offen
        s_mov_b64 exec, -1
        """)
    a.label(L('xt'))
if env("WU", 0):
    a(f"s_cmp_lt_u32 s3, 4\ns_cbranch_scc0 {L('wu1')}")
    with a.skippable():
        a(f"""
        v_lshrrev_b32 v254, 1, v1
        v_and_b32 v255, 1, v1
        v_lshlrev_b32 v255, 7, v255
        v_lshl_add_u32 v254, v254, 10, v255
        s_lshl_b32 s9, s3, 15
        s_add_u32 s9, s9, s60
        s_lshr_b32 s11, s2, 6
        s_lshl_b32 s11, s11, 8
        s_add_u32 s9, s9, s11
        buffer_load_dword v255, v254, {R(X)}, s9 offen
        s_branch {L('wu3')}
        """)
    a.label(L('wu1'))
    with a.skippable():
        a(f"""
        s_cmp_eq_u32 s3, 4
        s_cselect_b32 s9, s61, s62
        s_cselect_b32 s11, 3072, s63
        s_cmp_eq_u32 s3, 6
        s_cselect_b32 s9, s64, s9
        s_cmp_eq_u32 s3, 7
        s_cselect_b32 s9, s65, s9
        s_cmp_ge_u32 s3, 6
        s_cselect_b32 s11, 3584, s11
        s_and_b32 s71, s4, 7
        s_lshl_b32 s71, s71, 6
        s_mul_i32 s71, s71, s11
        s_add_u32 s9, s9, s71
        v_mul_lo_u32 v254, v1, s11
        s_cmp_eq_u32 s11, 3072
        s_cbranch_scc1 {L('wu2')}
        buffer_load_dword v255, v254, {R(W1)}, s9 offen
        s_branch {L('wu3')}
        """)
        a.label(L('wu2'))
        a(f"buffer_load_dword v255, v254, {R(WQ)}, s9 offen")
    a.label(L('wu3'))
    a.items.append(("qins", ("C0", 1)))
if env("ICP", 0):
    a(f"s_cmp_lt_u32 s3, 4\ns_cbranch_scc0 {L('noicp')}")
    with a.skippable():
        a(f"""
        s_getpc_b64 s[80:81]
        v_lshlrev_b32 v127, 7, v1
        s_lshl_b32 s9, s3, 13
        v_add_u32 v127, s9, v127
        v_min_u32 v127, {env("ICP", 0)}, v127
        global_load_dword v127, v127, s[80:81]
        """)
    a.label(L('noicp'))
fin(a, "ws", WS); fin(a, "dbg", DBG)
a("v_mov_b32 v19, 0")
a(f"s_or_b32 s9, s2, s3\ns_cmp_eq_u32 s9, 0\ns_cbranch_scc0 {L('nononce')}")
with a.skippable():
    a(f"""
    s_memrealtime s[80:81]
    s_waitcnt lgkmcnt(0)
    s_or_b32 s80, s80, 1
    v_mov_b32 v10, s80
    s_mov_b64 exec, 1
    buffer_store_dword v10, v19, {R(DBG)}, 0 offen {SC}
    s_mov_b64 exec, -1
    """)
a.label(L('nononce'))
a(f"""
s_bfe_u32 s7, s3, 0x10001           ; mh
s_lshr_b32 s8, s3, 2                ; hi
s_mul_i32 s72, s6, {KV_J}
s_add_u32 s72, s72, {KVACC}
s_cmp_eq_u32 s5, 1
s_cselect_b32 s9, s4, 1
s_cmp_eq_u32 s9, 0
s_cbranch_scc0 {L('nozero')}
""")
with a.skippable():
    a(f"""
    v_lshlrev_b32 v9, 4, v0
    v_mov_b32 v10, 0
    v_mov_b32 v11, 0
    v_mov_b32 v12, 0
    v_mov_b32 v13, 0
    buffer_store_dwordx4 v[10:13], v9, {R(WS)}, s72 offen {SC}
    s_add_u32 s9, s72, 8192
    s_cmp_eq_u32 s3, 0
    s_cbranch_scc0 {L('nozero')}
    buffer_store_dwordx4 v[10:13], v9, {R(WS)}, s9 offen {SC}
    """)
a.label(L('nozero'))
a(f"""
s_and_b32 s9, s78, s8
s_cmp_eq_u32 s5, 0
s_cselect_b32 s61, s8, s9           ; sel
v_and_b32 v29, 31, v1
v_lshrrev_b32 v30, 5, v1
v_bfe_u32 v31, v1, 1, 3
v_xor_b32 v31, v31, v30
v_lshlrev_b32 v20, 7, v29
v_lshl_add_u32 v8, v31, 4, v20
s_lshl_b32 s9, s7, 1
s_add_u32 s62, s9, s61
s_lshl_b32 s9, s62, 12
s_add_u32 s9, s9, {RB}
v_add_u32 v8, s9, v8
v_xor_b32 v9, 32, v8
v_xor_b32 v10, 64, v8
v_xor_b32 v11, 96, v8
v_xor_b32 v12, 0x1000, v8
v_xor_b32 v13, 0x1000, v9
v_xor_b32 v14, 0x1000, v10
v_xor_b32 v15, 0x1000, v11
v_bfe_u32 v31, v1, 2, 2
v_lshl_add_u32 v20, v30, 3, v31
v_and_b32 v22, 3, v1
v_lshlrev_b32 v22, 3, v22
v_lshl_add_u32 v18, v20, 6, v22
v_lshl_add_u32 v20, v20, 7, v22
v_lshl_add_u32 v21, v30, 2, v31
v_lshl_add_u32 v21, v21, 5, v22
v_bfe_u32 v22, v1, 4, 1
v_lshl_add_u32 v18, v22, 5, v18
v_add_u32 v18, s69, v18
v_and_b32 v31, 2, v31
v_xor_b32 v31, v31, v22
v_lshl_add_u32 v20, v31, 5, v20     ; nat0
s_lshl_b32 s9, s8, 1
s_add_u32 s63, s9, s78              ; nq
s_lshl_b32 s9, s63, 5
v_xor_b32 v23, s9, v20
v_lshl_add_u32 v23, v22, 13, v23
s_lshl_b32 s9, s78, 6
v_xor_b32 v24, s9, v20
s_cmp_eq_u32 s8, 0
s_cselect_b32 s10, 8192, 0
v_add_u32 v25, s10, v24
v_cndmask_b32 v16, v25, v23, vcc
v_add_u32 v16, {RB+16384}, v16
s_and_b32 s9, s6, 1
s_lshl_b32 s9, s9, 6
v_xor_b32 v25, s9, v20
v_add_u32 v25, 8192, v25
s_and_b32 s9, s5, s8
s_cmp_eq_u32 s9, 1
s_cselect_b64 s[80:81], -1, 0
v_cndmask_b32 v17, v24, v25, s[80:81]
v_add_u32 v17, {RB+32768}, v17
v_mov_b32 v20, v24
v_mul_u32_u24 v23, 192, v22
v_lshlrev_b32 v24, 2, v29
s_lshl_b32 s9, s63, 6
v_add3_u32 v23, v23, v24, s9
s_lshl_b32 s9, s78, 7
s_cmp_eq_u32 s8, 0
s_cselect_b32 s10, 256, 0
s_add_u32 s10, s10, s9
v_add_u32 v25, s10, v24
v_cndmask_b32 v23, v25, v23, vcc
s_add_u32 s9, s9, 512
s_and_b32 s10, s5, s8
s_cmp_eq_u32 s10, 1
s_cselect_b32 s9, 768, s9
v_add_u32 v24, s9, v24
s_lshl_b32 s66, s66, 1
s_add_u32 s66, s66, s78
s_lshl_b32 s67, s67, 1
s_add_u32 s67, s67, s78
s_lshl_b32 s68, s68, 1
s_and_b32 s9, s6, 1
s_add_u32 s68, s68, s9
s_cmp_eq_u32 s10, 1
s_cselect_b32 s67, s68, s67
s_lshl_b32 s9, s78, 1
s_cmp_eq_u32 s5, 0
s_cselect_b32 s9, s63, s9
s_lshl_b32 s10, s6, 2
s_add_u32 s65, s10, s9
s_lshl_b32 s9, s9, 9
s_add_u32 s9, s9, 14336
v_add_u32 v21, s9, v21
v_mov_b32 v22, 0x3f803f80
v_and_b32 v27, 15, v1
v_lshlrev_b32 v27, 2, v27
s_lshl_b32 s9, s4, 7
s_add_u32 s9, s9, {EFS}
s_lshl_b32 s10, s79, 7
s_add_u32 s10, s10, {EFC}
v_add_u32 v25, s9, v27
v_add_u32 v28, s10, v27
v_lshrrev_b32 v27, 4, v1
v_cmp_eq_u32 vcc, 1, v27
v_cndmask_b32 v25, v25, v28, vcc
s_lshl_b32 s9, s6, 2
s_add_u32 s9, s9, {EFS+32}
v_writelane_b32 v25, s9, 32
""")
fin(a, "b1", B1); fin(a, "wphi", WPHI); fin(a, "w2", W2); fin(a, "wo", WO); fin(a, "b2", B2); fin(a, "out", OUT)
st(grp="P")
a.wv("E")
st(grp="P")
for k, off in enumerate((0, 256, 1024, 1280)): a(f"ds_read_b64_tr_b16 {V(120+2*k,2)}, v18 offset:{off}", "EW")
a("v_mov_b32 v116, 0\nv_mov_b32 v117, 0\nv_mov_b32 v118, 0")
for q in range(4):
    a(f"v_dot2_f32_bf16 v116, v{112+q}, v22, v116\nv_dot2_f32_bf16 v117, v{112+q}, v{112+q}, v117")
a.wl("EW")
for q in range(8): a(f"v_dot2_f32_bf16 v118, v{120+q}, v22, v118")
for dpp in ("quad_perm:[1,0,3,2]", "quad_perm:[2,3,0,1]", "row_half_mirror", "row_mirror"):
    a(f"v_add_f32_dpp v116, v116, v116 {dpp} row_mask:0xf bank_mask:0xf\nv_add_f32_dpp v117, v117, v117 {dpp} row_mask:0xf bank_mask:0xf")
a(f"""
v_permlane16_swap_b32 v116, v117
v_add_f32 v116, v116, v117
v_mov_b32 v119, v118
v_mov_b32 v117, v116
v_permlane32_swap_b32 v118, v119
v_permlane32_swap_b32 v116, v117
v_add_f32 v118, v118, v119
v_add_f32 v116, v116, v117
v_mov_b32 v117, v116
v_permlane16_swap_b32 v116, v117
v_mul_f32 v116, 0x3b000000, v116
v_mul_f32 v117, 0x3b000000, v117
v_fma_f32 v117, -v116, v116, v117
v_max_f32 v117, 0, v117
v_add_f32 v117, 0x3727c5ac, v117
v_rsq_f32 v114, v117
v_sub_f32 v116, 0, v116
v_mul_f32 v117, v117, v114
v_cvt_pk_bf16_f32 v120, v116, v117
v_and_b32 v121, 0xffff0000, v120
v_lshlrev_b32 v122, 16, v120
v_sub_f32 v123, v116, v122
v_sub_f32 v124, v117, v121
v_cvt_pk_bf16_f32 v112, v122, v123
v_cvt_pk_bf16_f32 v113, v121, v124
s_lshl_b32 s10, s4, 7
s_lshl_b32 s11, s79, 3
s_add_u32 s10, s10, s11
s_add_u32 s10, s10, s3
s_lshl_b32 s10, s10, 4
s_add_u32 s10, s10, {STAT}
s_mul_i32 s11, s79, 14336
s_mul_i32 s71, s4, 896
s_add_u32 s11, s11, s71
s_lshl_b32 s71, s3, 7
s_add_u32 s11, s11, s71
s_add_u32 s11, s11, {CSP}
v_lshlrev_b32 v120, 2, v1
s_mov_b64 exec, 1
buffer_store_dwordx4 v[112:115], v19, {R(WS)}, s10 offen {SC}
s_cmp_lt_u32 s3, 7
s_cselect_b32 exec_lo, -1, 0
s_cbranch_scc0 {L('nocs')}
""")
with a.skippable():
    a(f"buffer_store_dword v118, v120, {R(WS)}, s11 offen {SC}")
a.label(L('nocs'))
a("s_mov_b64 exec, -1")
a(f"buffer_load_dword v31, v19, {R(DBG)}, 0 offen {SC}", "N0")
a("v_lshlrev_b32 v120, 1, v29\ns_lshl_b32 s9, s66, 6\ns_lshl_b32 s10, s67, 6")
a(f"buffer_load_ushort v27, v120, {R(B1)}, s9 offen", "S")
a(f"buffer_load_ushort v28, v120, {R(B1)}, s10 offen", "S")
st(); st(grp="P")

def side_flags(tg, tmp):
    a(f"s_cmp_eq_u32 s3, 0\ns_cbranch_scc0 {L('nofl'+tg)}")
    with a.skippable():
        a("s_mov_b32 s71, 0")
        a.label(L('nspin'+tg))
        a(f"""
        v_readfirstlane_b32 s9, v31
        s_add_u32 s71, s71, 1
        s_cmp_gt_u32 s71, {SPIN}
        s_cbranch_scc1 {L('nok'+tg)}
        s_cmp_lg_u32 s9, 0
        s_cbranch_scc1 {L('nok'+tg)}
        buffer_load_dword v31, v19, {R(DBG)}, 0 offen {SC}
        s_waitcnt vmcnt(0)
        s_branch {L('nspin'+tg)}
        """)
        a.label(L('nok'+tg))
        a(f"""
        s_lshl_b32 s10, s4, 7
        s_lshl_b32 s11, s79, 2
        s_add_u32 s10, s10, s11
        s_lshl_b32 s11, s79, 7
        s_lshl_b32 s71, s4, 2
        s_add_u32 s11, s11, s71
        s_add_u32 s11, s11, {EFC-EFS}
        v_mov_b32 v{tmp}, s10
        v_writelane_b32 v{tmp}, s11, 1
        s_mov_b32 s10, {EFS}
        s_mov_b64 exec, 3
        buffer_store_dword v31, v{tmp}, {R(WS)}, s10 offen {SC}
        s_mov_b64 exec, -1
        """)
    a.label(L('nofl'+tg))
def side_wphi_dma(tg):
    a(f"s_cmp_lt_u32 s3, 2\ns_cbranch_scc0 {L('nowp'+tg)}")
    with a.skippable():
        a(f"s_add_u32 m0, s70, 14336\ns_lshl_b32 s9, s6, 11\ns_add_u32 s9, s9, s70\nbuffer_load_dwordx4 v26, {R(WPHI)}, s9 offen lds")
    a.label(L('nowp'+tg))
def side_poll_issue(tg):
    a(f"s_cmp_eq_u32 s3, 0\ns_cbranch_scc0 {L('npi'+tg)}")
    with a.skippable():
        a(f"buffer_load_dword v18, v25, {R(WS)}, 0 offen {SC}")
    a.label(L('npi'+tg))
def side_poll_wait(tg, restore_vcc):
    a(f"s_cmp_eq_u32 s3, 0\ns_cbranch_scc0 {L('fok2'+tg)}")
    with a.skippable():
        a("s_mov_b32 s71, 0")
        a.label(L('fspin'+tg))
        a(f"""
        v_cmp_ne_u32 vcc, v18, v31
        s_cmp_eq_u64 vcc, 0
        s_cbranch_scc1 {L('fok'+tg)}
        s_add_u32 s71, s71, 1
        s_cmp_gt_u32 s71, {SPIN}
        s_cbranch_scc1 {L('fok'+tg)}
        s_sleep {SLP}
        buffer_load_dword v18, v25, {R(WS)}, 0 offen {SC}
        s_waitcnt vmcnt(0)
        s_branch {L('fspin'+tg)}
        """)
        a.label(L('fok'+tg))
        if restore_vcc: a("s_mov_b64 vcc, s[80:81]")
        a("ds_write_b32 v19, v31 offset:16380\ns_waitcnt lgkmcnt(0)")
    a.label(L('fok2'+tg))
def side_poll_check(tg, raw, tmp, ptag):
    a(f"ds_read_b32 v31, v19 offset:16380", ptag)
    a(f"""
    v_lshlrev_b32 v{tmp}, 4, v29
    s_lshl_b32 s9, s4, 11
    s_lshl_b32 s10, s62, 9
    s_add_u32 s9, s9, s10
    s_add_u32 s9, s9, {STAT}
    s_xor_b32 s10, s9, 512
    """)
    a(f"s_cmp_lt_u32 s3, 7\ns_cbranch_scc0 {L('nocsd'+tg)}")
    with a.skippable():
        a(f"s_mul_i32 s11, s79, 14336\ns_add_u32 s11, s11, s69\ns_add_u32 s11, s11, {CSP}\ns_mov_b32 m0, s69")
        a(f"buffer_load_dwordx4 v26, {R(WS)}, s11 offen {SC} lds")
        a(f"buffer_load_dwordx4 v26, {R(WS)}, s11 offen offset:1024 {SC} lds")
    a.label(L('nocsd'+tg))
    a(f"buffer_load_dwordx4 {V(raw)}, v{tmp}, {R(WS)}, s9 offen {SC}", "ST")
    a(f"buffer_load_dwordx4 {V(raw+4)}, v{tmp}, {R(WS)}, s10 offen {SC}", "ST")
def side_csred(tg, t16, tmp):
    a(f"s_cmp_lt_u32 s3, 4\ns_cbranch_scc0 {L('nored'+tg)}")
    with a.skippable():
        a(f"v_min_u32 v{tmp}, 223, v0\nv_lshlrev_b32 v{tmp}, 2, v{tmp}")
        for g in range(16): a(f"ds_read_b32 v{t16+g}, v{tmp} offset:{g*896}")
        a("s_waitcnt lgkmcnt(0)")
        for w in (8, 4, 2, 1):
            for g in range(w): a(f"v_add_f32 v{t16+g}, v{t16+g}, v{t16+g+w}")
        a(f"""
        v_cvt_pk_bf16_f32 v{t16+1}, v{t16}, v{t16}
        v_and_b32 v{t16+1}, 0xffff0000, v{t16+1}
        v_sub_f32 v{t16+2}, v{t16}, v{t16+1}
        v_cvt_pk_bf16_f32 v{t16}, v{t16+1}, v{t16+2}
        ds_write_b32 v{tmp}, v{t16}
        """)
    a.label(L('nored'+tg))
def side_bext(raw, BX, RR, tmp):
    for t in range(2):
        s0 = raw+4*t; B = BX+4*t; rr = RR+3*t
        a(f"""
        v_and_b32 v{tmp}, 0xffff, v{s0}
        v_lshl_or_b32 v{B}, v{tmp}, 16, v{tmp}
        v_lshrrev_b32 v{tmp}, 16, v{s0}
        v_lshl_or_b32 v{B+1}, v{tmp}, 16, v{tmp}
        v_mov_b32 v{B+2}, v{s0+1}
        v_mov_b32 v{B+3}, 0
        v_mov_b32 v{rr}, v{s0+2}
        v_mul_f32 v{rr+1}, {LOG2E}, v{s0+2}
        v_mul_f32 v{rr+2}, 0.5, v{s0+2}
        """)
MAP = env("MAP", 0)
if MAP == 0:
    P2MAP = f"""
    s_and_b32 s82, s2, 7
    s_lshl_b32 s82, s82, 2
    s_bfe_u32 s9, s2, 0x20003
    s_add_u32 s82, s82, s9
    s_lshr_b32 s62, s2, 5
    s_mul_i32 s76, s62, 7
    s_lshr_b32 s76, s76, 2
    s_mul_i32 s9, s9, 3
    """
elif MAP == 2:
    P2MAP = f"""
    s_and_b32 s82, s2, 7
    s_lshl_b32 s82, s82, 2
    s_lshr_b32 s9, s2, 6
    s_add_u32 s82, s82, s9
    s_bfe_u32 s62, s2, 0x30003
    s_mul_i32 s76, s62, 7
    s_lshr_b32 s76, s76, 2
    s_mul_i32 s9, s9, {env("RM", 3)}
    """ + ("s_cmp_ge_u32 s9, 14\n    s_cselect_b32 s10, 14, 0\n    s_sub_u32 s9, s9, s10\n" if env("RM", 3) > 4 else "")
else:
    P2MAP = f"""
    s_bfe_u32 s82, s2, 0x20001
    s_lshl_b32 s82, s82, 3
    s_lshr_b32 s76, s2, 5
    s_add_u32 s82, s82, s76
    s_and_b32 s62, s2, 1
    s_lshl_b32 s62, s62, 2
    s_bfe_u32 s9, s2, 0x20003
    s_add_u32 s62, s62, s9
    s_mul_i32 s76, s76, 7
    s_lshr_b32 s76, s76, 2
    s_mul_i32 s9, s9, 3
    """
P2MAP += f"""
    s_add_u32 s76, s76, s9
    s_lshl_b32 s62, s62, 7
    s_mul_i32 s60, s3, {14*16*1024}
    s_add_u32 s60, s60, s62
    s_add_u32 s83, s60, {14*16384}
    s_lshl_b32 s68, s3, 16
    s_add_u32 s68, s68, s62
"""
TP0 = env("TP0", -1); TPS = env("TPS", 2)
def side_touch(tg, p, r1, r2):
    if TP0 < 0 or p < TP0 or (p-TP0) % TPS or (p-TP0)//TPS >= 8: return
    w = (p-TP0)//TPS
    a(f"s_cmp_eq_u32 s3, {w}\ns_cbranch_scc0 {L(f'pf{tg}{w}')}")
    with a.skippable():
        a(f"""
        s_lshr_b32 s9, s2, 3
        s_lshl_b32 s9, s9, 3
        s_add_u32 s9, s9, s3
        s_and_b32 s71, s2, 1
        s_lshl_b32 s71, s71, 9
        s_mul_i32 s10, s9, {7*1024}
        s_add_u32 s10, s10, s71
        s_lshl_b32 s11, s9, 11
        s_add_u32 s11, s11, s71
        v_lshrrev_b32 v{r1}, 2, v1
        v_and_b32 v{r2}, 3, v1
        v_lshlrev_b32 v{r2}, 7, v{r2}
        v_lshl_add_u32 v{r1}, v{r1}, 10, v{r2}
        s_mov_b64 exec, 0xfffffff
        buffer_load_dword v{r2}, v{r1}, {R(W2)}, s10 offen
        s_mov_b64 exec, 0xff
        buffer_load_dword v{r1}, v{r1}, {R(WO)}, s11 offen
        s_mov_b64 exec, -1
        """)
    a.label(L(f'pf{tg}{w}'))
def side_slow(tg, p, r1):
    if p != env("TQ", -1): return
    a(f"s_cmp_lt_u32 s3, 6\ns_cbranch_scc1 {L('sl3'+tg)}")
    with a.skippable():
        a(f"""
        s_lshr_b32 s9, s2, 3
        v_lshlrev_b32 v{r1}, 10, v1
        s_cmp_eq_u32 s3, 6
        s_cbranch_scc1 {L('sl1'+tg)}
        s_lshr_b32 s10, s{W2}, 7
        s_sub_u32 s10, 3, s10
        s_and_b32 s10, s10, 7
        s_lshl_b32 s10, s10, 7
        s_mul_i32 s9, s9, {56*1024}
        s_add_u32 s9, s9, s10
        s_mov_b32 exec_hi, 0xffffff
        buffer_load_dword v{r1}, v{r1}, {R(W2)}, s9 offen
        s_branch {L('sl2'+tg)}
        """)
        a.label(L('sl1'+tg))
        a(f"""
        s_lshr_b32 s10, s{WO}, 7
        s_sub_u32 s10, 3, s10
        s_and_b32 s10, s10, 7
        s_lshl_b32 s10, s10, 7
        s_lshl_b32 s9, s9, 14
        s_add_u32 s9, s9, s10
        s_mov_b64 exec, 0xffff
        buffer_load_dword v{r1}, v{r1}, {R(WO)}, s9 offen
        """)
        a.label(L('sl2'+tg))
        a("s_mov_b64 exec, -1")
    a.label(L('sl3'+tg))
def side_slow2(p, r1):
    T0 = env("TS0", -1); TS = env("TSS", 4)
    if T0 < 0 or p < T0 or (p-T0) % TS or (p-T0)//TS > 4: return
    k = (p-T0)//TS
    a(f"s_cmp_eq_u32 s3, {4 + (k & 3)}\ns_cbranch_scc0 {L(f'sq{k}')}")
    with a.skippable():
        srd = W2 if k < 4 else WO
        a(f"""
        s_bfe_u32 s9, s2, 0x40003
        v_lshlrev_b32 v{r1}, 10, v1
        s_lshr_b32 s10, s{srd}, 7
        s_sub_u32 s10, 3, s10
        s_and_b32 s10, s10, 7
        s_lshl_b32 s10, s10, 7
        s_mul_i32 s9, s9, {112*1024 if k < 4 else 32*1024}
        s_add_u32 s9, s9, s10
        s_add_u32 s9, s9, {k*28*1024 if k < 4 else 0}
        s_mov_b64 exec, {hex((1<<28)-1) if k < 4 else hex((1<<32)-1)}
        buffer_load_dword v{r1}, v{r1}, {R(srd)}, s9 offen
        s_mov_b64 exec, -1
        """)
    a.label(L(f'sq{k}'))
def side_p2(t3):
    a(f"""
    v_readfirstlane_b32 s75, v31
    v_lshrrev_b32 v{t3}, 3, v1
    v_and_b32 v{t3+1}, 7, v1
    v_lshrrev_b32 v{t3+2}, 2, v1
    v_and_b32 v{t3+2}, 4, v{t3+2}
    v_xor_b32 v{t3+1}, v{t3+1}, v{t3+2}
    v_lshlrev_b32 v{t3}, 10, v{t3}
    v_lshl_add_u32 v18, v{t3+1}, 4, v{t3}
    s_lshl_b32 s74, s4, 2
    s_add_u32 s74, s74, s62
    s_xor_b32 s64, s74, 1
    s_mul_i32 s74, s74, {AF_TG}
    s_mul_i32 s64, s64, {AF_TG}
    {P2MAP}
    s_cmp_ge_u32 s76, 14
    s_cselect_b32 s9, 14, 0
    s_sub_u32 s76, s76, s9
    s_lshl_b32 s61, s76, 14
    s_add_u32 s61, s61, s60
    """)
def p2_adv(x):
    x("s_add_u32 s61, s61, 16384\ns_cmp_eq_u32 s61, s83\ns_cselect_b32 s61, s60, s61")
W2PG = [7, 8, 9, 1, 2, 3, 4, 5, 6]
def p2_dma(x, u, tag, partner=False):
    pg = W2PG[u % 9]
    for half in range(2):
        x(f"s_add_u32 m0, s69, {pg*PG + half*1024}")
        if u < 14:
            if half == 0: x(f"s_add_u32 s71, s61, 8192\nbuffer_load_dwordx4 v18, {R(W2)}, s61 offen lds", tag)
            else: x(f"buffer_load_dwordx4 v18, {R(W2)}, s71 offen lds", tag)
        else:
            x(f"s_add_u32 s71, s68, {((u-14)*16+half*8)*1024}")
            x(f"buffer_load_dwordx4 v18, {R(WO)}, s71 offen lds", tag)
    if partner:
        for half in range(2):
            x(f"s_add_u32 m0, s69, {pg*PG + half*1024 + 8192}\ns_add_u32 s71, s61, {4*14*16384 + half*8192}")
            x(f"buffer_load_dwordx4 v18, {R(W2)}, s71 offen lds", tag)
    if u < 14: p2_adv(x)
def p2_dma_partner(x, u, tag):
    pg = W2PG[u % 9]
    for half in range(2):
        x(f"s_add_u32 m0, s69, {pg*PG + half*1024 + 8192}")
        if u < 14:
            x(f"s_add_u32 s71, s81, {4*14*16384 + half*8192}")
            x(f"buffer_load_dwordx4 v18, {R(W2)}, s71 offen lds", tag)
        else:
            x(f"s_add_u32 s71, s68, {4*65536 + ((u-14)*16+half*8)*1024}")
            x(f"buffer_load_dwordx4 v18, {R(WO)}, s71 offen lds", tag)
    if u < 14: x("s_add_u32 s81, s81, 16384\ns_cmp_eq_u32 s81, s83\ns_cselect_b32 s81, s60, s81")
def p2_dma2(x, u, tag):
    pg = W2PG[u % 9]
    for half in range(2):
        x(f"s_add_u32 m0, s69, {pg*PG + half*1024}")
        if u < 14:
            x(f"s_add_u32 s71, s81, {half*8192}")
            x(f"buffer_load_dwordx4 v18, {R(W2)}, s71 offen lds", tag)
        else:
            x(f"s_add_u32 s71, s68, {((u-14)*16+half*8)*1024}")
            x(f"buffer_load_dwordx4 v18, {R(WO)}, s71 offen lds", tag)
    if u < 14: x("s_add_u32 s81, s81, 16384\ns_cmp_eq_u32 s81, s83\ns_cselect_b32 s81, s60, s81")
def lds_wait(lab, off):
    a("s_mov_b32 s71, 0")
    a.label(L(lab))
    a(f"""
    ds_read_b32 v10, v11 offset:{off}
    s_waitcnt lgkmcnt(0)
    v_readfirstlane_b32 s9, v10
    s_add_u32 s71, s71, 1
    s_cmp_gt_u32 s71, {SPIN*8}
    s_cbranch_scc1 {L(lab+'x')}
    s_cmp_eq_u32 s9, s75
    s_cbranch_scc1 {L(lab+'x')}
    s_sleep 1
    s_branch {L(lab)}
    """)
    a.label(L(lab+'x'))
def poison(r):
    a(f"s_add_u32 s9, s65, 112\ns_lshl_b32 s9, s9, 10\ns_add_u32 s10, s9, s64\ns_add_u32 s9, s9, s74")
    a(f"v_mov_b32 v{r}, -1\nv_mov_b32 v{r+1}, -1\nv_mov_b32 v{r+2}, -1\nv_mov_b32 v{r+3}, -1")
    for f in range(2):
        for h in range(2): a(f"buffer_store_dwordx4 {V(r)}, v26, {R(WS)}, {('s9','s10')[f]} offen offset:{h*1024} {SC}")
def softmax(x, P, Pp, Pm, c):
    E = 112
    x(f"""
    v_max3_f32 v2, v{P}, v{P+1}, v{P+2}
    v_max3_f32 v3, -v{P}, -v{P+1}, -v{P+2}
    v_max3_f32 v2, v2, v{P+3}, v{P+4}
    v_max3_f32 v3, v3, -v{P+3}, -v{P+4}
    v_max3_f32 v2, v2, v{P+5}, v{P+6}
    v_max3_f32 v3, v3, -v{P+5}, -v{P+6}
    v_max_f32 v2, v2, v{P+7}
    v_max_f32_e64 v3, v3, -v{P+7}
    v_permlane32_swap_b32 v2, v3
    v_max_f32 v2, v2, v3
    v_mul_f32_e64 v2, -v2, v{c}
    v_mov_b32 v3, v2
    v_permlane32_swap_b32 v2, v3
    """)
    for r in range(8): x(f"v_fma_f32 v{E+r}, -v{P+r}, v{c}, v3\nv_fma_f32 v{P+r}, v{P+r}, v{c}, v2")
    for r in range(8): x(f"v_exp_f32 v{E+r}, v{E+r}\nv_exp_f32 v{P+r}, v{P+r}")
    x(f"v_add_f32 v2, v{P}, v{P+1}\nv_add_f32 v3, v{E}, v{E+1}")
    for r in range(2, 8): x(f"v_add_f32 v2, v2, v{P+r}\nv_add_f32 v3, v3, v{E+r}")
    x("v_permlane32_swap_b32 v2, v3\nv_add_f32 v2, v2, v3\nv_rcp_f32 v2, v2\nv_mov_b32 v3, v2\nv_permlane32_swap_b32 v2, v3")
    for r in range(8): x(f"v_mul_f32 v{P+r}, v{P+r}, v2\nv_mul_f32 v{E+r}, v{E+r}, v3")
    for q in range(4): x(f"v_cvt_pk_bf16_f32 v{Pp+q}, v{P+2*q}, v{P+2*q+1}\nv_cvt_pk_bf16_f32 v{Pm+q}, v{E+2*q}, v{E+2*q+1}")
def ffn_epi(x, acc, s_tile, f, rh, so=9):
    a(f"s_lshl_b32 s{so}, s{s_tile}, 11\ns_add_u32 s{so}, s{so}, s{(74,64)[f]}")
    for r in range(16): x(f"v_add_f32_e64 v{acc+r}, v{acc+r}, |v{acc+r}|")
    for r in range(16): x(f"v_mul_f32 v{acc+r}, v{acc+r}, v{rh}")
    for r in range(16): x(f"v_mul_f32 v{acc+r}, v{acc+r}, v{acc+r}")
    for q in range(8): x(f"v_cvt_pk_bf16_f32 v{acc+q}, v{acc+2*q}, v{acc+2*q+1}")
    x(f"buffer_store_dwordx4 {V(acc)}, v26, {R(WS)}, s{so} offen {SC}", "H")
    x(f"buffer_store_dwordx4 {V(acc+4)}, v26, {R(WS)}, s{so} offen offset:1024 {SC}", "H")
def flag_store(soff):
    a(f"""
    v_mov_b32 v31, s75
    s_mov_b64 exec, 1
    buffer_store_dword v31, v19, {R(WS)}, {soff} offen {SC}
    s_mov_b64 exec, -1
    """)
WREG = 128; P2ACC = 64; WTMP = 48; TRA = 2
def p2_traddr(t=2, q=8):
    a(f"""
    v_lshrrev_b32 v{q}, 5, v1
    v_bfe_u32 v{q+1}, v1, 2, 2
    v_lshl_add_u32 v{q}, v{q}, 2, v{q+1}
    v_lshlrev_b32 v{q}, 7, v{q}
    v_and_b32 v{q+2}, 3, v1
    v_lshl_add_u32 v{q}, v{q+2}, 3, v{q}
    v_bfe_u32 v{q+2}, v1, 4, 1
    v_and_b32 v{q+1}, 2, v{q+1}
    v_or_b32 v{q+2}, v{q+2}, v{q+1}
    v_lshl_add_u32 v{t}, v{q+2}, 5, v{q}
    v_add_u32 v{t}, s69, v{t}
    v_xor_b32 v{t+1}, 64, v{t}
    v_add_u32 v{t+2}, 0x10000, v{t}
    v_add_u32 v{t+3}, 0x10000, v{t+1}
    v_add_u32 v{t+4}, 0x20000, v{t}
    v_add_u32 v{t+5}, 0x20000, v{t+1}
    """)
def p2_tr(x, dst, u, tag):
    pg = W2PG[u % 9]
    for b in range(2):
        for e in range(2):
            x(f"ds_read_b64_tr_b16 {V(dst+4*b+2*e,2)}, v{TRA+2*(pg>>2)+b} offset:{(pg&3)*PG+e*1024}", tag)
def hflag():
    a(f"""
    s_lshl_b32 s9, s4, 1
    s_add_u32 s9, s9, s7
    s_lshl_b32 s77, s9, 8
    s_lshl_b32 s10, s79, 2
    s_add_u32 s10, s10, s63
    s_lshl_b32 s10, s10, 2
    s_add_u32 s9, s77, s10
    s_add_u32 s9, s9, {HF}
    """)
    flag_store("s9")
def kvpoll(w, lab):
    a(f"s_cmp_eq_u32 s3, {w}\ns_cbranch_scc0 {L(lab)}")
    with a.skippable():
        a("s_mov_b32 s71, 0")
        a.label(L('pk'))
        a(f"""
        buffer_load_dwordx2 v[10:11], v8, {R(WS)}, s66 offen {SC}
        s_waitcnt vmcnt(0)
        v_cmp_ne_u32 vcc, s75, v10
        v_cmp_ne_u32 s[80:81], s75, v11
        s_or_b64 vcc, vcc, s[80:81]
        s_cmp_eq_u64 vcc, 0
        s_cbranch_scc1 {L('pk2')}
        s_add_u32 s71, s71, 1
        s_cmp_gt_u32 s71, {SPIN}
        s_cbranch_scc1 {L('pk2')}
        s_sleep {SLP}
        s_branch {L('pk')}
        """)
        a.label(L('pk2'))
        for q in range(9):
            a(f"s_mov_b32 m0, {q*1024}\ns_add_u32 s10, s72, {q*1024}\nbuffer_load_dwordx4 v26, {R(WS)}, s10 offen {SC} lds")
        a("s_waitcnt vmcnt(0)\nv_mov_b32 v10, s75\nds_write_b32 v19, v10 offset:12288")
    a.label(L(lab))
ACC = [32, 48, 64, 80]
T = 96; KP = 2*PG; XF = 128
a(f"s_cmp_eq_u32 s5, 0\ns_cbranch_scc0 {L('typeB')}")
a.qsave("br")
for p in range(4): dma(1, p)
for i in range(8): a(f"v_add_u32 v{112+i}, {2*SLOT}, v{8+i}")
a(f"v_add_u32 v17, {2*SLOT}, v16")
a("v_lshlrev_b32 v121, 2, v30\nv_sub_u32 v121, v29, v121\nv_mov_b32 v122, 0x3f80\nv_mov_b32 v123, 0x3f800000")
SEL, WPH, BX, RRA, RAW = 64, 72, 76, 84, 120
for k in range(8):
    sg = k >> 2; q = k & 3
    f0 = (2*q & 3) + 8*((2*q) >> 2) + 16*sg
    a(f"v_cmp_eq_u32 vcc, {f0}, v121\nv_cndmask_b32 v{SEL+k}, 0, v122, vcc\nv_cmp_eq_u32 vcc, {f0+1}, v121\nv_cndmask_b32 v{SEL+k}, v{SEL+k}, v123, vcc")
st(grp="P"); a.wv("C0"); st(grp="P"); a("s_barrier"); st(grp="P")
st(grp="A")
def rdA(p):
    i = p & 3; b = 96 + 8*(p & 1); c = p >> 2; sl = c % 3
    ab = 8 if sl < 2 else 112; so = SLOT if sl == 1 else 0
    a(f"ds_read_b128 {V(XF+4*p)}, v{ab+i} offset:{so}", f"P{p}")
    for e in range(2): a(f"ds_read_b64_tr_b16 {V(b+4+2*e,2)}, v{16 if sl < 2 else 17} offset:{so+i*2048+e*512}", f"P{p}")
    a(f"ds_read_b128 {V(b)}, v{ab+4+i} offset:{so}", f"P{p}")
rdA(0)
for p in range(32):
    c = p >> 2; i = p & 3
    a.wl(f"P{p}")
    if i == 3 and c < 7:
        if c in (2,3): st(grp="W")
        a.wv(f"C{c+1}")
        if c in (2,3): st(grp="W")
        if p == 23: st(grp="W"); side_poll_wait("A", False)
        a("s_barrier"); st(grp="A")
        if c in (2,3,5): st(grp="W")
    if p+1 < 32: rdA(p+1)
    b = 96 + 8*(p & 1)
    a(f"{MF} {V(ACC[0],16)}, {V(b+4)}, {V(XF+4*p)}, {V(ACC[0],16) if p else 0}")
    if p < 2: dma(2, 2*p); dma(2, 2*p+1)
    elif p >= 3:
        cc = ((p-3) >> 2) + 3
        if cc <= 7: dma(cc, (p-3) & 3)
    a(f"{MF} {V(ACC[1],16)}, {V(b+4)}, {V(b)}, {V(ACC[1],16) if p else 0}")
    side_slow("A", p, 94)
    if p == 0: side_wphi_dma("A")
    if p == 3: side_flags("A", 90)
    if p == 8:
        for e in range(2): a(f"ds_read_b64_tr_b16 {V(WPH+2*e,2)}, v21 offset:{e*256}", f"P{p+1}")
    if p == 17: side_poll_issue("A")
    if p == 23: side_poll_check("A", RAW, 92, "P24")
    if p == 24: side_p2(90)
    if AW == 0:
        if p in (24, 25, 26): p2_dma(a, p-24, "D1")
        if p == 28: p2_dma(a, 3, "D1")
    if AW == 2 and p in (27, 28):
        a(f"s_add_u32 m0, s70, {3*PG + (p-27)*8192}")
        a(f"buffer_load_dwordx4 v6, {R(W1)}, s73 offen lds", "I2")
        a(f"s_add_u32 s73, s73, {64*3584}")
st(); st(grp="B")
a.wv("ST"); a("s_barrier")
side_csred("A", 96, 92)
side_bext(RAW, BX, RRA, 92)
a("v_mov_b32 v95, v6")
a("s_waitcnt lgkmcnt(0)\ns_barrier")
st(grp="B")
a(f"""
ds_read_b32 v120, v23
ds_read_b32 v4, v24
v_cmp_gt_u32 vcc, 32, v1
v_lshl_or_b32 v28, v28, 16, v28
v_cndmask_b32 v6, 0, v28, vcc
v_cmp_eq_u32 s[80:81], 16, v29
v_cndmask_b32 v27, 0, v22, s[80:81]
v_mov_b32 v122, 0
v_mov_b32 v123, 0
v_mov_b32 v7, 0
s_waitcnt lgkmcnt(0)
v_cndmask_b32 v120, 0, v120, vcc
v_cndmask_b32 v4, 0, v4, vcc
v_mov_b32 v121, v120
v_mov_b32 v5, v4
{MF} {V(ACC[0],16)}, v[120:123], {V(BX)}, {V(ACC[0],16)}
{MF} {V(ACC[1],16)}, v[120:123], {V(BX+4)}, {V(ACC[1],16)}
""")
KVA = 8
a("v_mov_b32 v90, v18\nv_mov_b32 v91, v20")
E = a.sub(); D = a.sub()
for f in range(2):
    acc = ACC[f]; rr = RRA+3*f
    for q in range(4): E(f"v_cvt_pk_bf16_f32 v{120+q}, v{acc+2*q}, v{acc+2*q+1}")
    E(f"{MF} {V(T,16)}, {V(WPH)}, v[120:123], 0")
    for r in range(8, 16): E(f"v_mul_f32 v{acc+r}, v{acc+r}, v{rr}")
    for q in range(4): E(f"v_cvt_pk_bf16_f32 v{120+q}, v{acc+8+2*q}, v{acc+9+2*q}")
    E(f"{MF} {V(acc,16)}, v[120:123], {V(SEL)}, 0")
    softmax(E, T, 120, 124, rr+1)
    E(f"{MF} {V(T,16)}, v[120:123], {V(SEL)}, 0")
    E(f"{MF} {V(T,16)}, v[124:127], {V(SEL+4)}, {V(T,16)}")
    for q in range(8): E(f"v_cvt_pk_bf16_f32 v{112+q}, v{acc+2*q}, v{acc+2*q+1}\nv_or_b32 v{112+q}, v{112+q}, v27")
    for q in range(8): E(f"v_cvt_pk_bf16_f32 v{T+q}, v{T+2*q}, v{T+2*q+1}")
    E(f"{MF} {V(KVA,16)}, {V(T)}, v[112:115], {V(KVA,16) if f else 0}")
    E(f"{MF} {V(KVA,16)}, {V(T+4)}, v[116:119], {V(KVA,16)}")
for c in range(2 if AW == 2 else 0, 8):
    D(f"s_add_u32 m0, s70, {3*PG + c*8192}")
    D(f"buffer_load_dwordx4 v95, {R(W1)}, s73 offen lds", "I2")
    D(f"s_add_u32 s73, s73, {64*3584}")
if AW:
    D2s = a.sub()
    for u in range(4): p2_dma(D2s, u, "D1")
    for it in D2s.items:
        if hasattr(it, "text"):
            D(it.text.replace("v18", "v90"), it.tag)
nE = len(E.items)*env("EFR", 6)//10
E1 = a.sub(); E1.items = E.items[:nE]; E2 = a.sub(); E2.items = E.items[nE:]
a.merge(E1, D); a.extend(E2)
st(grp="B")
a(f"""
s_lshl_b32 s9, s63, 12
s_lshl_b32 s10, s7, 11
s_add_u32 s9, s9, s10
s_add_u32 s9, s9, {KP}
v_add_u32 v92, s9, v26
v_xor_b32 v93, 0x800, v92
v_mul_u32_u24 v94, 17, v30
v_add_u32 v94, v94, v29
v_lshlrev_b32 v94, 2, v94
s_mul_i32 s10, s63, 2176
s_mul_i32 s11, s7, {8*136}
s_add_u32 s10, s10, s11
s_add_u32 s10, s10, s72
v_cmp_gt_u32 s[80:81], 17, v29
s_cmp_eq_u32 s7, 0
s_cbranch_scc1 {L('kv0')}
""")
with a.skippable():
    for q in range(2): a(f"ds_write_b128 v92, {V(KVA+4*q)} offset:{q*1024}")
    for r in range(8): a(f"v_mov_b32 v{KVA+r}, v{KVA+8+r}")
    a(f"s_branch {L('kv1')}")
a.label(L('kv0'))
with a.skippable():
    for q in range(2): a(f"ds_write_b128 v92, {V(KVA+8+4*q)} offset:{q*1024}")
a.label(L('kv1'))
if not env("SEP", 0): a.wv("I2")
a("s_waitcnt lgkmcnt(0)\ns_barrier")
for q in range(2): a(f"ds_read_b128 {V(T+4*q)}, v93 offset:{q*1024}")
a(f"v_mov_b32 v18, v90\nv_mov_b32 v19, 0\nv_add_u32 v20, {3*PG}, v91")
a("s_waitcnt lgkmcnt(0)")
for r in range(8): a(f"v_add_f32 v{KVA+r}, v{KVA+r}, v{T+r}")
a("s_mov_b64 exec, s[80:81]")
for r in range(8): a(f"buffer_atomic_add_f32 v{KVA+r}, v94, {R(WS)}, s10 offen offset:{r*136}", "AT")
a("s_mov_b64 exec, -1")
st(grp="B")
if env("SEP", 0): a.wv("I2"); a("s_barrier")
A2 = 32
def rd2(k):
    b = 48 + 4*(k % 4)
    for e in range(2): a(f"ds_read_b64_tr_b16 {V(b+2*e,2)}, v20 offset:{k*2048+e*512}", f"B{k}")
a(f"{MF} {V(A2,16)}, v[4:7], {V(BX)}, 0")
rd2(0); rd2(1); rd2(2)
K1 = env("K1", 0); K2 = env("K2", 17)
TRA = 96
if K1: p2_traddr(96, 104)
a(f"s_add_u32 s81, s61, {5*16384}\ns_sub_u32 s9, s81, {14*16384}\ns_cmp_ge_u32 s81, s83\ns_cselect_b32 s81, s9, s81")
for k in range(32):
    if k+3 < 32: rd2(k+3)
    a.wl(f"B{k}")
    a(f"{MF} {V(A2,16)}, {V(48+4*(k%4))}, {V(XF+4*k)}, {V(A2,16)}")
    if K1 and k == K1:
        for u in range(4): p2_tr(a, WREG+8*u, u, f"B{k+4}")
    if K1 and K1+4 <= k < K1+8: p2_dma2(a, 9+k-K1-4, "D2")
    if K1 and k == K2: a("s_barrier")
    if K1 and k in (K2+5, K2+7, K2+9): p2_dma(a, 4+(k-K2-5)//2, "D1")
    if k == env("KVK", 20):
        a.wv("AT")
        a(f"""
        s_lshl_b32 s9, s6, 9
        s_lshl_b32 s10, s4, 5
        s_add_u32 s9, s9, s10
        s_lshl_b32 s10, s3, 2
        s_add_u32 s9, s9, s10
        s_add_u32 s9, s9, {KVF}
        """)
        flag_store("s9")
        st(grp="B")
ffn_epi(a, A2, 67, 0, RRA+2)
st()
TRA = 2
p2_traddr()
if K1:
    a("s_barrier")
    for u in range(7, 9): p2_dma(a, u, "D1x")
    a.wv("H")
    hflag()
    st()
    for u in range(4, 7): p2_tr(a, WREG+8*u, u, "W1")
    a("s_barrier")
    a.wl("W1")
    for u in range(13, 16): p2_dma2(a, u, "D2")
    a.wv("D1x")
    for u in range(7, 9): p2_tr(a, WREG+8*u, u, "W1")
    a.wl("W1")
    for u in range(16, 18): p2_dma2(a, u, "D2")
else:
    AT2 = env("AT2", 0)
    for u in range(4): p2_tr(a, WREG+8*u, u, "W1")
    if AT2 == 2:
        a.wl("W1")
        for u in range(9, 13): p2_dma2(a, u, "D2")
    a("s_barrier")
    for u in range(4, 6): p2_dma(a, u, "D1")
    a.wv("H")
    hflag()
    st()
    if AT2 == 0: a("s_barrier")
    for u in range(6, 9): p2_dma(a, u, "D1")
    a.wl("W1")
    if AT2 != 2:
        for u in range(9, 13): p2_dma2(a, u, "D2")
    a.wv("D1")
    for u in range(4, 9): p2_tr(a, WREG+8*u, u, "W1")
    a.wl("W1")
    for u in range(13, 18): p2_dma2(a, u, "D2")
a(f"s_branch {L('tail')}")
a.label(L('typeB'))
a.qload("br")
for p in range(6): dma(1, p)
for i in range(10): a(f"v_add_u32 v{160+i}, {2*SLOT}, v{8+i}")
a("s_cmp_eq_u32 s8, 0\ns_cselect_b64 s[80:81], -1, 0\ns_mov_b64 vcc, s[80:81]")
st(5, grp="P"); a.wv("C0"); st(grp="P"); a("s_barrier"); st(grp="P")
st(1, grp="A")
def rdB(p):
    i = p & 3; b = 96 + 16*(p & 1); c = p >> 2; sl = c % 3
    ab = 8 if sl < 2 else 160; so = SLOT if sl == 1 else 0
    a(f"ds_read_b128 {V(b)}, v{ab+i} offset:{so}", f"P{p}")
    for e in range(2): a(f"ds_read_b64_tr_b16 {V(b+8+2*e,2)}, v{ab+8} offset:{so+i*2048+e*512}", f"P{p}")
    a(f"ds_read_b128 {V(b+4)}, v{ab+4+i} offset:{so}", f"P{p}")
    for e in range(2): a(f"ds_read_b64_tr_b16 {V(b+12+2*e,2)}, v{ab+9} offset:{so+i*2048+e*512}", f"P{p}")
rdB(0)
WPB, BXB, RRB, RAWB = 200, 208, 220, 232
for p in range(32):
    c = p >> 2; i = p & 3
    a.wl(f"P{p}")
    b = 96 + 16*(p & 1)
    BO = env("BO", 0) if (i == 3 and c < 7) else 0
    M01 = [f"{MF} {V(ACC[0],16)}, {V(b+8)}, {V(b)}, {V(ACC[0],16) if p else 0}", f"{MF} {V(ACC[1],16)}, {V(b+8)}, {V(b+4)}, {V(ACC[1],16) if p else 0}"]
    for m in M01[:BO]: a(m)
    if i == 3 and c < 7:
        a.wv(f"C{c+1}")
        if p == 19: side_poll_wait("B", True)
        a("s_barrier"); st(grp="A")
    if p+1 < 32: rdB(p+1)
    for m in M01[BO:]: a(m)
    if p < 3: dma(2, 2*p); dma(2, 2*p+1)
    else:
        cc = ((p-3) >> 2) + 3; q = (p-3) & 3
        if cc <= 7:
            for piece in ((0,1),(2,3),(4,),(5,))[q]: dma(cc, piece)
    a(f"{MF} {V(ACC[2],16)}, {V(b+12)}, {V(b)}, {V(ACC[2],16) if p else 0}")
    a(f"s_cbranch_vccz {L(f'm4_{p}')}")
    with a.skippable():
        a(f"{MF} {V(ACC[3],16)}, {V(b+12)}, {V(b+4)}, {V(ACC[3],16) if p else 0}")
    a.label(L(f"m4_{p}"))
    side_slow("B", p, 250); side_slow2(p, 250 + ((p//4) & 1))
    if p == 0: side_wphi_dma("B")
    if p == 3: side_flags("B", 240)
    if p == 8:
        for h in range(2):
            for e in range(2): a(f"ds_read_b64_tr_b16 {V(WPB+4*h+2*e,2)}, v21 offset:{h*512+e*256}", f"P{p+1}")
    if p == 13: side_poll_issue("B")
    if p == 19: side_poll_check("B", RAWB, 240, "P20")
    if p == 26: a.wv("ST")
    if p == 28: side_csred("B", 144, 240)
    if p == 29: side_bext(RAWB, BXB, RRB, 240)
    if p == 22:
        side_p2(240)
        if env("PZ", 0):
            a(f"s_cbranch_vccnz {L('nopz')}")
            with a.skippable(): poison(244)
            a.label(L('nopz'))
    if p in (23, 24, 25): p2_dma(a, p-23, "D1a")
    if p in (27, 29, 30): p2_dma(a, {27:3, 29:4, 30:5}[p], "D1b")
st(2)
a("s_waitcnt lgkmcnt(0)\ns_barrier")
a(f"""
ds_read_b32 v216, v23
ds_read_b32 v240, v24
v_cmp_gt_u32 vcc, 32, v1
v_lshl_or_b32 v27, v27, 16, v27
v_lshl_or_b32 v28, v28, 16, v28
s_and_b64 s[80:81], s[80:81], vcc
v_cndmask_b32 v218, 0, v27, s[80:81]
v_cndmask_b32 v242, 0, v28, vcc
v_mov_b32 v219, 0
v_mov_b32 v243, 0
s_waitcnt lgkmcnt(0)
v_cndmask_b32 v216, 0, v216, vcc
v_cndmask_b32 v240, 0, v240, vcc
v_mov_b32 v217, v216
v_mov_b32 v241, v240
{MF} {V(ACC[0],16)}, v[216:219], {V(BXB)}, {V(ACC[0],16)}
{MF} {V(ACC[1],16)}, v[216:219], {V(BXB+4)}, {V(ACC[1],16)}
{MF} {V(ACC[2],16)}, v[240:243], {V(BXB)}, {V(ACC[2],16)}
{MF} {V(ACC[3],16)}, v[240:243], {V(BXB+4)}, {V(ACC[3],16)}
""")
for u in range(6, 9): p2_dma(a, u, "D1c")
TRA = 12
p2_traddr(12)
def w2step(k):
    if k == 0:
        a.wv("D1a")
        for u in range(0, 3): p2_tr(a, WREG+8*u, u, "W1")
    elif k == 1:
        a.wl("W1")
        for u in range(9, 12): p2_dma(a, u, "D2")
        a.wv("D1b")
        for u in range(3, 6): p2_tr(a, WREG+8*u, u, "W1")
    elif k == 2:
        a.wl("W1")
        for u in range(12, 15): p2_dma(a, u, "D2")
        a.wv("D1c")
        for u in range(6, 9): p2_tr(a, WREG+8*u, u, "W1")
    elif k == 3:
        a.wl("W1")
        for u in range(15, 18): p2_dma(a, u, "D2")
a(f"s_cmp_eq_u32 s8, 0\ns_cbranch_scc0 {L('Bq')}")
a.qsave("bq")
ffn_epi(a, ACC[0], 66, 0, RRB+2)
ffn_epi(a, ACC[1], 66, 1, RRB+5)
ffn_epi(a, ACC[2], 67, 0, RRB+2)
ffn_epi(a, ACC[3], 67, 1, RRB+5)
st(3)
a.wv("D1c")
for u in range(9): p2_tr(a, WREG+8*u, u, "W1")
a.wv("H")
hflag()
a("s_mov_b32 s81, s61\ns_lshl_b32 s9, s3, 2\nv_mov_b32 v11, s9")
a.wl("W1")
for u in range(9, 18): p2_dma(a, u, "D2")
lds_wait("pw", 12304)
for u in range(9, 18): p2_dma_partner(a, u, "D2")
a("s_waitcnt vmcnt(0)\nv_mov_b32 v10, s75\nds_write_b32 v11, v10 offset:12320")
st(4)
a(f"s_branch {L('tailB')}")
a.label(L('Bq'))
a.qload("bq")
stor = {(0,0): (80, 84), (0,1): (88, 92), (1,0): (232, 236), (1,1): (240, 244)}
if not env("PZ", 0): poison(4)
ffn_epi(a, ACC[2], 67, 0, RRB+2)
a(f"v_lshlrev_b32 v8, 3, v1\ns_lshl_b32 s66, s6, 9\ns_add_u32 s66, s66, {KVF}\ns_mul_i32 s11, s78, 4352")
for f in range(2):
    acc = ACC[f]
    for q in range(8): a(f"v_cvt_pk_bf16_f32 v{acc+q}, v{acc+2*q}, v{acc+2*q+1}")
    for h in range(2):
        a(f"{MF} {V(T,16)}, {V(WPB+4*h)}, {V(acc+4*h)}, 0")
        if 2*f+h == TRP:
            a.wv("H"); hflag()
            for u in range(9): p2_tr(a, WREG+8*u, u, "W1")
        if 2*f+h == TRP+1:
            a.wl("W1")
            a("s_lshl_b32 s9, s3, 2\nv_mov_b32 v9, s9\nv_mov_b32 v10, s75\nds_write_b32 v9, v10 offset:12288")
        softmax(a, T, stor[(f,h)][0], stor[(f,h)][1], RRB+1+3*f)
st(3)
a(f"""
v_min_u32 v9, 16, v29
v_mul_u32_u24 v10, 17, v30
v_add_u32 v9, v9, v10
v_lshlrev_b32 v9, 2, v9
v_add_u32 v9, s11, v9
""")
kvpoll(4, 'nopk')
a("s_mov_b32 s71, 0")
a.label(L('lf1'))
a(f"""
ds_read_b32 v10, v19 offset:12288
s_waitcnt lgkmcnt(0)
v_readfirstlane_b32 s9, v10
s_add_u32 s71, s71, 1
s_cmp_gt_u32 s71, {SPIN*8}
s_cbranch_scc1 {L('lf2')}
s_cmp_eq_u32 s9, s75
s_cbranch_scc1 {L('lf2')}
s_sleep 1
s_branch {L('lf1')}
""")
a.label(L('lf2'))
for h in range(2):
    for r in range(16): a(f"ds_read_b32 v{32+16*h+r}, v9 offset:{h*2176+r*136}", f"K{h}")
a(f"s_add_u32 s9, s65, 112\ns_lshl_b32 s9, s9, 10\ns_add_u32 s10, s9, s64\ns_add_u32 s9, s9, s74")
for h in range(2):
    kb = 32+16*h
    a.wl(f"K{h}")
    for q in range(8): a(f"v_cvt_pk_bf16_f32 v{kb+q}, v{kb+2*q}, v{kb+2*q+1}")
    for f in range(2):
        Tt = 96+16*f
        a(f"{MF} {V(Tt,16)}, {V(kb)}, {V(stor[(f,h)][0])}, 0")
        a(f"{MF} {V(Tt,16)}, {V(kb+4)}, {V(stor[(f,h)][1])}, {V(Tt,16)}")
    for f in range(2):
        Tt = 96+16*f; o = kb+8+4*f
        a(f"v_add_f32 v8, 0x358637bd, v{Tt+8}\nv_rcp_f32 v8, v8")
        for r in range(8): a(f"v_mul_f32 v{Tt+r}, v{Tt+r}, v8")
        for q in range(4): a(f"v_cvt_pk_bf16_f32 v{o+q}, v{Tt+2*q}, v{Tt+2*q+1}")
        a(f"buffer_store_dwordx4 {V(o)}, v26, {R(WS)}, {('s9','s10')[f]} offen offset:{h*1024} {SC}", "O")
st()
a("s_lshl_b32 s9, s3, 2\nv_mov_b32 v11, s9")
lds_wait("r2w", 12320-16)
a.label(L('tailB'))
for i in range(6): a(f"v_mov_b32 v{2+i}, v{12+i}")
TRA = 2
a.label(L('tail'))
a(f"""
s_mul_i32 s64, s82, {2*AF_TG}
s_mul_i32 s65, s3, {14*1024}
s_add_u32 s65, s65, s64
s_lshl_b32 s66, s3, 12
s_add_u32 s66, s66, s64
s_add_u32 s66, s66, {112*1024}
s_add_u32 s67, s66, {AF_TG}
s_lshl_b32 s9, s82, 8
s_add_u32 s72, s9, {HF}
s_add_u32 s73, s9, {OF}
v_lshlrev_b32 v0, 4, v1
v_lshlrev_b32 v8, 2, v1
""")
st(5)
a(f"s_cmp_eq_u32 s3, 0\ns_cbranch_scc0 {L('phok')}")
with a.skippable():
    a("s_mov_b32 s79, 0")
    a.label(L('ph'))
    a(f"""
    buffer_load_dword v10, v8, {R(WS)}, s72 offen {SC}
    s_waitcnt vmcnt(0)
    v_cmp_ne_u32 vcc, s75, v10
    s_cmp_eq_u64 vcc, 0
    s_cbranch_scc1 {L('phok')}
    s_add_u32 s79, s79, 1
    s_cmp_gt_u32 s79, {SPIN}
    s_cbranch_scc1 {L('phok')}
    s_sleep {SLP}
    s_branch {L('ph')}
    """)
if env("DEC", 0):
    a.label(L('phok2')) if False else None
a.label(L('phok'))
if env("DEC", 0):
    a(f"s_cmp_eq_u32 s3, 0\ns_cbranch_scc0 {L('hw0')}")
    with a.skippable():
        a("v_mov_b32 v10, s75\nds_write_b32 v19, v10 offset:12352")
    a.label(L('hw0'))
    a("v_mov_b32 v11, 0")
    lds_wait("hw", 12352)
else:
    a("s_barrier")
st(); st(1, grp="T")
abuf = [200+8*i for i in range(7)] + [16+8*i for i in range(4)]
NA = 11
a(f"""
s_mov_b32 s60, s65
s_add_u32 s83, s65, {14*1024}
s_lshl_b32 s9, s76, 10
s_add_u32 s65, s65, s9
""")
def aload(u):
    r = abuf[u % NA]
    if u < 14:
        a(f"s_add_u32 s71, s65, {AF_TG}")
        a(f"buffer_load_dwordx4 {V(r)}, v0, {R(WS)}, s65 offen {ASC}", f"A{u}")
        a(f"buffer_load_dwordx4 {V(r+4)}, v0, {R(WS)}, s71 offen {ASC}", f"A{u}")
        a("s_add_u32 s65, s65, 1024\ns_cmp_eq_u32 s65, s83\ns_cselect_b32 s65, s60, s65")
    else:
        for tb in range(2):
            a(f"buffer_load_dwordx4 {V(r+4*tb)}, v0, {R(WS)}, s{(66,67)[tb]} offen offset:{(u-14)*1024} {SC}", f"A{u}")
NW = env("NW", 11)
OCK = min(OCK, 14-NW) if NW < 11 else OCK
FOP = max(0, OCK - 2)
for u in range(NW):
    aload(u)
def mfmas(u, w):
    r = abuf[u % NA]
    for tb in range(2):
        for nb in range(2):
            d = P2ACC + 16*(2*tb+nb)
            a(f"{MF} {V(d,16)}, {V(w+4*nb)}, {V(r+4*tb)}, {V(d,16) if u else 0}")
a(f"""
v_lshrrev_b32 v12, 3, v1
v_lshlrev_b32 v12, 10, v12
v_and_b32 v13, 7, v1
v_lshlrev_b32 v13, 4, v13
v_add_u32 v12, v12, v13
s_lshl_b32 s74, s82, 16
s_lshl_b32 s9, s3, 13
s_add_u32 s74, s74, s9
s_add_u32 s74, s74, s62
""")
for u in range(18):
    if u == 8: p2_tr(a, WTMP, 9, "T9")
    if 9 <= u < 17: p2_tr(a, WTMP + 8*((u-8)&1), u+1, f"T{u+1}")
    if u >= 9: a.wl(f"T{u}")
    a.wv(f"A{u}")
    if u in (0, 7, 14): st(grp="T")
    if u >= 14:
        r = abuf[u % NA]
        a("s_mov_b32 s79, 0")
        a.label(L(f'oc{u}'))
        a(f"""
        v_cmp_eq_u32 vcc, -1, v{r}
        v_cmp_eq_u32 s[80:81], -1, v{r+4}
        s_or_b64 vcc, vcc, s[80:81]
        s_cmp_eq_u64 vcc, 0
        s_cbranch_scc1 {L(f'ok{u}')}
        s_add_u32 s79, s79, 1
        s_cmp_gt_u32 s79, {SPIN}
        s_cbranch_scc1 {L(f'ok{u}')}
        """)
        with a.skippable():
            a("s_sleep 8")
            for tb in range(2):
                a(f"buffer_load_dwordx4 {V(r+4*tb)}, v0, {R(WS)}, s{(66,67)[tb]} offen offset:{(u-14)*1024} {SC}")
            a(f"s_waitcnt vmcnt(0)\ns_branch {L(f'oc{u}')}")
        a.label(L(f'ok{u}'))
    mfmas(u, WREG+8*u if u < 9 else WTMP+8*((u-9)&1))
    if NW == 11:
        if u < 3: aload(u+NA)
    else:
        if u+NW < 14: aload(u+NW)
        if u+NW == OCK+0: a(f"buffer_load_dword v10, v8, {R(WS)}, s73 offen {SC}", f"A{OCK}")
        if u > OCK and u+NW < 18: aload(u+NW)  if u+NW >= 14 else None
    if u == 3:
        a(f"buffer_load_dwordx4 v[128:131], v12, {R(X)}, s74 offen", "X")
        a(f"buffer_load_dwordx4 v[132:135], v13, {R(B2)}, s62 offen", "X")
    if u == OCK:
        for uu in range(14, 18): aload(uu)
    if u == 15 and env("CLR", 1) == 1:
        a(f"s_or_b32 s9, s2, s3\ns_cmp_eq_u32 s9, 0\ns_cbranch_scc0 {L('noclr1')}")
        with a.skippable():
            a(f"v_mov_b32 v8, 0\ns_mov_b64 exec, 1\nbuffer_store_dword v8, v8, {R(DBG)}, 0 offen {SC}\ns_mov_b64 exec, -1")
        a.label(L('noclr1'))
st(); st(grp="T")
a(f"""
v_bfe_u32 v8, v1, 3, 2
v_lshlrev_b32 v8, 14, v8
v_and_b32 v9, 7, v1
v_lshl_add_u32 v8, v9, 8, v8
v_lshrrev_b32 v10, 5, v1
v_xor_b32 v10, v10, v9
v_lshl_add_u32 v8, v10, 4, v8
s_add_u32 s9, s69, {PG}
v_add_u32 v8, s9, v8
v_xor_b32 v9, 32, v8
v_xor_b32 v10, 64, v8
v_xor_b32 v11, 96, v8
v_add_u32 v2, 0x10000, v8
v_add_u32 v3, 0x10000, v9
v_add_u32 v4, 0x10000, v10
v_add_u32 v5, 0x10000, v11
""")
for tb in range(2):
    for nb in range(2):
        for qq in range(4):
            d = P2ACC + 16*(2*tb+nb) + 4*qq
            a(f"ds_write_b128 v{(8,2)[tb]+qq}, {V(d)} offset:{nb*128}")
a("""
v_lshrrev_b32 v6, 3, v1
v_and_b32 v7, 7, v1
v_lshlrev_b32 v7, 1, v7
v_xor_b32 v7, v7, v6
v_lshlrev_b32 v6, 8, v6
v_lshl_add_u32 v6, v7, 4, v6
s_lshl_b32 s9, s3, 14
s_add_u32 s9, s9, 16384
v_add_u32 v6, s9, v6
v_xor_b32 v7, 16, v6
s_waitcnt lgkmcnt(0)
""")
st(grp="T"); a("s_barrier"); st(grp="T")
RR = 160
for w in range(8):
    for e in range(2):
        a(f"ds_read_b128 {V(RR+8*w+4*e)}, v{6+e} offset:{w*2048}", f"R{w}")
a.wv("X")
for i in range(4):
    a(f"v_lshlrev_b32 v{24+2*i}, 16, v{128+i}\nv_and_b32 v{25+2*i}, 0xffff0000, v{128+i}")
    a(f"v_lshlrev_b32 v{32+2*i}, 16, v{132+i}\nv_and_b32 v{33+2*i}, 0xffff0000, v{132+i}")
for i in range(8): a(f"v_add_f32 v{24+i}, v{24+i}, v{32+i}")
for w in range(8):
    a.wl(f"R{w}")
    for i in range(8): a(f"v_add_f32 v{24+i}, v{24+i}, v{RR+8*w+i}")
for i in range(4): a(f"v_cvt_pk_bf16_f32 v{32+i}, v{24+2*i}, v{25+2*i}")
a(f"buffer_store_dwordx4 v[32:35], v12, {R(OUT)}, s74 offen {os.environ.get('OSC','')}")
st(grp="T")
if INSTR:
    a("s_waitcnt vmcnt(0)"); st()
    nst[0] = 9
    a(f"s_waitcnt lgkmcnt(0)\ns_lshl_b32 s9, s2, 3\ns_add_u32 s9, s9, s3\ns_lshl_b32 s9, s9, 6\ns_add_u32 s9, s9, {STAMPS}")
    a("v_mov_b32 v0, 0\ns_mov_b64 exec, 1")
    for i in range(nst[0]):
        a(f"v_mov_b32 v1, s{84+2*i}\nbuffer_store_dword v1, v0, {R(WS)}, s9 offen offset:{4*i}\ns_nop 1")
a.label(L('end')); a("s_endpgm")
desc = f""".section .rodata,"a"
.p2align 6
.amdhsa_kernel {NAME}
  .amdhsa_next_free_vgpr 256
  .amdhsa_next_free_sgpr 102
  .amdhsa_accum_offset 256
  .amdhsa_group_segment_fixed_size 0
  .amdhsa_kernarg_size 96
  .amdhsa_user_sgpr_count 2
  .amdhsa_user_sgpr_kernarg_segment_ptr 1
  .amdhsa_system_sgpr_workgroup_id_x 1
  .amdhsa_float_denorm_mode_32 3
.end_amdhsa_kernel
"""
if __name__ == "__main__":
    open(sys.argv[1], "w").write("; @launch grid=(256,1,1) block=(512,1,1) lds=163840\n" + a.finish() + desc)
    print("stamps:", nst[0], "STAMPS", STAMPS)
```

```python
import sys, os
sys.path.insert(0, "work")
from asmlib import Asm
EXP = os.environ.get("EXP", "").split(",")
INSTR = "instr" in sys.argv
STG = os.environ.get("STG", "main")
def env(n, d): return int(os.environ.get(n, str(d)))
NAME = "parallel_sum__linear_kernel_hedgehog__dense_activation_squared_relu__prompt_kernel"
SZ = dict(x=2048*512*2, wqkv=512*1536*2, wphi=32*16*16*2, wo=512*512*2, w1=512*1792*2, b1=1792*2, w2=1792*512*2, b2=512*2, out=2048*512*2, dbg=256)
KSLOT = dict(x=0, wqkv=1, wphi=2, wo=3, w1=5, b1=6, w2=7, b2=8, out=9, dbg=10, ws=11)
AF_TG = 144*1024
KVACC = 64*AF_TG; KV_J = 9216
KVF = KVACC + 8*KV_J + 512
HF = KVACC + 8*KV_J + 8*1024
OF = HF
EFS = HF + 32*512
EFC = EFS + 16*256
CSP = EFC + 16*256
STAT = CSP + 16*14336
STAMPS = STAT + 2048*16
WS_END = STAMPS + 256*8*64
SZ["ws"] = WS_END
LOG2E = "0x3fb8aa3b"
SLOT = 49152; PG = 16384; RB = PG
SPIN = 60000
FLA = env("FLA", 18); FLC = env("FLC", 23); KPW = env("KPW", 4); FLB = env("FLB", 14); OCK = env("OCK", 6 if env("NW", 11) == 11 else 14-env("NW", 11)); AW = env("AW", 0); TRP = env("TRP", 1); NE = env("NE", 4); NB = env("NB", 8)
SC = "sc1"
ASC = os.environ.get("ASC", "sc1")
SLP = env("SLP", 8)
X, WQ, W1, WS, DBG, WPHI, B1, I1, W2, WO, B2, OUT = 12, 16, 20, 24, 28, 32, 36, 40, 44, 48, 52, 56
def R(s): return f"s[{s}:{s+3}]"
def V(b, n=4): return f"v[{b}:{b+n-1}]"
MF = "v_mfma_f32_32x32x16_bf16"
a = Asm()
nst = [0]
def st(i=None, grp="main"):
    if not INSTR or grp != STG: return
    if i is not None: nst[0] = i
    a(f"s_memrealtime s[{84+2*nst[0]}:{85+2*nst[0]}]"); nst[0] += 1
def L(n): return f"L_{n}"
def fin(x, n, s): x(f"s_mov_b32 s{s+2}, {SZ[n]}\ns_mov_b32 s{s+3}, 0x20000")

a.raw('.amdgcn_target "amdgcn-amd-amdhsa--gfx950"\n.text')
a.raw(f".globl {NAME}\n.p2align 8\n.type {NAME},@function\n{NAME}:")
a(f"s_cmp_ge_u32 s2, 256\ns_cbranch_scc1 {L('end')}")
st(grp=STG)
names = (("x",X),("wqkv",WQ),("w1",W1),("ws",WS),("dbg",DBG),("wphi",WPHI),("b1",B1),("w2",W2),("wo",WO),("b2",B2),("out",OUT))
for n, s in names: a(f"s_load_dwordx2 s[{s}:{s+1}], s[0:1], {KSLOT[n]*8}")
a(f"""
v_and_b32 v1, 63, v0
v_lshrrev_b32 v2, 6, v0
v_readfirstlane_b32 s3, v2
s_bfe_u32 s4, s2, 0x30003
s_bfe_u32 s9, s2, 0x10002
s_lshl_b32 s9, s9, 3
s_add_u32 s4, s4, s9                ; m
s_lshr_b32 s5, s2, 7                ; type
s_and_b32 s6, s2, 3
s_lshl_b32 s6, s6, 1
s_bfe_u32 s10, s2, 0x10006
s_add_u32 s6, s6, s10               ; j
v_lshrrev_b32 v9, 3, v1
v_and_b32 v10, 7, v1
v_lshrrev_b32 v11, 4, v1
v_xor_b32 v12, v10, v11
v_lshlrev_b32 v13, 10, v9
v_lshl_add_u32 v2, v12, 4, v13
v_xor_b32 v3, 0x2040, v2
v_and_b32 v11, 1, v11
v_lshlrev_b32 v11, 6, v11
v_lshlrev_b32 v12, 4, v10
v_xor_b32 v12, v12, v11
v_mul_u32_u24 v13, 3072, v9
v_add_u32 v4, v13, v12
v_mul_u32_u24 v13, 3584, v9
v_add_u32 v6, v13, v12
v_xor_b32 v14, 32, v4
s_and_b32 s9, s2, 3
s_mul_i32 s9, s9, 5
s_add_u32 s9, s9, 8
s_mul_i32 s11, s10, 3
s_add_u32 s66, s9, s11              ; I1 block (B)
s_add_u32 s67, s66, 1
s_add_u32 s68, s9, 2                ; I3 block
s_lshl_b32 s61, s6, 7
s_add_u32 s62, s61, 2048
s_lshl_b32 s77, s66, 7
s_add_u32 s78, s61, 1024
s_movk_i32 s63, 3584
s_cmp_eq_u32 s5, 0
s_cselect_b64 vcc, -1, 0
s_cselect_b32 s61, s78, s61         ; I0 col
s_cselect_b32 s62, s62, s77         ; I1 col
s_cselect_b32 s63, 3072, s63
s_cselect_b32 s67, s6, s67          ; I2 block
v_cndmask_b32 v5, v6, v14, vcc
s_lshl_b32 s64, s67, 7              ; I2 col
s_lshl_b32 s65, s68, 7              ; I3 col
s_lshl_b32 s60, s4, 17
s_lshl_b32 s69, s3, 11
s_lshl_b32 s70, s3, 10
s_lshl_b32 s11, s3, 14
s_add_u32 s76, s60, s11
s_mul_i32 s11, s3, {8*3072}
s_add_u32 s11, s61, s11
v_add_u32 v4, s11, v4
s_lshl_b32 s11, s3, 3
s_mul_i32 s11, s11, s63
s_add_u32 s11, s62, s11
v_add_u32 v5, s11, v5
s_lshl_b32 s75, s63, 6
s_mul_i32 s11, s3, {8*3584}
s_add_u32 s73, s64, s11
s_add_u32 s74, s65, s11
v_add_u32 v7, s74, v6
v_add_u32 v6, s73, v6
s_mov_b32 s82, 0
s_mov_b32 s83, 0
s_mov_b32 s73, 0
s_lshl_b32 s79, s5, 3
s_add_u32 s79, s79, s6              ; slot
s_and_b32 s78, s3, 1                ; lo
s_lshr_b32 s77, s3, 1
v_lshlrev_b32 v26, 4, v1
s_waitcnt lgkmcnt(0)
""")
st(8, grp="P"); nst[0] = 1
fin(a, "x", X); fin(a, "wqkv", WQ); fin(a, "w1", W1)
a(f"""
s_cmp_eq_u32 s5, 0
s_cselect_b32 s{I1}, s{WQ}, s{W1}
s_cselect_b32 s{I1+1}, s{WQ+1}, s{W1+1}
s_cselect_b32 s{I1+2}, s{WQ+2}, s{W1+2}
s_mov_b32 s{I1+3}, 0x20000
""")
a(f"""
s_lshl_b32 s9, s79, 13
s_add_u32 s9, s9, s70
s_add_u32 s9, s9, s60
""")
a(f"buffer_load_dwordx4 v[112:115], v26, {R(X)}, s9 offen", "E")
a(f"""
v_lshrrev_b32 v9, 2, v1
v_and_b32 v10, 3, v1
v_lshlrev_b32 v10, 4, v10
s_cmp_eq_u32 s77, 0
s_cselect_b32 s9, s61, s62
s_cselect_b32 s11, 3072, s63
s_cmp_eq_u32 s77, 2
s_cselect_b32 s9, s64, s9
s_cmp_eq_u32 s77, 3
s_cselect_b32 s9, s65, s9
s_cselect_b32 s71, s10, s78
s_cmp_ge_u32 s77, 2
s_cselect_b32 s11, 3584, s11
s_lshl_b32 s71, s71, 6
s_add_u32 s9, s9, s71
s_lshl_b32 s71, s4, 5
s_mul_i32 s71, s71, s11
s_add_u32 s9, s9, s71               ; + 32m rows
v_mul_lo_u32 v9, v9, s11
v_add_u32 v9, v9, v10
s_lshl_b32 s11, s11, 4
s_add_u32 s71, s9, s11
s_mov_b32 m0, s69
s_cmp_eq_u32 s11, {3072*16}
s_cbranch_scc1 {L('e1')}
""")
with a.skippable():
    a(f"buffer_load_dwordx4 v9, {R(W1)}, s9 offen lds\ns_add_u32 m0, s69, 1024\ns_nop 0\nbuffer_load_dwordx4 v9, {R(W1)}, s71 offen lds\ns_branch {L('e2')}")
a.label(L('e1'))
with a.skippable():
    a(f"buffer_load_dwordx4 v9, {R(WQ)}, s9 offen lds\ns_add_u32 m0, s69, 1024\ns_nop 0\nbuffer_load_dwordx4 v9, {R(WQ)}, s71 offen lds")
a.label(L('e2'))
def dma(c, piece):
    t = f"C{c}"; sl = RB + (c % 3)*SLOT
    if piece < 2:
        a(f"s_add_u32 m0, s69, {sl+1024*piece-c*128}")
        a(f"buffer_load_dwordx4 v{2+piece}, {R(X)}, s76 offen offset:{c*128} lds", t)
    elif piece == 2:
        a(f"s_add_u32 m0, s70, {sl+16384}")
        a(f"buffer_load_dwordx4 v4, {R(WQ)}, s82 offen lds", t)
        a(f"s_add_u32 s82, s82, {64*3072}")
    elif piece == 3:
        a(f"s_add_u32 m0, s70, {sl+24576}")
        a(f"buffer_load_dwordx4 v5, {R(I1)}, s83 offen lds", t)
        a("s_add_u32 s83, s83, s75")
    elif piece == 4:
        a(f"s_add_u32 m0, s70, {sl+32768}")
        a(f"buffer_load_dwordx4 v6, {R(W1)}, s73 offen lds", t)
    else:
        a(f"s_add_u32 m0, s70, {sl+40960}")
        a(f"buffer_load_dwordx4 v7, {R(W1)}, s73 offen lds", t)
        a(f"s_add_u32 s73, s73, {64*3584}")
dma(0, 0); a.items.append(("retag", ("C0", "E")))
a(f"s_cmp_eq_u32 s5, 0\ns_cbranch_scc1 {L('c0b')}")
with a.skippable():
    dma(0, 4); dma(0, 5)
a.label(L('c0b'))
dma(0, 1); dma(0, 2); dma(0, 3)
st(grp="P")
if env("XT", 1):
    a(f"s_cmp_eq_u32 s3, 5\ns_cbranch_scc0 {L('xt')}")
    with a.skippable():
        a(f"""
        v_lshlrev_b32 v255, 10, v1
        s_lshr_b32 s9, s2, 6
        s_lshl_b32 s9, s9, 15
        s_add_u32 s9, s9, s60
        s_lshr_b32 s11, s{X}, 7
        s_sub_u32 s11, 3, s11
        s_and_b32 s11, s11, 7
        s_lshl_b32 s11, s11, 7
        s_add_u32 s9, s9, s11
        s_mov_b64 exec, 0xffffffff
        buffer_load_dword v255, v255, {R(X)}, s9 offen
        s_mov_b64 exec, -1
        """)
    a.label(L('xt'))
if env("XW", 0):
    a(f"""
    s_lshr_b32 s9, s{WQ}, 7
    s_add_u32 s9, s9, s6
    s_and_b32 s9, s9, 7
    s_cmp_eq_u32 s9, 3
    s_cbranch_scc0 {L('xw')}
    s_add_u32 s9, s3, s5
    s_cmp_lt_u32 s3, 6
    s_cbranch_scc1 {L('xw')}
    s_cmp_gt_u32 s9, 7
    s_cbranch_scc1 {L('xw')}
    """)
    with a.skippable():
        a(f"""
        s_cmp_eq_u32 s3, 6
        s_cselect_b32 s9, s61, s62
        s_and_b32 s11, s4, 7
        s_mul_i32 s11, s11, {64*3072}
        s_add_u32 s9, s9, s11
        v_mul_u32_u24 v255, 3072, v1
        buffer_load_dword v255, v255, {R(WQ)}, s9 offen
        """)
    a.label(L('xw'))
if env("WU", 0):
    a(f"s_cmp_lt_u32 s3, 4\ns_cbranch_scc0 {L('wu1')}")
    with a.skippable():
        a(f"""
        v_lshrrev_b32 v254, 1, v1
        v_and_b32 v255, 1, v1
        v_lshlrev_b32 v255, 7, v255
        v_lshl_add_u32 v254, v254, 10, v255
        s_lshl_b32 s9, s3, 15
        s_add_u32 s9, s9, s60
        s_lshr_b32 s11, s2, 6
        s_lshl_b32 s11, s11, 8
        s_add_u32 s9, s9, s11
        buffer_load_dword v255, v254, {R(X)}, s9 offen
        s_branch {L('wu3')}
        """)
    a.label(L('wu1'))
    with a.skippable():
        a(f"""
        s_cmp_eq_u32 s3, 4
        s_cselect_b32 s9, s61, s62
        s_cselect_b32 s11, 3072, s63
        s_cmp_eq_u32 s3, 6
        s_cselect_b32 s9, s64, s9
        s_cmp_eq_u32 s3, 7
        s_cselect_b32 s9, s65, s9
        s_cmp_ge_u32 s3, 6
        s_cselect_b32 s11, 3584, s11
        s_and_b32 s71, s4, 7
        s_lshl_b32 s71, s71, 6
        s_mul_i32 s71, s71, s11
        s_add_u32 s9, s9, s71
        v_mul_lo_u32 v254, v1, s11
        s_cmp_eq_u32 s11, 3072
        s_cbranch_scc1 {L('wu2')}
        buffer_load_dword v255, v254, {R(W1)}, s9 offen
        s_branch {L('wu3')}
        """)
        a.label(L('wu2'))
        a(f"buffer_load_dword v255, v254, {R(WQ)}, s9 offen")
    a.label(L('wu3'))
    a.items.append(("qins", ("C0", 1)))
if env("ICP", 0):
    a(f"s_cmp_lt_u32 s3, 4\ns_cbranch_scc0 {L('noicp')}")
    with a.skippable():
        a(f"""
        s_getpc_b64 s[80:81]
        v_lshlrev_b32 v127, 7, v1
        s_lshl_b32 s9, s3, 13
        v_add_u32 v127, s9, v127
        v_min_u32 v127, {env("ICP", 0)}, v127
        global_load_dword v127, v127, s[80:81]
        """)
    a.label(L('noicp'))
fin(a, "ws", WS); fin(a, "dbg", DBG)
a("v_mov_b32 v19, 0")
a(f"s_or_b32 s9, s2, s3\ns_cmp_eq_u32 s9, 0\ns_cbranch_scc0 {L('nononce')}")
with a.skippable():
    a(f"""
    s_memrealtime s[80:81]
    s_waitcnt lgkmcnt(0)
    s_or_b32 s80, s80, 1
    v_mov_b32 v10, s80
    s_mov_b64 exec, 1
    buffer_store_dword v10, v19, {R(DBG)}, 0 offen {SC}
    s_mov_b64 exec, -1
    """)
a.label(L('nononce'))
a(f"""
s_bfe_u32 s7, s3, 0x10001           ; mh
s_lshr_b32 s8, s3, 2                ; hi
s_mul_i32 s72, s6, {KV_J}
s_add_u32 s72, s72, {KVACC}
s_cmp_eq_u32 s5, 1
s_cselect_b32 s9, s4, 1
s_cmp_eq_u32 s9, 0
s_cbranch_scc0 {L('nozero')}
""")
with a.skippable():
    a(f"""
    v_lshlrev_b32 v9, 4, v0
    v_mov_b32 v10, 0
    v_mov_b32 v11, 0
    v_mov_b32 v12, 0
    v_mov_b32 v13, 0
    buffer_store_dwordx4 v[10:13], v9, {R(WS)}, s72 offen {SC}
    s_add_u32 s9, s72, 8192
    s_cmp_eq_u32 s3, 0
    s_cbranch_scc0 {L('nozero')}
    buffer_store_dwordx4 v[10:13], v9, {R(WS)}, s9 offen {SC}
    """)
a.label(L('nozero'))
a(f"""
s_and_b32 s9, s78, s8
s_cmp_eq_u32 s5, 0
s_cselect_b32 s61, s8, s9           ; sel
v_and_b32 v29, 31, v1
v_lshrrev_b32 v30, 5, v1
v_bfe_u32 v31, v1, 1, 3
v_xor_b32 v31, v31, v30
v_lshlrev_b32 v20, 7, v29
v_lshl_add_u32 v8, v31, 4, v20
s_lshl_b32 s9, s7, 1
s_add_u32 s62, s9, s61
s_lshl_b32 s9, s62, 12
s_add_u32 s9, s9, {RB}
v_add_u32 v8, s9, v8
v_xor_b32 v9, 32, v8
v_xor_b32 v10, 64, v8
v_xor_b32 v11, 96, v8
v_xor_b32 v12, 0x1000, v8
v_xor_b32 v13, 0x1000, v9
v_xor_b32 v14, 0x1000, v10
v_xor_b32 v15, 0x1000, v11
v_bfe_u32 v31, v1, 2, 2
v_lshl_add_u32 v20, v30, 3, v31
v_and_b32 v22, 3, v1
v_lshlrev_b32 v22, 3, v22
v_lshl_add_u32 v18, v20, 6, v22
v_lshl_add_u32 v20, v20, 7, v22
v_lshl_add_u32 v21, v30, 2, v31
v_lshl_add_u32 v21, v21, 5, v22
v_bfe_u32 v22, v1, 4, 1
v_lshl_add_u32 v18, v22, 5, v18
v_add_u32 v18, s69, v18
v_and_b32 v31, 2, v31
v_xor_b32 v31, v31, v22
v_lshl_add_u32 v20, v31, 5, v20     ; nat0
s_lshl_b32 s9, s8, 1
s_add_u32 s63, s9, s78              ; nq
s_lshl_b32 s9, s63, 5
v_xor_b32 v23, s9, v20
v_lshl_add_u32 v23, v22, 13, v23
s_lshl_b32 s9, s78, 6
v_xor_b32 v24, s9, v20
s_cmp_eq_u32 s8, 0
s_cselect_b32 s10, 8192, 0
v_add_u32 v25, s10, v24
v_cndmask_b32 v16, v25, v23, vcc
v_add_u32 v16, {RB+16384}, v16
s_and_b32 s9, s6, 1
s_lshl_b32 s9, s9, 6
v_xor_b32 v25, s9, v20
v_add_u32 v25, 8192, v25
s_and_b32 s9, s5, s8
s_cmp_eq_u32 s9, 1
s_cselect_b64 s[80:81], -1, 0
v_cndmask_b32 v17, v24, v25, s[80:81]
v_add_u32 v17, {RB+32768}, v17
v_mov_b32 v20, v24
v_mul_u32_u24 v23, 192, v22
v_lshlrev_b32 v24, 2, v29
s_lshl_b32 s9, s63, 6
v_add3_u32 v23, v23, v24, s9
s_lshl_b32 s9, s78, 7
s_cmp_eq_u32 s8, 0
s_cselect_b32 s10, 256, 0
s_add_u32 s10, s10, s9
v_add_u32 v25, s10, v24
v_cndmask_b32 v23, v25, v23, vcc
s_add_u32 s9, s9, 512
s_and_b32 s10, s5, s8
s_cmp_eq_u32 s10, 1
s_cselect_b32 s9, 768, s9
v_add_u32 v24, s9, v24
s_lshl_b32 s66, s66, 1
s_add_u32 s66, s66, s78
s_lshl_b32 s67, s67, 1
s_add_u32 s67, s67, s78
s_lshl_b32 s68, s68, 1
s_and_b32 s9, s6, 1
s_add_u32 s68, s68, s9
s_cmp_eq_u32 s10, 1
s_cselect_b32 s67, s68, s67
s_lshl_b32 s9, s78, 1
s_cmp_eq_u32 s5, 0
s_cselect_b32 s9, s63, s9
s_lshl_b32 s10, s6, 2
s_add_u32 s65, s10, s9
s_lshl_b32 s9, s9, 9
s_add_u32 s9, s9, 14336
v_add_u32 v21, s9, v21
v_mov_b32 v22, 0x3f803f80
v_and_b32 v27, 15, v1
v_lshlrev_b32 v27, 2, v27
s_lshl_b32 s9, s4, 8
s_add_u32 s9, s9, {EFS}
s_lshl_b32 s10, s79, 8
s_add_u32 s10, s10, {EFC}
v_add_u32 v25, s9, v27
v_add_u32 v28, s10, v27
v_lshrrev_b32 v27, 4, v1
v_cmp_eq_u32 vcc, 1, v27
v_cndmask_b32 v25, v25, v28, vcc
s_lshl_b32 s9, s6, 2
s_add_u32 s9, s9, {EFS+32}
v_writelane_b32 v25, s9, 32
""")
fin(a, "b1", B1); fin(a, "wphi", WPHI); fin(a, "w2", W2); fin(a, "wo", WO); fin(a, "b2", B2); fin(a, "out", OUT)
st(grp="P")
a.wv("E")
st(grp="P")
for k, off in enumerate((0, 256, 1024, 1280)): a(f"ds_read_b64_tr_b16 {V(120+2*k,2)}, v18 offset:{off}", "EW")
a("v_mov_b32 v116, 0\nv_mov_b32 v117, 0\nv_mov_b32 v118, 0")
for q in range(4):
    a(f"v_dot2_f32_bf16 v116, v{112+q}, v22, v116\nv_dot2_f32_bf16 v117, v{112+q}, v{112+q}, v117")
a.wl("EW")
for q in range(8): a(f"v_dot2_f32_bf16 v118, v{120+q}, v22, v118")
for dpp in ("quad_perm:[1,0,3,2]", "quad_perm:[2,3,0,1]", "row_half_mirror", "row_mirror"):
    a(f"v_add_f32_dpp v116, v116, v116 {dpp} row_mask:0xf bank_mask:0xf\nv_add_f32_dpp v117, v117, v117 {dpp} row_mask:0xf bank_mask:0xf")
a(f"""
v_permlane16_swap_b32 v116, v117
v_add_f32 v116, v116, v117
v_mov_b32 v119, v118
v_mov_b32 v117, v116
v_permlane32_swap_b32 v118, v119
v_permlane32_swap_b32 v116, v117
v_add_f32 v118, v118, v119
v_add_f32 v116, v116, v117
v_mov_b32 v117, v116
v_permlane16_swap_b32 v116, v117
v_mul_f32 v116, 0x3b000000, v116
v_mul_f32 v117, 0x3b000000, v117
v_fma_f32 v117, -v116, v116, v117
v_max_f32 v117, 0, v117
v_add_f32 v117, 0x3727c5ac, v117
v_rsq_f32 v114, v117
v_sub_f32 v116, 0, v116
v_mul_f32 v117, v117, v114
v_cvt_pk_bf16_f32 v120, v116, v117
v_and_b32 v121, 0xffff0000, v120
v_lshlrev_b32 v122, 16, v120
v_sub_f32 v123, v116, v122
v_sub_f32 v124, v117, v121
v_cvt_pk_bf16_f32 v112, v122, v123
v_cvt_pk_bf16_f32 v113, v121, v124
s_lshl_b32 s10, s4, 7
s_lshl_b32 s11, s79, 3
s_add_u32 s10, s10, s11
s_add_u32 s10, s10, s3
s_lshl_b32 s10, s10, 4
s_add_u32 s10, s10, {STAT}
s_mul_i32 s11, s79, 14336
s_mul_i32 s71, s4, 896
s_add_u32 s11, s11, s71
s_lshl_b32 s71, s3, 7
s_add_u32 s11, s11, s71
s_add_u32 s11, s11, {CSP}
v_lshlrev_b32 v120, 2, v1
s_mov_b64 exec, 1
buffer_store_dwordx4 v[112:115], v19, {R(WS)}, s10 offen {SC}
s_cmp_lt_u32 s3, 7
s_cselect_b32 exec_lo, -1, 0
s_cbranch_scc0 {L('nocs')}
""")
with a.skippable():
    a(f"buffer_store_dword v118, v120, {R(WS)}, s11 offen {SC}")
a.label(L('nocs'))
a("s_mov_b64 exec, -1")
a(f"buffer_load_dword v31, v19, {R(DBG)}, 0 offen {SC}", "N0")
a("v_lshlrev_b32 v120, 1, v29\ns_lshl_b32 s9, s66, 6\ns_lshl_b32 s10, s67, 6")
a(f"buffer_load_ushort v27, v120, {R(B1)}, s9 offen", "S")
a(f"buffer_load_ushort v28, v120, {R(B1)}, s10 offen", "S")
st(); st(grp="P")

def side_flags(tg, tmp):
    a(f"s_cmp_eq_u32 s3, 0\ns_cbranch_scc0 {L('nofl'+tg)}")
    with a.skippable():
        a("s_mov_b32 s71, 0")
        a.label(L('nspin'+tg))
        a(f"""
        v_readfirstlane_b32 s9, v31
        s_add_u32 s71, s71, 1
        s_cmp_gt_u32 s71, {SPIN}
        s_cbranch_scc1 {L('nok'+tg)}
        s_cmp_lg_u32 s9, 0
        s_cbranch_scc1 {L('nok'+tg)}
        buffer_load_dword v31, v19, {R(DBG)}, 0 offen {SC}
        s_waitcnt vmcnt(0)
        s_branch {L('nspin'+tg)}
        """)
        a.label(L('nok'+tg))
        a(f"""
        s_lshl_b32 s10, s4, 8
        s_lshl_b32 s11, s79, 2
        s_add_u32 s10, s10, s11
        s_lshl_b32 s11, s79, 8
        s_lshl_b32 s71, s4, 2
        s_add_u32 s11, s11, s71
        s_add_u32 s11, s11, {EFC-EFS}
        v_mov_b32 v{tmp}, s10
        v_writelane_b32 v{tmp}, s11, 1
        s_mov_b32 s10, {EFS}
        s_mov_b64 exec, 3
        buffer_store_dword v31, v{tmp}, {R(WS)}, s10 offen {SC}
        s_mov_b64 exec, -1
        """)
    a.label(L('nofl'+tg))
def side_wphi_dma(tg):
    a(f"s_cmp_lt_u32 s3, 2\ns_cbranch_scc0 {L('nowp'+tg)}")
    with a.skippable():
        a(f"s_add_u32 m0, s70, 14336\ns_lshl_b32 s9, s6, 11\ns_add_u32 s9, s9, s70\nbuffer_load_dwordx4 v26, {R(WPHI)}, s9 offen lds")
    a.label(L('nowp'+tg))
def side_poll_issue(tg):
    a(f"s_cmp_eq_u32 s3, 0\ns_cbranch_scc0 {L('npi'+tg)}")
    with a.skippable():
        a(f"buffer_load_dword v18, v25, {R(WS)}, 0 offen {SC}")
    a.label(L('npi'+tg))
def side_poll_wait(tg, restore_vcc):
    a(f"s_cmp_eq_u32 s3, 0\ns_cbranch_scc0 {L('fok2'+tg)}")
    with a.skippable():
        a("s_mov_b32 s71, 0")
        a.label(L('fspin'+tg))
        a(f"""
        v_cmp_ne_u32 vcc, v18, v31
        s_cmp_eq_u64 vcc, 0
        s_cbranch_scc1 {L('fok'+tg)}
        s_add_u32 s71, s71, 1
        s_cmp_gt_u32 s71, {SPIN}
        s_cbranch_scc1 {L('fok'+tg)}
        s_sleep {SLP}
        buffer_load_dword v18, v25, {R(WS)}, 0 offen {SC}
        s_waitcnt vmcnt(0)
        s_branch {L('fspin'+tg)}
        """)
        a.label(L('fok'+tg))
        if restore_vcc: a("s_mov_b64 vcc, s[80:81]")
        a("ds_write_b32 v19, v31 offset:16380\ns_waitcnt lgkmcnt(0)")
    a.label(L('fok2'+tg))
def side_poll_check(tg, raw, tmp, ptag):
    a(f"ds_read_b32 v31, v19 offset:16380", ptag)
    a(f"""
    v_lshlrev_b32 v{tmp}, 4, v29
    s_lshl_b32 s9, s4, 11
    s_lshl_b32 s10, s62, 9
    s_add_u32 s9, s9, s10
    s_add_u32 s9, s9, {STAT}
    s_xor_b32 s10, s9, 512
    """)
    a(f"s_cmp_lt_u32 s3, 7\ns_cbranch_scc0 {L('nocsd'+tg)}")
    with a.skippable():
        a(f"s_mul_i32 s11, s79, 14336\ns_add_u32 s11, s11, s69\ns_add_u32 s11, s11, {CSP}\ns_mov_b32 m0, s69")
        a(f"buffer_load_dwordx4 v26, {R(WS)}, s11 offen {SC} lds")
        a(f"buffer_load_dwordx4 v26, {R(WS)}, s11 offen offset:1024 {SC} lds")
    a.label(L('nocsd'+tg))
    a(f"buffer_load_dwordx4 {V(raw)}, v{tmp}, {R(WS)}, s9 offen {SC}", "ST")
    a(f"buffer_load_dwordx4 {V(raw+4)}, v{tmp}, {R(WS)}, s10 offen {SC}", "ST")
def side_csred(tg, t16, tmp):
    a(f"s_cmp_lt_u32 s3, 4\ns_cbranch_scc0 {L('nored'+tg)}")
    with a.skippable():
        a(f"v_min_u32 v{tmp}, 223, v0\nv_lshlrev_b32 v{tmp}, 2, v{tmp}")
        for g in range(16): a(f"ds_read_b32 v{t16+g}, v{tmp} offset:{g*896}")
        a("s_waitcnt lgkmcnt(0)")
        for w in (8, 4, 2, 1):
            for g in range(w): a(f"v_add_f32 v{t16+g}, v{t16+g}, v{t16+g+w}")
        a(f"""
        v_cvt_pk_bf16_f32 v{t16+1}, v{t16}, v{t16}
        v_and_b32 v{t16+1}, 0xffff0000, v{t16+1}
        v_sub_f32 v{t16+2}, v{t16}, v{t16+1}
        v_cvt_pk_bf16_f32 v{t16}, v{t16+1}, v{t16+2}
        ds_write_b32 v{tmp}, v{t16}
        """)
    a.label(L('nored'+tg))
def side_bext(raw, BX, RR, tmp):
    for t in range(2):
        s0 = raw+4*t; B = BX+4*t; rr = RR+3*t
        a(f"""
        v_and_b32 v{tmp}, 0xffff, v{s0}
        v_lshl_or_b32 v{B}, v{tmp}, 16, v{tmp}
        v_lshrrev_b32 v{tmp}, 16, v{s0}
        v_lshl_or_b32 v{B+1}, v{tmp}, 16, v{tmp}
        v_mov_b32 v{B+2}, v{s0+1}
        v_mov_b32 v{B+3}, 0
        v_mov_b32 v{rr}, v{s0+2}
        v_mul_f32 v{rr+1}, {LOG2E}, v{s0+2}
        v_mul_f32 v{rr+2}, 0.5, v{s0+2}
        """)
MAP = env("MAP", 0)
if MAP == 0:
    P2MAP = f"""
    s_and_b32 s82, s2, 7
    s_lshl_b32 s82, s82, 2
    s_bfe_u32 s9, s2, 0x20003
    s_add_u32 s82, s82, s9
    s_lshr_b32 s62, s2, 5
    s_mul_i32 s76, s62, 7
    s_lshr_b32 s76, s76, 2
    s_mul_i32 s9, s9, 3
    """
elif MAP == 2:
    P2MAP = f"""
    s_and_b32 s82, s2, 7
    s_lshl_b32 s82, s82, 2
    s_lshr_b32 s9, s2, 6
    s_add_u32 s82, s82, s9
    s_bfe_u32 s62, s2, 0x30003
    s_mul_i32 s76, s62, 7
    s_lshr_b32 s76, s76, 2
    s_mul_i32 s9, s9, {env("RM", 3)}
    """ + ("s_cmp_ge_u32 s9, 14\n    s_cselect_b32 s10, 14, 0\n    s_sub_u32 s9, s9, s10\n" if env("RM", 3) > 4 else "")
else:
    P2MAP = f"""
    s_bfe_u32 s82, s2, 0x20001
    s_lshl_b32 s82, s82, 3
    s_lshr_b32 s76, s2, 5
    s_add_u32 s82, s82, s76
    s_and_b32 s62, s2, 1
    s_lshl_b32 s62, s62, 2
    s_bfe_u32 s9, s2, 0x20003
    s_add_u32 s62, s62, s9
    s_mul_i32 s76, s76, 7
    s_lshr_b32 s76, s76, 2
    s_mul_i32 s9, s9, 3
    """
P2MAP += f"""
    s_add_u32 s76, s76, s9
    s_lshl_b32 s62, s62, 7
    s_mul_i32 s60, s3, {14*16*1024}
    s_add_u32 s60, s60, s62
    s_add_u32 s83, s60, {14*16384}
    s_lshl_b32 s68, s3, 16
    s_add_u32 s68, s68, s62
"""
TP0 = env("TP0", -1); TPS = env("TPS", 2)
def side_touch(tg, p, r1, r2):
    if TP0 < 0 or p < TP0 or (p-TP0) % TPS or (p-TP0)//TPS >= 8: return
    w = (p-TP0)//TPS
    a(f"s_cmp_eq_u32 s3, {w}\ns_cbranch_scc0 {L(f'pf{tg}{w}')}")
    with a.skippable():
        a(f"""
        s_lshr_b32 s9, s2, 3
        s_lshl_b32 s9, s9, 3
        s_add_u32 s9, s9, s3
        s_and_b32 s71, s2, 1
        s_lshl_b32 s71, s71, 9
        s_mul_i32 s10, s9, {7*1024}
        s_add_u32 s10, s10, s71
        s_lshl_b32 s11, s9, 11
        s_add_u32 s11, s11, s71
        v_lshrrev_b32 v{r1}, 2, v1
        v_and_b32 v{r2}, 3, v1
        v_lshlrev_b32 v{r2}, 7, v{r2}
        v_lshl_add_u32 v{r1}, v{r1}, 10, v{r2}
        s_mov_b64 exec, 0xfffffff
        buffer_load_dword v{r2}, v{r1}, {R(W2)}, s10 offen
        s_mov_b64 exec, 0xff
        buffer_load_dword v{r1}, v{r1}, {R(WO)}, s11 offen
        s_mov_b64 exec, -1
        """)
    a.label(L(f'pf{tg}{w}'))
def side_slow(tg, p, r1):
    if p != env("TQ", 8): return
    a(f"s_cmp_lt_u32 s3, 6\ns_cbranch_scc1 {L('sl3'+tg)}")
    with a.skippable():
        a(f"""
        s_lshr_b32 s9, s2, 3
        v_lshlrev_b32 v{r1}, 10, v1
        s_cmp_eq_u32 s3, 6
        s_cbranch_scc1 {L('sl1'+tg)}
        s_lshr_b32 s10, s{W2}, 7
        s_sub_u32 s10, 3, s10
        s_and_b32 s10, s10, 7
        s_lshl_b32 s10, s10, 7
        s_mul_i32 s9, s9, {56*1024}
        s_add_u32 s9, s9, s10
        s_mov_b32 exec_hi, 0xffffff
        buffer_load_dword v{r1}, v{r1}, {R(W2)}, s9 offen
        s_branch {L('sl2'+tg)}
        """)
        a.label(L('sl1'+tg))
        a(f"""
        s_lshr_b32 s10, s{WO}, 7
        s_sub_u32 s10, 3, s10
        s_and_b32 s10, s10, 7
        s_lshl_b32 s10, s10, 7
        s_lshl_b32 s9, s9, 14
        s_add_u32 s9, s9, s10
        s_mov_b64 exec, 0xffff
        buffer_load_dword v{r1}, v{r1}, {R(WO)}, s9 offen
        """)
        a.label(L('sl2'+tg))
        a("s_mov_b64 exec, -1")
    a.label(L('sl3'+tg))
def side_slow2(p, r1):
    T0 = env("TS0", -1); TS = env("TSS", 4)
    if T0 < 0 or p < T0 or (p-T0) % TS or (p-T0)//TS > 4: return
    k = (p-T0)//TS
    a(f"s_cmp_eq_u32 s3, {4 + (k & 3)}\ns_cbranch_scc0 {L(f'sq{k}')}")
    with a.skippable():
        srd = W2 if k < 4 else WO
        a(f"""
        s_bfe_u32 s9, s2, 0x40003
        v_lshlrev_b32 v{r1}, 10, v1
        s_lshr_b32 s10, s{srd}, 7
        s_sub_u32 s10, 3, s10
        s_and_b32 s10, s10, 7
        s_lshl_b32 s10, s10, 7
        s_mul_i32 s9, s9, {112*1024 if k < 4 else 32*1024}
        s_add_u32 s9, s9, s10
        s_add_u32 s9, s9, {k*28*1024 if k < 4 else 0}
        s_mov_b64 exec, {hex((1<<28)-1) if k < 4 else hex((1<<32)-1)}
        buffer_load_dword v{r1}, v{r1}, {R(srd)}, s9 offen
        s_mov_b64 exec, -1
        """)
    a.label(L(f'sq{k}'))
def side_p2(t3):
    a(f"""
    v_readfirstlane_b32 s75, v31
    v_lshrrev_b32 v{t3}, 3, v1
    v_and_b32 v{t3+1}, 7, v1
    v_lshrrev_b32 v{t3+2}, 2, v1
    v_and_b32 v{t3+2}, 4, v{t3+2}
    v_xor_b32 v{t3+1}, v{t3+1}, v{t3+2}
    v_lshlrev_b32 v{t3}, 10, v{t3}
    v_lshl_add_u32 v18, v{t3+1}, 4, v{t3}
    s_lshl_b32 s74, s4, 2
    s_add_u32 s74, s74, s62
    s_xor_b32 s64, s74, 1
    s_mul_i32 s74, s74, {AF_TG}
    s_mul_i32 s64, s64, {AF_TG}
    {P2MAP}
    s_cmp_ge_u32 s76, 14
    s_cselect_b32 s9, 14, 0
    s_sub_u32 s76, s76, s9
    s_lshl_b32 s61, s76, 14
    s_add_u32 s61, s61, s60
    """)
def p2_adv(x):
    x("s_add_u32 s61, s61, 16384\ns_cmp_eq_u32 s61, s83\ns_cselect_b32 s61, s60, s61")
W2PG = [7, 8, 9, 1, 2, 3, 4, 5, 6]
def p2_dma(x, u, tag, partner=False):
    pg = W2PG[u % 9]
    for half in range(2):
        x(f"s_add_u32 m0, s69, {pg*PG + half*1024}")
        if u < 14:
            if half == 0: x(f"s_add_u32 s71, s61, 8192\nbuffer_load_dwordx4 v18, {R(W2)}, s61 offen lds", tag)
            else: x(f"buffer_load_dwordx4 v18, {R(W2)}, s71 offen lds", tag)
        else:
            x(f"s_add_u32 s71, s68, {((u-14)*16+half*8)*1024}")
            x(f"buffer_load_dwordx4 v18, {R(WO)}, s71 offen lds", tag)
    if partner:
        for half in range(2):
            x(f"s_add_u32 m0, s69, {pg*PG + half*1024 + 8192}\ns_add_u32 s71, s61, {4*14*16384 + half*8192}")
            x(f"buffer_load_dwordx4 v18, {R(W2)}, s71 offen lds", tag)
    if u < 14: p2_adv(x)
def p2_dma_partner(x, u, tag):
    pg = W2PG[u % 9]
    for half in range(2):
        x(f"s_add_u32 m0, s69, {pg*PG + half*1024 + 8192}")
        if u < 14:
            x(f"s_add_u32 s71, s81, {4*14*16384 + half*8192}")
            x(f"buffer_load_dwordx4 v18, {R(W2)}, s71 offen lds", tag)
        else:
            x(f"s_add_u32 s71, s68, {4*65536 + ((u-14)*16+half*8)*1024}")
            x(f"buffer_load_dwordx4 v18, {R(WO)}, s71 offen lds", tag)
    if u < 14: x("s_add_u32 s81, s81, 16384\ns_cmp_eq_u32 s81, s83\ns_cselect_b32 s81, s60, s81")
def p2_dma2(x, u, tag):
    pg = W2PG[u % 9]
    for half in range(2):
        x(f"s_add_u32 m0, s69, {pg*PG + half*1024}")
        if u < 14:
            x(f"s_add_u32 s71, s81, {half*8192}")
            x(f"buffer_load_dwordx4 v18, {R(W2)}, s71 offen lds", tag)
        else:
            x(f"s_add_u32 s71, s68, {((u-14)*16+half*8)*1024}")
            x(f"buffer_load_dwordx4 v18, {R(WO)}, s71 offen lds", tag)
    if u < 14: x("s_add_u32 s81, s81, 16384\ns_cmp_eq_u32 s81, s83\ns_cselect_b32 s81, s60, s81")
def lds_wait(lab, off):
    a("s_mov_b32 s71, 0")
    a.label(L(lab))
    a(f"""
    ds_read_b32 v10, v11 offset:{off}
    s_waitcnt lgkmcnt(0)
    v_readfirstlane_b32 s9, v10
    s_add_u32 s71, s71, 1
    s_cmp_gt_u32 s71, {SPIN*8}
    s_cbranch_scc1 {L(lab+'x')}
    s_cmp_eq_u32 s9, s75
    s_cbranch_scc1 {L(lab+'x')}
    s_sleep 1
    s_branch {L(lab)}
    """)
    a.label(L(lab+'x'))
def poison(r):
    a(f"s_add_u32 s9, s65, 112\ns_lshl_b32 s9, s9, 10\ns_add_u32 s10, s9, s64\ns_add_u32 s9, s9, s74")
    a(f"v_mov_b32 v{r}, -1\nv_mov_b32 v{r+1}, -1\nv_mov_b32 v{r+2}, -1\nv_mov_b32 v{r+3}, -1")
    for f in range(2):
        for h in range(2): a(f"buffer_store_dwordx4 {V(r)}, v26, {R(WS)}, {('s9','s10')[f]} offen offset:{h*1024} {SC}")
def softmax(x, P, Pp, Pm, c):
    E = 112
    x(f"""
    v_max3_f32 v2, v{P}, v{P+1}, v{P+2}
    v_max3_f32 v3, -v{P}, -v{P+1}, -v{P+2}
    v_max3_f32 v2, v2, v{P+3}, v{P+4}
    v_max3_f32 v3, v3, -v{P+3}, -v{P+4}
    v_max3_f32 v2, v2, v{P+5}, v{P+6}
    v_max3_f32 v3, v3, -v{P+5}, -v{P+6}
    v_max_f32 v2, v2, v{P+7}
    v_max_f32_e64 v3, v3, -v{P+7}
    v_permlane32_swap_b32 v2, v3
    v_max_f32 v2, v2, v3
    v_mul_f32_e64 v2, -v2, v{c}
    v_mov_b32 v3, v2
    v_permlane32_swap_b32 v2, v3
    """)
    for r in range(8): x(f"v_fma_f32 v{E+r}, -v{P+r}, v{c}, v3\nv_fma_f32 v{P+r}, v{P+r}, v{c}, v2")
    for r in range(8): x(f"v_exp_f32 v{E+r}, v{E+r}\nv_exp_f32 v{P+r}, v{P+r}")
    x(f"v_add_f32 v2, v{P}, v{P+1}\nv_add_f32 v3, v{E}, v{E+1}")
    for r in range(2, 8): x(f"v_add_f32 v2, v2, v{P+r}\nv_add_f32 v3, v3, v{E+r}")
    x("v_permlane32_swap_b32 v2, v3\nv_add_f32 v2, v2, v3\nv_rcp_f32 v2, v2\nv_mov_b32 v3, v2\nv_permlane32_swap_b32 v2, v3")
    for r in range(8): x(f"v_mul_f32 v{P+r}, v{P+r}, v2\nv_mul_f32 v{E+r}, v{E+r}, v3")
    for q in range(4): x(f"v_cvt_pk_bf16_f32 v{Pp+q}, v{P+2*q}, v{P+2*q+1}\nv_cvt_pk_bf16_f32 v{Pm+q}, v{E+2*q}, v{E+2*q+1}")
def ffn_epi(x, acc, s_tile, f, rh, so=9):
    a(f"s_lshl_b32 s{so}, s{s_tile}, 11\ns_add_u32 s{so}, s{so}, s{(74,64)[f]}")
    for r in range(16): x(f"v_add_f32_e64 v{acc+r}, v{acc+r}, |v{acc+r}|")
    for r in range(16): x(f"v_mul_f32 v{acc+r}, v{acc+r}, v{rh}")
    for r in range(16): x(f"v_mul_f32 v{acc+r}, v{acc+r}, v{acc+r}")
    for q in range(8): x(f"v_cvt_pk_bf16_f32 v{acc+q}, v{acc+2*q}, v{acc+2*q+1}")
    x(f"buffer_store_dwordx4 {V(acc)}, v26, {R(WS)}, s{so} offen {SC}", "H")
    x(f"buffer_store_dwordx4 {V(acc+4)}, v26, {R(WS)}, s{so} offen offset:1024 {SC}", "H")
def flag_store(soff):
    a(f"""
    v_mov_b32 v31, s75
    s_mov_b64 exec, 1
    buffer_store_dword v31, v19, {R(WS)}, {soff} offen {SC}
    s_mov_b64 exec, -1
    """)
WREG = 128; P2ACC = 64; WTMP = 48; TRA = 2
def p2_traddr(t=2, q=8):
    a(f"""
    v_lshrrev_b32 v{q}, 5, v1
    v_bfe_u32 v{q+1}, v1, 2, 2
    v_lshl_add_u32 v{q}, v{q}, 2, v{q+1}
    v_lshlrev_b32 v{q}, 7, v{q}
    v_and_b32 v{q+2}, 3, v1
    v_lshl_add_u32 v{q}, v{q+2}, 3, v{q}
    v_bfe_u32 v{q+2}, v1, 4, 1
    v_and_b32 v{q+1}, 2, v{q+1}
    v_or_b32 v{q+2}, v{q+2}, v{q+1}
    v_lshl_add_u32 v{t}, v{q+2}, 5, v{q}
    v_add_u32 v{t}, s69, v{t}
    v_xor_b32 v{t+1}, 64, v{t}
    v_add_u32 v{t+2}, 0x10000, v{t}
    v_add_u32 v{t+3}, 0x10000, v{t+1}
    v_add_u32 v{t+4}, 0x20000, v{t}
    v_add_u32 v{t+5}, 0x20000, v{t+1}
    """)
def p2_tr(x, dst, u, tag):
    pg = W2PG[u % 9]
    for b in range(2):
        for e in range(2):
            x(f"ds_read_b64_tr_b16 {V(dst+4*b+2*e,2)}, v{TRA+2*(pg>>2)+b} offset:{(pg&3)*PG+e*1024}", tag)
def hflag():
    a(f"""
    s_lshl_b32 s9, s4, 1
    s_add_u32 s9, s9, s7
    s_lshl_b32 s77, s9, 9
    s_lshl_b32 s10, s79, 2
    s_add_u32 s10, s10, s63
    s_lshl_b32 s10, s10, 2
    s_add_u32 s9, s77, s10
    s_add_u32 s9, s9, {HF}
    """)
    flag_store("s9")
def kvpoll(w, lab):
    a(f"s_cmp_eq_u32 s3, {w}\ns_cbranch_scc0 {L(lab)}")
    with a.skippable():
        a("s_mov_b32 s71, 0")
        a.label(L('pk'))
        a(f"""
        buffer_load_dwordx2 v[10:11], v8, {R(WS)}, s66 offen {SC}
        s_waitcnt vmcnt(0)
        v_cmp_ne_u32 vcc, s75, v10
        v_cmp_ne_u32 s[80:81], s75, v11
        s_or_b64 vcc, vcc, s[80:81]
        s_cmp_eq_u64 vcc, 0
        s_cbranch_scc1 {L('pk2')}
        s_add_u32 s71, s71, 1
        s_cmp_gt_u32 s71, {SPIN}
        s_cbranch_scc1 {L('pk2')}
        s_sleep {SLP}
        s_branch {L('pk')}
        """)
        a.label(L('pk2'))
        for q in range(9):
            a(f"s_mov_b32 m0, {q*1024}\ns_add_u32 s10, s72, {q*1024}\nbuffer_load_dwordx4 v26, {R(WS)}, s10 offen {SC} lds")
        a("s_waitcnt vmcnt(0)\nv_mov_b32 v10, s75\nds_write_b32 v19, v10 offset:12288")
    a.label(L(lab))
ACC = [32, 48, 64, 80]
T = 96; KP = 2*PG; XF = 128
a(f"s_cmp_eq_u32 s5, 0\ns_cbranch_scc0 {L('typeB')}")
a.qsave("br")
for p in range(4): dma(1, p)
for i in range(8): a(f"v_add_u32 v{112+i}, {2*SLOT}, v{8+i}")
a(f"v_add_u32 v17, {2*SLOT}, v16")
a("v_lshlrev_b32 v121, 2, v30\nv_sub_u32 v121, v29, v121\nv_mov_b32 v122, 0x3f80\nv_mov_b32 v123, 0x3f800000")
SEL, WPH, BX, RRA, RAW = 64, 72, 76, 84, 120
for k in range(8):
    sg = k >> 2; q = k & 3
    f0 = (2*q & 3) + 8*((2*q) >> 2) + 16*sg
    a(f"v_cmp_eq_u32 vcc, {f0}, v121\nv_cndmask_b32 v{SEL+k}, 0, v122, vcc\nv_cmp_eq_u32 vcc, {f0+1}, v121\nv_cndmask_b32 v{SEL+k}, v{SEL+k}, v123, vcc")
st(grp="P"); a.wv("C0"); st(grp="P"); a("s_barrier"); st(grp="P")
st(grp="A")
def rdA(p):
    i = p & 3; b = 96 + 8*(p & 1); c = p >> 2; sl = c % 3
    ab = 8 if sl < 2 else 112; so = SLOT if sl == 1 else 0
    a(f"ds_read_b128 {V(XF+4*p)}, v{ab+i} offset:{so}", f"P{p}")
    for e in range(2): a(f"ds_read_b64_tr_b16 {V(b+4+2*e,2)}, v{16 if sl < 2 else 17} offset:{so+i*2048+e*512}", f"P{p}")
    a(f"ds_read_b128 {V(b)}, v{ab+4+i} offset:{so}", f"P{p}")
rdA(0)
for p in range(32):
    c = p >> 2; i = p & 3
    a.wl(f"P{p}")
    if i == 3 and c < 7:
        if c in (2,3): st(grp="W")
        a.wv(f"C{c+1}")
        if c in (2,3): st(grp="W")
        if p == 23: st(grp="W"); side_poll_wait("A", False)
        a("s_barrier"); st(grp="A")
        if c in (2,3,5): st(grp="W")
    if p+1 < 32: rdA(p+1)
    b = 96 + 8*(p & 1)
    a(f"{MF} {V(ACC[0],16)}, {V(b+4)}, {V(XF+4*p)}, {V(ACC[0],16) if p else 0}")
    if p < 2: dma(2, 2*p); dma(2, 2*p+1)
    elif p >= 3:
        cc = ((p-3) >> 2) + 3
        if cc <= 7: dma(cc, (p-3) & 3)
    a(f"{MF} {V(ACC[1],16)}, {V(b+4)}, {V(b)}, {V(ACC[1],16) if p else 0}")
    side_slow("A", p, 94)
    if p == 0: side_wphi_dma("A")
    if p == 3: side_flags("A", 90)
    if p == 8:
        for e in range(2): a(f"ds_read_b64_tr_b16 {V(WPH+2*e,2)}, v21 offset:{e*256}", f"P{p+1}")
    if p == 17: side_poll_issue("A")
    if p == 23: side_poll_check("A", RAW, 92, "P24")
    if p == 24: side_p2(90)
    if AW == 0:
        if p in (24, 25, 26): p2_dma(a, p-24, "D1")
        if p == 28: p2_dma(a, 3, "D1")
    if AW == 2 and p in (27, 28):
        a(f"s_add_u32 m0, s70, {3*PG + (p-27)*8192}")
        a(f"buffer_load_dwordx4 v6, {R(W1)}, s73 offen lds", "I2")
        a(f"s_add_u32 s73, s73, {64*3584}")
st(); st(grp="B")
a.wv("ST"); a("s_barrier")
side_csred("A", 96, 92)
side_bext(RAW, BX, RRA, 92)
a("v_mov_b32 v95, v6")
a("s_waitcnt lgkmcnt(0)\ns_barrier")
st(grp="B")
a(f"""
ds_read_b32 v120, v23
ds_read_b32 v4, v24
v_cmp_gt_u32 vcc, 32, v1
v_lshl_or_b32 v28, v28, 16, v28
v_cndmask_b32 v6, 0, v28, vcc
v_cmp_eq_u32 s[80:81], 16, v29
v_cndmask_b32 v27, 0, v22, s[80:81]
v_mov_b32 v122, 0
v_mov_b32 v123, 0
v_mov_b32 v7, 0
s_waitcnt lgkmcnt(0)
v_cndmask_b32 v120, 0, v120, vcc
v_cndmask_b32 v4, 0, v4, vcc
v_mov_b32 v121, v120
v_mov_b32 v5, v4
{MF} {V(ACC[0],16)}, v[120:123], {V(BX)}, {V(ACC[0],16)}
{MF} {V(ACC[1],16)}, v[120:123], {V(BX+4)}, {V(ACC[1],16)}
""")
KVA = 8
a("v_mov_b32 v90, v18\nv_mov_b32 v91, v20")
E = a.sub(); D = a.sub()
for f in range(2):
    acc = ACC[f]; rr = RRA+3*f
    for q in range(4): E(f"v_cvt_pk_bf16_f32 v{120+q}, v{acc+2*q}, v{acc+2*q+1}")
    E(f"{MF} {V(T,16)}, {V(WPH)}, v[120:123], 0")
    for r in range(8, 16): E(f"v_mul_f32 v{acc+r}, v{acc+r}, v{rr}")
    for q in range(4): E(f"v_cvt_pk_bf16_f32 v{120+q}, v{acc+8+2*q}, v{acc+9+2*q}")
    E(f"{MF} {V(acc,16)}, v[120:123], {V(SEL)}, 0")
    softmax(E, T, 120, 124, rr+1)
    E(f"{MF} {V(T,16)}, v[120:123], {V(SEL)}, 0")
    E(f"{MF} {V(T,16)}, v[124:127], {V(SEL+4)}, {V(T,16)}")
    for q in range(8): E(f"v_cvt_pk_bf16_f32 v{112+q}, v{acc+2*q}, v{acc+2*q+1}\nv_or_b32 v{112+q}, v{112+q}, v27")
    for q in range(8): E(f"v_cvt_pk_bf16_f32 v{T+q}, v{T+2*q}, v{T+2*q+1}")
    E(f"{MF} {V(KVA,16)}, {V(T)}, v[112:115], {V(KVA,16) if f else 0}")
    E(f"{MF} {V(KVA,16)}, {V(T+4)}, v[116:119], {V(KVA,16)}")
for c in range(2 if AW == 2 else 0, 8):
    D(f"s_add_u32 m0, s70, {3*PG + c*8192}")
    D(f"buffer_load_dwordx4 v95, {R(W1)}, s73 offen lds", "I2")
    D(f"s_add_u32 s73, s73, {64*3584}")
if AW:
    D2s = a.sub()
    for u in range(4): p2_dma(D2s, u, "D1")
    for it in D2s.items:
        if hasattr(it, "text"):
            D(it.text.replace("v18", "v90"), it.tag)
nE = len(E.items)*env("EFR", 6)//10
E1 = a.sub(); E1.items = E.items[:nE]; E2 = a.sub(); E2.items = E.items[nE:]
a.merge(E1, D); a.extend(E2)
st(grp="B")
a(f"""
s_lshl_b32 s9, s63, 12
s_lshl_b32 s10, s7, 11
s_add_u32 s9, s9, s10
s_add_u32 s9, s9, {KP}
v_add_u32 v92, s9, v26
v_xor_b32 v93, 0x800, v92
v_mul_u32_u24 v94, 17, v30
v_add_u32 v94, v94, v29
v_lshlrev_b32 v94, 2, v94
s_mul_i32 s10, s63, 2176
s_mul_i32 s11, s7, {8*136}
s_add_u32 s10, s10, s11
s_add_u32 s10, s10, s72
v_cmp_gt_u32 s[80:81], 17, v29
s_cmp_eq_u32 s7, 0
s_cbranch_scc1 {L('kv0')}
""")
with a.skippable():
    for q in range(2): a(f"ds_write_b128 v92, {V(KVA+4*q)} offset:{q*1024}")
    for r in range(8): a(f"v_mov_b32 v{KVA+r}, v{KVA+8+r}")
    a(f"s_branch {L('kv1')}")
a.label(L('kv0'))
with a.skippable():
    for q in range(2): a(f"ds_write_b128 v92, {V(KVA+8+4*q)} offset:{q*1024}")
a.label(L('kv1'))
if not env("SEP", 0): a.wv("I2")
a("s_waitcnt lgkmcnt(0)\ns_barrier")
for q in range(2): a(f"ds_read_b128 {V(T+4*q)}, v93 offset:{q*1024}")
a(f"v_mov_b32 v18, v90\nv_mov_b32 v19, 0\nv_add_u32 v20, {3*PG}, v91")
a("s_waitcnt lgkmcnt(0)")
for r in range(8): a(f"v_add_f32 v{KVA+r}, v{KVA+r}, v{T+r}")
a("s_mov_b64 exec, s[80:81]")
for r in range(8): a(f"buffer_atomic_add_f32 v{KVA+r}, v94, {R(WS)}, s10 offen offset:{r*136}", "AT")
a("s_mov_b64 exec, -1")
st(grp="B")
if env("SEP", 0): a.wv("I2"); a("s_barrier")
A2 = 32
def rd2(k):
    b = 48 + 4*(k % 4)
    for e in range(2): a(f"ds_read_b64_tr_b16 {V(b+2*e,2)}, v20 offset:{k*2048+e*512}", f"B{k}")
a(f"{MF} {V(A2,16)}, v[4:7], {V(BX)}, 0")
rd2(0); rd2(1); rd2(2)
K1 = env("K1", 0); K2 = env("K2", 17)
TRA = 96
if K1: p2_traddr(96, 104)
a(f"s_add_u32 s81, s61, {5*16384}\ns_sub_u32 s9, s81, {14*16384}\ns_cmp_ge_u32 s81, s83\ns_cselect_b32 s81, s9, s81")
for k in range(32):
    if k+3 < 32: rd2(k+3)
    a.wl(f"B{k}")
    a(f"{MF} {V(A2,16)}, {V(48+4*(k%4))}, {V(XF+4*k)}, {V(A2,16)}")
    if K1 and k == K1:
        for u in range(4): p2_tr(a, WREG+8*u, u, f"B{k+4}")
    if K1 and K1+4 <= k < K1+8: p2_dma2(a, 9+k-K1-4, "D2")
    if K1 and k == K2: a("s_barrier")
    if K1 and k in (K2+5, K2+7, K2+9): p2_dma(a, 4+(k-K2-5)//2, "D1")
    if k == env("KVK", 20):
        a.wv("AT")
        a(f"""
        s_lshl_b32 s9, s6, 10
        s_lshl_b32 s10, s4, 5
        s_add_u32 s9, s9, s10
        s_lshl_b32 s10, s3, 2
        s_add_u32 s9, s9, s10
        s_add_u32 s9, s9, {KVF}
        """)
        flag_store("s9")
        st(grp="B")
ffn_epi(a, A2, 67, 0, RRA+2)
st()
TRA = 2
p2_traddr()
if K1:
    a("s_barrier")
    for u in range(7, 9): p2_dma(a, u, "D1x")
    a.wv("H")
    hflag()
    st()
    for u in range(4, 7): p2_tr(a, WREG+8*u, u, "W1")
    a("s_barrier")
    a.wl("W1")
    for u in range(13, 16): p2_dma2(a, u, "D2")
    a.wv("D1x")
    for u in range(7, 9): p2_tr(a, WREG+8*u, u, "W1")
    a.wl("W1")
    for u in range(16, 18): p2_dma2(a, u, "D2")
else:
    AT2 = env("AT2", 0)
    for u in range(4): p2_tr(a, WREG+8*u, u, "W1")
    if AT2 == 2:
        a.wl("W1")
        for u in range(9, 13): p2_dma2(a, u, "D2")
    a("s_barrier")
    for u in range(4, 6): p2_dma(a, u, "D1")
    a.wv("H")
    hflag()
    st()
    if AT2 == 0: a("s_barrier")
    for u in range(6, 9): p2_dma(a, u, "D1")
    a.wl("W1")
    if AT2 != 2:
        for u in range(9, 13): p2_dma2(a, u, "D2")
    a.wv("D1")
    for u in range(4, 9): p2_tr(a, WREG+8*u, u, "W1")
    a.wl("W1")
    for u in range(13, 18): p2_dma2(a, u, "D2")
a(f"s_branch {L('tail')}")
a.label(L('typeB'))
a.qload("br")
for p in range(6): dma(1, p)
for i in range(10): a(f"v_add_u32 v{160+i}, {2*SLOT}, v{8+i}")
a("s_cmp_eq_u32 s8, 0\ns_cselect_b64 s[80:81], -1, 0\ns_mov_b64 vcc, s[80:81]")
st(5, grp="P"); a.wv("C0"); st(grp="P"); a("s_barrier"); st(grp="P")
st(1, grp="A")
def rdB(p):
    i = p & 3; b = 96 + 16*(p & 1); c = p >> 2; sl = c % 3
    ab = 8 if sl < 2 else 160; so = SLOT if sl == 1 else 0
    a(f"ds_read_b128 {V(b)}, v{ab+i} offset:{so}", f"P{p}")
    for e in range(2): a(f"ds_read_b64_tr_b16 {V(b+8+2*e,2)}, v{ab+8} offset:{so+i*2048+e*512}", f"P{p}")
    a(f"ds_read_b128 {V(b+4)}, v{ab+4+i} offset:{so}", f"P{p}")
    for e in range(2): a(f"ds_read_b64_tr_b16 {V(b+12+2*e,2)}, v{ab+9} offset:{so+i*2048+e*512}", f"P{p}")
rdB(0)
WPB, BXB, RRB, RAWB = 200, 208, 220, 232
for p in range(32):
    c = p >> 2; i = p & 3
    a.wl(f"P{p}")
    b = 96 + 16*(p & 1)
    BO = env("BO", 0) if (i == 3 and c < 7) else 0
    M01 = [f"{MF} {V(ACC[0],16)}, {V(b+8)}, {V(b)}, {V(ACC[0],16) if p else 0}", f"{MF} {V(ACC[1],16)}, {V(b+8)}, {V(b+4)}, {V(ACC[1],16) if p else 0}"]
    for m in M01[:BO]: a(m)
    if i == 3 and c < 7:
        a.wv(f"C{c+1}")
        if p == 19: side_poll_wait("B", True)
        a("s_barrier"); st(grp="A")
    if p+1 < 32: rdB(p+1)
    for m in M01[BO:]: a(m)
    if p < 3: dma(2, 2*p); dma(2, 2*p+1)
    else:
        cc = ((p-3) >> 2) + 3; q = (p-3) & 3
        if cc <= 7:
            for piece in ((0,1),(2,3),(4,),(5,))[q]: dma(cc, piece)
    a(f"{MF} {V(ACC[2],16)}, {V(b+12)}, {V(b)}, {V(ACC[2],16) if p else 0}")
    a(f"s_cbranch_vccz {L(f'm4_{p}')}")
    with a.skippable():
        a(f"{MF} {V(ACC[3],16)}, {V(b+12)}, {V(b+4)}, {V(ACC[3],16) if p else 0}")
    a.label(L(f"m4_{p}"))
    side_slow("B", p, 250); side_slow2(p, 250 + ((p//4) & 1))
    if p == 0: side_wphi_dma("B")
    if p == 3: side_flags("B", 240)
    if p == 8:
        for h in range(2):
            for e in range(2): a(f"ds_read_b64_tr_b16 {V(WPB+4*h+2*e,2)}, v21 offset:{h*512+e*256}", f"P{p+1}")
    if p == 13: side_poll_issue("B")
    if p == 19: side_poll_check("B", RAWB, 240, "P20")
    if p == 26: a.wv("ST")
    if p == 28: side_csred("B", 144, 240)
    if p == 29: side_bext(RAWB, BXB, RRB, 240)
    if p == 22:
        side_p2(240)
        if env("PZ", 0):
            a(f"s_cbranch_vccnz {L('nopz')}")
            with a.skippable(): poison(244)
            a.label(L('nopz'))
    if p in (23, 24, 25): p2_dma(a, p-23, "D1a")
    if p in (27, 29, 30): p2_dma(a, {27:3, 29:4, 30:5}[p], "D1b")
st(2)
a("s_waitcnt lgkmcnt(0)\ns_barrier")
a(f"""
ds_read_b32 v216, v23
ds_read_b32 v240, v24
v_cmp_gt_u32 vcc, 32, v1
v_lshl_or_b32 v27, v27, 16, v27
v_lshl_or_b32 v28, v28, 16, v28
s_and_b64 s[80:81], s[80:81], vcc
v_cndmask_b32 v218, 0, v27, s[80:81]
v_cndmask_b32 v242, 0, v28, vcc
v_mov_b32 v219, 0
v_mov_b32 v243, 0
s_waitcnt lgkmcnt(0)
v_cndmask_b32 v216, 0, v216, vcc
v_cndmask_b32 v240, 0, v240, vcc
v_mov_b32 v217, v216
v_mov_b32 v241, v240
{MF} {V(ACC[0],16)}, v[216:219], {V(BXB)}, {V(ACC[0],16)}
{MF} {V(ACC[1],16)}, v[216:219], {V(BXB+4)}, {V(ACC[1],16)}
{MF} {V(ACC[2],16)}, v[240:243], {V(BXB)}, {V(ACC[2],16)}
{MF} {V(ACC[3],16)}, v[240:243], {V(BXB+4)}, {V(ACC[3],16)}
""")
for u in range(6, 9): p2_dma(a, u, "D1c")
TRA = 12
p2_traddr(12)
def w2step(k):
    if k == 0:
        a.wv("D1a")
        for u in range(0, 3): p2_tr(a, WREG+8*u, u, "W1")
    elif k == 1:
        a.wl("W1")
        for u in range(9, 12): p2_dma(a, u, "D2")
        a.wv("D1b")
        for u in range(3, 6): p2_tr(a, WREG+8*u, u, "W1")
    elif k == 2:
        a.wl("W1")
        for u in range(12, 15): p2_dma(a, u, "D2")
        a.wv("D1c")
        for u in range(6, 9): p2_tr(a, WREG+8*u, u, "W1")
    elif k == 3:
        a.wl("W1")
        for u in range(15, 18): p2_dma(a, u, "D2")
a(f"s_cmp_eq_u32 s8, 0\ns_cbranch_scc0 {L('Bq')}")
a.qsave("bq")
ffn_epi(a, ACC[0], 66, 0, RRB+2)
ffn_epi(a, ACC[1], 66, 1, RRB+5)
ffn_epi(a, ACC[2], 67, 0, RRB+2)
ffn_epi(a, ACC[3], 67, 1, RRB+5)
st(3)
a.wv("D1c")
for u in range(9): p2_tr(a, WREG+8*u, u, "W1")
a.wv("H")
hflag()
a("s_mov_b32 s81, s61\ns_lshl_b32 s9, s3, 2\nv_mov_b32 v11, s9")
a.wl("W1")
for u in range(9, 18): p2_dma(a, u, "D2")
lds_wait("pw", 12304)
for u in range(9, 18): p2_dma_partner(a, u, "D2")
a("s_waitcnt vmcnt(0)\nv_mov_b32 v10, s75\nds_write_b32 v11, v10 offset:12320")
st(4)
a(f"s_branch {L('tailB')}")
a.label(L('Bq'))
a.qload("bq")
stor = {(0,0): (80, 84), (0,1): (88, 92), (1,0): (232, 236), (1,1): (240, 244)}
if not env("PZ", 0): poison(4)
ffn_epi(a, ACC[2], 67, 0, RRB+2)
a(f"v_lshlrev_b32 v8, 3, v1\ns_lshl_b32 s66, s6, 10\ns_add_u32 s66, s66, {KVF}\ns_mul_i32 s11, s78, 4352")
for f in range(2):
    acc = ACC[f]
    for q in range(8): a(f"v_cvt_pk_bf16_f32 v{acc+q}, v{acc+2*q}, v{acc+2*q+1}")
    for h in range(2):
        a(f"{MF} {V(T,16)}, {V(WPB+4*h)}, {V(acc+4*h)}, 0")
        if 2*f+h == TRP:
            a.wv("H"); hflag()
            for u in range(9): p2_tr(a, WREG+8*u, u, "W1")
        if 2*f+h == TRP+1:
            a.wl("W1")
            a("s_lshl_b32 s9, s3, 2\nv_mov_b32 v9, s9\nv_mov_b32 v10, s75\nds_write_b32 v9, v10 offset:12288")
        softmax(a, T, stor[(f,h)][0], stor[(f,h)][1], RRB+1+3*f)
st(3)
a(f"""
v_min_u32 v9, 16, v29
v_mul_u32_u24 v10, 17, v30
v_add_u32 v9, v9, v10
v_lshlrev_b32 v9, 2, v9
v_add_u32 v9, s11, v9
""")
kvpoll(4, 'nopk')
a("s_mov_b32 s71, 0")
a.label(L('lf1'))
a(f"""
ds_read_b32 v10, v19 offset:12288
s_waitcnt lgkmcnt(0)
v_readfirstlane_b32 s9, v10
s_add_u32 s71, s71, 1
s_cmp_gt_u32 s71, {SPIN*8}
s_cbranch_scc1 {L('lf2')}
s_cmp_eq_u32 s9, s75
s_cbranch_scc1 {L('lf2')}
s_sleep 1
s_branch {L('lf1')}
""")
a.label(L('lf2'))
for h in range(2):
    for r in range(16): a(f"ds_read_b32 v{32+16*h+r}, v9 offset:{h*2176+r*136}", f"K{h}")
a(f"s_add_u32 s9, s65, 112\ns_lshl_b32 s9, s9, 10\ns_add_u32 s10, s9, s64\ns_add_u32 s9, s9, s74")
for h in range(2):
    kb = 32+16*h
    a.wl(f"K{h}")
    for q in range(8): a(f"v_cvt_pk_bf16_f32 v{kb+q}, v{kb+2*q}, v{kb+2*q+1}")
    for f in range(2):
        Tt = 96+16*f
        a(f"{MF} {V(Tt,16)}, {V(kb)}, {V(stor[(f,h)][0])}, 0")
        a(f"{MF} {V(Tt,16)}, {V(kb+4)}, {V(stor[(f,h)][1])}, {V(Tt,16)}")
    for f in range(2):
        Tt = 96+16*f; o = kb+8+4*f
        a(f"v_add_f32 v8, 0x358637bd, v{Tt+8}\nv_rcp_f32 v8, v8")
        for r in range(8): a(f"v_mul_f32 v{Tt+r}, v{Tt+r}, v8")
        for q in range(4): a(f"v_cvt_pk_bf16_f32 v{o+q}, v{Tt+2*q}, v{Tt+2*q+1}")
        a(f"buffer_store_dwordx4 {V(o)}, v26, {R(WS)}, {('s9','s10')[f]} offen offset:{h*1024} {SC}", "O")
st()
a("s_lshl_b32 s9, s3, 2\nv_mov_b32 v11, s9")
lds_wait("r2w", 12320-16)
a.label(L('tailB'))
for i in range(6): a(f"v_mov_b32 v{2+i}, v{12+i}")
TRA = 2
a.label(L('tail'))
a(f"""
s_mul_i32 s64, s82, {2*AF_TG}
s_mul_i32 s65, s3, {14*1024}
s_add_u32 s65, s65, s64
s_lshl_b32 s66, s3, 12
s_add_u32 s66, s66, s64
s_add_u32 s66, s66, {112*1024}
s_add_u32 s67, s66, {AF_TG}
s_lshl_b32 s9, s82, 9
s_add_u32 s72, s9, {HF}
s_add_u32 s73, s9, {OF}
v_lshlrev_b32 v0, 4, v1
v_lshlrev_b32 v8, 2, v1
""")
st(5)
a(f"s_cmp_eq_u32 s3, 0\ns_cbranch_scc0 {L('phok')}")
with a.skippable():
    a("s_mov_b32 s79, 0")
    a.label(L('ph'))
    a(f"""
    buffer_load_dword v10, v8, {R(WS)}, s72 offen {SC}
    s_waitcnt vmcnt(0)
    v_cmp_ne_u32 vcc, s75, v10
    s_cmp_eq_u64 vcc, 0
    s_cbranch_scc1 {L('phok')}
    s_add_u32 s79, s79, 1
    s_cmp_gt_u32 s79, {SPIN}
    s_cbranch_scc1 {L('phok')}
    s_sleep {SLP}
    s_branch {L('ph')}
    """)
if env("DEC", 0):
    a.label(L('phok2')) if False else None
a.label(L('phok'))
if env("DEC", 0):
    a(f"s_cmp_eq_u32 s3, 0\ns_cbranch_scc0 {L('hw0')}")
    with a.skippable():
        a("v_mov_b32 v10, s75\nds_write_b32 v19, v10 offset:12352")
    a.label(L('hw0'))
    a("v_mov_b32 v11, 0")
    lds_wait("hw", 12352)
else:
    a("s_barrier")
st(); st(1, grp="T")
abuf = [200+8*i for i in range(7)] + [16+8*i for i in range(4)]
NA = 11
a(f"""
s_mov_b32 s60, s65
s_add_u32 s83, s65, {14*1024}
s_lshl_b32 s9, s76, 10
s_add_u32 s65, s65, s9
""")
def aload(u):
    r = abuf[u % NA]
    if u < 14:
        a(f"s_add_u32 s71, s65, {AF_TG}")
        a(f"buffer_load_dwordx4 {V(r)}, v0, {R(WS)}, s65 offen {ASC}", f"A{u}")
        a(f"buffer_load_dwordx4 {V(r+4)}, v0, {R(WS)}, s71 offen {ASC}", f"A{u}")
        a("s_add_u32 s65, s65, 1024\ns_cmp_eq_u32 s65, s83\ns_cselect_b32 s65, s60, s65")
    else:
        for tb in range(2):
            a(f"buffer_load_dwordx4 {V(r+4*tb)}, v0, {R(WS)}, s{(66,67)[tb]} offen offset:{(u-14)*1024} {SC}", f"A{u}")
NW = env("NW", 11)
OCK = min(OCK, 14-NW) if NW < 11 else OCK
FOP = max(0, OCK - 2)
for u in range(NW):
    aload(u)
def mfmas(u, w):
    r = abuf[u % NA]
    for tb in range(2):
        for nb in range(2):
            d = P2ACC + 16*(2*tb+nb)
            a(f"{MF} {V(d,16)}, {V(w+4*nb)}, {V(r+4*tb)}, {V(d,16) if u else 0}")
a(f"""
v_lshrrev_b32 v12, 3, v1
v_lshlrev_b32 v12, 10, v12
v_and_b32 v13, 7, v1
v_lshlrev_b32 v13, 4, v13
v_add_u32 v12, v12, v13
s_lshl_b32 s74, s82, 16
s_lshl_b32 s9, s3, 13
s_add_u32 s74, s74, s9
s_add_u32 s74, s74, s62
""")
for u in range(18):
    if u == 8: p2_tr(a, WTMP, 9, "T9")
    if 9 <= u < 17: p2_tr(a, WTMP + 8*((u-8)&1), u+1, f"T{u+1}")
    if u >= 9: a.wl(f"T{u}")
    a.wv(f"A{u}")
    if u in (0, 7, 14): st(grp="T")
    if u >= 14:
        r = abuf[u % NA]
        a("s_mov_b32 s79, 0")
        a.label(L(f'oc{u}'))
        a(f"""
        v_cmp_eq_u32 vcc, -1, v{r}
        v_cmp_eq_u32 s[80:81], -1, v{r+4}
        s_or_b64 vcc, vcc, s[80:81]
        s_cmp_eq_u64 vcc, 0
        s_cbranch_scc1 {L(f'ok{u}')}
        s_add_u32 s79, s79, 1
        s_cmp_gt_u32 s79, {SPIN}
        s_cbranch_scc1 {L(f'ok{u}')}
        """)
        with a.skippable():
            a("s_sleep 8")
            for tb in range(2):
                a(f"buffer_load_dwordx4 {V(r+4*tb)}, v0, {R(WS)}, s{(66,67)[tb]} offen offset:{(u-14)*1024} {SC}")
            a(f"s_waitcnt vmcnt(0)\ns_branch {L(f'oc{u}')}")
        a.label(L(f'ok{u}'))
    mfmas(u, WREG+8*u if u < 9 else WTMP+8*((u-9)&1))
    if NW == 11:
        if u < 3: aload(u+NA)
    else:
        if u+NW < 14: aload(u+NW)
        if u+NW == OCK+0: a(f"buffer_load_dword v10, v8, {R(WS)}, s73 offen {SC}", f"A{OCK}")
        if u > OCK and u+NW < 18: aload(u+NW)  if u+NW >= 14 else None
    if u == 3:
        a(f"buffer_load_dwordx4 v[128:131], v12, {R(X)}, s74 offen", "X")
        a(f"buffer_load_dwordx4 v[132:135], v13, {R(B2)}, s62 offen", "X")
    if u == OCK:
        for uu in range(14, 18): aload(uu)
    if u == 15 and env("CLR", 1) == 1:
        a(f"s_or_b32 s9, s2, s3\ns_cmp_eq_u32 s9, 0\ns_cbranch_scc0 {L('noclr1')}")
        with a.skippable():
            a(f"v_mov_b32 v8, 0\ns_mov_b64 exec, 1\nbuffer_store_dword v8, v8, {R(DBG)}, 0 offen {SC}\ns_mov_b64 exec, -1")
        a.label(L('noclr1'))
st(); st(grp="T")
a(f"""
v_bfe_u32 v8, v1, 3, 2
v_lshlrev_b32 v8, 14, v8
v_and_b32 v9, 7, v1
v_lshl_add_u32 v8, v9, 8, v8
v_lshrrev_b32 v10, 5, v1
v_xor_b32 v10, v10, v9
v_lshl_add_u32 v8, v10, 4, v8
s_add_u32 s9, s69, {PG}
v_add_u32 v8, s9, v8
v_xor_b32 v9, 32, v8
v_xor_b32 v10, 64, v8
v_xor_b32 v11, 96, v8
v_add_u32 v2, 0x10000, v8
v_add_u32 v3, 0x10000, v9
v_add_u32 v4, 0x10000, v10
v_add_u32 v5, 0x10000, v11
""")
for tb in range(2):
    for nb in range(2):
        for qq in range(4):
            d = P2ACC + 16*(2*tb+nb) + 4*qq
            a(f"ds_write_b128 v{(8,2)[tb]+qq}, {V(d)} offset:{nb*128}")
a("""
v_lshrrev_b32 v6, 3, v1
v_and_b32 v7, 7, v1
v_lshlrev_b32 v7, 1, v7
v_xor_b32 v7, v7, v6
v_lshlrev_b32 v6, 8, v6
v_lshl_add_u32 v6, v7, 4, v6
s_lshl_b32 s9, s3, 14
s_add_u32 s9, s9, 16384
v_add_u32 v6, s9, v6
v_xor_b32 v7, 16, v6
s_waitcnt lgkmcnt(0)
""")
st(grp="T"); a("s_barrier"); st(grp="T")
RR = 160
for w in range(8):
    for e in range(2):
        a(f"ds_read_b128 {V(RR+8*w+4*e)}, v{6+e} offset:{w*2048}", f"R{w}")
a.wv("X")
for i in range(4):
    a(f"v_lshlrev_b32 v{24+2*i}, 16, v{128+i}\nv_and_b32 v{25+2*i}, 0xffff0000, v{128+i}")
    a(f"v_lshlrev_b32 v{32+2*i}, 16, v{132+i}\nv_and_b32 v{33+2*i}, 0xffff0000, v{132+i}")
for i in range(8): a(f"v_add_f32 v{24+i}, v{24+i}, v{32+i}")
for w in range(8):
    a.wl(f"R{w}")
    for i in range(8): a(f"v_add_f32 v{24+i}, v{24+i}, v{RR+8*w+i}")
for i in range(4): a(f"v_cvt_pk_bf16_f32 v{32+i}, v{24+2*i}, v{25+2*i}")
a(f"buffer_store_dwordx4 v[32:35], v12, {R(OUT)}, s74 offen {os.environ.get('OSC','')}")
st(grp="T")
if INSTR:
    a("s_waitcnt vmcnt(0)"); st()
    nst[0] = 9
    a(f"s_waitcnt lgkmcnt(0)\ns_lshl_b32 s9, s2, 3\ns_add_u32 s9, s9, s3\ns_lshl_b32 s9, s9, 6\ns_add_u32 s9, s9, {STAMPS}")
    a("v_mov_b32 v0, 0\ns_mov_b64 exec, 1")
    for i in range(nst[0]):
        a(f"v_mov_b32 v1, s{84+2*i}\nbuffer_store_dword v1, v0, {R(WS)}, s9 offen offset:{4*i}\ns_nop 1")
a.label(L('end')); a("s_endpgm")
desc = f""".section .rodata,"a"
.p2align 6
.amdhsa_kernel {NAME}
  .amdhsa_next_free_vgpr 256
  .amdhsa_next_free_sgpr 102
  .amdhsa_accum_offset 256
  .amdhsa_group_segment_fixed_size 0
  .amdhsa_kernarg_size 96
  .amdhsa_user_sgpr_count 2
  .amdhsa_user_sgpr_kernarg_segment_ptr 1
  .amdhsa_system_sgpr_workgroup_id_x 1
  .amdhsa_float_denorm_mode_32 3
.end_amdhsa_kernel
"""
if __name__ == "__main__":
    open(sys.argv[1], "w").write("; @launch grid=(256,1,1) block=(512,1,1) lds=163840\n" + a.finish() + desc)
    print("stamps:", nst[0], "STAMPS", STAMPS)
```

```python
import sys, os
sys.path.insert(0, "work")
from asmlib import Asm
EXP = os.environ.get("EXP", "").split(",")
INSTR = "instr" in sys.argv
STG = os.environ.get("STG", "main")
def env(n, d): return int(os.environ.get(n, str(d)))
NAME = "parallel_sum__linear_kernel_hedgehog__dense_activation_squared_relu__prompt_kernel"
SZ = dict(x=2048*512*2, wqkv=512*1536*2, wphi=32*16*16*2, wo=512*512*2, w1=512*1792*2, b1=1792*2, w2=1792*512*2, b2=512*2, out=2048*512*2, dbg=256)
KSLOT = dict(x=0, wqkv=1, wphi=2, wo=3, w1=5, b1=6, w2=7, b2=8, out=9, dbg=10, ws=11)
AF_TG = 144*1024
KVACC = 64*AF_TG; KV_J = 9216
KVF = KVACC + 8*KV_J
HF = KVF + 8*512
OF = HF + 32*256
EFS = OF + 32*256
EFC = EFS + 16*128
CSP = EFC + 16*128
STAT = CSP + 16*14336
STAMPS = STAT + 2048*16
WS_END = STAMPS + 256*8*64
SZ["ws"] = WS_END
LOG2E = "0x3fb8aa3b"
SLOT = 49152; PG = 16384; RB = PG
SPIN = 60000
FLA = env("FLA", 18); FLC = env("FLC", 23); KPW = env("KPW", 4); FLB = env("FLB", 14); OCK = env("OCK", 6 if env("NW", 11) == 11 else 14-env("NW", 11)); AW = env("AW", 0); TRP = env("TRP", 1); NE = env("NE", 4); NB = env("NB", 8)
SC = "sc1"
ASC = os.environ.get("ASC", "sc1")
SLP = env("SLP", 8)
X, WQ, W1, WS, DBG, WPHI, B1, I1, W2, WO, B2, OUT = 12, 16, 20, 24, 28, 32, 36, 40, 44, 48, 52, 56
def R(s): return f"s[{s}:{s+3}]"
def V(b, n=4): return f"v[{b}:{b+n-1}]"
MF = "v_mfma_f32_32x32x16_bf16"
a = Asm()
nst = [0]
def st(i=None, grp="main"):
    if not INSTR or grp != STG: return
    if i is not None: nst[0] = i
    a(f"s_memrealtime s[{84+2*nst[0]}:{85+2*nst[0]}]"); nst[0] += 1
def L(n): return f"L_{n}"
def fin(x, n, s): x(f"s_mov_b32 s{s+2}, {SZ[n]}\ns_mov_b32 s{s+3}, 0x20000")

a.raw('.amdgcn_target "amdgcn-amd-amdhsa--gfx950"\n.text')
a.raw(f".globl {NAME}\n.p2align 8\n.type {NAME},@function\n{NAME}:")
a(f"s_cmp_ge_u32 s2, 256\ns_cbranch_scc1 {L('end')}")
st(grp=STG)
names = (("x",X),("wqkv",WQ),("w1",W1),("ws",WS),("dbg",DBG),("wphi",WPHI),("b1",B1),("w2",W2),("wo",WO),("b2",B2),("out",OUT))
for n, s in names: a(f"s_load_dwordx2 s[{s}:{s+1}], s[0:1], {KSLOT[n]*8}")
a(f"""
v_and_b32 v1, 63, v0
v_lshrrev_b32 v2, 6, v0
v_readfirstlane_b32 s3, v2
s_bfe_u32 s4, s2, 0x30003
s_bfe_u32 s9, s2, 0x10002
s_lshl_b32 s9, s9, 3
s_add_u32 s4, s4, s9                ; m
s_lshr_b32 s5, s2, 7                ; type
s_and_b32 s6, s2, 3
s_lshl_b32 s6, s6, 1
s_bfe_u32 s10, s2, 0x10006
s_add_u32 s6, s6, s10               ; j
v_lshrrev_b32 v9, 3, v1
v_and_b32 v10, 7, v1
v_lshrrev_b32 v11, 4, v1
v_xor_b32 v12, v10, v11
v_lshlrev_b32 v13, 10, v9
v_lshl_add_u32 v2, v12, 4, v13
v_xor_b32 v3, 0x2040, v2
v_and_b32 v11, 1, v11
v_lshlrev_b32 v11, 6, v11
v_lshlrev_b32 v12, 4, v10
v_xor_b32 v12, v12, v11
v_mul_u32_u24 v13, 3072, v9
v_add_u32 v4, v13, v12
v_mul_u32_u24 v13, 3584, v9
v_add_u32 v6, v13, v12
v_xor_b32 v14, 32, v4
s_and_b32 s9, s2, 3
s_mul_i32 s9, s9, 5
s_add_u32 s9, s9, 8
s_mul_i32 s11, s10, 3
s_add_u32 s66, s9, s11              ; I1 block (B)
s_add_u32 s67, s66, 1
s_add_u32 s68, s9, 2                ; I3 block
s_lshl_b32 s61, s6, 7
s_add_u32 s62, s61, 2048
s_lshl_b32 s77, s66, 7
s_add_u32 s78, s61, 1024
s_movk_i32 s63, 3584
s_cmp_eq_u32 s5, 0
s_cselect_b64 vcc, -1, 0
s_cselect_b32 s61, s78, s61         ; I0 col
s_cselect_b32 s62, s62, s77         ; I1 col
s_cselect_b32 s63, 3072, s63
s_cselect_b32 s67, s6, s67          ; I2 block
v_cndmask_b32 v5, v6, v14, vcc
s_lshl_b32 s64, s67, 7              ; I2 col
s_lshl_b32 s65, s68, 7              ; I3 col
s_lshl_b32 s60, s4, 17
s_lshl_b32 s69, s3, 11
s_lshl_b32 s70, s3, 10
s_lshl_b32 s11, s3, 14
s_add_u32 s76, s60, s11
s_mul_i32 s11, s3, {8*3072}
s_add_u32 s11, s61, s11
v_add_u32 v4, s11, v4
s_lshl_b32 s11, s3, 3
s_mul_i32 s11, s11, s63
s_add_u32 s11, s62, s11
v_add_u32 v5, s11, v5
s_lshl_b32 s75, s63, 6
s_mul_i32 s11, s3, {8*3584}
s_add_u32 s73, s64, s11
s_add_u32 s74, s65, s11
v_add_u32 v7, s74, v6
v_add_u32 v6, s73, v6
s_mov_b32 s82, 0
s_mov_b32 s83, 0
s_mov_b32 s73, 0
s_lshl_b32 s79, s5, 3
s_add_u32 s79, s79, s6              ; slot
s_and_b32 s78, s3, 1                ; lo
s_lshr_b32 s77, s3, 1
v_lshlrev_b32 v26, 4, v1
s_waitcnt lgkmcnt(0)
""")
st(8, grp="P"); nst[0] = 1
fin(a, "x", X); fin(a, "wqkv", WQ); fin(a, "w1", W1)
a(f"""
s_cmp_eq_u32 s5, 0
s_cselect_b32 s{I1}, s{WQ}, s{W1}
s_cselect_b32 s{I1+1}, s{WQ+1}, s{W1+1}
s_cselect_b32 s{I1+2}, s{WQ+2}, s{W1+2}
s_mov_b32 s{I1+3}, 0x20000
""")
a(f"""
s_lshl_b32 s9, s79, 13
s_add_u32 s9, s9, s70
s_add_u32 s9, s9, s60
""")
a(f"buffer_load_dwordx4 v[112:115], v26, {R(X)}, s9 offen", "E")
a(f"""
v_lshrrev_b32 v9, 2, v1
v_and_b32 v10, 3, v1
v_lshlrev_b32 v10, 4, v10
s_cmp_eq_u32 s77, 0
s_cselect_b32 s9, s61, s62
s_cselect_b32 s11, 3072, s63
s_cmp_eq_u32 s77, 2
s_cselect_b32 s9, s64, s9
s_cmp_eq_u32 s77, 3
s_cselect_b32 s9, s65, s9
s_cselect_b32 s71, s10, s78
s_cmp_ge_u32 s77, 2
s_cselect_b32 s11, 3584, s11
s_lshl_b32 s71, s71, 6
s_add_u32 s9, s9, s71
s_lshl_b32 s71, s4, 5
s_mul_i32 s71, s71, s11
s_add_u32 s9, s9, s71               ; + 32m rows
v_mul_lo_u32 v9, v9, s11
v_add_u32 v9, v9, v10
s_lshl_b32 s11, s11, 4
s_add_u32 s71, s9, s11
s_mov_b32 m0, s69
s_cmp_eq_u32 s11, {3072*16}
s_cbranch_scc1 {L('e1')}
""")
with a.skippable():
    a(f"buffer_load_dwordx4 v9, {R(W1)}, s9 offen lds\ns_add_u32 m0, s69, 1024\ns_nop 0\nbuffer_load_dwordx4 v9, {R(W1)}, s71 offen lds\ns_branch {L('e2')}")
a.label(L('e1'))
with a.skippable():
    a(f"buffer_load_dwordx4 v9, {R(WQ)}, s9 offen lds\ns_add_u32 m0, s69, 1024\ns_nop 0\nbuffer_load_dwordx4 v9, {R(WQ)}, s71 offen lds")
a.label(L('e2'))
def dma(c, piece):
    t = f"C{c}"; sl = RB + (c % 3)*SLOT
    if piece < 2:
        a(f"s_add_u32 m0, s69, {sl+1024*piece-c*128}")
        a(f"buffer_load_dwordx4 v{2+piece}, {R(X)}, s76 offen offset:{c*128} lds", t)
    elif piece == 2:
        a(f"s_add_u32 m0, s70, {sl+16384}")
        a(f"buffer_load_dwordx4 v4, {R(WQ)}, s82 offen lds", t)
        a(f"s_add_u32 s82, s82, {64*3072}")
    elif piece == 3:
        a(f"s_add_u32 m0, s70, {sl+24576}")
        a(f"buffer_load_dwordx4 v5, {R(I1)}, s83 offen lds", t)
        a("s_add_u32 s83, s83, s75")
    elif piece == 4:
        a(f"s_add_u32 m0, s70, {sl+32768}")
        a(f"buffer_load_dwordx4 v6, {R(W1)}, s73 offen lds", t)
    else:
        a(f"s_add_u32 m0, s70, {sl+40960}")
        a(f"buffer_load_dwordx4 v7, {R(W1)}, s73 offen lds", t)
        a(f"s_add_u32 s73, s73, {64*3584}")
dma(0, 0); a.items.append(("retag", ("C0", "E")))
a(f"s_cmp_eq_u32 s5, 0\ns_cbranch_scc1 {L('c0b')}")
with a.skippable():
    dma(0, 4); dma(0, 5)
a.label(L('c0b'))
dma(0, 1); dma(0, 2); dma(0, 3)
st(grp="P")
if env("XT", 1):
    a(f"s_cmp_eq_u32 s3, 5\ns_cbranch_scc0 {L('xt')}")
    with a.skippable():
        a(f"""
        v_lshlrev_b32 v255, 10, v1
        s_lshr_b32 s9, s2, 6
        s_lshl_b32 s9, s9, 15
        s_add_u32 s9, s9, s60
        s_lshr_b32 s11, s{X}, 7
        s_sub_u32 s11, 3, s11
        s_and_b32 s11, s11, 7
        s_lshl_b32 s11, s11, 7
        s_add_u32 s9, s9, s11
        s_mov_b64 exec, 0xffffffff
        buffer_load_dword v255, v255, {R(X)}, s9 offen
        s_mov_b64 exec, -1
        """)
    a.label(L('xt'))
if env("XW", 0):
    a(f"""
    s_lshr_b32 s9, s{WQ}, 7
    s_add_u32 s9, s9, s6
    s_and_b32 s9, s9, 7
    s_cmp_eq_u32 s9, 3
    s_cbranch_scc0 {L('xw')}
    s_add_u32 s9, s3, s5
    s_cmp_lt_u32 s3, 6
    s_cbranch_scc1 {L('xw')}
    s_cmp_gt_u32 s9, 7
    s_cbranch_scc1 {L('xw')}
    """)
    with a.skippable():
        a(f"""
        s_cmp_eq_u32 s3, 6
        s_cselect_b32 s9, s61, s62
        s_and_b32 s11, s4, 7
        s_mul_i32 s11, s11, {64*3072}
        s_add_u32 s9, s9, s11
        v_mul_u32_u24 v255, 3072, v1
        buffer_load_dword v255, v255, {R(WQ)}, s9 offen
        """)
    a.label(L('xw'))
if env("WU", 0):
    a(f"s_cmp_lt_u32 s3, 4\ns_cbranch_scc0 {L('wu1')}")
    with a.skippable():
        a(f"""
        v_lshrrev_b32 v254, 1, v1
        v_and_b32 v255, 1, v1
        v_lshlrev_b32 v255, 7, v255
        v_lshl_add_u32 v254, v254, 10, v255
        s_lshl_b32 s9, s3, 15
        s_add_u32 s9, s9, s60
        s_lshr_b32 s11, s2, 6
        s_lshl_b32 s11, s11, 8
        s_add_u32 s9, s9, s11
        buffer_load_dword v255, v254, {R(X)}, s9 offen
        s_branch {L('wu3')}
        """)
    a.label(L('wu1'))
    with a.skippable():
        a(f"""
        s_cmp_eq_u32 s3, 4
        s_cselect_b32 s9, s61, s62
        s_cselect_b32 s11, 3072, s63
        s_cmp_eq_u32 s3, 6
        s_cselect_b32 s9, s64, s9
        s_cmp_eq_u32 s3, 7
        s_cselect_b32 s9, s65, s9
        s_cmp_ge_u32 s3, 6
        s_cselect_b32 s11, 3584, s11
        s_and_b32 s71, s4, 7
        s_lshl_b32 s71, s71, 6
        s_mul_i32 s71, s71, s11
        s_add_u32 s9, s9, s71
        v_mul_lo_u32 v254, v1, s11
        s_cmp_eq_u32 s11, 3072
        s_cbranch_scc1 {L('wu2')}
        buffer_load_dword v255, v254, {R(W1)}, s9 offen
        s_branch {L('wu3')}
        """)
        a.label(L('wu2'))
        a(f"buffer_load_dword v255, v254, {R(WQ)}, s9 offen")
    a.label(L('wu3'))
    a.items.append(("qins", ("C0", 1)))
if env("ICP", 0):
    a(f"s_cmp_lt_u32 s3, 4\ns_cbranch_scc0 {L('noicp')}")
    with a.skippable():
        a(f"""
        s_getpc_b64 s[80:81]
        v_lshlrev_b32 v127, 7, v1
        s_lshl_b32 s9, s3, 13
        v_add_u32 v127, s9, v127
        v_min_u32 v127, {env("ICP", 0)}, v127
        global_load_dword v127, v127, s[80:81]
        """)
    a.label(L('noicp'))
fin(a, "ws", WS); fin(a, "dbg", DBG)
a("v_mov_b32 v19, 0")
a(f"s_or_b32 s9, s2, s3\ns_cmp_eq_u32 s9, 0\ns_cbranch_scc0 {L('nononce')}")
with a.skippable():
    a(f"""
    s_memrealtime s[80:81]
    s_waitcnt lgkmcnt(0)
    s_or_b32 s80, s80, 1
    v_mov_b32 v10, s80
    s_mov_b64 exec, 1
    buffer_store_dword v10, v19, {R(DBG)}, 0 offen {SC}
    s_mov_b64 exec, -1
    """)
a.label(L('nononce'))
a(f"""
s_bfe_u32 s7, s3, 0x10001           ; mh
s_lshr_b32 s8, s3, 2                ; hi
s_mul_i32 s72, s6, {KV_J}
s_add_u32 s72, s72, {KVACC}
s_cmp_eq_u32 s5, 1
s_cselect_b32 s9, s4, 1
s_cmp_eq_u32 s9, 0
s_cbranch_scc0 {L('nozero')}
""")
with a.skippable():
    a(f"""
    v_lshlrev_b32 v9, 4, v0
    v_mov_b32 v10, 0
    v_mov_b32 v11, 0
    v_mov_b32 v12, 0
    v_mov_b32 v13, 0
    buffer_store_dwordx4 v[10:13], v9, {R(WS)}, s72 offen {SC}
    s_add_u32 s9, s72, 8192
    s_cmp_eq_u32 s3, 0
    s_cbranch_scc0 {L('nozero')}
    buffer_store_dwordx4 v[10:13], v9, {R(WS)}, s9 offen {SC}
    """)
a.label(L('nozero'))
a(f"""
s_and_b32 s9, s78, s8
s_cmp_eq_u32 s5, 0
s_cselect_b32 s61, s8, s9           ; sel
v_and_b32 v29, 31, v1
v_lshrrev_b32 v30, 5, v1
v_bfe_u32 v31, v1, 1, 3
v_xor_b32 v31, v31, v30
v_lshlrev_b32 v20, 7, v29
v_lshl_add_u32 v8, v31, 4, v20
s_lshl_b32 s9, s7, 1
s_add_u32 s62, s9, s61
s_lshl_b32 s9, s62, 12
s_add_u32 s9, s9, {RB}
v_add_u32 v8, s9, v8
v_xor_b32 v9, 32, v8
v_xor_b32 v10, 64, v8
v_xor_b32 v11, 96, v8
v_xor_b32 v12, 0x1000, v8
v_xor_b32 v13, 0x1000, v9
v_xor_b32 v14, 0x1000, v10
v_xor_b32 v15, 0x1000, v11
v_bfe_u32 v31, v1, 2, 2
v_lshl_add_u32 v20, v30, 3, v31
v_and_b32 v22, 3, v1
v_lshlrev_b32 v22, 3, v22
v_lshl_add_u32 v18, v20, 6, v22
v_lshl_add_u32 v20, v20, 7, v22
v_lshl_add_u32 v21, v30, 2, v31
v_lshl_add_u32 v21, v21, 5, v22
v_bfe_u32 v22, v1, 4, 1
v_lshl_add_u32 v18, v22, 5, v18
v_add_u32 v18, s69, v18
v_and_b32 v31, 2, v31
v_xor_b32 v31, v31, v22
v_lshl_add_u32 v20, v31, 5, v20     ; nat0
s_lshl_b32 s9, s8, 1
s_add_u32 s63, s9, s78              ; nq
s_lshl_b32 s9, s63, 5
v_xor_b32 v23, s9, v20
v_lshl_add_u32 v23, v22, 13, v23
s_lshl_b32 s9, s78, 6
v_xor_b32 v24, s9, v20
s_cmp_eq_u32 s8, 0
s_cselect_b32 s10, 8192, 0
v_add_u32 v25, s10, v24
v_cndmask_b32 v16, v25, v23, vcc
v_add_u32 v16, {RB+16384}, v16
s_and_b32 s9, s6, 1
s_lshl_b32 s9, s9, 6
v_xor_b32 v25, s9, v20
v_add_u32 v25, 8192, v25
s_and_b32 s9, s5, s8
s_cmp_eq_u32 s9, 1
s_cselect_b64 s[80:81], -1, 0
v_cndmask_b32 v17, v24, v25, s[80:81]
v_add_u32 v17, {RB+32768}, v17
v_mov_b32 v20, v24
v_mul_u32_u24 v23, 192, v22
v_lshlrev_b32 v24, 2, v29
s_lshl_b32 s9, s63, 6
v_add3_u32 v23, v23, v24, s9
s_lshl_b32 s9, s78, 7
s_cmp_eq_u32 s8, 0
s_cselect_b32 s10, 256, 0
s_add_u32 s10, s10, s9
v_add_u32 v25, s10, v24
v_cndmask_b32 v23, v25, v23, vcc
s_add_u32 s9, s9, 512
s_and_b32 s10, s5, s8
s_cmp_eq_u32 s10, 1
s_cselect_b32 s9, 768, s9
v_add_u32 v24, s9, v24
s_lshl_b32 s66, s66, 1
s_add_u32 s66, s66, s78
s_lshl_b32 s67, s67, 1
s_add_u32 s67, s67, s78
s_lshl_b32 s68, s68, 1
s_and_b32 s9, s6, 1
s_add_u32 s68, s68, s9
s_cmp_eq_u32 s10, 1
s_cselect_b32 s67, s68, s67
s_lshl_b32 s9, s78, 1
s_cmp_eq_u32 s5, 0
s_cselect_b32 s9, s63, s9
s_lshl_b32 s10, s6, 2
s_add_u32 s65, s10, s9
s_lshl_b32 s9, s9, 9
s_add_u32 s9, s9, 14336
v_add_u32 v21, s9, v21
v_mov_b32 v22, 0x3f803f80
v_and_b32 v27, 15, v1
v_lshlrev_b32 v27, 2, v27
s_lshl_b32 s9, s4, 7
s_add_u32 s9, s9, {EFS}
s_lshl_b32 s10, s79, 7
s_add_u32 s10, s10, {EFC}
v_add_u32 v25, s9, v27
v_add_u32 v28, s10, v27
v_lshrrev_b32 v27, 4, v1
v_cmp_eq_u32 vcc, 1, v27
v_cndmask_b32 v25, v25, v28, vcc
s_lshl_b32 s9, s6, 2
s_add_u32 s9, s9, {EFS+32}
v_writelane_b32 v25, s9, 32
""")
fin(a, "b1", B1); fin(a, "wphi", WPHI); fin(a, "w2", W2); fin(a, "wo", WO); fin(a, "b2", B2); fin(a, "out", OUT)
st(grp="P")
a.wv("E")
st(grp="P")
for k, off in enumerate((0, 256, 1024, 1280)): a(f"ds_read_b64_tr_b16 {V(120+2*k,2)}, v18 offset:{off}", "EW")
a("v_mov_b32 v116, 0\nv_mov_b32 v117, 0\nv_mov_b32 v118, 0")
for q in range(4):
    a(f"v_dot2_f32_bf16 v116, v{112+q}, v22, v116\nv_dot2_f32_bf16 v117, v{112+q}, v{112+q}, v117")
a.wl("EW")
for q in range(8): a(f"v_dot2_f32_bf16 v118, v{120+q}, v22, v118")
for dpp in ("quad_perm:[1,0,3,2]", "quad_perm:[2,3,0,1]", "row_half_mirror", "row_mirror"):
    a(f"v_add_f32_dpp v116, v116, v116 {dpp} row_mask:0xf bank_mask:0xf\nv_add_f32_dpp v117, v117, v117 {dpp} row_mask:0xf bank_mask:0xf")
a(f"""
v_permlane16_swap_b32 v116, v117
v_add_f32 v116, v116, v117
v_mov_b32 v119, v118
v_mov_b32 v117, v116
v_permlane32_swap_b32 v118, v119
v_permlane32_swap_b32 v116, v117
v_add_f32 v118, v118, v119
v_add_f32 v116, v116, v117
v_mov_b32 v117, v116
v_permlane16_swap_b32 v116, v117
v_mul_f32 v116, 0x3b000000, v116
v_mul_f32 v117, 0x3b000000, v117
v_fma_f32 v117, -v116, v116, v117
v_max_f32 v117, 0, v117
v_add_f32 v117, 0x3727c5ac, v117
v_rsq_f32 v114, v117
v_sub_f32 v116, 0, v116
v_mul_f32 v117, v117, v114
v_cvt_pk_bf16_f32 v120, v116, v117
v_and_b32 v121, 0xffff0000, v120
v_lshlrev_b32 v122, 16, v120
v_sub_f32 v123, v116, v122
v_sub_f32 v124, v117, v121
v_cvt_pk_bf16_f32 v112, v122, v123
v_cvt_pk_bf16_f32 v113, v121, v124
s_lshl_b32 s10, s4, 7
s_lshl_b32 s11, s79, 3
s_add_u32 s10, s10, s11
s_add_u32 s10, s10, s3
s_lshl_b32 s10, s10, 4
s_add_u32 s10, s10, {STAT}
s_mul_i32 s11, s79, 14336
s_mul_i32 s71, s4, 896
s_add_u32 s11, s11, s71
s_lshl_b32 s71, s3, 7
s_add_u32 s11, s11, s71
s_add_u32 s11, s11, {CSP}
v_lshlrev_b32 v120, 2, v1
s_mov_b64 exec, 1
buffer_store_dwordx4 v[112:115], v19, {R(WS)}, s10 offen {SC}
s_cmp_lt_u32 s3, 7
s_cselect_b32 exec_lo, -1, 0
s_cbranch_scc0 {L('nocs')}
""")
with a.skippable():
    a(f"buffer_store_dword v118, v120, {R(WS)}, s11 offen {SC}")
a.label(L('nocs'))
a("s_mov_b64 exec, -1")
a(f"buffer_load_dword v31, v19, {R(DBG)}, 0 offen {SC}", "N0")
a("v_lshlrev_b32 v120, 1, v29\ns_lshl_b32 s9, s66, 6\ns_lshl_b32 s10, s67, 6")
a(f"buffer_load_ushort v27, v120, {R(B1)}, s9 offen", "S")
a(f"buffer_load_ushort v28, v120, {R(B1)}, s10 offen", "S")
st(); st(grp="P")

def side_flags(tg, tmp):
    a(f"s_cmp_eq_u32 s3, 0\ns_cbranch_scc0 {L('nofl'+tg)}")
    with a.skippable():
        a("s_mov_b32 s71, 0")
        a.label(L('nspin'+tg))
        a(f"""
        v_readfirstlane_b32 s9, v31
        s_add_u32 s71, s71, 1
        s_cmp_gt_u32 s71, {SPIN}
        s_cbranch_scc1 {L('nok'+tg)}
        s_cmp_lg_u32 s9, 0
        s_cbranch_scc1 {L('nok'+tg)}
        buffer_load_dword v31, v19, {R(DBG)}, 0 offen {SC}
        s_waitcnt vmcnt(0)
        s_branch {L('nspin'+tg)}
        """)
        a.label(L('nok'+tg))
        a(f"""
        s_lshl_b32 s10, s4, 7
        s_lshl_b32 s11, s79, 2
        s_add_u32 s10, s10, s11
        s_lshl_b32 s11, s79, 7
        s_lshl_b32 s71, s4, 2
        s_add_u32 s11, s11, s71
        s_add_u32 s11, s11, {EFC-EFS}
        v_mov_b32 v{tmp}, s10
        v_writelane_b32 v{tmp}, s11, 1
        s_mov_b32 s10, {EFS}
        s_mov_b64 exec, 3
        buffer_store_dword v31, v{tmp}, {R(WS)}, s10 offen {SC}
        s_mov_b64 exec, -1
        """)
    a.label(L('nofl'+tg))
def side_wphi_dma(tg):
    a(f"s_cmp_lt_u32 s3, 2\ns_cbranch_scc0 {L('nowp'+tg)}")
    with a.skippable():
        a(f"s_add_u32 m0, s70, 14336\ns_lshl_b32 s9, s6, 11\ns_add_u32 s9, s9, s70\nbuffer_load_dwordx4 v26, {R(WPHI)}, s9 offen lds")
    a.label(L('nowp'+tg))
def side_poll_issue(tg):
    a(f"s_cmp_eq_u32 s3, 0\ns_cbranch_scc0 {L('npi'+tg)}")
    with a.skippable():
        a(f"buffer_load_dword v18, v25, {R(WS)}, 0 offen {SC}")
    a.label(L('npi'+tg))
def side_poll_wait(tg, restore_vcc):
    a(f"s_cmp_eq_u32 s3, 0\ns_cbranch_scc0 {L('fok2'+tg)}")
    with a.skippable():
        a("s_mov_b32 s71, 0")
        a.label(L('fspin'+tg))
        a(f"""
        v_cmp_ne_u32 vcc, v18, v31
        s_cmp_eq_u64 vcc, 0
        s_cbranch_scc1 {L('fok'+tg)}
        s_add_u32 s71, s71, 1
        s_cmp_gt_u32 s71, {SPIN}
        s_cbranch_scc1 {L('fok'+tg)}
        s_sleep {SLP}
        buffer_load_dword v18, v25, {R(WS)}, 0 offen {SC}
        s_waitcnt vmcnt(0)
        s_branch {L('fspin'+tg)}
        """)
        a.label(L('fok'+tg))
        if restore_vcc: a("s_mov_b64 vcc, s[80:81]")
        a("ds_write_b32 v19, v31 offset:16380\ns_waitcnt lgkmcnt(0)")
    a.label(L('fok2'+tg))
def side_poll_check(tg, raw, tmp, ptag):
    a(f"ds_read_b32 v31, v19 offset:16380", ptag)
    a(f"""
    v_lshlrev_b32 v{tmp}, 4, v29
    s_lshl_b32 s9, s4, 11
    s_lshl_b32 s10, s62, 9
    s_add_u32 s9, s9, s10
    s_add_u32 s9, s9, {STAT}
    s_xor_b32 s10, s9, 512
    """)
    a(f"s_cmp_lt_u32 s3, 7\ns_cbranch_scc0 {L('nocsd'+tg)}")
    with a.skippable():
        a(f"s_mul_i32 s11, s79, 14336\ns_add_u32 s11, s11, s69\ns_add_u32 s11, s11, {CSP}\ns_mov_b32 m0, s69")
        a(f"buffer_load_dwordx4 v26, {R(WS)}, s11 offen {SC} lds")
        a(f"buffer_load_dwordx4 v26, {R(WS)}, s11 offen offset:1024 {SC} lds")
    a.label(L('nocsd'+tg))
    a(f"buffer_load_dwordx4 {V(raw)}, v{tmp}, {R(WS)}, s9 offen {SC}", "ST")
    a(f"buffer_load_dwordx4 {V(raw+4)}, v{tmp}, {R(WS)}, s10 offen {SC}", "ST")
def side_csred(tg, t16, tmp):
    a(f"s_cmp_lt_u32 s3, 4\ns_cbranch_scc0 {L('nored'+tg)}")
    with a.skippable():
        a(f"v_min_u32 v{tmp}, 223, v0\nv_lshlrev_b32 v{tmp}, 2, v{tmp}")
        for g in range(16): a(f"ds_read_b32 v{t16+g}, v{tmp} offset:{g*896}")
        a("s_waitcnt lgkmcnt(0)")
        for w in (8, 4, 2, 1):
            for g in range(w): a(f"v_add_f32 v{t16+g}, v{t16+g}, v{t16+g+w}")
        a(f"""
        v_cvt_pk_bf16_f32 v{t16+1}, v{t16}, v{t16}
        v_and_b32 v{t16+1}, 0xffff0000, v{t16+1}
        v_sub_f32 v{t16+2}, v{t16}, v{t16+1}
        v_cvt_pk_bf16_f32 v{t16}, v{t16+1}, v{t16+2}
        ds_write_b32 v{tmp}, v{t16}
        """)
    a.label(L('nored'+tg))
def side_bext(raw, BX, RR, tmp):
    for t in range(2):
        s0 = raw+4*t; B = BX+4*t; rr = RR+3*t
        a(f"""
        v_and_b32 v{tmp}, 0xffff, v{s0}
        v_lshl_or_b32 v{B}, v{tmp}, 16, v{tmp}
        v_lshrrev_b32 v{tmp}, 16, v{s0}
        v_lshl_or_b32 v{B+1}, v{tmp}, 16, v{tmp}
        v_mov_b32 v{B+2}, v{s0+1}
        v_mov_b32 v{B+3}, 0
        v_mov_b32 v{rr}, v{s0+2}
        v_mul_f32 v{rr+1}, {LOG2E}, v{s0+2}
        v_mul_f32 v{rr+2}, 0.5, v{s0+2}
        """)
MAP = env("MAP", 0)
if MAP == 0:
    P2MAP = f"""
    s_and_b32 s82, s2, 7
    s_lshl_b32 s82, s82, 2
    s_bfe_u32 s9, s2, 0x20003
    s_add_u32 s82, s82, s9
    s_lshr_b32 s62, s2, 5
    s_mul_i32 s76, s62, 7
    s_lshr_b32 s76, s76, 2
    s_mul_i32 s9, s9, 3
    """
elif MAP == 2:
    P2MAP = f"""
    s_and_b32 s82, s2, 7
    s_lshl_b32 s82, s82, 2
    s_lshr_b32 s9, s2, 6
    s_add_u32 s82, s82, s9
    s_bfe_u32 s62, s2, 0x30003
    s_mul_i32 s76, s62, 7
    s_lshr_b32 s76, s76, 2
    s_mul_i32 s9, s9, {env("RM", 3)}
    """ + ("s_cmp_ge_u32 s9, 14\n    s_cselect_b32 s10, 14, 0\n    s_sub_u32 s9, s9, s10\n" if env("RM", 3) > 4 else "")
else:
    P2MAP = f"""
    s_bfe_u32 s82, s2, 0x20001
    s_lshl_b32 s82, s82, 3
    s_lshr_b32 s76, s2, 5
    s_add_u32 s82, s82, s76
    s_and_b32 s62, s2, 1
    s_lshl_b32 s62, s62, 2
    s_bfe_u32 s9, s2, 0x20003
    s_add_u32 s62, s62, s9
    s_mul_i32 s76, s76, 7
    s_lshr_b32 s76, s76, 2
    s_mul_i32 s9, s9, 3
    """
P2MAP += f"""
    s_add_u32 s76, s76, s9
    s_lshl_b32 s62, s62, 7
    s_mul_i32 s60, s3, {14*16*1024}
    s_add_u32 s60, s60, s62
    s_add_u32 s83, s60, {14*16384}
    s_lshl_b32 s68, s3, 16
    s_add_u32 s68, s68, s62
"""
TP0 = env("TP0", -1); TPS = env("TPS", 2)
def side_touch(tg, p, r1, r2):
    if TP0 < 0 or p < TP0 or (p-TP0) % TPS or (p-TP0)//TPS >= 8: return
    w = (p-TP0)//TPS
    a(f"s_cmp_eq_u32 s3, {w}\ns_cbranch_scc0 {L(f'pf{tg}{w}')}")
    with a.skippable():
        a(f"""
        s_lshr_b32 s9, s2, 3
        s_lshl_b32 s9, s9, 3
        s_add_u32 s9, s9, s3
        s_and_b32 s71, s2, 1
        s_lshl_b32 s71, s71, 9
        s_mul_i32 s10, s9, {7*1024}
        s_add_u32 s10, s10, s71
        s_lshl_b32 s11, s9, 11
        s_add_u32 s11, s11, s71
        v_lshrrev_b32 v{r1}, 2, v1
        v_and_b32 v{r2}, 3, v1
        v_lshlrev_b32 v{r2}, 7, v{r2}
        v_lshl_add_u32 v{r1}, v{r1}, 10, v{r2}
        s_mov_b64 exec, 0xfffffff
        buffer_load_dword v{r2}, v{r1}, {R(W2)}, s10 offen
        s_mov_b64 exec, 0xff
        buffer_load_dword v{r1}, v{r1}, {R(WO)}, s11 offen
        s_mov_b64 exec, -1
        """)
    a.label(L(f'pf{tg}{w}'))
def side_slow(tg, p, r1):
    if p != env("TQ", 8): return
    a(f"s_cmp_lt_u32 s3, 6\ns_cbranch_scc1 {L('sl3'+tg)}")
    with a.skippable():
        a(f"""
        s_lshr_b32 s9, s2, 3
        v_lshlrev_b32 v{r1}, 10, v1
        s_cmp_eq_u32 s3, 6
        s_cbranch_scc1 {L('sl1'+tg)}
        s_lshr_b32 s10, s{W2}, 7
        s_sub_u32 s10, 3, s10
        s_and_b32 s10, s10, 7
        s_lshl_b32 s10, s10, 7
        s_mul_i32 s9, s9, {56*1024}
        s_add_u32 s9, s9, s10
        s_mov_b32 exec_hi, 0xffffff
        buffer_load_dword v{r1}, v{r1}, {R(W2)}, s9 offen
        s_branch {L('sl2'+tg)}
        """)
        a.label(L('sl1'+tg))
        a(f"""
        s_lshr_b32 s10, s{WO}, 7
        s_sub_u32 s10, 3, s10
        s_and_b32 s10, s10, 7
        s_lshl_b32 s10, s10, 7
        s_lshl_b32 s9, s9, 14
        s_add_u32 s9, s9, s10
        s_mov_b64 exec, 0xffff
        buffer_load_dword v{r1}, v{r1}, {R(WO)}, s9 offen
        """)
        a.label(L('sl2'+tg))
        a("s_mov_b64 exec, -1")
    a.label(L('sl3'+tg))
def side_slow2(p, r1):
    T0 = env("TS0", -1); TS = env("TSS", 4)
    if T0 < 0 or p < T0 or (p-T0) % TS or (p-T0)//TS > 4: return
    k = (p-T0)//TS
    a(f"s_cmp_eq_u32 s3, {4 + (k & 3)}\ns_cbranch_scc0 {L(f'sq{k}')}")
    with a.skippable():
        srd = W2 if k < 4 else WO
        a(f"""
        s_bfe_u32 s9, s2, 0x40003
        v_lshlrev_b32 v{r1}, 10, v1
        s_lshr_b32 s10, s{srd}, 7
        s_sub_u32 s10, 3, s10
        s_and_b32 s10, s10, 7
        s_lshl_b32 s10, s10, 7
        s_mul_i32 s9, s9, {112*1024 if k < 4 else 32*1024}
        s_add_u32 s9, s9, s10
        s_add_u32 s9, s9, {k*28*1024 if k < 4 else 0}
        s_mov_b64 exec, {hex((1<<28)-1) if k < 4 else hex((1<<32)-1)}
        buffer_load_dword v{r1}, v{r1}, {R(srd)}, s9 offen
        s_mov_b64 exec, -1
        """)
    a.label(L(f'sq{k}'))
def side_p2(t3):
    a(f"""
    v_readfirstlane_b32 s75, v31
    v_lshrrev_b32 v{t3}, 3, v1
    v_and_b32 v{t3+1}, 7, v1
    v_lshrrev_b32 v{t3+2}, 2, v1
    v_and_b32 v{t3+2}, 4, v{t3+2}
    v_xor_b32 v{t3+1}, v{t3+1}, v{t3+2}
    v_lshlrev_b32 v{t3}, 10, v{t3}
    v_lshl_add_u32 v18, v{t3+1}, 4, v{t3}
    s_lshl_b32 s74, s4, 2
    s_add_u32 s74, s74, s62
    s_xor_b32 s64, s74, 1
    s_mul_i32 s74, s74, {AF_TG}
    s_mul_i32 s64, s64, {AF_TG}
    {P2MAP}
    s_cmp_ge_u32 s76, 14
    s_cselect_b32 s9, 14, 0
    s_sub_u32 s76, s76, s9
    s_lshl_b32 s61, s76, 14
    s_add_u32 s61, s61, s60
    """)
def p2_adv(x):
    x("s_add_u32 s61, s61, 16384\ns_cmp_eq_u32 s61, s83\ns_cselect_b32 s61, s60, s61")
W2PG = [7, 8, 9, 1, 2, 3, 4, 5, 6]
def p2_dma(x, u, tag, partner=False):
    pg = W2PG[u % 9]
    for half in range(2):
        x(f"s_add_u32 m0, s69, {pg*PG + half*1024}")
        if u < 14:
            if half == 0: x(f"s_add_u32 s71, s61, 8192\nbuffer_load_dwordx4 v18, {R(W2)}, s61 offen lds", tag)
            else: x(f"buffer_load_dwordx4 v18, {R(W2)}, s71 offen lds", tag)
        else:
            x(f"s_add_u32 s71, s68, {((u-14)*16+half*8)*1024}")
            x(f"buffer_load_dwordx4 v18, {R(WO)}, s71 offen lds", tag)
    if partner:
        for half in range(2):
            x(f"s_add_u32 m0, s69, {pg*PG + half*1024 + 8192}\ns_add_u32 s71, s61, {4*14*16384 + half*8192}")
            x(f"buffer_load_dwordx4 v18, {R(W2)}, s71 offen lds", tag)
    if u < 14: p2_adv(x)
def p2_dma_partner(x, u, tag):
    pg = W2PG[u % 9]
    for half in range(2):
        x(f"s_add_u32 m0, s69, {pg*PG + half*1024 + 8192}")
        if u < 14:
            x(f"s_add_u32 s71, s81, {4*14*16384 + half*8192}")
            x(f"buffer_load_dwordx4 v18, {R(W2)}, s71 offen lds", tag)
        else:
            x(f"s_add_u32 s71, s68, {4*65536 + ((u-14)*16+half*8)*1024}")
            x(f"buffer_load_dwordx4 v18, {R(WO)}, s71 offen lds", tag)
    if u < 14: x("s_add_u32 s81, s81, 16384\ns_cmp_eq_u32 s81, s83\ns_cselect_b32 s81, s60, s81")
def p2_dma2(x, u, tag):
    pg = W2PG[u % 9]
    for half in range(2):
        x(f"s_add_u32 m0, s69, {pg*PG + half*1024}")
        if u < 14:
            x(f"s_add_u32 s71, s81, {half*8192}")
            x(f"buffer_load_dwordx4 v18, {R(W2)}, s71 offen lds", tag)
        else:
            x(f"s_add_u32 s71, s68, {((u-14)*16+half*8)*1024}")
            x(f"buffer_load_dwordx4 v18, {R(WO)}, s71 offen lds", tag)
    if u < 14: x("s_add_u32 s81, s81, 16384\ns_cmp_eq_u32 s81, s83\ns_cselect_b32 s81, s60, s81")
def lds_wait(lab, off):
    a("s_mov_b32 s71, 0")
    a.label(L(lab))
    a(f"""
    ds_read_b32 v10, v11 offset:{off}
    s_waitcnt lgkmcnt(0)
    v_readfirstlane_b32 s9, v10
    s_add_u32 s71, s71, 1
    s_cmp_gt_u32 s71, {SPIN*8}
    s_cbranch_scc1 {L(lab+'x')}
    s_cmp_eq_u32 s9, s75
    s_cbranch_scc1 {L(lab+'x')}
    s_sleep 1
    s_branch {L(lab)}
    """)
    a.label(L(lab+'x'))
def poison(r):
    a(f"s_add_u32 s9, s65, 112\ns_lshl_b32 s9, s9, 10\ns_add_u32 s10, s9, s64\ns_add_u32 s9, s9, s74")
    a(f"v_mov_b32 v{r}, -1\nv_mov_b32 v{r+1}, -1\nv_mov_b32 v{r+2}, -1\nv_mov_b32 v{r+3}, -1")
    for f in range(2):
        for h in range(2): a(f"buffer_store_dwordx4 {V(r)}, v26, {R(WS)}, {('s9','s10')[f]} offen offset:{h*1024} {SC}")
def softmax(x, P, Pp, Pm, c):
    E = 112
    x(f"""
    v_max3_f32 v2, v{P}, v{P+1}, v{P+2}
    v_max3_f32 v3, -v{P}, -v{P+1}, -v{P+2}
    v_max3_f32 v2, v2, v{P+3}, v{P+4}
    v_max3_f32 v3, v3, -v{P+3}, -v{P+4}
    v_max3_f32 v2, v2, v{P+5}, v{P+6}
    v_max3_f32 v3, v3, -v{P+5}, -v{P+6}
    v_max_f32 v2, v2, v{P+7}
    v_max_f32_e64 v3, v3, -v{P+7}
    v_permlane32_swap_b32 v2, v3
    v_max_f32 v2, v2, v3
    v_mul_f32_e64 v2, -v2, v{c}
    v_mov_b32 v3, v2
    v_permlane32_swap_b32 v2, v3
    """)
    for r in range(8): x(f"v_fma_f32 v{E+r}, -v{P+r}, v{c}, v3\nv_fma_f32 v{P+r}, v{P+r}, v{c}, v2")
    for r in range(8): x(f"v_exp_f32 v{E+r}, v{E+r}\nv_exp_f32 v{P+r}, v{P+r}")
    x(f"v_add_f32 v2, v{P}, v{P+1}\nv_add_f32 v3, v{E}, v{E+1}")
    for r in range(2, 8): x(f"v_add_f32 v2, v2, v{P+r}\nv_add_f32 v3, v3, v{E+r}")
    x("v_permlane32_swap_b32 v2, v3\nv_add_f32 v2, v2, v3\nv_rcp_f32 v2, v2\nv_mov_b32 v3, v2\nv_permlane32_swap_b32 v2, v3")
    for r in range(8): x(f"v_mul_f32 v{P+r}, v{P+r}, v2\nv_mul_f32 v{E+r}, v{E+r}, v3")
    for q in range(4): x(f"v_cvt_pk_bf16_f32 v{Pp+q}, v{P+2*q}, v{P+2*q+1}\nv_cvt_pk_bf16_f32 v{Pm+q}, v{E+2*q}, v{E+2*q+1}")
def ffn_epi(x, acc, s_tile, f, rh, so=9):
    a(f"s_lshl_b32 s{so}, s{s_tile}, 11\ns_add_u32 s{so}, s{so}, s{(74,64)[f]}")
    for r in range(16): x(f"v_add_f32_e64 v{acc+r}, v{acc+r}, |v{acc+r}|")
    for r in range(16): x(f"v_mul_f32 v{acc+r}, v{acc+r}, v{rh}")
    for r in range(16): x(f"v_mul_f32 v{acc+r}, v{acc+r}, v{acc+r}")
    for q in range(8): x(f"v_cvt_pk_bf16_f32 v{acc+q}, v{acc+2*q}, v{acc+2*q+1}")
    x(f"buffer_store_dwordx4 {V(acc)}, v26, {R(WS)}, s{so} offen {SC}", "H")
    x(f"buffer_store_dwordx4 {V(acc+4)}, v26, {R(WS)}, s{so} offen offset:1024 {SC}", "H")
def flag_store(soff):
    a(f"""
    v_mov_b32 v31, s75
    s_mov_b64 exec, 1
    buffer_store_dword v31, v19, {R(WS)}, {soff} offen {SC}
    s_mov_b64 exec, -1
    """)
WREG = 128; P2ACC = 64; WTMP = 48; TRA = 2
def p2_traddr(t=2, q=8):
    a(f"""
    v_lshrrev_b32 v{q}, 5, v1
    v_bfe_u32 v{q+1}, v1, 2, 2
    v_lshl_add_u32 v{q}, v{q}, 2, v{q+1}
    v_lshlrev_b32 v{q}, 7, v{q}
    v_and_b32 v{q+2}, 3, v1
    v_lshl_add_u32 v{q}, v{q+2}, 3, v{q}
    v_bfe_u32 v{q+2}, v1, 4, 1
    v_and_b32 v{q+1}, 2, v{q+1}
    v_or_b32 v{q+2}, v{q+2}, v{q+1}
    v_lshl_add_u32 v{t}, v{q+2}, 5, v{q}
    v_add_u32 v{t}, s69, v{t}
    v_xor_b32 v{t+1}, 64, v{t}
    v_add_u32 v{t+2}, 0x10000, v{t}
    v_add_u32 v{t+3}, 0x10000, v{t+1}
    v_add_u32 v{t+4}, 0x20000, v{t}
    v_add_u32 v{t+5}, 0x20000, v{t+1}
    """)
def p2_tr(x, dst, u, tag):
    pg = W2PG[u % 9]
    for b in range(2):
        for e in range(2):
            x(f"ds_read_b64_tr_b16 {V(dst+4*b+2*e,2)}, v{TRA+2*(pg>>2)+b} offset:{(pg&3)*PG+e*1024}", tag)
def hflag():
    a(f"""
    s_lshl_b32 s9, s4, 1
    s_add_u32 s9, s9, s7
    s_lshl_b32 s77, s9, 8
    s_lshl_b32 s10, s79, 2
    s_add_u32 s10, s10, s63
    s_lshl_b32 s10, s10, 2
    s_add_u32 s9, s77, s10
    s_add_u32 s9, s9, {HF}
    """)
    flag_store("s9")
def kvpoll(w, lab):
    a(f"s_cmp_eq_u32 s3, {w}\ns_cbranch_scc0 {L(lab)}")
    with a.skippable():
        a("s_mov_b32 s71, 0")
        a.label(L('pk'))
        a(f"""
        buffer_load_dwordx2 v[10:11], v8, {R(WS)}, s66 offen {SC}
        s_waitcnt vmcnt(0)
        v_cmp_ne_u32 vcc, s75, v10
        v_cmp_ne_u32 s[80:81], s75, v11
        s_or_b64 vcc, vcc, s[80:81]
        s_cmp_eq_u64 vcc, 0
        s_cbranch_scc1 {L('pk2')}
        s_add_u32 s71, s71, 1
        s_cmp_gt_u32 s71, {SPIN}
        s_cbranch_scc1 {L('pk2')}
        s_sleep {SLP}
        s_branch {L('pk')}
        """)
        a.label(L('pk2'))
        for q in range(9):
            a(f"s_mov_b32 m0, {q*1024}\ns_add_u32 s10, s72, {q*1024}\nbuffer_load_dwordx4 v26, {R(WS)}, s10 offen {SC} lds")
        a("s_waitcnt vmcnt(0)\nv_mov_b32 v10, s75\nds_write_b32 v19, v10 offset:12288")
    a.label(L(lab))
ACC = [32, 48, 64, 80]
T = 96; KP = 2*PG; XF = 128
a(f"s_cmp_eq_u32 s5, 0\ns_cbranch_scc0 {L('typeB')}")
a.qsave("br")
for p in range(4): dma(1, p)
for i in range(8): a(f"v_add_u32 v{112+i}, {2*SLOT}, v{8+i}")
a(f"v_add_u32 v17, {2*SLOT}, v16")
a("v_lshlrev_b32 v121, 2, v30\nv_sub_u32 v121, v29, v121\nv_mov_b32 v122, 0x3f80\nv_mov_b32 v123, 0x3f800000")
SEL, WPH, BX, RRA, RAW = 64, 72, 76, 84, 120
for k in range(8):
    sg = k >> 2; q = k & 3
    f0 = (2*q & 3) + 8*((2*q) >> 2) + 16*sg
    a(f"v_cmp_eq_u32 vcc, {f0}, v121\nv_cndmask_b32 v{SEL+k}, 0, v122, vcc\nv_cmp_eq_u32 vcc, {f0+1}, v121\nv_cndmask_b32 v{SEL+k}, v{SEL+k}, v123, vcc")
st(grp="P"); a.wv("C0"); st(grp="P"); a("s_barrier"); st(grp="P")
st(grp="A")
def rdA(p):
    i = p & 3; b = 96 + 8*(p & 1); c = p >> 2; sl = c % 3
    ab = 8 if sl < 2 else 112; so = SLOT if sl == 1 else 0
    a(f"ds_read_b128 {V(XF+4*p)}, v{ab+i} offset:{so}", f"P{p}")
    for e in range(2): a(f"ds_read_b64_tr_b16 {V(b+4+2*e,2)}, v{16 if sl < 2 else 17} offset:{so+i*2048+e*512}", f"P{p}")
    a(f"ds_read_b128 {V(b)}, v{ab+4+i} offset:{so}", f"P{p}")
rdA(0)
for p in range(32):
    c = p >> 2; i = p & 3
    a.wl(f"P{p}")
    if i == 3 and c < 7:
        if c in (2,3): st(grp="W")
        a.wv(f"C{c+1}")
        if c in (2,3): st(grp="W")
        if p == 23: st(grp="W"); side_poll_wait("A", False)
        a("s_barrier"); st(grp="A")
        if c in (2,3,5): st(grp="W")
    if p+1 < 32: rdA(p+1)
    b = 96 + 8*(p & 1)
    a(f"{MF} {V(ACC[0],16)}, {V(b+4)}, {V(XF+4*p)}, {V(ACC[0],16) if p else 0}")
    if p < 2: dma(2, 2*p); dma(2, 2*p+1)
    elif p >= 3:
        cc = ((p-3) >> 2) + 3
        if cc <= 7: dma(cc, (p-3) & 3)
    a(f"{MF} {V(ACC[1],16)}, {V(b+4)}, {V(b)}, {V(ACC[1],16) if p else 0}")
    side_slow("A", p, 94)
    if p == 0: side_wphi_dma("A")
    if p == 3: side_flags("A", 90)
    if p == 8:
        for e in range(2): a(f"ds_read_b64_tr_b16 {V(WPH+2*e,2)}, v21 offset:{e*256}", f"P{p+1}")
    if p == 17: side_poll_issue("A")
    if p == 23: side_poll_check("A", RAW, 92, "P24")
    if p == 24: side_p2(90)
    if AW == 0:
        if p in (24, 25, 26): p2_dma(a, p-24, "D1")
        if p == 28: p2_dma(a, 3, "D1")
    if AW == 2 and p in (27, 28):
        a(f"s_add_u32 m0, s70, {3*PG + (p-27)*8192}")
        a(f"buffer_load_dwordx4 v6, {R(W1)}, s73 offen lds", "I2")
        a(f"s_add_u32 s73, s73, {64*3584}")
st(); st(grp="B")
a.wv("ST"); a("s_barrier")
side_csred("A", 96, 92)
side_bext(RAW, BX, RRA, 92)
a("v_mov_b32 v95, v6")
a("s_waitcnt lgkmcnt(0)\ns_barrier")
st(grp="B")
a(f"""
ds_read_b32 v120, v23
ds_read_b32 v4, v24
v_cmp_gt_u32 vcc, 32, v1
v_lshl_or_b32 v28, v28, 16, v28
v_cndmask_b32 v6, 0, v28, vcc
v_cmp_eq_u32 s[80:81], 16, v29
v_cndmask_b32 v27, 0, v22, s[80:81]
v_mov_b32 v122, 0
v_mov_b32 v123, 0
v_mov_b32 v7, 0
s_waitcnt lgkmcnt(0)
v_cndmask_b32 v120, 0, v120, vcc
v_cndmask_b32 v4, 0, v4, vcc
v_mov_b32 v121, v120
v_mov_b32 v5, v4
{MF} {V(ACC[0],16)}, v[120:123], {V(BX)}, {V(ACC[0],16)}
{MF} {V(ACC[1],16)}, v[120:123], {V(BX+4)}, {V(ACC[1],16)}
""")
KVA = 8
a("v_mov_b32 v90, v18\nv_mov_b32 v91, v20")
E = a.sub(); D = a.sub()
for f in range(2):
    acc = ACC[f]; rr = RRA+3*f
    for q in range(4): E(f"v_cvt_pk_bf16_f32 v{120+q}, v{acc+2*q}, v{acc+2*q+1}")
    E(f"{MF} {V(T,16)}, {V(WPH)}, v[120:123], 0")
    for r in range(8, 16): E(f"v_mul_f32 v{acc+r}, v{acc+r}, v{rr}")
    for q in range(4): E(f"v_cvt_pk_bf16_f32 v{120+q}, v{acc+8+2*q}, v{acc+9+2*q}")
    E(f"{MF} {V(acc,16)}, v[120:123], {V(SEL)}, 0")
    softmax(E, T, 120, 124, rr+1)
    E(f"{MF} {V(T,16)}, v[120:123], {V(SEL)}, 0")
    E(f"{MF} {V(T,16)}, v[124:127], {V(SEL+4)}, {V(T,16)}")
    for q in range(8): E(f"v_cvt_pk_bf16_f32 v{112+q}, v{acc+2*q}, v{acc+2*q+1}\nv_or_b32 v{112+q}, v{112+q}, v27")
    for q in range(8): E(f"v_cvt_pk_bf16_f32 v{T+q}, v{T+2*q}, v{T+2*q+1}")
    E(f"{MF} {V(KVA,16)}, {V(T)}, v[112:115], {V(KVA,16) if f else 0}")
    E(f"{MF} {V(KVA,16)}, {V(T+4)}, v[116:119], {V(KVA,16)}")
for c in range(2 if AW == 2 else 0, 8):
    D(f"s_add_u32 m0, s70, {3*PG + c*8192}")
    D(f"buffer_load_dwordx4 v95, {R(W1)}, s73 offen lds", "I2")
    D(f"s_add_u32 s73, s73, {64*3584}")
if AW:
    D2s = a.sub()
    for u in range(4): p2_dma(D2s, u, "D1")
    for it in D2s.items:
        if hasattr(it, "text"):
            D(it.text.replace("v18", "v90"), it.tag)
nE = len(E.items)*env("EFR", 6)//10
E1 = a.sub(); E1.items = E.items[:nE]; E2 = a.sub(); E2.items = E.items[nE:]
a.merge(E1, D); a.extend(E2)
st(grp="B")
a(f"""
s_lshl_b32 s9, s63, 12
s_lshl_b32 s10, s7, 11
s_add_u32 s9, s9, s10
s_add_u32 s9, s9, {KP}
v_add_u32 v92, s9, v26
v_xor_b32 v93, 0x800, v92
v_mul_u32_u24 v94, 17, v30
v_add_u32 v94, v94, v29
v_lshlrev_b32 v94, 2, v94
s_mul_i32 s10, s63, 2176
s_mul_i32 s11, s7, {8*136}
s_add_u32 s10, s10, s11
s_add_u32 s10, s10, s72
v_cmp_gt_u32 s[80:81], 17, v29
s_cmp_eq_u32 s7, 0
s_cbranch_scc1 {L('kv0')}
""")
with a.skippable():
    for q in range(2): a(f"ds_write_b128 v92, {V(KVA+4*q)} offset:{q*1024}")
    for r in range(8): a(f"v_mov_b32 v{KVA+r}, v{KVA+8+r}")
    a(f"s_branch {L('kv1')}")
a.label(L('kv0'))
with a.skippable():
    for q in range(2): a(f"ds_write_b128 v92, {V(KVA+8+4*q)} offset:{q*1024}")
a.label(L('kv1'))
if not env("SEP", 0): a.wv("I2")
a("s_waitcnt lgkmcnt(0)\ns_barrier")
for q in range(2): a(f"ds_read_b128 {V(T+4*q)}, v93 offset:{q*1024}")
a(f"v_mov_b32 v18, v90\nv_mov_b32 v19, 0\nv_add_u32 v20, {3*PG}, v91")
a("s_waitcnt lgkmcnt(0)")
for r in range(8): a(f"v_add_f32 v{KVA+r}, v{KVA+r}, v{T+r}")
a("s_mov_b64 exec, s[80:81]")
for r in range(8): a(f"buffer_atomic_add_f32 v{KVA+r}, v94, {R(WS)}, s10 offen offset:{r*136}", "AT")
a("s_mov_b64 exec, -1")
st(grp="B")
if env("SEP", 0): a.wv("I2"); a("s_barrier")
A2 = 32
def rd2(k):
    b = 48 + 4*(k % 4)
    for e in range(2): a(f"ds_read_b64_tr_b16 {V(b+2*e,2)}, v20 offset:{k*2048+e*512}", f"B{k}")
a(f"{MF} {V(A2,16)}, v[4:7], {V(BX)}, 0")
rd2(0); rd2(1); rd2(2)
K1 = env("K1", 0); K2 = env("K2", 17)
TRA = 96
if K1: p2_traddr(96, 104)
a(f"s_add_u32 s81, s61, {5*16384}\ns_sub_u32 s9, s81, {14*16384}\ns_cmp_ge_u32 s81, s83\ns_cselect_b32 s81, s9, s81")
for k in range(32):
    if k+3 < 32: rd2(k+3)
    a.wl(f"B{k}")
    a(f"{MF} {V(A2,16)}, {V(48+4*(k%4))}, {V(XF+4*k)}, {V(A2,16)}")
    if K1 and k == K1:
        for u in range(4): p2_tr(a, WREG+8*u, u, f"B{k+4}")
    if K1 and K1+4 <= k < K1+8: p2_dma2(a, 9+k-K1-4, "D2")
    if K1 and k == K2: a("s_barrier")
    if K1 and k in (K2+5, K2+7, K2+9): p2_dma(a, 4+(k-K2-5)//2, "D1")
    if k == env("KVK", 20):
        a.wv("AT")
        a(f"""
        s_lshl_b32 s9, s6, 9
        s_lshl_b32 s10, s4, 5
        s_add_u32 s9, s9, s10
        s_lshl_b32 s10, s3, 2
        s_add_u32 s9, s9, s10
        s_add_u32 s9, s9, {KVF}
        """)
        flag_store("s9")
        st(grp="B")
ffn_epi(a, A2, 67, 0, RRA+2)
st()
TRA = 2
p2_traddr()
if K1:
    a("s_barrier")
    for u in range(7, 9): p2_dma(a, u, "D1x")
    a.wv("H")
    hflag()
    st()
    for u in range(4, 7): p2_tr(a, WREG+8*u, u, "W1")
    a("s_barrier")
    a.wl("W1")
    for u in range(13, 16): p2_dma2(a, u, "D2")
    a.wv("D1x")
    for u in range(7, 9): p2_tr(a, WREG+8*u, u, "W1")
    a.wl("W1")
    for u in range(16, 18): p2_dma2(a, u, "D2")
else:
    AT2 = env("AT2", 0)
    for u in range(4): p2_tr(a, WREG+8*u, u, "W1")
    if AT2 == 2:
        a.wl("W1")
        for u in range(9, 13): p2_dma2(a, u, "D2")
    a("s_barrier")
    for u in range(4, 6): p2_dma(a, u, "D1")
    a.wv("H")
    hflag()
    st()
    if AT2 == 0: a("s_barrier")
    for u in range(6, 9): p2_dma(a, u, "D1")
    a.wl("W1")
    if AT2 != 2:
        for u in range(9, 13): p2_dma2(a, u, "D2")
    a.wv("D1")
    for u in range(4, 9): p2_tr(a, WREG+8*u, u, "W1")
    a.wl("W1")
    for u in range(13, 18): p2_dma2(a, u, "D2")
a(f"s_branch {L('tail')}")
a.label(L('typeB'))
a.qload("br")
for p in range(6): dma(1, p)
for i in range(10): a(f"v_add_u32 v{160+i}, {2*SLOT}, v{8+i}")
a("s_cmp_eq_u32 s8, 0\ns_cselect_b64 s[80:81], -1, 0\ns_mov_b64 vcc, s[80:81]")
st(5, grp="P"); a.wv("C0"); st(grp="P"); a("s_barrier"); st(grp="P")
st(1, grp="A")
def rdB(p):
    i = p & 3; b = 96 + 16*(p & 1); c = p >> 2; sl = c % 3
    ab = 8 if sl < 2 else 160; so = SLOT if sl == 1 else 0
    a(f"ds_read_b128 {V(b)}, v{ab+i} offset:{so}", f"P{p}")
    for e in range(2): a(f"ds_read_b64_tr_b16 {V(b+8+2*e,2)}, v{ab+8} offset:{so+i*2048+e*512}", f"P{p}")
    a(f"ds_read_b128 {V(b+4)}, v{ab+4+i} offset:{so}", f"P{p}")
    for e in range(2): a(f"ds_read_b64_tr_b16 {V(b+12+2*e,2)}, v{ab+9} offset:{so+i*2048+e*512}", f"P{p}")
rdB(0)
WPB, BXB, RRB, RAWB = 200, 208, 220, 232
for p in range(32):
    c = p >> 2; i = p & 3
    a.wl(f"P{p}")
    b = 96 + 16*(p & 1)
    BO = env("BO", 0) if (i == 3 and c < 7) else 0
    M01 = [f"{MF} {V(ACC[0],16)}, {V(b+8)}, {V(b)}, {V(ACC[0],16) if p else 0}", f"{MF} {V(ACC[1],16)}, {V(b+8)}, {V(b+4)}, {V(ACC[1],16) if p else 0}"]
    for m in M01[:BO]: a(m)
    if i == 3 and c < 7:
        a.wv(f"C{c+1}")
        if p == 19: side_poll_wait("B", True)
        a("s_barrier"); st(grp="A")
    if p+1 < 32: rdB(p+1)
    for m in M01[BO:]: a(m)
    if p < 3: dma(2, 2*p); dma(2, 2*p+1)
    else:
        cc = ((p-3) >> 2) + 3; q = (p-3) & 3
        if cc <= 7:
            for piece in ((0,1),(2,3),(4,),(5,))[q]: dma(cc, piece)
    a(f"{MF} {V(ACC[2],16)}, {V(b+12)}, {V(b)}, {V(ACC[2],16) if p else 0}")
    a(f"s_cbranch_vccz {L(f'm4_{p}')}")
    with a.skippable():
        a(f"{MF} {V(ACC[3],16)}, {V(b+12)}, {V(b+4)}, {V(ACC[3],16) if p else 0}")
    a.label(L(f"m4_{p}"))
    side_slow("B", p, 250); side_slow2(p, 250 + ((p//4) & 1))
    if p == 0: side_wphi_dma("B")
    if p == 3: side_flags("B", 240)
    if p == 8:
        for h in range(2):
            for e in range(2): a(f"ds_read_b64_tr_b16 {V(WPB+4*h+2*e,2)}, v21 offset:{h*512+e*256}", f"P{p+1}")
    if p == 13: side_poll_issue("B")
    if p == 19: side_poll_check("B", RAWB, 240, "P20")
    if p == 26: a.wv("ST")
    if p == 28: side_csred("B", 144, 240)
    if p == 29: side_bext(RAWB, BXB, RRB, 240)
    if p == 22:
        side_p2(240)
        if env("PZ", 0):
            a(f"s_cbranch_vccnz {L('nopz')}")
            with a.skippable(): poison(244)
            a.label(L('nopz'))
    if p in (23, 24, 25): p2_dma(a, p-23, "D1a")
    if p in (27, 29, 30): p2_dma(a, {27:3, 29:4, 30:5}[p], "D1b")
st(2)
a("s_waitcnt lgkmcnt(0)\ns_barrier")
a(f"""
ds_read_b32 v216, v23
ds_read_b32 v240, v24
v_cmp_gt_u32 vcc, 32, v1
v_lshl_or_b32 v27, v27, 16, v27
v_lshl_or_b32 v28, v28, 16, v28
s_and_b64 s[80:81], s[80:81], vcc
v_cndmask_b32 v218, 0, v27, s[80:81]
v_cndmask_b32 v242, 0, v28, vcc
v_mov_b32 v219, 0
v_mov_b32 v243, 0
s_waitcnt lgkmcnt(0)
v_cndmask_b32 v216, 0, v216, vcc
v_cndmask_b32 v240, 0, v240, vcc
v_mov_b32 v217, v216
v_mov_b32 v241, v240
{MF} {V(ACC[0],16)}, v[216:219], {V(BXB)}, {V(ACC[0],16)}
{MF} {V(ACC[1],16)}, v[216:219], {V(BXB+4)}, {V(ACC[1],16)}
{MF} {V(ACC[2],16)}, v[240:243], {V(BXB)}, {V(ACC[2],16)}
{MF} {V(ACC[3],16)}, v[240:243], {V(BXB+4)}, {V(ACC[3],16)}
""")
for u in range(6, 9): p2_dma(a, u, "D1c")
TRA = 12
p2_traddr(12)
def w2step(k):
    if k == 0:
        a.wv("D1a")
        for u in range(0, 3): p2_tr(a, WREG+8*u, u, "W1")
    elif k == 1:
        a.wl("W1")
        for u in range(9, 12): p2_dma(a, u, "D2")
        a.wv("D1b")
        for u in range(3, 6): p2_tr(a, WREG+8*u, u, "W1")
    elif k == 2:
        a.wl("W1")
        for u in range(12, 15): p2_dma(a, u, "D2")
        a.wv("D1c")
        for u in range(6, 9): p2_tr(a, WREG+8*u, u, "W1")
    elif k == 3:
        a.wl("W1")
        for u in range(15, 18): p2_dma(a, u, "D2")
a(f"s_cmp_eq_u32 s8, 0\ns_cbranch_scc0 {L('Bq')}")
a.qsave("bq")
ffn_epi(a, ACC[0], 66, 0, RRB+2)
ffn_epi(a, ACC[1], 66, 1, RRB+5)
ffn_epi(a, ACC[2], 67, 0, RRB+2)
ffn_epi(a, ACC[3], 67, 1, RRB+5)
st(3)
a.wv("D1c")
for u in range(9): p2_tr(a, WREG+8*u, u, "W1")
a.wv("H")
hflag()
a("s_mov_b32 s81, s61\ns_lshl_b32 s9, s3, 2\nv_mov_b32 v11, s9")
a.wl("W1")
for u in range(9, 18): p2_dma(a, u, "D2")
lds_wait("pw", 12304)
for u in range(9, 18): p2_dma_partner(a, u, "D2")
a("s_waitcnt vmcnt(0)\nv_mov_b32 v10, s75\nds_write_b32 v11, v10 offset:12320")
st(4)
a(f"s_branch {L('tailB')}")
a.label(L('Bq'))
a.qload("bq")
stor = {(0,0): (80, 84), (0,1): (88, 92), (1,0): (232, 236), (1,1): (240, 244)}
if not env("PZ", 0): poison(4)
ffn_epi(a, ACC[2], 67, 0, RRB+2)
a(f"v_lshlrev_b32 v8, 3, v1\ns_lshl_b32 s66, s6, 9\ns_add_u32 s66, s66, {KVF}\ns_mul_i32 s11, s78, 4352")
for f in range(2):
    acc = ACC[f]
    for q in range(8): a(f"v_cvt_pk_bf16_f32 v{acc+q}, v{acc+2*q}, v{acc+2*q+1}")
    for h in range(2):
        a(f"{MF} {V(T,16)}, {V(WPB+4*h)}, {V(acc+4*h)}, 0")
        if 2*f+h == TRP:
            a.wv("H"); hflag()
            for u in range(9): p2_tr(a, WREG+8*u, u, "W1")
        if 2*f+h == TRP+1:
            a.wl("W1")
            a("s_lshl_b32 s9, s3, 2\nv_mov_b32 v9, s9\nv_mov_b32 v10, s75\nds_write_b32 v9, v10 offset:12288")
        softmax(a, T, stor[(f,h)][0], stor[(f,h)][1], RRB+1+3*f)
st(3)
a(f"""
v_min_u32 v9, 16, v29
v_mul_u32_u24 v10, 17, v30
v_add_u32 v9, v9, v10
v_lshlrev_b32 v9, 2, v9
v_add_u32 v9, s11, v9
""")
kvpoll(4, 'nopk')
a("s_mov_b32 s71, 0")
a.label(L('lf1'))
a(f"""
ds_read_b32 v10, v19 offset:12288
s_waitcnt lgkmcnt(0)
v_readfirstlane_b32 s9, v10
s_add_u32 s71, s71, 1
s_cmp_gt_u32 s71, {SPIN*8}
s_cbranch_scc1 {L('lf2')}
s_cmp_eq_u32 s9, s75
s_cbranch_scc1 {L('lf2')}
s_sleep 1
s_branch {L('lf1')}
""")
a.label(L('lf2'))
for h in range(2):
    for r in range(16): a(f"ds_read_b32 v{32+16*h+r}, v9 offset:{h*2176+r*136}", f"K{h}")
a(f"s_add_u32 s9, s65, 112\ns_lshl_b32 s9, s9, 10\ns_add_u32 s10, s9, s64\ns_add_u32 s9, s9, s74")
for h in range(2):
    kb = 32+16*h
    a.wl(f"K{h}")
    for q in range(8): a(f"v_cvt_pk_bf16_f32 v{kb+q}, v{kb+2*q}, v{kb+2*q+1}")
    for f in range(2):
        Tt = 96+16*f
        a(f"{MF} {V(Tt,16)}, {V(kb)}, {V(stor[(f,h)][0])}, 0")
        a(f"{MF} {V(Tt,16)}, {V(kb+4)}, {V(stor[(f,h)][1])}, {V(Tt,16)}")
    for f in range(2):
        Tt = 96+16*f; o = kb+8+4*f
        a(f"v_add_f32 v8, 0x358637bd, v{Tt+8}\nv_rcp_f32 v8, v8")
        for r in range(8): a(f"v_mul_f32 v{Tt+r}, v{Tt+r}, v8")
        for q in range(4): a(f"v_cvt_pk_bf16_f32 v{o+q}, v{Tt+2*q}, v{Tt+2*q+1}")
        a(f"buffer_store_dwordx4 {V(o)}, v26, {R(WS)}, {('s9','s10')[f]} offen offset:{h*1024} {SC}", "O")
st()
a("s_lshl_b32 s9, s3, 2\nv_mov_b32 v11, s9")
lds_wait("r2w", 12320-16)
a.label(L('tailB'))
for i in range(6): a(f"v_mov_b32 v{2+i}, v{12+i}")
TRA = 2
a.label(L('tail'))
a(f"""
s_mul_i32 s64, s82, {2*AF_TG}
s_mul_i32 s65, s3, {14*1024}
s_add_u32 s65, s65, s64
s_lshl_b32 s66, s3, 12
s_add_u32 s66, s66, s64
s_add_u32 s66, s66, {112*1024}
s_add_u32 s67, s66, {AF_TG}
s_lshl_b32 s9, s82, 8
s_add_u32 s72, s9, {HF}
s_add_u32 s73, s9, {OF}
v_lshlrev_b32 v0, 4, v1
v_lshlrev_b32 v8, 2, v1
""")
st(5)
a(f"s_cmp_eq_u32 s3, 0\ns_cbranch_scc0 {L('phok')}")
with a.skippable():
    a("s_mov_b32 s79, 0")
    a.label(L('ph'))
    a(f"""
    buffer_load_dword v10, v8, {R(WS)}, s72 offen {SC}
    s_waitcnt vmcnt(0)
    v_cmp_ne_u32 vcc, s75, v10
    s_cmp_eq_u64 vcc, 0
    s_cbranch_scc1 {L('phok')}
    s_add_u32 s79, s79, 1
    s_cmp_gt_u32 s79, {SPIN}
    s_cbranch_scc1 {L('phok')}
    s_sleep {SLP}
    s_branch {L('ph')}
    """)
if env("DEC", 0):
    a.label(L('phok2')) if False else None
a.label(L('phok'))
if env("DEC", 0):
    a(f"s_cmp_eq_u32 s3, 0\ns_cbranch_scc0 {L('hw0')}")
    with a.skippable():
        a("v_mov_b32 v10, s75\nds_write_b32 v19, v10 offset:12352")
    a.label(L('hw0'))
    a("v_mov_b32 v11, 0")
    lds_wait("hw", 12352)
else:
    a("s_barrier")
st(); st(1, grp="T")
abuf = [200+8*i for i in range(7)] + [16+8*i for i in range(4)]
NA = 11
a(f"""
s_mov_b32 s60, s65
s_add_u32 s83, s65, {14*1024}
s_lshl_b32 s9, s76, 10
s_add_u32 s65, s65, s9
""")
def aload(u):
    r = abuf[u % NA]
    if u < 14:
        a(f"s_add_u32 s71, s65, {AF_TG}")
        a(f"buffer_load_dwordx4 {V(r)}, v0, {R(WS)}, s65 offen {ASC}", f"A{u}")
        a(f"buffer_load_dwordx4 {V(r+4)}, v0, {R(WS)}, s71 offen {ASC}", f"A{u}")
        a("s_add_u32 s65, s65, 1024\ns_cmp_eq_u32 s65, s83\ns_cselect_b32 s65, s60, s65")
    else:
        for tb in range(2):
            a(f"buffer_load_dwordx4 {V(r+4*tb)}, v0, {R(WS)}, s{(66,67)[tb]} offen offset:{(u-14)*1024} {SC}", f"A{u}")
NW = env("NW", 11)
OCK = min(OCK, 14-NW) if NW < 11 else OCK
FOP = max(0, OCK - 2)
for u in range(NW):
    aload(u)
def mfmas(u, w):
    r = abuf[u % NA]
    for tb in range(2):
        for nb in range(2):
            d = P2ACC + 16*(2*tb+nb)
            a(f"{MF} {V(d,16)}, {V(w+4*nb)}, {V(r+4*tb)}, {V(d,16) if u else 0}")
a(f"""
v_lshrrev_b32 v12, 3, v1
v_lshlrev_b32 v12, 10, v12
v_and_b32 v13, 7, v1
v_lshlrev_b32 v13, 4, v13
v_add_u32 v12, v12, v13
s_lshl_b32 s74, s82, 16
s_lshl_b32 s9, s3, 13
s_add_u32 s74, s74, s9
s_add_u32 s74, s74, s62
""")
for u in range(18):
    if u == 8: p2_tr(a, WTMP, 9, "T9")
    if 9 <= u < 17: p2_tr(a, WTMP + 8*((u-8)&1), u+1, f"T{u+1}")
    if u >= 9: a.wl(f"T{u}")
    a.wv(f"A{u}")
    if u in (0, 7, 14): st(grp="T")
    if u >= 14:
        r = abuf[u % NA]
        a("s_mov_b32 s79, 0")
        a.label(L(f'oc{u}'))
        a(f"""
        v_cmp_eq_u32 vcc, -1, v{r}
        v_cmp_eq_u32 s[80:81], -1, v{r+4}
        s_or_b64 vcc, vcc, s[80:81]
        s_cmp_eq_u64 vcc, 0
        s_cbranch_scc1 {L(f'ok{u}')}
        s_add_u32 s79, s79, 1
        s_cmp_gt_u32 s79, {SPIN}
        s_cbranch_scc1 {L(f'ok{u}')}
        """)
        with a.skippable():
            a("s_sleep 8")
            for tb in range(2):
                a(f"buffer_load_dwordx4 {V(r+4*tb)}, v0, {R(WS)}, s{(66,67)[tb]} offen offset:{(u-14)*1024} {SC}")
            a(f"s_waitcnt vmcnt(0)\ns_branch {L(f'oc{u}')}")
        a.label(L(f'ok{u}'))
    mfmas(u, WREG+8*u if u < 9 else WTMP+8*((u-9)&1))
    if NW == 11:
        if u < 3: aload(u+NA)
    else:
        if u+NW < 14: aload(u+NW)
        if u+NW == OCK+0: a(f"buffer_load_dword v10, v8, {R(WS)}, s73 offen {SC}", f"A{OCK}")
        if u > OCK and u+NW < 18: aload(u+NW)  if u+NW >= 14 else None
    if u == 3:
        a(f"buffer_load_dwordx4 v[128:131], v12, {R(X)}, s74 offen", "X")
        a(f"buffer_load_dwordx4 v[132:135], v13, {R(B2)}, s62 offen", "X")
    if u == OCK:
        for uu in range(14, 18): aload(uu)
    if u == 15 and env("CLR", 1) == 1:
        a(f"s_or_b32 s9, s2, s3\ns_cmp_eq_u32 s9, 0\ns_cbranch_scc0 {L('noclr1')}")
        with a.skippable():
            a(f"v_mov_b32 v8, 0\ns_mov_b64 exec, 1\nbuffer_store_dword v8, v8, {R(DBG)}, 0 offen {SC}\ns_mov_b64 exec, -1")
        a.label(L('noclr1'))
st(); st(grp="T")
a(f"""
v_bfe_u32 v8, v1, 3, 2
v_lshlrev_b32 v8, 14, v8
v_and_b32 v9, 7, v1
v_lshl_add_u32 v8, v9, 8, v8
v_lshrrev_b32 v10, 5, v1
v_xor_b32 v10, v10, v9
v_lshl_add_u32 v8, v10, 4, v8
s_add_u32 s9, s69, {PG}
v_add_u32 v8, s9, v8
v_xor_b32 v9, 32, v8
v_xor_b32 v10, 64, v8
v_xor_b32 v11, 96, v8
v_add_u32 v2, 0x10000, v8
v_add_u32 v3, 0x10000, v9
v_add_u32 v4, 0x10000, v10
v_add_u32 v5, 0x10000, v11
""")
for tb in range(2):
    for nb in range(2):
        for qq in range(4):
            d = P2ACC + 16*(2*tb+nb) + 4*qq
            a(f"ds_write_b128 v{(8,2)[tb]+qq}, {V(d)} offset:{nb*128}")
a("""
v_lshrrev_b32 v6, 3, v1
v_and_b32 v7, 7, v1
v_lshlrev_b32 v7, 1, v7
v_xor_b32 v7, v7, v6
v_lshlrev_b32 v6, 8, v6
v_lshl_add_u32 v6, v7, 4, v6
s_lshl_b32 s9, s3, 14
s_add_u32 s9, s9, 16384
v_add_u32 v6, s9, v6
v_xor_b32 v7, 16, v6
s_waitcnt lgkmcnt(0)
""")
st(grp="T"); a("s_barrier"); st(grp="T")
RR = 160
for w in range(8):
    for e in range(2):
        a(f"ds_read_b128 {V(RR+8*w+4*e)}, v{6+e} offset:{w*2048}", f"R{w}")
a.wv("X")
for i in range(4):
    a(f"v_lshlrev_b32 v{24+2*i}, 16, v{128+i}\nv_and_b32 v{25+2*i}, 0xffff0000, v{128+i}")
    a(f"v_lshlrev_b32 v{32+2*i}, 16, v{132+i}\nv_and_b32 v{33+2*i}, 0xffff0000, v{132+i}")
for i in range(8): a(f"v_add_f32 v{24+i}, v{24+i}, v{32+i}")
for w in range(8):
    a.wl(f"R{w}")
    for i in range(8): a(f"v_add_f32 v{24+i}, v{24+i}, v{RR+8*w+i}")
for i in range(4): a(f"v_cvt_pk_bf16_f32 v{32+i}, v{24+2*i}, v{25+2*i}")
a(f"buffer_store_dwordx4 v[32:35], v12, {R(OUT)}, s74 offen {os.environ.get('OSC','')}")
st(grp="T")
if INSTR:
    a("s_waitcnt vmcnt(0)"); st()
    nst[0] = 9
    a(f"s_waitcnt lgkmcnt(0)\ns_lshl_b32 s9, s2, 3\ns_add_u32 s9, s9, s3\ns_lshl_b32 s9, s9, 6\ns_add_u32 s9, s9, {STAMPS}")
    a("v_mov_b32 v0, 0\ns_mov_b64 exec, 1")
    for i in range(nst[0]):
        a(f"v_mov_b32 v1, s{84+2*i}\nbuffer_store_dword v1, v0, {R(WS)}, s9 offen offset:{4*i}\ns_nop 1")
a.label(L('end')); a("s_endpgm")
desc = f""".section .rodata,"a"
.p2align 6
.amdhsa_kernel {NAME}
  .amdhsa_next_free_vgpr 256
  .amdhsa_next_free_sgpr 102
  .amdhsa_accum_offset 256
  .amdhsa_group_segment_fixed_size 0
  .amdhsa_kernarg_size 96
  .amdhsa_user_sgpr_count 2
  .amdhsa_user_sgpr_kernarg_segment_ptr 1
  .amdhsa_system_sgpr_workgroup_id_x 1
  .amdhsa_float_denorm_mode_32 3
.end_amdhsa_kernel
"""
if __name__ == "__main__":
    open(sys.argv[1], "w").write("; @launch grid=(256,1,1) block=(512,1,1) lds=163840\n" + a.finish() + desc)
    print("stamps:", nst[0], "STAMPS", STAMPS)
```

```python
import sys, os
sys.path.insert(0, "work")
from asmlib import Asm
EXP = os.environ.get("EXP", "").split(",")
INSTR = "instr" in sys.argv
STG = os.environ.get("STG", "main")
def env(n, d): return int(os.environ.get(n, str(d)))
NAME = "parallel_sum__linear_kernel_hedgehog__dense_activation_squared_relu__prompt_kernel"
SZ = dict(x=2048*512*2, wqkv=512*1536*2, wphi=32*16*16*2, wo=512*512*2, w1=512*1792*2, b1=1792*2, w2=1792*512*2, b2=512*2, out=2048*512*2, dbg=256)
KSLOT = dict(x=0, wqkv=1, wphi=2, wo=3, w1=5, b1=6, w2=7, b2=8, out=9, dbg=10, ws=11)
AF_TG = 144*1024
KVACC = 64*AF_TG; KV_J = 9216
KVF = KVACC + 8*KV_J
HF = KVF + 8*512
OF = HF + 32*256
EFS = OF + 32*256
EFC = EFS + 16*128
CSP = EFC + 16*128
STAT = CSP + 16*14336
STAMPS = STAT + 2048*16
WS_END = STAMPS + 256*8*64
SZ["ws"] = WS_END
LOG2E = "0x3fb8aa3b"
SLOT = 49152; PG = 16384; RB = PG
SPIN = 60000
FLA = env("FLA", 18); FLC = env("FLC", 23); KPW = env("KPW", 4); FLB = env("FLB", 14); OCK = env("OCK", 6 if env("NW", 11) == 11 else 14-env("NW", 11)); AW = env("AW", 0); TRP = env("TRP", 1); NE = env("NE", 4); NB = env("NB", 8)
SC = "sc1"
ASC = os.environ.get("ASC", "sc1")
SLP = env("SLP", 8)
X, WQ, W1, WS, DBG, WPHI, B1, I1, W2, WO, B2, OUT = 12, 16, 20, 24, 28, 32, 36, 40, 44, 48, 52, 56
def R(s): return f"s[{s}:{s+3}]"
def V(b, n=4): return f"v[{b}:{b+n-1}]"
MF = "v_mfma_f32_32x32x16_bf16"
a = Asm()
nst = [0]
def st(i=None, grp="main"):
    if not INSTR or grp != STG: return
    if i is not None: nst[0] = i
    a(f"s_memrealtime s[{84+2*nst[0]}:{85+2*nst[0]}]"); nst[0] += 1
def L(n): return f"L_{n}"
def fin(x, n, s): x(f"s_mov_b32 s{s+2}, {SZ[n]}\ns_mov_b32 s{s+3}, 0x20000")

a.raw('.amdgcn_target "amdgcn-amd-amdhsa--gfx950"\n.text')
a.raw(f".globl {NAME}\n.p2align 8\n.type {NAME},@function\n{NAME}:")
a(f"s_cmp_ge_u32 s2, 256\ns_cbranch_scc1 {L('end')}")
st(grp=STG)
names = (("x",X),("wqkv",WQ),("w1",W1),("ws",WS),("dbg",DBG),("wphi",WPHI),("b1",B1),("w2",W2),("wo",WO),("b2",B2),("out",OUT))
for n, s in names: a(f"s_load_dwordx2 s[{s}:{s+1}], s[0:1], {KSLOT[n]*8}")
a(f"""
v_and_b32 v1, 63, v0
v_lshrrev_b32 v2, 6, v0
v_readfirstlane_b32 s3, v2
s_bfe_u32 s4, s2, 0x30003
s_bfe_u32 s9, s2, 0x10002
s_lshl_b32 s9, s9, 3
s_add_u32 s4, s4, s9                ; m
s_lshr_b32 s5, s2, 7                ; type
s_and_b32 s6, s2, 3
s_lshl_b32 s6, s6, 1
s_bfe_u32 s10, s2, 0x10006
s_add_u32 s6, s6, s10               ; j
v_lshrrev_b32 v9, 3, v1
v_and_b32 v10, 7, v1
v_lshrrev_b32 v11, 4, v1
v_xor_b32 v12, v10, v11
v_lshlrev_b32 v13, 10, v9
v_lshl_add_u32 v2, v12, 4, v13
v_xor_b32 v3, 0x2040, v2
v_and_b32 v11, 1, v11
v_lshlrev_b32 v11, 6, v11
v_lshlrev_b32 v12, 4, v10
v_xor_b32 v12, v12, v11
v_mul_u32_u24 v13, 3072, v9
v_add_u32 v4, v13, v12
v_mul_u32_u24 v13, 3584, v9
v_add_u32 v6, v13, v12
v_xor_b32 v14, 32, v4
s_and_b32 s9, s2, 3
s_mul_i32 s9, s9, 5
s_add_u32 s9, s9, 8
s_mul_i32 s11, s10, 3
s_add_u32 s66, s9, s11              ; I1 block (B)
s_add_u32 s67, s66, 1
s_add_u32 s68, s9, 2                ; I3 block
s_lshl_b32 s61, s6, 7
s_add_u32 s62, s61, 2048
s_lshl_b32 s77, s66, 7
s_add_u32 s78, s61, 1024
s_movk_i32 s63, 3584
s_cmp_eq_u32 s5, 0
s_cselect_b64 vcc, -1, 0
s_cselect_b32 s61, s78, s61         ; I0 col
s_cselect_b32 s62, s62, s77         ; I1 col
s_cselect_b32 s63, 3072, s63
s_cselect_b32 s67, s6, s67          ; I2 block
v_cndmask_b32 v5, v6, v14, vcc
s_lshl_b32 s64, s67, 7              ; I2 col
s_lshl_b32 s65, s68, 7              ; I3 col
s_lshl_b32 s60, s4, 17
s_lshl_b32 s69, s3, 11
s_lshl_b32 s70, s3, 10
s_lshl_b32 s11, s3, 14
s_add_u32 s76, s60, s11
s_mul_i32 s11, s3, {8*3072}
s_add_u32 s11, s61, s11
v_add_u32 v4, s11, v4
s_lshl_b32 s11, s3, 3
s_mul_i32 s11, s11, s63
s_add_u32 s11, s62, s11
v_add_u32 v5, s11, v5
s_lshl_b32 s75, s63, 6
s_mul_i32 s11, s3, {8*3584}
s_add_u32 s73, s64, s11
s_add_u32 s74, s65, s11
v_add_u32 v7, s74, v6
v_add_u32 v6, s73, v6
s_mov_b32 s82, 0
s_mov_b32 s83, 0
s_mov_b32 s73, 0
s_lshl_b32 s79, s5, 3
s_add_u32 s79, s79, s6              ; slot
s_and_b32 s78, s3, 1                ; lo
s_lshr_b32 s77, s3, 1
v_lshlrev_b32 v26, 4, v1
s_waitcnt lgkmcnt(0)
""")
st(8, grp="P"); nst[0] = 1
fin(a, "x", X); fin(a, "wqkv", WQ); fin(a, "w1", W1)
a(f"""
s_cmp_eq_u32 s5, 0
s_cselect_b32 s{I1}, s{WQ}, s{W1}
s_cselect_b32 s{I1+1}, s{WQ+1}, s{W1+1}
s_cselect_b32 s{I1+2}, s{WQ+2}, s{W1+2}
s_mov_b32 s{I1+3}, 0x20000
""")
a(f"""
s_lshl_b32 s9, s79, 13
s_add_u32 s9, s9, s70
s_add_u32 s9, s9, s60
""")
a(f"buffer_load_dwordx4 v[112:115], v26, {R(X)}, s9 offen", "E")
a(f"""
v_lshrrev_b32 v9, 2, v1
v_and_b32 v10, 3, v1
v_lshlrev_b32 v10, 4, v10
s_cmp_eq_u32 s77, 0
s_cselect_b32 s9, s61, s62
s_cselect_b32 s11, 3072, s63
s_cmp_eq_u32 s77, 2
s_cselect_b32 s9, s64, s9
s_cmp_eq_u32 s77, 3
s_cselect_b32 s9, s65, s9
s_cselect_b32 s71, s10, s78
s_cmp_ge_u32 s77, 2
s_cselect_b32 s11, 3584, s11
s_lshl_b32 s71, s71, 6
s_add_u32 s9, s9, s71
s_lshl_b32 s71, s4, 5
s_mul_i32 s71, s71, s11
s_add_u32 s9, s9, s71               ; + 32m rows
v_mul_lo_u32 v9, v9, s11
v_add_u32 v9, v9, v10
s_lshl_b32 s11, s11, 4
s_add_u32 s71, s9, s11
s_mov_b32 m0, s69
s_cmp_eq_u32 s11, {3072*16}
s_cbranch_scc1 {L('e1')}
""")
with a.skippable():
    a(f"buffer_load_dwordx4 v9, {R(W1)}, s9 offen lds\ns_add_u32 m0, s69, 1024\ns_nop 0\nbuffer_load_dwordx4 v9, {R(W1)}, s71 offen lds\ns_branch {L('e2')}")
a.label(L('e1'))
with a.skippable():
    a(f"buffer_load_dwordx4 v9, {R(WQ)}, s9 offen lds\ns_add_u32 m0, s69, 1024\ns_nop 0\nbuffer_load_dwordx4 v9, {R(WQ)}, s71 offen lds")
a.label(L('e2'))
a(f"""
s_bfe_u32 s101, s2, 0x30003
s_mul_i32 s101, s101, {env("RMM", 1)}
s_lshr_b32 s9, s2, 6
s_mul_i32 s9, s9, {env("RQ", 2)}
s_add_u32 s101, s101, s9
""")
def chunk_setup(x, c):
    x(f"""
    s_add_u32 s77, s101, {c}
    s_and_b32 s77, s77, 7
    s_lshl_b32 s100, s77, 7
    s_add_u32 s100, s100, s76
    s_mul_i32 s82, s77, {64*3072}
    s_mul_i32 s83, s77, s75
    s_mul_i32 s73, s77, {64*3584}
    """)
def dma(c, piece):
    t = f"C{c}"; sl = RB + (c % 3)*SLOT
    if piece == 0: chunk_setup(a, c)
    if piece < 2:
        a(f"s_add_u32 m0, s69, {sl+1024*piece}")
        a(f"buffer_load_dwordx4 v{2+piece}, {R(X)}, s100 offen lds", t)
    elif piece == 2:
        a(f"s_add_u32 m0, s70, {sl+16384}")
        a(f"buffer_load_dwordx4 v4, {R(WQ)}, s82 offen lds", t)
    elif piece == 3:
        a(f"s_add_u32 m0, s70, {sl+24576}")
        a(f"buffer_load_dwordx4 v5, {R(I1)}, s83 offen lds", t)
    elif piece == 4:
        a(f"s_add_u32 m0, s70, {sl+32768}")
        a(f"buffer_load_dwordx4 v6, {R(W1)}, s73 offen lds", t)
    else:
        a(f"s_add_u32 m0, s70, {sl+40960}")
        a(f"buffer_load_dwordx4 v7, {R(W1)}, s73 offen lds", t)
dma(0, 0); a.items.append(("retag", ("C0", "E")))
a(f"s_cmp_eq_u32 s5, 0\ns_cbranch_scc1 {L('c0b')}")
with a.skippable():
    dma(0, 4); dma(0, 5)
a.label(L('c0b'))
dma(0, 1); dma(0, 2); dma(0, 3)
st(grp="P")
if env("XT", 1):
    a(f"s_cmp_eq_u32 s3, 5\ns_cbranch_scc0 {L('xt')}")
    with a.skippable():
        a(f"""
        v_lshlrev_b32 v255, 10, v1
        s_lshr_b32 s9, s2, 6
        s_lshl_b32 s9, s9, 15
        s_add_u32 s9, s9, s60
        s_lshr_b32 s11, s{X}, 7
        s_sub_u32 s11, 3, s11
        s_and_b32 s11, s11, 7
        s_lshl_b32 s11, s11, 7
        s_add_u32 s9, s9, s11
        s_mov_b64 exec, 0xffffffff
        buffer_load_dword v255, v255, {R(X)}, s9 offen
        s_mov_b64 exec, -1
        """)
    a.label(L('xt'))
if env("XW", 0):
    a(f"""
    s_lshr_b32 s9, s{WQ}, 7
    s_add_u32 s9, s9, s6
    s_and_b32 s9, s9, 7
    s_cmp_eq_u32 s9, 3
    s_cbranch_scc0 {L('xw')}
    s_add_u32 s9, s3, s5
    s_cmp_lt_u32 s3, 6
    s_cbranch_scc1 {L('xw')}
    s_cmp_gt_u32 s9, 7
    s_cbranch_scc1 {L('xw')}
    """)
    with a.skippable():
        a(f"""
        s_cmp_eq_u32 s3, 6
        s_cselect_b32 s9, s61, s62
        s_and_b32 s11, s4, 7
        s_mul_i32 s11, s11, {64*3072}
        s_add_u32 s9, s9, s11
        v_mul_u32_u24 v255, 3072, v1
        buffer_load_dword v255, v255, {R(WQ)}, s9 offen
        """)
    a.label(L('xw'))
if env("WU", 0):
    a(f"s_cmp_lt_u32 s3, 4\ns_cbranch_scc0 {L('wu1')}")
    with a.skippable():
        a(f"""
        v_lshrrev_b32 v254, 1, v1
        v_and_b32 v255, 1, v1
        v_lshlrev_b32 v255, 7, v255
        v_lshl_add_u32 v254, v254, 10, v255
        s_lshl_b32 s9, s3, 15
        s_add_u32 s9, s9, s60
        s_lshr_b32 s11, s2, 6
        s_lshl_b32 s11, s11, 8
        s_add_u32 s9, s9, s11
        buffer_load_dword v255, v254, {R(X)}, s9 offen
        s_branch {L('wu3')}
        """)
    a.label(L('wu1'))
    with a.skippable():
        a(f"""
        s_cmp_eq_u32 s3, 4
        s_cselect_b32 s9, s61, s62
        s_cselect_b32 s11, 3072, s63
        s_cmp_eq_u32 s3, 6
        s_cselect_b32 s9, s64, s9
        s_cmp_eq_u32 s3, 7
        s_cselect_b32 s9, s65, s9
        s_cmp_ge_u32 s3, 6
        s_cselect_b32 s11, 3584, s11
        s_and_b32 s71, s4, 7
        s_lshl_b32 s71, s71, 6
        s_mul_i32 s71, s71, s11
        s_add_u32 s9, s9, s71
        v_mul_lo_u32 v254, v1, s11
        s_cmp_eq_u32 s11, 3072
        s_cbranch_scc1 {L('wu2')}
        buffer_load_dword v255, v254, {R(W1)}, s9 offen
        s_branch {L('wu3')}
        """)
        a.label(L('wu2'))
        a(f"buffer_load_dword v255, v254, {R(WQ)}, s9 offen")
    a.label(L('wu3'))
    a.items.append(("qins", ("C0", 1)))
if env("ICP", 0):
    a(f"s_cmp_lt_u32 s3, 4\ns_cbranch_scc0 {L('noicp')}")
    with a.skippable():
        a(f"""
        s_getpc_b64 s[80:81]
        v_lshlrev_b32 v127, 7, v1
        s_lshl_b32 s9, s3, 13
        v_add_u32 v127, s9, v127
        v_min_u32 v127, {env("ICP", 0)}, v127
        global_load_dword v127, v127, s[80:81]
        """)
    a.label(L('noicp'))
fin(a, "ws", WS); fin(a, "dbg", DBG)
a("v_mov_b32 v19, 0")
a(f"s_or_b32 s9, s2, s3\ns_cmp_eq_u32 s9, 0\ns_cbranch_scc0 {L('nononce')}")
with a.skippable():
    a(f"""
    s_memrealtime s[80:81]
    s_waitcnt lgkmcnt(0)
    s_or_b32 s80, s80, 1
    v_mov_b32 v10, s80
    s_mov_b64 exec, 1
    buffer_store_dword v10, v19, {R(DBG)}, 0 offen {SC}
    s_mov_b64 exec, -1
    """)
a.label(L('nononce'))
a(f"""
s_bfe_u32 s7, s3, 0x10001           ; mh
s_lshr_b32 s8, s3, 2                ; hi
s_mul_i32 s72, s6, {KV_J}
s_add_u32 s72, s72, {KVACC}
s_cmp_eq_u32 s5, 1
s_cselect_b32 s9, s4, 1
s_cmp_eq_u32 s9, 0
s_cbranch_scc0 {L('nozero')}
""")
with a.skippable():
    a(f"""
    v_lshlrev_b32 v9, 4, v0
    v_mov_b32 v10, 0
    v_mov_b32 v11, 0
    v_mov_b32 v12, 0
    v_mov_b32 v13, 0
    buffer_store_dwordx4 v[10:13], v9, {R(WS)}, s72 offen {SC}
    s_add_u32 s9, s72, 8192
    s_cmp_eq_u32 s3, 0
    s_cbranch_scc0 {L('nozero')}
    buffer_store_dwordx4 v[10:13], v9, {R(WS)}, s9 offen {SC}
    """)
a.label(L('nozero'))
a(f"""
s_and_b32 s9, s78, s8
s_cmp_eq_u32 s5, 0
s_cselect_b32 s61, s8, s9           ; sel
v_and_b32 v29, 31, v1
v_lshrrev_b32 v30, 5, v1
v_bfe_u32 v31, v1, 1, 3
v_xor_b32 v31, v31, v30
v_lshlrev_b32 v20, 7, v29
v_lshl_add_u32 v8, v31, 4, v20
s_lshl_b32 s9, s7, 1
s_add_u32 s62, s9, s61
s_lshl_b32 s9, s62, 12
s_add_u32 s9, s9, {RB}
v_add_u32 v8, s9, v8
v_xor_b32 v9, 32, v8
v_xor_b32 v10, 64, v8
v_xor_b32 v11, 96, v8
v_xor_b32 v12, 0x1000, v8
v_xor_b32 v13, 0x1000, v9
v_xor_b32 v14, 0x1000, v10
v_xor_b32 v15, 0x1000, v11
v_bfe_u32 v31, v1, 2, 2
v_lshl_add_u32 v20, v30, 3, v31
v_and_b32 v22, 3, v1
v_lshlrev_b32 v22, 3, v22
v_lshl_add_u32 v18, v20, 6, v22
v_lshl_add_u32 v20, v20, 7, v22
v_lshl_add_u32 v21, v30, 2, v31
v_lshl_add_u32 v21, v21, 5, v22
v_bfe_u32 v22, v1, 4, 1
v_lshl_add_u32 v18, v22, 5, v18
v_add_u32 v18, s69, v18
v_and_b32 v31, 2, v31
v_xor_b32 v31, v31, v22
v_lshl_add_u32 v20, v31, 5, v20     ; nat0
s_lshl_b32 s9, s8, 1
s_add_u32 s63, s9, s78              ; nq
s_lshl_b32 s9, s63, 5
v_xor_b32 v23, s9, v20
v_lshl_add_u32 v23, v22, 13, v23
s_lshl_b32 s9, s78, 6
v_xor_b32 v24, s9, v20
s_cmp_eq_u32 s8, 0
s_cselect_b32 s10, 8192, 0
v_add_u32 v25, s10, v24
v_cndmask_b32 v16, v25, v23, vcc
v_add_u32 v16, {RB+16384}, v16
s_and_b32 s9, s6, 1
s_lshl_b32 s9, s9, 6
v_xor_b32 v25, s9, v20
v_add_u32 v25, 8192, v25
s_and_b32 s9, s5, s8
s_cmp_eq_u32 s9, 1
s_cselect_b64 s[80:81], -1, 0
v_cndmask_b32 v17, v24, v25, s[80:81]
v_add_u32 v17, {RB+32768}, v17
v_mov_b32 v20, v24
v_mul_u32_u24 v23, 192, v22
v_lshlrev_b32 v24, 2, v29
s_lshl_b32 s9, s63, 6
v_add3_u32 v23, v23, v24, s9
s_lshl_b32 s9, s78, 7
s_cmp_eq_u32 s8, 0
s_cselect_b32 s10, 256, 0
s_add_u32 s10, s10, s9
v_add_u32 v25, s10, v24
v_cndmask_b32 v23, v25, v23, vcc
s_add_u32 s9, s9, 512
s_and_b32 s10, s5, s8
s_cmp_eq_u32 s10, 1
s_cselect_b32 s9, 768, s9
v_add_u32 v24, s9, v24
s_lshl_b32 s66, s66, 1
s_add_u32 s66, s66, s78
s_lshl_b32 s67, s67, 1
s_add_u32 s67, s67, s78
s_lshl_b32 s68, s68, 1
s_and_b32 s9, s6, 1
s_add_u32 s68, s68, s9
s_cmp_eq_u32 s10, 1
s_cselect_b32 s67, s68, s67
s_lshl_b32 s9, s78, 1
s_cmp_eq_u32 s5, 0
s_cselect_b32 s9, s63, s9
s_lshl_b32 s10, s6, 2
s_add_u32 s65, s10, s9
s_lshl_b32 s9, s9, 9
s_add_u32 s9, s9, 14336
v_add_u32 v21, s9, v21
v_mov_b32 v22, 0x3f803f80
v_and_b32 v27, 15, v1
v_lshlrev_b32 v27, 2, v27
s_lshl_b32 s9, s4, 7
s_add_u32 s9, s9, {EFS}
s_lshl_b32 s10, s79, 7
s_add_u32 s10, s10, {EFC}
v_add_u32 v25, s9, v27
v_add_u32 v28, s10, v27
v_lshrrev_b32 v27, 4, v1
v_cmp_eq_u32 vcc, 1, v27
v_cndmask_b32 v25, v25, v28, vcc
s_lshl_b32 s9, s6, 2
s_add_u32 s9, s9, {EFS+32}
v_writelane_b32 v25, s9, 32
""")
fin(a, "b1", B1); fin(a, "wphi", WPHI); fin(a, "w2", W2); fin(a, "wo", WO); fin(a, "b2", B2); fin(a, "out", OUT)
st(grp="P")
a.wv("E")
st(grp="P")
for k, off in enumerate((0, 256, 1024, 1280)): a(f"ds_read_b64_tr_b16 {V(120+2*k,2)}, v18 offset:{off}", "EW")
a("v_mov_b32 v116, 0\nv_mov_b32 v117, 0\nv_mov_b32 v118, 0")
for q in range(4):
    a(f"v_dot2_f32_bf16 v116, v{112+q}, v22, v116\nv_dot2_f32_bf16 v117, v{112+q}, v{112+q}, v117")
a.wl("EW")
for q in range(8): a(f"v_dot2_f32_bf16 v118, v{120+q}, v22, v118")
for dpp in ("quad_perm:[1,0,3,2]", "quad_perm:[2,3,0,1]", "row_half_mirror", "row_mirror"):
    a(f"v_add_f32_dpp v116, v116, v116 {dpp} row_mask:0xf bank_mask:0xf\nv_add_f32_dpp v117, v117, v117 {dpp} row_mask:0xf bank_mask:0xf")
a(f"""
v_permlane16_swap_b32 v116, v117
v_add_f32 v116, v116, v117
v_mov_b32 v119, v118
v_mov_b32 v117, v116
v_permlane32_swap_b32 v118, v119
v_permlane32_swap_b32 v116, v117
v_add_f32 v118, v118, v119
v_add_f32 v116, v116, v117
v_mov_b32 v117, v116
v_permlane16_swap_b32 v116, v117
v_mul_f32 v116, 0x3b000000, v116
v_mul_f32 v117, 0x3b000000, v117
v_fma_f32 v117, -v116, v116, v117
v_max_f32 v117, 0, v117
v_add_f32 v117, 0x3727c5ac, v117
v_rsq_f32 v114, v117
v_sub_f32 v116, 0, v116
v_mul_f32 v117, v117, v114
v_cvt_pk_bf16_f32 v120, v116, v117
v_and_b32 v121, 0xffff0000, v120
v_lshlrev_b32 v122, 16, v120
v_sub_f32 v123, v116, v122
v_sub_f32 v124, v117, v121
v_cvt_pk_bf16_f32 v112, v122, v123
v_cvt_pk_bf16_f32 v113, v121, v124
s_lshl_b32 s10, s4, 7
s_lshl_b32 s11, s79, 3
s_add_u32 s10, s10, s11
s_add_u32 s10, s10, s3
s_lshl_b32 s10, s10, 4
s_add_u32 s10, s10, {STAT}
s_mul_i32 s11, s79, 14336
s_mul_i32 s71, s4, 896
s_add_u32 s11, s11, s71
s_lshl_b32 s71, s3, 7
s_add_u32 s11, s11, s71
s_add_u32 s11, s11, {CSP}
v_lshlrev_b32 v120, 2, v1
s_mov_b64 exec, 1
buffer_store_dwordx4 v[112:115], v19, {R(WS)}, s10 offen {SC}
s_cmp_lt_u32 s3, 7
s_cselect_b32 exec_lo, -1, 0
s_cbranch_scc0 {L('nocs')}
""")
with a.skippable():
    a(f"buffer_store_dword v118, v120, {R(WS)}, s11 offen {SC}")
a.label(L('nocs'))
a("s_mov_b64 exec, -1")
a(f"buffer_load_dword v31, v19, {R(DBG)}, 0 offen {SC}", "N0")
a("v_lshlrev_b32 v120, 1, v29\ns_lshl_b32 s9, s66, 6\ns_lshl_b32 s10, s67, 6")
a(f"buffer_load_ushort v27, v120, {R(B1)}, s9 offen", "S")
a(f"buffer_load_ushort v28, v120, {R(B1)}, s10 offen", "S")
st(); st(grp="P")

def side_flags(tg, tmp):
    a(f"s_cmp_eq_u32 s3, 0\ns_cbranch_scc0 {L('nofl'+tg)}")
    with a.skippable():
        a("s_mov_b32 s71, 0")
        a.label(L('nspin'+tg))
        a(f"""
        v_readfirstlane_b32 s9, v31
        s_add_u32 s71, s71, 1
        s_cmp_gt_u32 s71, {SPIN}
        s_cbranch_scc1 {L('nok'+tg)}
        s_cmp_lg_u32 s9, 0
        s_cbranch_scc1 {L('nok'+tg)}
        buffer_load_dword v31, v19, {R(DBG)}, 0 offen {SC}
        s_waitcnt vmcnt(0)
        s_branch {L('nspin'+tg)}
        """)
        a.label(L('nok'+tg))
        a(f"""
        s_lshl_b32 s10, s4, 7
        s_lshl_b32 s11, s79, 2
        s_add_u32 s10, s10, s11
        s_lshl_b32 s11, s79, 7
        s_lshl_b32 s71, s4, 2
        s_add_u32 s11, s11, s71
        s_add_u32 s11, s11, {EFC-EFS}
        v_mov_b32 v{tmp}, s10
        v_writelane_b32 v{tmp}, s11, 1
        s_mov_b32 s10, {EFS}
        s_mov_b64 exec, 3
        buffer_store_dword v31, v{tmp}, {R(WS)}, s10 offen {SC}
        s_mov_b64 exec, -1
        """)
    a.label(L('nofl'+tg))
def side_wphi_dma(tg):
    a(f"s_cmp_lt_u32 s3, 2\ns_cbranch_scc0 {L('nowp'+tg)}")
    with a.skippable():
        a(f"s_add_u32 m0, s70, 14336\ns_lshl_b32 s9, s6, 11\ns_add_u32 s9, s9, s70\nbuffer_load_dwordx4 v26, {R(WPHI)}, s9 offen lds")
    a.label(L('nowp'+tg))
def side_poll_issue(tg):
    a(f"s_cmp_eq_u32 s3, 0\ns_cbranch_scc0 {L('npi'+tg)}")
    with a.skippable():
        a(f"buffer_load_dword v18, v25, {R(WS)}, 0 offen {SC}")
    a.label(L('npi'+tg))
def side_poll_wait(tg, restore_vcc):
    a(f"s_cmp_eq_u32 s3, 0\ns_cbranch_scc0 {L('fok2'+tg)}")
    with a.skippable():
        a("s_mov_b32 s71, 0")
        a.label(L('fspin'+tg))
        a(f"""
        v_cmp_ne_u32 vcc, v18, v31
        s_cmp_eq_u64 vcc, 0
        s_cbranch_scc1 {L('fok'+tg)}
        s_add_u32 s71, s71, 1
        s_cmp_gt_u32 s71, {SPIN}
        s_cbranch_scc1 {L('fok'+tg)}
        s_sleep {SLP}
        buffer_load_dword v18, v25, {R(WS)}, 0 offen {SC}
        s_waitcnt vmcnt(0)
        s_branch {L('fspin'+tg)}
        """)
        a.label(L('fok'+tg))
        if restore_vcc: a("s_mov_b64 vcc, s[80:81]")
        a("ds_write_b32 v19, v31 offset:16380\ns_waitcnt lgkmcnt(0)")
    a.label(L('fok2'+tg))
def side_poll_check(tg, raw, tmp, ptag):
    a(f"ds_read_b32 v31, v19 offset:16380", ptag)
    a(f"""
    v_lshlrev_b32 v{tmp}, 4, v29
    s_lshl_b32 s9, s4, 11
    s_lshl_b32 s10, s62, 9
    s_add_u32 s9, s9, s10
    s_add_u32 s9, s9, {STAT}
    s_xor_b32 s10, s9, 512
    """)
    a(f"s_cmp_lt_u32 s3, 7\ns_cbranch_scc0 {L('nocsd'+tg)}")
    with a.skippable():
        a(f"s_mul_i32 s11, s79, 14336\ns_add_u32 s11, s11, s69\ns_add_u32 s11, s11, {CSP}\ns_mov_b32 m0, s69")
        a(f"buffer_load_dwordx4 v26, {R(WS)}, s11 offen {SC} lds")
        a(f"buffer_load_dwordx4 v26, {R(WS)}, s11 offen offset:1024 {SC} lds")
    a.label(L('nocsd'+tg))
    a(f"buffer_load_dwordx4 {V(raw)}, v{tmp}, {R(WS)}, s9 offen {SC}", "ST")
    a(f"buffer_load_dwordx4 {V(raw+4)}, v{tmp}, {R(WS)}, s10 offen {SC}", "ST")
def side_csred(tg, t16, tmp):
    a(f"s_cmp_lt_u32 s3, 4\ns_cbranch_scc0 {L('nored'+tg)}")
    with a.skippable():
        a(f"v_min_u32 v{tmp}, 223, v0\nv_lshlrev_b32 v{tmp}, 2, v{tmp}")
        for g in range(16): a(f"ds_read_b32 v{t16+g}, v{tmp} offset:{g*896}")
        a("s_waitcnt lgkmcnt(0)")
        for w in (8, 4, 2, 1):
            for g in range(w): a(f"v_add_f32 v{t16+g}, v{t16+g}, v{t16+g+w}")
        a(f"""
        v_cvt_pk_bf16_f32 v{t16+1}, v{t16}, v{t16}
        v_and_b32 v{t16+1}, 0xffff0000, v{t16+1}
        v_sub_f32 v{t16+2}, v{t16}, v{t16+1}
        v_cvt_pk_bf16_f32 v{t16}, v{t16+1}, v{t16+2}
        ds_write_b32 v{tmp}, v{t16}
        """)
    a.label(L('nored'+tg))
def side_bext(raw, BX, RR, tmp):
    for t in range(2):
        s0 = raw+4*t; B = BX+4*t; rr = RR+3*t
        a(f"""
        v_and_b32 v{tmp}, 0xffff, v{s0}
        v_lshl_or_b32 v{B}, v{tmp}, 16, v{tmp}
        v_lshrrev_b32 v{tmp}, 16, v{s0}
        v_lshl_or_b32 v{B+1}, v{tmp}, 16, v{tmp}
        v_mov_b32 v{B+2}, v{s0+1}
        v_mov_b32 v{B+3}, 0
        v_mov_b32 v{rr}, v{s0+2}
        v_mul_f32 v{rr+1}, {LOG2E}, v{s0+2}
        v_mul_f32 v{rr+2}, 0.5, v{s0+2}
        """)
MAP = env("MAP", 0)
if MAP == 0:
    P2MAP = f"""
    s_and_b32 s82, s2, 7
    s_lshl_b32 s82, s82, 2
    s_bfe_u32 s9, s2, 0x20003
    s_add_u32 s82, s82, s9
    s_lshr_b32 s62, s2, 5
    s_mul_i32 s76, s62, 7
    s_lshr_b32 s76, s76, 2
    s_mul_i32 s9, s9, 3
    """
elif MAP == 2:
    P2MAP = f"""
    s_and_b32 s82, s2, 7
    s_lshl_b32 s82, s82, 2
    s_lshr_b32 s9, s2, 6
    s_add_u32 s82, s82, s9
    s_bfe_u32 s62, s2, 0x30003
    s_mul_i32 s76, s62, 7
    s_lshr_b32 s76, s76, 2
    s_mul_i32 s9, s9, {env("RM", 3)}
    """ + ("s_cmp_ge_u32 s9, 14\n    s_cselect_b32 s10, 14, 0\n    s_sub_u32 s9, s9, s10\n" if env("RM", 3) > 4 else "")
else:
    P2MAP = f"""
    s_bfe_u32 s82, s2, 0x20001
    s_lshl_b32 s82, s82, 3
    s_lshr_b32 s76, s2, 5
    s_add_u32 s82, s82, s76
    s_and_b32 s62, s2, 1
    s_lshl_b32 s62, s62, 2
    s_bfe_u32 s9, s2, 0x20003
    s_add_u32 s62, s62, s9
    s_mul_i32 s76, s76, 7
    s_lshr_b32 s76, s76, 2
    s_mul_i32 s9, s9, 3
    """
P2MAP += f"""
    s_add_u32 s76, s76, s9
    s_lshl_b32 s62, s62, 7
    s_mul_i32 s60, s3, {14*16*1024}
    s_add_u32 s60, s60, s62
    s_add_u32 s83, s60, {14*16384}
    s_lshl_b32 s68, s3, 16
    s_add_u32 s68, s68, s62
"""
TP0 = env("TP0", -1); TPS = env("TPS", 2)
def side_touch(tg, p, r1, r2):
    if TP0 < 0 or p < TP0 or (p-TP0) % TPS or (p-TP0)//TPS >= 8: return
    w = (p-TP0)//TPS
    a(f"s_cmp_eq_u32 s3, {w}\ns_cbranch_scc0 {L(f'pf{tg}{w}')}")
    with a.skippable():
        a(f"""
        s_lshr_b32 s9, s2, 3
        s_lshl_b32 s9, s9, 3
        s_add_u32 s9, s9, s3
        s_and_b32 s71, s2, 1
        s_lshl_b32 s71, s71, 9
        s_mul_i32 s10, s9, {7*1024}
        s_add_u32 s10, s10, s71
        s_lshl_b32 s11, s9, 11
        s_add_u32 s11, s11, s71
        v_lshrrev_b32 v{r1}, 2, v1
        v_and_b32 v{r2}, 3, v1
        v_lshlrev_b32 v{r2}, 7, v{r2}
        v_lshl_add_u32 v{r1}, v{r1}, 10, v{r2}
        s_mov_b64 exec, 0xfffffff
        buffer_load_dword v{r2}, v{r1}, {R(W2)}, s10 offen
        s_mov_b64 exec, 0xff
        buffer_load_dword v{r1}, v{r1}, {R(WO)}, s11 offen
        s_mov_b64 exec, -1
        """)
    a.label(L(f'pf{tg}{w}'))
def side_slow(tg, p, r1):
    if p != env("TQ", 8): return
    a(f"s_cmp_lt_u32 s3, 6\ns_cbranch_scc1 {L('sl3'+tg)}")
    with a.skippable():
        a(f"""
        s_lshr_b32 s9, s2, 3
        v_lshlrev_b32 v{r1}, 10, v1
        s_cmp_eq_u32 s3, 6
        s_cbranch_scc1 {L('sl1'+tg)}
        s_lshr_b32 s10, s{W2}, 7
        s_sub_u32 s10, 3, s10
        s_and_b32 s10, s10, 7
        s_lshl_b32 s10, s10, 7
        s_mul_i32 s9, s9, {56*1024}
        s_add_u32 s9, s9, s10
        s_mov_b32 exec_hi, 0xffffff
        buffer_load_dword v{r1}, v{r1}, {R(W2)}, s9 offen
        s_branch {L('sl2'+tg)}
        """)
        a.label(L('sl1'+tg))
        a(f"""
        s_lshr_b32 s10, s{WO}, 7
        s_sub_u32 s10, 3, s10
        s_and_b32 s10, s10, 7
        s_lshl_b32 s10, s10, 7
        s_lshl_b32 s9, s9, 14
        s_add_u32 s9, s9, s10
        s_mov_b64 exec, 0xffff
        buffer_load_dword v{r1}, v{r1}, {R(WO)}, s9 offen
        """)
        a.label(L('sl2'+tg))
        a("s_mov_b64 exec, -1")
    a.label(L('sl3'+tg))
def side_slow2(p, r1):
    T0 = env("TS0", -1); TS = env("TSS", 4)
    if T0 < 0 or p < T0 or (p-T0) % TS or (p-T0)//TS > 4: return
    k = (p-T0)//TS
    a(f"s_cmp_eq_u32 s3, {4 + (k & 3)}\ns_cbranch_scc0 {L(f'sq{k}')}")
    with a.skippable():
        srd = W2 if k < 4 else WO
        a(f"""
        s_bfe_u32 s9, s2, 0x40003
        v_lshlrev_b32 v{r1}, 10, v1
        s_lshr_b32 s10, s{srd}, 7
        s_sub_u32 s10, 3, s10
        s_and_b32 s10, s10, 7
        s_lshl_b32 s10, s10, 7
        s_mul_i32 s9, s9, {112*1024 if k < 4 else 32*1024}
        s_add_u32 s9, s9, s10
        s_add_u32 s9, s9, {k*28*1024 if k < 4 else 0}
        s_mov_b64 exec, {hex((1<<28)-1) if k < 4 else hex((1<<32)-1)}
        buffer_load_dword v{r1}, v{r1}, {R(srd)}, s9 offen
        s_mov_b64 exec, -1
        """)
    a.label(L(f'sq{k}'))
def side_p2(t3):
    a(f"""
    v_readfirstlane_b32 s75, v31
    v_lshrrev_b32 v{t3}, 3, v1
    v_and_b32 v{t3+1}, 7, v1
    v_lshrrev_b32 v{t3+2}, 2, v1
    v_and_b32 v{t3+2}, 4, v{t3+2}
    v_xor_b32 v{t3+1}, v{t3+1}, v{t3+2}
    v_lshlrev_b32 v{t3}, 10, v{t3}
    v_lshl_add_u32 v18, v{t3+1}, 4, v{t3}
    s_lshl_b32 s74, s4, 2
    s_add_u32 s74, s74, s62
    s_xor_b32 s64, s74, 1
    s_mul_i32 s74, s74, {AF_TG}
    s_mul_i32 s64, s64, {AF_TG}
    {P2MAP}
    s_cmp_ge_u32 s76, 14
    s_cselect_b32 s9, 14, 0
    s_sub_u32 s76, s76, s9
    s_lshl_b32 s61, s76, 14
    s_add_u32 s61, s61, s60
    """)
def p2_adv(x):
    x("s_add_u32 s61, s61, 16384\ns_cmp_eq_u32 s61, s83\ns_cselect_b32 s61, s60, s61")
W2PG = [7, 8, 9, 1, 2, 3, 4, 5, 6]
def p2_dma(x, u, tag, partner=False):
    pg = W2PG[u % 9]
    for half in range(2):
        x(f"s_add_u32 m0, s69, {pg*PG + half*1024}")
        if u < 14:
            if half == 0: x(f"s_add_u32 s71, s61, 8192\nbuffer_load_dwordx4 v18, {R(W2)}, s61 offen lds", tag)
            else: x(f"buffer_load_dwordx4 v18, {R(W2)}, s71 offen lds", tag)
        else:
            x(f"s_add_u32 s71, s68, {((u-14)*16+half*8)*1024}")
            x(f"buffer_load_dwordx4 v18, {R(WO)}, s71 offen lds", tag)
    if partner:
        for half in range(2):
            x(f"s_add_u32 m0, s69, {pg*PG + half*1024 + 8192}\ns_add_u32 s71, s61, {4*14*16384 + half*8192}")
            x(f"buffer_load_dwordx4 v18, {R(W2)}, s71 offen lds", tag)
    if u < 14: p2_adv(x)
def p2_dma_partner(x, u, tag):
    pg = W2PG[u % 9]
    for half in range(2):
        x(f"s_add_u32 m0, s69, {pg*PG + half*1024 + 8192}")
        if u < 14:
            x(f"s_add_u32 s71, s81, {4*14*16384 + half*8192}")
            x(f"buffer_load_dwordx4 v18, {R(W2)}, s71 offen lds", tag)
        else:
            x(f"s_add_u32 s71, s68, {4*65536 + ((u-14)*16+half*8)*1024}")
            x(f"buffer_load_dwordx4 v18, {R(WO)}, s71 offen lds", tag)
    if u < 14: x("s_add_u32 s81, s81, 16384\ns_cmp_eq_u32 s81, s83\ns_cselect_b32 s81, s60, s81")
def p2_dma2(x, u, tag):
    pg = W2PG[u % 9]
    for half in range(2):
        x(f"s_add_u32 m0, s69, {pg*PG + half*1024}")
        if u < 14:
            x(f"s_add_u32 s71, s81, {half*8192}")
            x(f"buffer_load_dwordx4 v18, {R(W2)}, s71 offen lds", tag)
        else:
            x(f"s_add_u32 s71, s68, {((u-14)*16+half*8)*1024}")
            x(f"buffer_load_dwordx4 v18, {R(WO)}, s71 offen lds", tag)
    if u < 14: x("s_add_u32 s81, s81, 16384\ns_cmp_eq_u32 s81, s83\ns_cselect_b32 s81, s60, s81")
def lds_wait(lab, off):
    a("s_mov_b32 s71, 0")
    a.label(L(lab))
    a(f"""
    ds_read_b32 v10, v11 offset:{off}
    s_waitcnt lgkmcnt(0)
    v_readfirstlane_b32 s9, v10
    s_add_u32 s71, s71, 1
    s_cmp_gt_u32 s71, {SPIN*8}
    s_cbranch_scc1 {L(lab+'x')}
    s_cmp_eq_u32 s9, s75
    s_cbranch_scc1 {L(lab+'x')}
    s_sleep 1
    s_branch {L(lab)}
    """)
    a.label(L(lab+'x'))
def poison(r):
    a(f"s_add_u32 s9, s65, 112\ns_lshl_b32 s9, s9, 10\ns_add_u32 s10, s9, s64\ns_add_u32 s9, s9, s74")
    a(f"v_mov_b32 v{r}, -1\nv_mov_b32 v{r+1}, -1\nv_mov_b32 v{r+2}, -1\nv_mov_b32 v{r+3}, -1")
    for f in range(2):
        for h in range(2): a(f"buffer_store_dwordx4 {V(r)}, v26, {R(WS)}, {('s9','s10')[f]} offen offset:{h*1024} {SC}")
def softmax(x, P, Pp, Pm, c):
    E = 112
    x(f"""
    v_max3_f32 v2, v{P}, v{P+1}, v{P+2}
    v_max3_f32 v3, -v{P}, -v{P+1}, -v{P+2}
    v_max3_f32 v2, v2, v{P+3}, v{P+4}
    v_max3_f32 v3, v3, -v{P+3}, -v{P+4}
    v_max3_f32 v2, v2, v{P+5}, v{P+6}
    v_max3_f32 v3, v3, -v{P+5}, -v{P+6}
    v_max_f32 v2, v2, v{P+7}
    v_max_f32_e64 v3, v3, -v{P+7}
    v_permlane32_swap_b32 v2, v3
    v_max_f32 v2, v2, v3
    v_mul_f32_e64 v2, -v2, v{c}
    v_mov_b32 v3, v2
    v_permlane32_swap_b32 v2, v3
    """)
    for r in range(8): x(f"v_fma_f32 v{E+r}, -v{P+r}, v{c}, v3\nv_fma_f32 v{P+r}, v{P+r}, v{c}, v2")
    for r in range(8): x(f"v_exp_f32 v{E+r}, v{E+r}\nv_exp_f32 v{P+r}, v{P+r}")
    x(f"v_add_f32 v2, v{P}, v{P+1}\nv_add_f32 v3, v{E}, v{E+1}")
    for r in range(2, 8): x(f"v_add_f32 v2, v2, v{P+r}\nv_add_f32 v3, v3, v{E+r}")
    x("v_permlane32_swap_b32 v2, v3\nv_add_f32 v2, v2, v3\nv_rcp_f32 v2, v2\nv_mov_b32 v3, v2\nv_permlane32_swap_b32 v2, v3")
    for r in range(8): x(f"v_mul_f32 v{P+r}, v{P+r}, v2\nv_mul_f32 v{E+r}, v{E+r}, v3")
    for q in range(4): x(f"v_cvt_pk_bf16_f32 v{Pp+q}, v{P+2*q}, v{P+2*q+1}\nv_cvt_pk_bf16_f32 v{Pm+q}, v{E+2*q}, v{E+2*q+1}")
def ffn_epi(x, acc, s_tile, f, rh, so=9):
    a(f"s_lshl_b32 s{so}, s{s_tile}, 11\ns_add_u32 s{so}, s{so}, s{(74,64)[f]}")
    for r in range(16): x(f"v_add_f32_e64 v{acc+r}, v{acc+r}, |v{acc+r}|")
    for r in range(16): x(f"v_mul_f32 v{acc+r}, v{acc+r}, v{rh}")
    for r in range(16): x(f"v_mul_f32 v{acc+r}, v{acc+r}, v{acc+r}")
    for q in range(8): x(f"v_cvt_pk_bf16_f32 v{acc+q}, v{acc+2*q}, v{acc+2*q+1}")
    x(f"buffer_store_dwordx4 {V(acc)}, v26, {R(WS)}, s{so} offen {SC}", "H")
    x(f"buffer_store_dwordx4 {V(acc+4)}, v26, {R(WS)}, s{so} offen offset:1024 {SC}", "H")
def flag_store(soff):
    a(f"""
    v_mov_b32 v31, s75
    s_mov_b64 exec, 1
    buffer_store_dword v31, v19, {R(WS)}, {soff} offen {SC}
    s_mov_b64 exec, -1
    """)
WREG = 128; P2ACC = 64; WTMP = 48; TRA = 2
def p2_traddr(t=2, q=8):
    a(f"""
    v_lshrrev_b32 v{q}, 5, v1
    v_bfe_u32 v{q+1}, v1, 2, 2
    v_lshl_add_u32 v{q}, v{q}, 2, v{q+1}
    v_lshlrev_b32 v{q}, 7, v{q}
    v_and_b32 v{q+2}, 3, v1
    v_lshl_add_u32 v{q}, v{q+2}, 3, v{q}
    v_bfe_u32 v{q+2}, v1, 4, 1
    v_and_b32 v{q+1}, 2, v{q+1}
    v_or_b32 v{q+2}, v{q+2}, v{q+1}
    v_lshl_add_u32 v{t}, v{q+2}, 5, v{q}
    v_add_u32 v{t}, s69, v{t}
    v_xor_b32 v{t+1}, 64, v{t}
    v_add_u32 v{t+2}, 0x10000, v{t}
    v_add_u32 v{t+3}, 0x10000, v{t+1}
    v_add_u32 v{t+4}, 0x20000, v{t}
    v_add_u32 v{t+5}, 0x20000, v{t+1}
    """)
def p2_tr(x, dst, u, tag):
    pg = W2PG[u % 9]
    for b in range(2):
        for e in range(2):
            x(f"ds_read_b64_tr_b16 {V(dst+4*b+2*e,2)}, v{TRA+2*(pg>>2)+b} offset:{(pg&3)*PG+e*1024}", tag)
def hflag():
    a(f"""
    s_lshl_b32 s9, s4, 1
    s_add_u32 s9, s9, s7
    s_lshl_b32 s77, s9, 8
    s_lshl_b32 s10, s79, 2
    s_add_u32 s10, s10, s63
    s_lshl_b32 s10, s10, 2
    s_add_u32 s9, s77, s10
    s_add_u32 s9, s9, {HF}
    """)
    flag_store("s9")
def kvpoll(w, lab):
    a(f"s_cmp_eq_u32 s3, {w}\ns_cbranch_scc0 {L(lab)}")
    with a.skippable():
        a("s_mov_b32 s71, 0")
        a.label(L('pk'))
        a(f"""
        buffer_load_dwordx2 v[10:11], v8, {R(WS)}, s66 offen {SC}
        s_waitcnt vmcnt(0)
        v_cmp_ne_u32 vcc, s75, v10
        v_cmp_ne_u32 s[80:81], s75, v11
        s_or_b64 vcc, vcc, s[80:81]
        s_cmp_eq_u64 vcc, 0
        s_cbranch_scc1 {L('pk2')}
        s_add_u32 s71, s71, 1
        s_cmp_gt_u32 s71, {SPIN}
        s_cbranch_scc1 {L('pk2')}
        s_sleep {SLP}
        s_branch {L('pk')}
        """)
        a.label(L('pk2'))
        for q in range(9):
            a(f"s_mov_b32 m0, {q*1024}\ns_add_u32 s10, s72, {q*1024}\nbuffer_load_dwordx4 v26, {R(WS)}, s10 offen {SC} lds")
        a("s_waitcnt vmcnt(0)\nv_mov_b32 v10, s75\nds_write_b32 v19, v10 offset:12288")
    a.label(L(lab))
ACC = [32, 48, 64, 80]
T = 96; KP = 2*PG; XF = 128
a(f"s_cmp_eq_u32 s5, 0\ns_cbranch_scc0 {L('typeB')}")
a.qsave("br")
for p in range(4): dma(1, p)
for i in range(8): a(f"v_add_u32 v{112+i}, {2*SLOT}, v{8+i}")
a(f"v_add_u32 v17, {2*SLOT}, v16")
a("v_lshlrev_b32 v121, 2, v30\nv_sub_u32 v121, v29, v121\nv_mov_b32 v122, 0x3f80\nv_mov_b32 v123, 0x3f800000")
SEL, WPH, BX, RRA, RAW = 64, 72, 76, 84, 120
for k in range(8):
    sg = k >> 2; q = k & 3
    f0 = (2*q & 3) + 8*((2*q) >> 2) + 16*sg
    a(f"v_cmp_eq_u32 vcc, {f0}, v121\nv_cndmask_b32 v{SEL+k}, 0, v122, vcc\nv_cmp_eq_u32 vcc, {f0+1}, v121\nv_cndmask_b32 v{SEL+k}, v{SEL+k}, v123, vcc")
st(grp="P"); a.wv("C0"); st(grp="P"); a("s_barrier"); st(grp="P")
st(grp="A")
def rdA(p):
    i = p & 3; b = 96 + 8*(p & 1); c = p >> 2; sl = c % 3
    ab = 8 if sl < 2 else 112; so = SLOT if sl == 1 else 0
    a(f"ds_read_b128 {V(XF+4*p)}, v{ab+i} offset:{so}", f"P{p}")
    for e in range(2): a(f"ds_read_b64_tr_b16 {V(b+4+2*e,2)}, v{16 if sl < 2 else 17} offset:{so+i*2048+e*512}", f"P{p}")
    a(f"ds_read_b128 {V(b)}, v{ab+4+i} offset:{so}", f"P{p}")
rdA(0)
for p in range(32):
    c = p >> 2; i = p & 3
    a.wl(f"P{p}")
    if i == 3 and c < 7:
        if c in (2,3): st(grp="W")
        a.wv(f"C{c+1}")
        if c in (2,3): st(grp="W")
        if p == 23: st(grp="W"); side_poll_wait("A", False)
        a("s_barrier"); st(grp="A")
        if c in (2,3,5): st(grp="W")
    if p+1 < 32: rdA(p+1)
    b = 96 + 8*(p & 1)
    a(f"{MF} {V(ACC[0],16)}, {V(b+4)}, {V(XF+4*p)}, {V(ACC[0],16) if p else 0}")
    if p < 2: dma(2, 2*p); dma(2, 2*p+1)
    elif p >= 3:
        cc = ((p-3) >> 2) + 3
        if cc <= 7: dma(cc, (p-3) & 3)
    a(f"{MF} {V(ACC[1],16)}, {V(b+4)}, {V(b)}, {V(ACC[1],16) if p else 0}")
    side_slow("A", p, 94)
    if p == 0: side_wphi_dma("A")
    if p == 3: side_flags("A", 90)
    if p == 8:
        for e in range(2): a(f"ds_read_b64_tr_b16 {V(WPH+2*e,2)}, v21 offset:{e*256}", f"P{p+1}")
    if p == 17: side_poll_issue("A")
    if p == 23: side_poll_check("A", RAW, 92, "P24")
    if p == 24: side_p2(90)
    if AW == 0:
        if p in (24, 25, 26): p2_dma(a, p-24, "D1")
        if p == 28: p2_dma(a, 3, "D1")
    if AW == 2 and p in (27, 28):
        a(f"s_add_u32 m0, s70, {3*PG + (p-27)*8192}")
        a(f"buffer_load_dwordx4 v6, {R(W1)}, s73 offen lds", "I2")
        a(f"s_add_u32 s73, s73, {64*3584}")
st(); st(grp="B")
a.wv("ST"); a("s_barrier")
side_csred("A", 96, 92)
side_bext(RAW, BX, RRA, 92)
a("v_mov_b32 v95, v6")
a("s_waitcnt lgkmcnt(0)\ns_barrier")
st(grp="B")
a(f"""
ds_read_b32 v120, v23
ds_read_b32 v4, v24
v_cmp_gt_u32 vcc, 32, v1
v_lshl_or_b32 v28, v28, 16, v28
v_cndmask_b32 v6, 0, v28, vcc
v_cmp_eq_u32 s[80:81], 16, v29
v_cndmask_b32 v27, 0, v22, s[80:81]
v_mov_b32 v122, 0
v_mov_b32 v123, 0
v_mov_b32 v7, 0
s_waitcnt lgkmcnt(0)
v_cndmask_b32 v120, 0, v120, vcc
v_cndmask_b32 v4, 0, v4, vcc
v_mov_b32 v121, v120
v_mov_b32 v5, v4
{MF} {V(ACC[0],16)}, v[120:123], {V(BX)}, {V(ACC[0],16)}
{MF} {V(ACC[1],16)}, v[120:123], {V(BX+4)}, {V(ACC[1],16)}
""")
KVA = 8
a("v_mov_b32 v90, v18\nv_mov_b32 v91, v20")
E = a.sub(); D = a.sub()
for f in range(2):
    acc = ACC[f]; rr = RRA+3*f
    for q in range(4): E(f"v_cvt_pk_bf16_f32 v{120+q}, v{acc+2*q}, v{acc+2*q+1}")
    E(f"{MF} {V(T,16)}, {V(WPH)}, v[120:123], 0")
    for r in range(8, 16): E(f"v_mul_f32 v{acc+r}, v{acc+r}, v{rr}")
    for q in range(4): E(f"v_cvt_pk_bf16_f32 v{120+q}, v{acc+8+2*q}, v{acc+9+2*q}")
    E(f"{MF} {V(acc,16)}, v[120:123], {V(SEL)}, 0")
    softmax(E, T, 120, 124, rr+1)
    E(f"{MF} {V(T,16)}, v[120:123], {V(SEL)}, 0")
    E(f"{MF} {V(T,16)}, v[124:127], {V(SEL+4)}, {V(T,16)}")
    for q in range(8): E(f"v_cvt_pk_bf16_f32 v{112+q}, v{acc+2*q}, v{acc+2*q+1}\nv_or_b32 v{112+q}, v{112+q}, v27")
    for q in range(8): E(f"v_cvt_pk_bf16_f32 v{T+q}, v{T+2*q}, v{T+2*q+1}")
    E(f"{MF} {V(KVA,16)}, {V(T)}, v[112:115], {V(KVA,16) if f else 0}")
    E(f"{MF} {V(KVA,16)}, {V(T+4)}, v[116:119], {V(KVA,16)}")
for c in range(2 if AW == 2 else 0, 8):
    D(f"s_add_u32 s77, s101, {c}\ns_and_b32 s77, s77, 7\ns_mul_i32 s73, s77, {64*3584}\ns_add_u32 m0, s70, {3*PG + c*8192}")
    D(f"buffer_load_dwordx4 v95, {R(W1)}, s73 offen lds", "I2")
if AW:
    D2s = a.sub()
    for u in range(4): p2_dma(D2s, u, "D1")
    for it in D2s.items:
        if hasattr(it, "text"):
            D(it.text.replace("v18", "v90"), it.tag)
nE = len(E.items)*env("EFR", 6)//10
E1 = a.sub(); E1.items = E.items[:nE]; E2 = a.sub(); E2.items = E.items[nE:]
a.merge(E1, D); a.extend(E2)
st(grp="B")
a(f"""
s_lshl_b32 s9, s63, 12
s_lshl_b32 s10, s7, 11
s_add_u32 s9, s9, s10
s_add_u32 s9, s9, {KP}
v_add_u32 v92, s9, v26
v_xor_b32 v93, 0x800, v92
v_mul_u32_u24 v94, 17, v30
v_add_u32 v94, v94, v29
v_lshlrev_b32 v94, 2, v94
s_mul_i32 s10, s63, 2176
s_mul_i32 s11, s7, {8*136}
s_add_u32 s10, s10, s11
s_add_u32 s10, s10, s72
v_cmp_gt_u32 s[80:81], 17, v29
s_cmp_eq_u32 s7, 0
s_cbranch_scc1 {L('kv0')}
""")
with a.skippable():
    for q in range(2): a(f"ds_write_b128 v92, {V(KVA+4*q)} offset:{q*1024}")
    for r in range(8): a(f"v_mov_b32 v{KVA+r}, v{KVA+8+r}")
    a(f"s_branch {L('kv1')}")
a.label(L('kv0'))
with a.skippable():
    for q in range(2): a(f"ds_write_b128 v92, {V(KVA+8+4*q)} offset:{q*1024}")
a.label(L('kv1'))
if not env("SEP", 0): a.wv("I2")
a("s_waitcnt lgkmcnt(0)\ns_barrier")
for q in range(2): a(f"ds_read_b128 {V(T+4*q)}, v93 offset:{q*1024}")
a(f"v_mov_b32 v18, v90\nv_mov_b32 v19, 0\nv_add_u32 v20, {3*PG}, v91")
a("s_waitcnt lgkmcnt(0)")
for r in range(8): a(f"v_add_f32 v{KVA+r}, v{KVA+r}, v{T+r}")
a("s_mov_b64 exec, s[80:81]")
for r in range(8): a(f"buffer_atomic_add_f32 v{KVA+r}, v94, {R(WS)}, s10 offen offset:{r*136}", "AT")
a("s_mov_b64 exec, -1")
st(grp="B")
if env("SEP", 0): a.wv("I2"); a("s_barrier")
A2 = 32
def rd2(k):
    b = 48 + 4*(k % 4)
    for e in range(2): a(f"ds_read_b64_tr_b16 {V(b+2*e,2)}, v20 offset:{k*2048+e*512}", f"B{k}")
a(f"{MF} {V(A2,16)}, v[4:7], {V(BX)}, 0")
rd2(0); rd2(1); rd2(2)
K1 = env("K1", 0); K2 = env("K2", 17)
TRA = 96
if K1: p2_traddr(96, 104)
a(f"s_add_u32 s81, s61, {5*16384}\ns_sub_u32 s9, s81, {14*16384}\ns_cmp_ge_u32 s81, s83\ns_cselect_b32 s81, s9, s81")
for k in range(32):
    if k+3 < 32: rd2(k+3)
    a.wl(f"B{k}")
    a(f"{MF} {V(A2,16)}, {V(48+4*(k%4))}, {V(XF+4*k)}, {V(A2,16)}")
    if K1 and k == K1:
        for u in range(4): p2_tr(a, WREG+8*u, u, f"B{k+4}")
    if K1 and K1+4 <= k < K1+8: p2_dma2(a, 9+k-K1-4, "D2")
    if K1 and k == K2: a("s_barrier")
    if K1 and k in (K2+5, K2+7, K2+9): p2_dma(a, 4+(k-K2-5)//2, "D1")
    if k == env("KVK", 20):
        a.wv("AT")
        a(f"""
        s_lshl_b32 s9, s6, 9
        s_lshl_b32 s10, s4, 5
        s_add_u32 s9, s9, s10
        s_lshl_b32 s10, s3, 2
        s_add_u32 s9, s9, s10
        s_add_u32 s9, s9, {KVF}
        """)
        flag_store("s9")
        st(grp="B")
ffn_epi(a, A2, 67, 0, RRA+2)
st()
TRA = 2
p2_traddr()
if K1:
    a("s_barrier")
    for u in range(7, 9): p2_dma(a, u, "D1x")
    a.wv("H")
    hflag()
    st()
    for u in range(4, 7): p2_tr(a, WREG+8*u, u, "W1")
    a("s_barrier")
    a.wl("W1")
    for u in range(13, 16): p2_dma2(a, u, "D2")
    a.wv("D1x")
    for u in range(7, 9): p2_tr(a, WREG+8*u, u, "W1")
    a.wl("W1")
    for u in range(16, 18): p2_dma2(a, u, "D2")
else:
    AT2 = env("AT2", 0)
    for u in range(4): p2_tr(a, WREG+8*u, u, "W1")
    if AT2 == 2:
        a.wl("W1")
        for u in range(9, 13): p2_dma2(a, u, "D2")
    a("s_barrier")
    for u in range(4, 6): p2_dma(a, u, "D1")
    a.wv("H")
    hflag()
    st()
    if AT2 == 0: a("s_barrier")
    for u in range(6, 9): p2_dma(a, u, "D1")
    a.wl("W1")
    if AT2 != 2:
        for u in range(9, 13): p2_dma2(a, u, "D2")
    a.wv("D1")
    for u in range(4, 9): p2_tr(a, WREG+8*u, u, "W1")
    a.wl("W1")
    for u in range(13, 18): p2_dma2(a, u, "D2")
a(f"s_branch {L('tail')}")
a.label(L('typeB'))
a.qload("br")
for p in range(6): dma(1, p)
for i in range(10): a(f"v_add_u32 v{160+i}, {2*SLOT}, v{8+i}")
a("s_cmp_eq_u32 s8, 0\ns_cselect_b64 s[80:81], -1, 0\ns_mov_b64 vcc, s[80:81]")
st(5, grp="P"); a.wv("C0"); st(grp="P"); a("s_barrier"); st(grp="P")
st(1, grp="A")
def rdB(p):
    i = p & 3; b = 96 + 16*(p & 1); c = p >> 2; sl = c % 3
    ab = 8 if sl < 2 else 160; so = SLOT if sl == 1 else 0
    a(f"ds_read_b128 {V(b)}, v{ab+i} offset:{so}", f"P{p}")
    for e in range(2): a(f"ds_read_b64_tr_b16 {V(b+8+2*e,2)}, v{ab+8} offset:{so+i*2048+e*512}", f"P{p}")
    a(f"ds_read_b128 {V(b+4)}, v{ab+4+i} offset:{so}", f"P{p}")
    for e in range(2): a(f"ds_read_b64_tr_b16 {V(b+12+2*e,2)}, v{ab+9} offset:{so+i*2048+e*512}", f"P{p}")
rdB(0)
WPB, BXB, RRB, RAWB = 200, 208, 220, 232
for p in range(32):
    c = p >> 2; i = p & 3
    a.wl(f"P{p}")
    b = 96 + 16*(p & 1)
    BO = env("BO", 0) if (i == 3 and c < 7) else 0
    M01 = [f"{MF} {V(ACC[0],16)}, {V(b+8)}, {V(b)}, {V(ACC[0],16) if p else 0}", f"{MF} {V(ACC[1],16)}, {V(b+8)}, {V(b+4)}, {V(ACC[1],16) if p else 0}"]
    for m in M01[:BO]: a(m)
    if i == 3 and c < 7:
        a.wv(f"C{c+1}")
        if p == 19: side_poll_wait("B", True)
        a("s_barrier"); st(grp="A")
    if p+1 < 32: rdB(p+1)
    for m in M01[BO:]: a(m)
    if p < 3: dma(2, 2*p); dma(2, 2*p+1)
    else:
        cc = ((p-3) >> 2) + 3; q = (p-3) & 3
        if cc <= 7:
            for piece in ((0,1),(2,3),(4,),(5,))[q]: dma(cc, piece)
    a(f"{MF} {V(ACC[2],16)}, {V(b+12)}, {V(b)}, {V(ACC[2],16) if p else 0}")
    a(f"s_cbranch_vccz {L(f'm4_{p}')}")
    with a.skippable():
        a(f"{MF} {V(ACC[3],16)}, {V(b+12)}, {V(b+4)}, {V(ACC[3],16) if p else 0}")
    a.label(L(f"m4_{p}"))
    side_slow("B", p, 250); side_slow2(p, 250 + ((p//4) & 1))
    if p == 0: side_wphi_dma("B")
    if p == 3: side_flags("B", 240)
    if p == 8:
        for h in range(2):
            for e in range(2): a(f"ds_read_b64_tr_b16 {V(WPB+4*h+2*e,2)}, v21 offset:{h*512+e*256}", f"P{p+1}")
    if p == 13: side_poll_issue("B")
    if p == 19: side_poll_check("B", RAWB, 240, "P20")
    if p == 26: a.wv("ST")
    if p == 28: side_csred("B", 144, 240)
    if p == 29: side_bext(RAWB, BXB, RRB, 240)
    if p == 22:
        side_p2(240)
        if env("PZ", 0):
            a(f"s_cbranch_vccnz {L('nopz')}")
            with a.skippable(): poison(244)
            a.label(L('nopz'))
    if p in (23, 24, 25): p2_dma(a, p-23, "D1a")
    if p in (27, 29, 30): p2_dma(a, {27:3, 29:4, 30:5}[p], "D1b")
st(2)
a("s_waitcnt lgkmcnt(0)\ns_barrier")
a(f"""
ds_read_b32 v216, v23
ds_read_b32 v240, v24
v_cmp_gt_u32 vcc, 32, v1
v_lshl_or_b32 v27, v27, 16, v27
v_lshl_or_b32 v28, v28, 16, v28
s_and_b64 s[80:81], s[80:81], vcc
v_cndmask_b32 v218, 0, v27, s[80:81]
v_cndmask_b32 v242, 0, v28, vcc
v_mov_b32 v219, 0
v_mov_b32 v243, 0
s_waitcnt lgkmcnt(0)
v_cndmask_b32 v216, 0, v216, vcc
v_cndmask_b32 v240, 0, v240, vcc
v_mov_b32 v217, v216
v_mov_b32 v241, v240
{MF} {V(ACC[0],16)}, v[216:219], {V(BXB)}, {V(ACC[0],16)}
{MF} {V(ACC[1],16)}, v[216:219], {V(BXB+4)}, {V(ACC[1],16)}
{MF} {V(ACC[2],16)}, v[240:243], {V(BXB)}, {V(ACC[2],16)}
{MF} {V(ACC[3],16)}, v[240:243], {V(BXB+4)}, {V(ACC[3],16)}
""")
for u in range(6, 9): p2_dma(a, u, "D1c")
TRA = 12
p2_traddr(12)
def w2step(k):
    if k == 0:
        a.wv("D1a")
        for u in range(0, 3): p2_tr(a, WREG+8*u, u, "W1")
    elif k == 1:
        a.wl("W1")
        for u in range(9, 12): p2_dma(a, u, "D2")
        a.wv("D1b")
        for u in range(3, 6): p2_tr(a, WREG+8*u, u, "W1")
    elif k == 2:
        a.wl("W1")
        for u in range(12, 15): p2_dma(a, u, "D2")
        a.wv("D1c")
        for u in range(6, 9): p2_tr(a, WREG+8*u, u, "W1")
    elif k == 3:
        a.wl("W1")
        for u in range(15, 18): p2_dma(a, u, "D2")
a(f"s_cmp_eq_u32 s8, 0\ns_cbranch_scc0 {L('Bq')}")
a.qsave("bq")
ffn_epi(a, ACC[0], 66, 0, RRB+2)
ffn_epi(a, ACC[1], 66, 1, RRB+5)
ffn_epi(a, ACC[2], 67, 0, RRB+2)
ffn_epi(a, ACC[3], 67, 1, RRB+5)
st(3)
a.wv("D1c")
for u in range(9): p2_tr(a, WREG+8*u, u, "W1")
a.wv("H")
hflag()
a("s_mov_b32 s81, s61\ns_lshl_b32 s9, s3, 2\nv_mov_b32 v11, s9")
a.wl("W1")
for u in range(9, 18): p2_dma(a, u, "D2")
lds_wait("pw", 12304)
for u in range(9, 18): p2_dma_partner(a, u, "D2")
a("s_waitcnt vmcnt(0)\nv_mov_b32 v10, s75\nds_write_b32 v11, v10 offset:12320")
st(4)
a(f"s_branch {L('tailB')}")
a.label(L('Bq'))
a.qload("bq")
stor = {(0,0): (80, 84), (0,1): (88, 92), (1,0): (232, 236), (1,1): (240, 244)}
if not env("PZ", 0): poison(4)
ffn_epi(a, ACC[2], 67, 0, RRB+2)
a(f"v_lshlrev_b32 v8, 3, v1\ns_lshl_b32 s66, s6, 9\ns_add_u32 s66, s66, {KVF}\ns_mul_i32 s11, s78, 4352")
for f in range(2):
    acc = ACC[f]
    for q in range(8): a(f"v_cvt_pk_bf16_f32 v{acc+q}, v{acc+2*q}, v{acc+2*q+1}")
    for h in range(2):
        a(f"{MF} {V(T,16)}, {V(WPB+4*h)}, {V(acc+4*h)}, 0")
        if 2*f+h == TRP:
            a.wv("H"); hflag()
            for u in range(9): p2_tr(a, WREG+8*u, u, "W1")
        if 2*f+h == TRP+1:
            a.wl("W1")
            a("s_lshl_b32 s9, s3, 2\nv_mov_b32 v9, s9\nv_mov_b32 v10, s75\nds_write_b32 v9, v10 offset:12288")
        softmax(a, T, stor[(f,h)][0], stor[(f,h)][1], RRB+1+3*f)
st(3)
a(f"""
v_min_u32 v9, 16, v29
v_mul_u32_u24 v10, 17, v30
v_add_u32 v9, v9, v10
v_lshlrev_b32 v9, 2, v9
v_add_u32 v9, s11, v9
""")
kvpoll(4, 'nopk')
a("s_mov_b32 s71, 0")
a.label(L('lf1'))
a(f"""
ds_read_b32 v10, v19 offset:12288
s_waitcnt lgkmcnt(0)
v_readfirstlane_b32 s9, v10
s_add_u32 s71, s71, 1
s_cmp_gt_u32 s71, {SPIN*8}
s_cbranch_scc1 {L('lf2')}
s_cmp_eq_u32 s9, s75
s_cbranch_scc1 {L('lf2')}
s_sleep 1
s_branch {L('lf1')}
""")
a.label(L('lf2'))
for h in range(2):
    for r in range(16): a(f"ds_read_b32 v{32+16*h+r}, v9 offset:{h*2176+r*136}", f"K{h}")
a(f"s_add_u32 s9, s65, 112\ns_lshl_b32 s9, s9, 10\ns_add_u32 s10, s9, s64\ns_add_u32 s9, s9, s74")
for h in range(2):
    kb = 32+16*h
    a.wl(f"K{h}")
    for q in range(8): a(f"v_cvt_pk_bf16_f32 v{kb+q}, v{kb+2*q}, v{kb+2*q+1}")
    for f in range(2):
        Tt = 96+16*f
        a(f"{MF} {V(Tt,16)}, {V(kb)}, {V(stor[(f,h)][0])}, 0")
        a(f"{MF} {V(Tt,16)}, {V(kb+4)}, {V(stor[(f,h)][1])}, {V(Tt,16)}")
    for f in range(2):
        Tt = 96+16*f; o = kb+8+4*f
        a(f"v_add_f32 v8, 0x358637bd, v{Tt+8}\nv_rcp_f32 v8, v8")
        for r in range(8): a(f"v_mul_f32 v{Tt+r}, v{Tt+r}, v8")
        for q in range(4): a(f"v_cvt_pk_bf16_f32 v{o+q}, v{Tt+2*q}, v{Tt+2*q+1}")
        a(f"buffer_store_dwordx4 {V(o)}, v26, {R(WS)}, {('s9','s10')[f]} offen offset:{h*1024} {SC}", "O")
st()
a("s_lshl_b32 s9, s3, 2\nv_mov_b32 v11, s9")
lds_wait("r2w", 12320-16)
a.label(L('tailB'))
for i in range(6): a(f"v_mov_b32 v{2+i}, v{12+i}")
TRA = 2
a.label(L('tail'))
a(f"""
s_mul_i32 s64, s82, {2*AF_TG}
s_mul_i32 s65, s3, {14*1024}
s_add_u32 s65, s65, s64
s_lshl_b32 s66, s3, 12
s_add_u32 s66, s66, s64
s_add_u32 s66, s66, {112*1024}
s_add_u32 s67, s66, {AF_TG}
s_lshl_b32 s9, s82, 8
s_add_u32 s72, s9, {HF}
s_add_u32 s73, s9, {OF}
v_lshlrev_b32 v0, 4, v1
v_lshlrev_b32 v8, 2, v1
""")
st(5)
a(f"s_cmp_eq_u32 s3, 0\ns_cbranch_scc0 {L('phok')}")
with a.skippable():
    a("s_mov_b32 s79, 0")
    a.label(L('ph'))
    a(f"""
    buffer_load_dword v10, v8, {R(WS)}, s72 offen {SC}
    s_waitcnt vmcnt(0)
    v_cmp_ne_u32 vcc, s75, v10
    s_cmp_eq_u64 vcc, 0
    s_cbranch_scc1 {L('phok')}
    s_add_u32 s79, s79, 1
    s_cmp_gt_u32 s79, {SPIN}
    s_cbranch_scc1 {L('phok')}
    s_sleep {SLP}
    s_branch {L('ph')}
    """)
if env("DEC", 0):
    a.label(L('phok2')) if False else None
a.label(L('phok'))
if env("DEC", 0):
    a(f"s_cmp_eq_u32 s3, 0\ns_cbranch_scc0 {L('hw0')}")
    with a.skippable():
        a("v_mov_b32 v10, s75\nds_write_b32 v19, v10 offset:12352")
    a.label(L('hw0'))
    a("v_mov_b32 v11, 0")
    lds_wait("hw", 12352)
else:
    a("s_barrier")
st(); st(1, grp="T")
abuf = [200+8*i for i in range(7)] + [16+8*i for i in range(4)]
NA = 11
a(f"""
s_mov_b32 s60, s65
s_add_u32 s83, s65, {14*1024}
s_lshl_b32 s9, s76, 10
s_add_u32 s65, s65, s9
""")
def aload(u):
    r = abuf[u % NA]
    if u < 14:
        a(f"s_add_u32 s71, s65, {AF_TG}")
        a(f"buffer_load_dwordx4 {V(r)}, v0, {R(WS)}, s65 offen {ASC}", f"A{u}")
        a(f"buffer_load_dwordx4 {V(r+4)}, v0, {R(WS)}, s71 offen {ASC}", f"A{u}")
        a("s_add_u32 s65, s65, 1024\ns_cmp_eq_u32 s65, s83\ns_cselect_b32 s65, s60, s65")
    else:
        for tb in range(2):
            a(f"buffer_load_dwordx4 {V(r+4*tb)}, v0, {R(WS)}, s{(66,67)[tb]} offen offset:{(u-14)*1024} {SC}", f"A{u}")
NW = env("NW", 11)
OCK = min(OCK, 14-NW) if NW < 11 else OCK
FOP = max(0, OCK - 2)
for u in range(NW):
    aload(u)
def mfmas(u, w):
    r = abuf[u % NA]
    for tb in range(2):
        for nb in range(2):
            d = P2ACC + 16*(2*tb+nb)
            a(f"{MF} {V(d,16)}, {V(w+4*nb)}, {V(r+4*tb)}, {V(d,16) if u else 0}")
a(f"""
v_lshrrev_b32 v12, 3, v1
v_lshlrev_b32 v12, 10, v12
v_and_b32 v13, 7, v1
v_lshlrev_b32 v13, 4, v13
v_add_u32 v12, v12, v13
s_lshl_b32 s74, s82, 16
s_lshl_b32 s9, s3, 13
s_add_u32 s74, s74, s9
s_add_u32 s74, s74, s62
""")
for u in range(18):
    if u == 8: p2_tr(a, WTMP, 9, "T9")
    if 9 <= u < 17: p2_tr(a, WTMP + 8*((u-8)&1), u+1, f"T{u+1}")
    if u >= 9: a.wl(f"T{u}")
    a.wv(f"A{u}")
    if u in (0, 7, 14): st(grp="T")
    if u >= 14:
        r = abuf[u % NA]
        a("s_mov_b32 s79, 0")
        a.label(L(f'oc{u}'))
        a(f"""
        v_cmp_eq_u32 vcc, -1, v{r}
        v_cmp_eq_u32 s[80:81], -1, v{r+4}
        s_or_b64 vcc, vcc, s[80:81]
        s_cmp_eq_u64 vcc, 0
        s_cbranch_scc1 {L(f'ok{u}')}
        s_add_u32 s79, s79, 1
        s_cmp_gt_u32 s79, {SPIN}
        s_cbranch_scc1 {L(f'ok{u}')}
        """)
        with a.skippable():
            a("s_sleep 8")
            for tb in range(2):
                a(f"buffer_load_dwordx4 {V(r+4*tb)}, v0, {R(WS)}, s{(66,67)[tb]} offen offset:{(u-14)*1024} {SC}")
            a(f"s_waitcnt vmcnt(0)\ns_branch {L(f'oc{u}')}")
        a.label(L(f'ok{u}'))
    mfmas(u, WREG+8*u if u < 9 else WTMP+8*((u-9)&1))
    if NW == 11:
        if u < 3: aload(u+NA)
    else:
        if u+NW < 14: aload(u+NW)
        if u+NW == OCK+0: a(f"buffer_load_dword v10, v8, {R(WS)}, s73 offen {SC}", f"A{OCK}")
        if u > OCK and u+NW < 18: aload(u+NW)  if u+NW >= 14 else None
    if u == 3:
        a(f"buffer_load_dwordx4 v[128:131], v12, {R(X)}, s74 offen", "X")
        a(f"buffer_load_dwordx4 v[132:135], v13, {R(B2)}, s62 offen", "X")
    if u == OCK:
        for uu in range(14, 18): aload(uu)
    if u == 15 and env("CLR", 1) == 1:
        a(f"s_or_b32 s9, s2, s3\ns_cmp_eq_u32 s9, 0\ns_cbranch_scc0 {L('noclr1')}")
        with a.skippable():
            a(f"v_mov_b32 v8, 0\ns_mov_b64 exec, 1\nbuffer_store_dword v8, v8, {R(DBG)}, 0 offen {SC}\ns_mov_b64 exec, -1")
        a.label(L('noclr1'))
st(); st(grp="T")
a(f"""
v_bfe_u32 v8, v1, 3, 2
v_lshlrev_b32 v8, 14, v8
v_and_b32 v9, 7, v1
v_lshl_add_u32 v8, v9, 8, v8
v_lshrrev_b32 v10, 5, v1
v_xor_b32 v10, v10, v9
v_lshl_add_u32 v8, v10, 4, v8
s_add_u32 s9, s69, {PG}
v_add_u32 v8, s9, v8
v_xor_b32 v9, 32, v8
v_xor_b32 v10, 64, v8
v_xor_b32 v11, 96, v8
v_add_u32 v2, 0x10000, v8
v_add_u32 v3, 0x10000, v9
v_add_u32 v4, 0x10000, v10
v_add_u32 v5, 0x10000, v11
""")
for tb in range(2):
    for nb in range(2):
        for qq in range(4):
            d = P2ACC + 16*(2*tb+nb) + 4*qq
            a(f"ds_write_b128 v{(8,2)[tb]+qq}, {V(d)} offset:{nb*128}")
a("""
v_lshrrev_b32 v6, 3, v1
v_and_b32 v7, 7, v1
v_lshlrev_b32 v7, 1, v7
v_xor_b32 v7, v7, v6
v_lshlrev_b32 v6, 8, v6
v_lshl_add_u32 v6, v7, 4, v6
s_lshl_b32 s9, s3, 14
s_add_u32 s9, s9, 16384
v_add_u32 v6, s9, v6
v_xor_b32 v7, 16, v6
s_waitcnt lgkmcnt(0)
""")
st(grp="T"); a("s_barrier"); st(grp="T")
RR = 160
for w in range(8):
    for e in range(2):
        a(f"ds_read_b128 {V(RR+8*w+4*e)}, v{6+e} offset:{w*2048}", f"R{w}")
a.wv("X")
for i in range(4):
    a(f"v_lshlrev_b32 v{24+2*i}, 16, v{128+i}\nv_and_b32 v{25+2*i}, 0xffff0000, v{128+i}")
    a(f"v_lshlrev_b32 v{32+2*i}, 16, v{132+i}\nv_and_b32 v{33+2*i}, 0xffff0000, v{132+i}")
for i in range(8): a(f"v_add_f32 v{24+i}, v{24+i}, v{32+i}")
for w in range(8):
    a.wl(f"R{w}")
    for i in range(8): a(f"v_add_f32 v{24+i}, v{24+i}, v{RR+8*w+i}")
for i in range(4): a(f"v_cvt_pk_bf16_f32 v{32+i}, v{24+2*i}, v{25+2*i}")
a(f"buffer_store_dwordx4 v[32:35], v12, {R(OUT)}, s74 offen {os.environ.get('OSC','')}")
st(grp="T")
if INSTR:
    a("s_waitcnt vmcnt(0)"); st()
    nst[0] = 9
    a(f"s_waitcnt lgkmcnt(0)\ns_lshl_b32 s9, s2, 3\ns_add_u32 s9, s9, s3\ns_lshl_b32 s9, s9, 6\ns_add_u32 s9, s9, {STAMPS}")
    a("v_mov_b32 v0, 0\ns_mov_b64 exec, 1")
    for i in range(nst[0]):
        a(f"v_mov_b32 v1, s{84+2*i}\nbuffer_store_dword v1, v0, {R(WS)}, s9 offen offset:{4*i}\ns_nop 1")
a.label(L('end')); a("s_endpgm")
desc = f""".section .rodata,"a"
.p2align 6
.amdhsa_kernel {NAME}
  .amdhsa_next_free_vgpr 256
  .amdhsa_next_free_sgpr 102
  .amdhsa_accum_offset 256
  .amdhsa_group_segment_fixed_size 0
  .amdhsa_kernarg_size 96
  .amdhsa_user_sgpr_count 2
  .amdhsa_user_sgpr_kernarg_segment_ptr 1
  .amdhsa_system_sgpr_workgroup_id_x 1
  .amdhsa_float_denorm_mode_32 3
.end_amdhsa_kernel
"""
if __name__ == "__main__":
    open(sys.argv[1], "w").write("; @launch grid=(256,1,1) block=(512,1,1) lds=163840\n" + a.finish() + desc)
    print("stamps:", nst[0], "STAMPS", STAMPS)
```
